```python
import torch

def _softmax(x, axis=-1):
    return torch.softmax(x, dim=axis)

def _gelu(x):
    return torch.nn.functional.gelu(x, approximate='tanh')

def _silu(x):
    return torch.nn.functional.silu(x)

def _sigmoid(x):
    return torch.sigmoid(x)

def _layernorm(x, axis=-1, eps=1e-05):
    m = x.mean(dim=axis, keepdim=True)
    v = x.var(dim=axis, keepdim=True, unbiased=False)
    return (x - m) / torch.sqrt(v + eps)

def _scatter_add(tgt, idx, src, axis=0):
    return tgt.clone().index_add_(axis, idx, src)

def _segment_sum(src, seg, n):
    out = torch.zeros((n,) + src.shape[1:], dtype=src.dtype)
    return out.index_add_(0, seg, src)

def _pad(x, pw):
    flat = tuple((v for pair in reversed(pw) for v in pair))
    return torch.nn.functional.pad(x, flat)
kernel_name = 'sequential_preLN__mha_block__mixer_gmlp__prompt'

def setup_inputs():

    _w = lambda a: (lambda t: t.to(torch.bfloat16) if t.is_floating_point() else t)(torch.as_tensor(a))

    def _A_setup():
        B, S, D, H = (1, 2048, 448, 16)
        return {'x': _w((lambda *s: torch.randn(*s, dtype=torch.bfloat16) * 0.05)(B, S, D)), 'wqkv': _w((lambda *s: torch.randn(*s, dtype=torch.bfloat16) * 0.05)(D, 3 * D)), 'wo': _w((lambda *s: torch.randn(*s, dtype=torch.bfloat16) * 0.05)(D, D))}
    _A_in = _A_setup()

    def _B_setup():
        B, S, D, F = (1, 2048, 448, 1792)
        Fh = F // 2
        return {'x': _w((lambda *s: torch.randn(*s, dtype=torch.bfloat16) * 0.05)(B, S, D)), 'w_in': _w((lambda *s: torch.randn(*s, dtype=torch.bfloat16) * 0.4)(D, 2 * Fh)), 'w_sp': _w(0.01 * (lambda *s: torch.randn(*s, dtype=torch.bfloat16) * 0.4)(S, S)), 'b_sp': _w(1.0 + 0.01 * (lambda *s: torch.randn(*s, dtype=torch.bfloat16) * 0.05)(S)), 'w_out': _w((lambda *s: torch.randn(*s, dtype=torch.bfloat16) * 0.05)(Fh, D))}
    _B_in = _B_setup()
    return {'A_x': _A_in['x'], 'A_wqkv': _A_in['wqkv'], 'A_wo': _A_in['wo'], 'B_x': _B_in['x'], 'B_w_in': _B_in['w_in'], 'B_w_sp': _B_in['w_sp'], 'B_b_sp': _B_in['b_sp'], 'B_w_out': _B_in['w_out']}

def reference(A_x, A_wqkv, A_wo, B_x, B_w_in, B_w_sp, B_b_sp, B_w_out):

    def _A_ref(x, wqkv, wo):
        B, S, D = x.shape
        H = 16
        Dh = D // H
        qkv = (lambda x, *d: x.permute(*d))((x @ wqkv).reshape(B, S, 3, H, Dh), 2, 0, 3, 1, 4)
        q, k, v = (qkv[0], qkv[1], qkv[2])
        scores = torch.einsum('bhqd,bhkd->bhqk', q, k) * Dh ** (-0.5)
        p = _softmax(scores, axis=-1)
        o = torch.einsum('bhqk,bhkd->bhqd', p, v)
        return (lambda x, *d: x.permute(*d))(o, 0, 2, 1, 3).reshape(B, S, D) @ wo

    def _B_ref(x, w_in, w_sp, b_sp, w_out):
        B, S, D = x.shape
        F = w_in.shape[-1]
        Fh = F // 2
        z = _gelu(torch.einsum('bsd,df->bsf', x, w_in))
        z1 = z[..., :Fh].clone()
        z2 = _layernorm(z[..., Fh:], axis=-1)
        g = torch.einsum('ts,bsf->btf', w_sp, z2) + b_sp[None, :, None]
        return torch.einsum('bsf,fd->bsd', z1 * g, w_out)
    x = A_x
    h = x + _A_ref(_layernorm(x, axis=-1), A_wqkv, A_wo)
    h2 = h + _B_ref(_layernorm(h, axis=-1), B_w_in, B_w_sp, B_b_sp, B_w_out)
    return h2
```

```python
import re

REG = re.compile(r'^(-|\|)?(v|a|s)(\d+)\|?$')
RNG = re.compile(r'^(v|a|s)\[(\d+):(\d+)\]$')
TRANS = ('v_exp_f32', 'v_log_f32', 'v_rcp_f32', 'v_rsq_f32', 'v_sqrt_f32', 'v_sin_f32', 'v_cos_f32')


def regs_of(tok):
    tok = tok.strip()
    if tok.startswith('abs(') and tok.endswith(')'):
        tok = tok[4:-1]
    if tok.startswith('-'):
        tok = tok[1:]
    if tok in ('vcc', 'exec', 'vcc_lo', 'vcc_hi'):
        return {(tok[:4].rstrip('_'), 0)}
    if tok == 'm0':
        return {('m0', 0)}
    m = RNG.match(tok)
    if m:
        return {(m.group(1), i) for i in range(int(m.group(2)), int(m.group(3)) + 1)}
    m = REG.match(tok)
    if m:
        return {(m.group(2), int(m.group(3)))}
    return set()


class Ins:
    __slots__ = ('text', 'op', 'kind', 'w', 'r', 'label', 'target', 'data', 'srcc', 'passes', 'note')

    def __init__(self, text):
        self.text = text
        self.label = None
        self.target = None
        self.w, self.r, self.data, self.srcc = set(), set(), set(), set()
        self.passes = 0
        self.note = None
        t = text.split(';')[0].strip()
        if t.endswith(':'):
            self.label = t[:-1]
            self.op, self.kind = '', 'label'
            return
        if t.startswith('.') or not t:
            self.op, self.kind = '', 'dir'
            return
        parts = t.split(None, 1)
        op = self.op = parts[0]
        rest = parts[1] if len(parts) > 1 else ''
        toks = [x.strip() for x in re.split(r',(?![^\[\(]*[\]\)])', rest)] if rest else []
        if toks:
            first_extra = toks[-1].split()
            toks[-1] = first_extra[0] if first_extra else ''
            mods = first_extra[1:]
        else:
            mods = []
        R = [regs_of(x) for x in toks]
        allr = lambda xs: set().union(*xs) if xs else set()
        if op.startswith('v_mfma'):
            self.kind = 'mfma'
            self.w, self.r, self.srcc = R[0], allr(R[1:]), R[3]
            self.passes = 8 if '32x32' in op else (4 if '16x16' in op else 2)
            self.data = R[1] | R[2]
        elif op.startswith('buffer_load') or op.startswith('global_load'):
            lds = 'lds' in mods or '_lds_' in op
            self.kind = 'dma' if lds else 'vload'
            if lds:
                self.r = allr(R) | {('m0', 0)}
            else:
                self.w, self.r = R[0], allr(R[1:])
        elif op.startswith('buffer_store') or op.startswith('buffer_atomic'):
            self.kind = 'vstore'
            self.r = allr(R)
            if 'x4' in op or 'x3' in op:
                self.data = R[0]
        elif op.startswith('global_store'):
            self.kind = 'vstore'
            self.r = allr(R)
            if 'x4' in op or 'x3' in op:
                self.data = R[1]
        elif op.startswith('buffer_wbl2') or op.startswith('buffer_inv'):
            self.kind = 'vstore'
        elif op.startswith('ds_read') or op.startswith('ds_bpermute'):
            self.kind = 'dsread'
            self.w, self.r = R[0], allr(R[1:])
        elif op.startswith('ds_'):
            self.kind = 'dswrite'
            self.r = allr(R)
        elif op.startswith('s_load') or op in ('s_memtime', 's_memrealtime'):
            self.kind = 'smem'
            self.w, self.r = R[0], allr(R[1:])
        elif op == 's_waitcnt':
            self.kind = 'wait'
        elif op == 's_nop':
            self.kind = 'nop'
        elif op.startswith('s_cbranch') or op == 's_branch':
            self.kind = 'branch'
            self.target = toks[0]
            if 'vcc' in op:
                self.r = {('vcc', 0)}
            if 'exec' in op:
                self.r = {('exec', 0)}
        elif op in ('s_barrier', 's_endpgm', 's_setprio', 's_sleep'):
            self.kind = 'misc'
        elif op.startswith('s_cmp') or op.startswith('s_bitcmp'):
            self.kind = 'salu'
            self.r = allr(R)
        elif op.startswith('s_'):
            self.kind = 'salu'
            self.w, self.r = R[0], allr(R[1:])
            if 'saveexec' in op:
                self.w = self.w | {('exec', 0)}
        elif op.startswith('v_'):
            self.kind = 'valu'
            self.w, self.r = R[0], allr(R[1:])
            if op.startswith('v_permlane32_swap'):
                self.w = self.r = R[0] | R[1]
            if op.startswith('v_fmac') or op.startswith('v_dot2c') or op.startswith('v_writelane'):
                self.r = self.r | R[0]
            if op.startswith('v_add_co') or op.startswith('v_addc_co') or op.startswith('v_mad_u64'):
                self.w = R[0] | R[1]
                self.r = allr(R[2:])
        else:
            raise ValueError('unknown instruction: ' + text)

    def states(self):
        if self.kind == 'nop':
            return int(self.text.split()[1]) + 1
        return 0 if self.kind in ('label', 'dir') else 1


def isv(rs):
    return {x for x in rs if x[0] in ('v', 'a')}


def iss(rs):
    return {x for x in rs if x[0] in ('s', 'vcc')}


def need(p, c):
    n = 0
    mem = ('vload', 'vstore', 'dma', 'dsread', 'dswrite')
    if p.kind == 'valu':
        dot = p.op.startswith('v_dot2')
        if c.kind == 'mfma' and isv(p.w) & c.r:
            n = max(n, 3 if dot else 2)
        if p.op.startswith(TRANS) and c.kind in ('valu',) + mem and isv(p.w) & c.r and not c.op.startswith(TRANS):
            n = max(n, 1)
        if c.op.startswith(('v_readfirstlane', 'v_readlane')) and isv(p.w) & c.r:
            n = max(n, 1)
        if c.op.startswith('v_permlane') and isv(p.w) & c.r:
            n = max(n, 2)
        if '_dpp' in c.op and isv(p.w) & c.r:
            n = max(n, 2)
        if iss(p.w):
            if c.kind in ('vload', 'vstore', 'dma') and iss(p.w) & c.r:
                n = max(n, 5)
            if c.kind == 'valu' and iss(p.w) & c.r:
                n = max(n, 4 if c.op.startswith(('v_readlane', 'v_writelane')) else 2)
            if c.kind == 'salu' and iss(p.w) & c.r:
                n = max(n, 2)
        if dot and c.kind != 'mfma' and isv(p.w) & (c.r | c.w):
            same_c = c.op == p.op and isv(p.w) == isv(c.w)
            if not same_c:
                n = max(n, 3)
    if p.kind == 'mfma':
        t = {2: 5, 4: 8, 8: 12}[p.passes]
        if c.kind == 'mfma':
            if p.w & c.data:
                n = max(n, t)
            if p.w & c.srcc and not (p.w == c.srcc and p.passes == c.passes and p.passes >= 4):
                n = max(n, {2: 4, 4: 6, 8: 10}[p.passes])
            if p.w & c.w and not p.w & c.srcc:
                n = max(n, t)
        elif c.kind == 'valu' or c.kind in mem:
            if p.w & (c.r | c.w):
                n = max(n, t)
        if c.kind == 'valu' and p.srcc & c.w:
            n = max(n, {2: 1, 4: 3, 8: 7}[p.passes])
    if p.kind == 'vstore' and p.data and p.data & c.w:
        n = max(n, 2)
    if p.kind == 'salu' and ('m0', 0) in p.w and c.kind == 'dma':
        n = max(n, 1)
    return n


class Asm:
    def __init__(self):
        self.L = []

    def __call__(self, text, note=None):
        for ln in text.split('\n'):
            ln = ln.strip()
            if ln:
                i = Ins(ln)
                i.note = note
                self.L.append(i)

    def _preds(self):
        lab = {x.label: k for k, x in enumerate(self.L) if x.label}
        pr = [[] for _ in self.L]
        for k, x in enumerate(self.L):
            if x.kind == 'branch' and x.target in lab:
                pr[lab[x.target]].append(k)
            fall = not (x.op == 's_branch' or x.op == 's_endpgm')
            if fall and k + 1 < len(self.L):
                pr[k + 1].append(k)
        return pr

    def pad(self):
        total = 0
        while True:
            pr = self._preds()
            fix = None
            for k, c in enumerate(self.L):
                if c.kind in ('label', 'dir', 'nop', 'wait', 'misc'):
                    continue
                short = 0
                stack = [(p, 0) for p in pr[k]]
                seen = {}
                while stack:
                    j, d = stack.pop()
                    if d >= 13 or seen.get(j, 99) <= d:
                        continue
                    seen[j] = d
                    p = self.L[j]
                    short = max(short, need(p, c) - d)
                    for q in pr[j]:
                        stack.append((q, d + p.states()))
                if short > 0:
                    fix = (k, short)
                    break
            if not fix:
                return total
            k, short = fix
            self.L.insert(k, Ins('s_nop %d' % (short - 1)))
            self.L[k].note = 'pad'
            total += 1

    def check_waits(self, take=()):
        lab = {x.label: k for k, x in enumerate(self.L) if x.label}
        vm, lg, errs = [], [], []
        taken = set()
        k = 0
        while k < len(self.L):
            x = self.L[k]
            if x.kind == 'wait':
                m = re.search(r'vmcnt\((\d+)\)', x.text)
                if m:
                    n = int(m.group(1))
                    vm = vm[len(vm) - n:] if n else []
                    if n and len(vm) > n:
                        vm = vm[-n:]
                m = re.search(r'lgkmcnt\((\d+)\)', x.text)
                if m:
                    n = int(m.group(1))
                    if n and any(e[1] == 'smem' for e in lg):
                        errs.append((k, 'counted lgkmcnt with SMEM outstanding: ' + x.text))
                    lg = lg[-n:] if n else []
            elif x.kind not in ('label', 'dir'):
                touched = x.r | x.w
                for q in (vm, lg):
                    for e in q:
                        if e[0] & touched:
                            errs.append((k, 'in-flight %s touched by: %s' % (sorted(e[0] & touched)[:2], x.text)))
                if x.kind in ('vload', 'vstore', 'dma'):
                    vm.append((x.w, x.kind))
                    if len(vm) > 63:
                        errs.append((k, 'vmcnt overflow at ' + x.text))
                elif x.kind in ('dsread', 'dswrite', 'smem'):
                    lg.append((x.w, x.kind))
            if x.op == 's_endpgm':
                break
            if x.kind == 'branch' and x.target in lab:
                t = lab[x.target]
                if x.op == 's_branch':
                    k = t
                    continue
                if t <= k and k not in taken:
                    taken.add(k)
                    k = t
                    continue
                if t > k and x.target in take:
                    k = t
                    continue
            k += 1
        return errs

    def text(self):
        out = []
        for x in self.L:
            out.append(x.text if x.kind == 'label' else '    ' + x.text)
        return '\n'.join(out) + '\n'
```

```python
import sys
import math
import struct
import copy
from asmlib import Asm

NAME = 'sequential_preLN__mha_block__mixer_gmlp__prompt'

FLAG1, FLAG2, FLAG3, FLAG5, FLAG6 = 0x0000, 0x1000, 0x2000, 0x3000, 0x4000
ONES, PROF = 0x40000, 0x80000
ZST, HST = 0x100000, 0x180000
KF, VF, OF, HF, ZF, UF = 0x200000, 0x400000, 0x600000, 0x800000, 0xA00000, 0xE00000
WS_BYTES = 0x1200000

XB = 57344
MISC = 155648
RSX = 157696
WIN2 = 57344
RED = 114688
LDS_BYTES = 163840

P_X, P_WQKV, P_WO, P_WIN, P_WSP, P_BSP, P_WOUT, P_OUT, P_DBG, P_WS = 4, 6, 8, 12, 14, 16, 18, 20, 22, 24
sW, sRB, sI, sXCC, sNON, sFAST = 26, 27, 44, 45, 46, 48
WS, SA, SB, SC = 28, 32, 36, 40
sHI = 50
sONE2 = 52
sT = 54
sCB, sKH, sT3 = 55, 56, 57
sK0, sK1 = 58, 60
t0, t1, t2, t3, t4, t5, t6, t7 = 62, 63, 64, 65, 66, 67, 68, 69
sSAVE = 70
sCNT = 72
sPT = 74
sB = 76
sFID = 77

vL, vH, vM, vL16, vTRa, vTRb, vPM = 0, 1, 2, 3, 4, 5, 6
u0, u1, u2, u3, u4, u5, u6, u7, u8 = 7, 8, 9, 10, 11, 12, 13, 14, 15
vCS1, vCS2, vMF, vHK, vBSP, vRS = 224, 232, 240, 244, 252, 253

POLL_MAX = 20000


def f32(x):
    return '0x%08x' % struct.unpack('<I', struct.pack('<f', x))[0]


def v(a, n=1):
    return 'v%d' % a if n == 1 else 'v[%d:%d]' % (a, a + n - 1)


def s(a, n=1):
    return 's%d' % a if n == 1 else 's[%d:%d]' % (a, a + n - 1)


class G:
    def __init__(self, opt):
        self.o = opt
        self.a = Asm()
        self.vm = []
        self.lg = []
        self.nlab = 0

    def __call__(self, t):
        self.a(t)

    def lab(self, p):
        self.nlab += 1
        return 'L_%s_%d' % (p, self.nlab)

    def vmi(self, text, tag):
        self.a(text)
        self.vm.append(tag)

    def lgi(self, text, tag):
        self.a(text)
        self.lg.append(tag)

    def _n(self, q, tag):
        idx = [k for k, t in enumerate(q) if t == tag]
        return None if not idx else len(q) - 1 - idx[-1]

    def wvm(self, tag=None):
        n = 0 if tag is None else self._n(self.vm, tag)
        if n is None:
            return
        self.a('s_waitcnt vmcnt(%d)' % n)
        self.vm = self.vm[len(self.vm) - n:]

    def wlg(self, tag=None):
        n = 0 if tag is None else self._n(self.lg, tag)
        if n is None:
            return
        n = min(n, 15)
        self.a('s_waitcnt lgkmcnt(%d)' % n)
        self.lg = self.lg[len(self.lg) - n:]

    def srd(self, r, ptr, nbytes):
        self('s_mov_b32 %s, %s\ns_mov_b32 %s, %s\ns_mov_b32 %s, 0x%x\ns_mov_b32 %s, 0x20000'
             % (s(r), s(ptr), s(r + 1), s(ptr + 1), s(r + 2), nbytes, s(r + 3)))

    def mfma(self, d, a_, b, c=None, pa='v', pb='v'):
        cs = '0' if c is None else v(c, 16)
        self('v_mfma_f32_32x32x16_bf16 %s, %s[%d:%d], %s[%d:%d], %s'
             % (v(d, 16), pa, a_, a_ + 3, pb, b, b + 3, cs))

    def tr(self, dst, addr, off, tag):
        self.lgi('ds_read_b64_tr_b16 %s, %s offset:%d' % (v(dst, 2), v(addr), off), tag)

    def trfrag(self, dst, addr, off, tag, step=512):
        self.tr(dst, addr, off, tag)
        self.tr(dst + 2, addr, off + step, tag)

    def load(self, dst, voff, srd, soff, imm, tag, n=4, sc1=True, pfx='v'):
        op = {4: 'dwordx4', 2: 'dwordx2', 1: 'dword'}[n]
        d = '%s%d' % (pfx, dst) if n == 1 else '%s[%d:%d]' % (pfx, dst, dst + n - 1)
        self.vmi('buffer_load_%s %s, %s, %s, %s offen offset:%d%s'
                 % (op, d, v(voff), s(srd, 4), soff, imm, ' sc1' if sc1 else ''), tag)

    def dma(self, voff, srd, soff, imm, tag, sc1=False):
        self.vmi('buffer_load_dwordx4 %s, %s, %s offen offset:%d%s lds'
                 % (v(voff), s(srd, 4), soff, imm, ' sc1' if sc1 else ''), tag)

    def store(self, src, voff, srd, soff, imm, tag, n=4, sc1=True):
        op = {4: 'dwordx4', 2: 'dwordx2', 1: 'dword'}[n]
        self.vmi('buffer_store_%s %s, %s, %s, %s offen offset:%d%s'
                 % (op, v(src, n), v(voff), s(srd, 4), soff, imm, ' sc1' if sc1 else ''), tag)

    def local_stores(self, emit):
        lp, lj = self.lab('plain'), self.lab('join')
        self('s_cmp_eq_u32 %s, 1\ns_cbranch_scc1 %s' % (s(sFAST), lp))
        keep = list(self.vm)
        emit(True)
        self('s_branch %s\n%s:' % (lj, lp))
        self.vm = keep
        emit(False)
        self('%s:' % lj)

    def publish(self, flag_soff, local, with_xcc=False):
        self.wvm()
        self('s_barrier')
        sk = self.lab('pub')
        self('s_cmp_eq_u32 %s, 0\ns_cbranch_scc0 %s' % (s(sW), sk))
        if with_xcc:
            self('s_or_b32 %s, %s, %s' % (s(t0), s(sNON), s(sXCC)))
        else:
            self('s_mov_b32 %s, %s' % (s(t0), s(sNON)))
        self('v_mov_b32 %s, %s\nv_mov_b32 %s, %s\nv_mov_b32 %s, 0' % (v(u1), s(t0), v(u2), s(sNON + 1), v(u0)))
        self('s_mov_b64 exec, 1')
        keep = list(self.vm)
        if local:
            self.local_stores(lambda sc: self.store(u1, u0, WS, flag_soff, 0, 'flag', n=2, sc1=sc))
        else:
            self.store(u1, u0, WS, flag_soff, 0, 'flag', n=2)
        self('s_mov_b64 exec, -1')
        self.vm = keep
        self('%s:' % sk)

    def poll(self, flag_soff, nflags):
        sk, lp = self.lab('pollskip'), self.lab('poll')
        self('s_cmp_eq_u32 %s, 0\ns_cbranch_scc0 %s' % (s(sW), sk))
        self('v_lshlrev_b32 %s, 3, %s' % (v(u0), v(vL)))
        self('s_mov_b64 exec, 0x%x' % ((1 << nflags) - 1) if nflags <= 32 else 's_mov_b64 exec, -1')
        self('s_mov_b32 %s, 0\n%s:' % (s(sCNT), lp))
        self('buffer_load_dwordx2 %s, %s, %s, %s offen sc1' % (v(u1, 2), v(u0), s(WS, 4), flag_soff))
        self('s_add_u32 %s, %s, 1' % (s(sCNT), s(sCNT)))
        self('s_waitcnt vmcnt(0)')
        self('v_cmp_ne_u64 vcc, %s, %s' % (s(sNON, 2), v(u1, 2)))
        self('s_cbranch_vccz %s_d' % lp)
        self('s_cmp_lt_u32 %s, %d\ns_cbranch_scc1 %s' % (s(sCNT), POLL_MAX, lp))
        self('%s_d:\ns_mov_b64 exec, -1\n%s:' % (lp, sk))
        self('s_barrier')

    def stamp(self, k):
        if not self.o.get('prof'):
            return
        sk = self.lab('st')
        self('s_cmp_eq_u32 %s, 0\ns_cbranch_scc0 %s' % (s(sW), sk))
        self('s_memrealtime %s\ns_lshl_b32 %s, %s, 8\ns_add_u32 %s, %s, %d'
             % (s(sPT, 2), s(t7), s(sB), s(t7), s(t7), PROF + 8 * k))
        self('s_waitcnt lgkmcnt(0)')
        self('v_mov_b32 v254, %s\nv_mov_b32 v255, %s\ns_mov_b64 exec, 1' % (s(sPT), s(sPT + 1)))
        self('buffer_store_dwordx2 v[254:255], %s, %s, %s offen' % (v(vL), s(WS, 4), s(t7)))
        self('s_mov_b64 exec, -1\n%s:' % sk)

    def xhalf_add(self, r, tmp):
        self('v_mov_b32 %s, %s\nv_permlane32_swap_b32 %s, %s\nv_add_f32 %s, %s, %s'
             % (v(tmp), v(r), v(tmp), v(r), v(r), v(r), v(tmp)))

    def mean_rstd(self, vsum, vsq, n, mean, rstd):
        self('v_mul_f32 %s, %s, %s' % (v(mean), f32(1.0 / n), v(vsum)))
        self('v_mul_f32 %s, %s, %s' % (v(rstd), f32(1.0 / n), v(vsq)))
        self('v_fma_f32 %s, -%s, %s, %s' % (v(rstd), v(mean), v(mean), v(rstd)))
        self('v_max_f32 %s, 0, %s\nv_add_f32 %s, %s, %s' % (v(rstd), v(rstd), v(rstd), f32(1e-5), v(rstd)))
        self('v_rsq_f32 %s, %s' % (v(rstd), v(rstd)))

    def make_meanfrag(self, mean, tmp):
        self('v_sub_f32 %s, 0, %s\nv_cndmask_b32 %s, %s, 0, %s' % (v(tmp), v(mean), v(tmp), v(tmp), s(sHI, 2)))
        self('v_cvt_pk_bf16_f32 %s, %s, 0\nv_lshlrev_b32 %s, 16, %s' % (v(vMF + 1), v(tmp), v(vMF), v(vMF + 1)))
        self('v_sub_f32 %s, %s, %s\nv_cvt_pk_bf16_f32 %s, %s, %s' % (v(vMF), v(tmp), v(vMF), v(vMF), v(tmp), v(vMF)))
        self('v_mov_b32 %s, 0\nv_mov_b32 %s, 0' % (v(vMF + 2), v(vMF + 3)))

    def make_csfrag(self, cs, dst):
        self('v_cvt_pk_bf16_f32 %s, %s, %s\nv_and_b32 %s, 0xffff0000, %s' % (v(dst), v(cs), v(cs), v(dst + 1), v(dst)))
        self('v_sub_f32 %s, %s, %s\nv_cvt_pk_bf16_f32 %s, %s, 0' % (v(dst + 1), v(cs), v(dst + 1), v(dst + 1), v(dst + 1)))
        self('v_mov_b32 %s, 0\nv_mov_b32 %s, 0' % (v(dst + 2), v(dst + 3)))

    def colsum_part(self, base, buf, xch):
        self('s_mul_i32 %s, %s, 14336\ns_add_u32 %s, %s, %d' % (s(t0), s(sW), s(t0), s(t0), base))
        self('v_add_u32 %s, %s, %s\nv_add_u32 %s, %s, %s' % (v(u0), s(t0), v(vTRa), v(u1), s(t0), v(vTRb)))
        for ct in range(2):
            for q in range(7):
                self.trfrag(buf + 28 * ct + 4 * q, u0 + ct, q * 2048, 'cs%d' % ct)
        for k in range(4):
            self('v_mov_b32 %s, 0' % v(u2 + k))
        for ct in range(2):
            self.wlg('cs%d' % ct)
            for q in range(28):
                self('v_dot2c_f32_bf16 %s, %s, %s' % (v(u2 + 2 * ct + (q & 1)), s(sONE2), v(buf + 28 * ct + q)))
        self('v_lshlrev_b32 %s, 5, %s\nv_lshl_add_u32 %s, %s, 2, %s' % (v(u0), v(vM), v(u0), v(vH), v(u0)))
        self('s_lshl_b32 %s, %s, 3\ns_add_u32 %s, %s, %d\nv_add_u32 %s, %s, %s'
             % (s(t0), s(sW), s(t0), s(t0), xch, v(u0), s(t0), v(u0)))
        self('v_add_f32 %s, %s, %s\nv_add_f32 %s, %s, %s' % (v(u2), v(u2), v(u3), v(u4), v(u4), v(u5)))
        self.lgi('ds_write_b32 %s, %s' % (v(u0), v(u2)), 'csw')
        self.lgi('ds_write_b32 %s, %s offset:1024' % (v(u0), v(u4)), 'csw')
        self.wlg()

    def colsum_get(self, buf, xch, dst):
        self('v_lshlrev_b32 %s, 5, %s\nv_add_u32 %s, %d, %s' % (v(u0), v(vM), v(u0), xch, v(u0)))
        for k in range(4):
            self.lgi('ds_read_b128 %s, %s offset:%d' % (v(buf + 4 * k, 4), v(u0), (k >> 1) * 1024 + (k & 1) * 16), 'csr')
        self.wlg()
        for ct in range(2):
            b = buf + 8 * ct
            self('v_pk_add_f32 %s, %s, %s\nv_pk_add_f32 %s, %s, %s'
                 % (v(b, 2), v(b, 2), v(b + 2, 2), v(b + 4, 2), v(b + 4, 2), v(b + 6, 2)))
            self('v_pk_add_f32 %s, %s, %s\nv_add_f32 %s, %s, %s' % (v(b, 2), v(b, 2), v(b + 4, 2), v(b), v(b), v(b + 1)))
            self.make_csfrag(b, dst + 4 * ct)

    def image_dma(self, srd, stride, col_soff, lds_base, ninstr, tag):
        self('v_lshrrev_b32 %s, 3, %s\nv_mul_u32_u24 %s, %d, %s' % (v(u0), v(vL), v(u0), stride, v(u0)))
        self('v_bfe_u32 %s, %s, 4, 1\nv_lshlrev_b32 %s, 2, %s' % (v(u1), v(vL), v(u1), v(u1)))
        self('v_and_b32 %s, 7, %s\nv_xor_b32 %s, %s, %s' % (v(u2), v(vL), v(u1), v(u1), v(u2)))
        self('v_lshl_add_u32 %s, %s, 4, %s\nv_add_u32 %s, %d, %s' % (v(u0), v(u1), v(u0), v(u1), 8 * stride - 1024, v(u0)))
        self('s_mul_i32 %s, %s, %d\ns_add_u32 %s, %s, %s' % (s(t0), s(sW), ninstr * 8 * stride, s(t0), s(t0), col_soff))
        self('s_mul_i32 %s, %s, %d\ns_add_u32 m0, %s, %d' % (s(t1), s(sW), ninstr * 1024, s(t1), lds_base))
        for q in range(0, ninstr, 2):
            if q:
                self('s_add_u32 m0, m0, 2048\ns_add_u32 %s, %s, %d' % (s(t0), s(t0), 16 * stride))
            self.dma(u0, srd, s(t0), 0, tag)
            self.dma(u1, srd, s(t0), 1024, tag)

    def rowtile_addrs(self, stride, vd, vr):
        self('v_lshrrev_b32 %s, 3, %s\nv_mul_u32_u24 %s, %d, %s' % (v(u0), v(vL), v(u0), stride, v(u0)))
        self('v_lshrrev_b32 %s, 4, %s\nv_and_b32 %s, 7, %s\nv_xor_b32 %s, %s, %s'
             % (v(u1), v(vL), v(u2), v(vL), v(u1), v(u1), v(u2)))
        for rg in range(4):
            self('v_xor_b32 %s, %d, %s\nv_lshl_add_u32 %s, %s, 4, %s' % (v(u2), 4 * (rg & 1), v(u1), v(u2), v(u2), v(u0)))
            self('v_add_u32 %s, %d, %s' % (v(vd + rg), rg * (8 * stride - 1024), v(u2)))
        self('v_bfe_u32 %s, %s, 1, 3\nv_xor_b32 %s, %s, %s' % (v(u1), v(vM), v(u1), v(u1), v(vH)))
        self('v_lshlrev_b32 %s, 4, %s\nv_lshl_add_u32 %s, %s, 7, %s' % (v(u1), v(u1), v(vr), v(vM), v(u1)))
        for k in range(1, 4):
            self('v_xor_b32 %s, %d, %s' % (v(vr + k), 32 * k, v(vr)))

    def gelu(self, x, n, tmp):
        for b in range(0, n, 8):
            for k in range(0, 8, 2):
                self('v_pk_mul_f32 %s, %s, %s' % (v(tmp + k, 2), v(x + b + k, 2), v(x + b + k, 2)))
            for k in range(0, 8, 2):
                self('v_pk_fma_f32 %s, %s, %s, %s' % (v(tmp + k, 2), v(tmp + k, 2), s(sK1, 2), v(u7, 2)))
            for k in range(0, 8, 2):
                self('v_pk_mul_f32 %s, %s, %s' % (v(tmp + k, 2), v(tmp + k, 2), v(x + b + k, 2)))
            for k in range(8):
                self('v_exp_f32 %s, %s' % (v(tmp + k), v(tmp + k)))
            for k in range(0, 8, 2):
                self('v_pk_add_f32 %s, %s, 1.0 op_sel_hi:[1,0]' % (v(tmp + k, 2), v(tmp + k, 2)))
            for k in range(8):
                self('v_rcp_f32 %s, %s' % (v(tmp + k), v(tmp + k)))
            for k in range(0, 8, 2):
                self('v_pk_mul_f32 %s, %s, %s' % (v(x + b + k, 2), v(x + b + k, 2), v(tmp + k, 2)))

    def scale(self, x, n, r):
        e = r & ~1
        sel = 'op_sel:[0,1] op_sel_hi:[1,1]' if r & 1 else 'op_sel_hi:[1,0]'
        for k in range(0, n, 2):
            self('v_pk_mul_f32 %s, %s, %s %s' % (v(x + k, 2), v(x + k, 2), v(e, 2), sel))

    def pack(self, dst, x, n):
        for k in range(0, n, 2):
            self('v_cvt_pk_bf16_f32 %s, %s, %s' % (v(dst + k // 2), v(x + k), v(x + k + 1)))

    def prologue(self):
        self('s_cmp_ge_u32 s2, 256\ns_cbranch_scc1 L_end')
        self('s_load_dwordx16 s[4:19], s[0:1], 0\ns_load_dwordx4 s[20:23], s[0:1], 64\ns_load_dwordx2 s[24:25], s[0:1], 80')
        self('s_mov_b32 %s, s2' % s(sB))
        self('v_lshrrev_b32 v1, 6, v0\nv_and_b32 v0, 63, v0\nv_readfirstlane_b32 %s, v1' % s(sW))
        if self.o.get('map', 'local') == 'local':
            self('s_and_b32 %s, s2, 7\ns_lshl_b32 %s, %s, 1\ns_lshr_b32 %s, s2, 7\ns_add_u32 %s, %s, %s'
                 % (s(t0), s(t0), s(t0), s(t1), s(sRB), s(t0), s(t1)))
            self('s_bfe_u32 %s, s2, 0x40003' % s(sI))
        else:
            self('s_lshr_b32 %s, s2, 4\ns_and_b32 %s, s2, 15' % (s(sRB), s(sI)))
        self('s_getreg_b32 %s, hwreg(HW_REG_XCC_ID, 0, 4)' % s(sXCC))
        self('s_mov_b32 %s, 0\ns_mov_b32 %s, -1\ns_mov_b32 %s, 0x3f803f80' % (s(sHI), s(sHI + 1), s(sONE2)))
        k0 = -2.0 * math.sqrt(2.0 / math.pi) * math.log2(math.e)
        self('s_mov_b32 %s, %s\ns_mov_b32 %s, %s' % (s(sK0), f32(k0), s(sK0 + 1), f32(k0)))
        self('s_mov_b32 %s, %s\ns_mov_b32 %s, %s' % (s(sK1), f32(k0 * 0.044715), s(sK1 + 1), f32(k0 * 0.044715)))
        self('s_lshl_b32 %s, %s, 2\ns_add_u32 %s, %s, %s' % (s(sT), s(sRB), s(sT), s(sT), s(sW)))
        self('s_lshl_b32 %s, %s, 4\ns_add_u32 %s, %s, %s\ns_lshl_b32 %s, %s, 3' % (s(sFID), s(sRB), s(sFID), s(sFID), s(sI), s(sFID), s(sFID)))
        self('s_cmp_ge_u32 %s, 7\ns_cselect_b32 %s, 7, 0\ns_cselect_b32 %s, 2, 0' % (s(sI), s(t0), s(t1)))
        self('s_sub_u32 %s, %s, %s\ns_lshr_b32 %s, %s, 1' % (s(sCB), s(sI), s(t0), s(sKH), s(sW)))
        self('s_lshl_b32 %s, %s, 2\ns_add_u32 %s, %s, %s\ns_and_b32 %s, %s, 1\ns_add_u32 %s, %s, %s'
             % (s(sT3), s(sRB), s(sT3), s(sT3), s(t1), s(t0), s(sW), s(sT3), s(sT3), s(t0)))
        self('v_lshrrev_b32 %s, 5, v0\nv_and_b32 %s, 31, v0\nv_lshlrev_b32 %s, 4, v0' % (v(vH), v(vM), v(vL16)))
        self('v_bfe_u32 %s, v0, 2, 2\nv_lshl_add_u32 %s, %s, 3, %s\nv_lshlrev_b32 %s, 7, %s'
             % (v(u0), v(u1), v(vH), v(u0), v(vTRa), v(u1)))
        self('v_bfe_u32 %s, v0, 4, 1\nv_and_b32 %s, 1, v0\nv_lshl_add_u32 %s, %s, 1, %s' % (v(u1), v(u2), v(u1), v(u1), v(u2)))
        self('v_bfe_u32 %s, v0, 3, 1\nv_lshlrev_b32 %s, 2, %s\nv_xor_b32 %s, %s, %s' % (v(u2), v(u2), v(u2), v(u2), v(u2), v(u1)))
        self('v_lshl_add_u32 %s, %s, 4, %s\nv_bfe_u32 %s, v0, 1, 1\nv_lshl_add_u32 %s, %s, 3, %s'
             % (v(vTRa), v(u2), v(vTRa), v(u2), v(vTRa), v(u2), v(vTRa)))
        self('v_xor_b32 %s, 64, %s' % (v(vTRb), v(vTRa)))
        self('v_and_b32 %s, 0x13, %s\nv_bfe_u32 %s, v0, 2, 1\nv_lshl_or_b32 %s, %s, 3, %s'
             % (v(vPM), v(vM), v(u0), v(vPM), v(u0), v(vPM)))
        self('v_bfe_u32 %s, v0, 3, 1\nv_lshl_or_b32 %s, %s, 2, %s' % (v(u0), v(vPM), v(u0), v(vPM)))
        self('s_waitcnt lgkmcnt(0)')
        self.srd(WS, P_WS, WS_BYTES)
        self.stamp(0)
        self.srd(SC, P_DBG, 256)
        sk = self.lab('non')
        self('s_or_b32 %s, %s, %s\ns_cmp_eq_u32 %s, 0\ns_cbranch_scc0 %s' % (s(t0), s(sB), s(sW), s(t0), sk))
        self('s_memrealtime %s\ns_waitcnt lgkmcnt(0)\ns_lshl_b64 %s, %s, 4\ns_or_b32 %s, %s, 0x80000000'
             % (s(t2, 2), s(t2, 2), s(t2, 2), s(t3), s(t3)))
        self('v_mov_b32 %s, %s\nv_mov_b32 %s, %s\ns_mov_b64 exec, 1' % (v(u1), s(t2), v(u2), s(t3)))
        self('buffer_store_dwordx2 %s, v0, %s, 0 offen sc1\ns_mov_b64 exec, -1\n%s:' % (v(u1, 2), s(SC, 4), sk))
        self.vm.append('non')

    XF, WF, ACC, ST, XD, XR, QD, NONV = 16, 128, 160, 192, 200, 206, 204, 214

    def p1_variant(self, kind):
        XF, WF, ACC, ST, XD, XR, QD, NONV = self.XF, self.WF, self.ACC, self.ST, self.XD, self.XR, self.QD, self.NONV
        kv = kind != 'N'
        if kv:
            self('s_lshl_b32 %s, %s, 7\ns_add_u32 %s, %s, 896' % (s(t2), s(sI), s(t2), s(t2)))
            self.image_dma(SB, 2688, s(t2), 0, 14, 'W')
        self('s_mul_i32 %s, %s, 24576\ns_add_u32 %s, %s, %d' % (s(t4), s(sW), s(t4), s(t4), XB))
        self('s_mul_i32 %s, %s, %d' % (s(t5), s(sT), 32 * 896))

        def xdma(blk, slot):
            self('s_add_u32 m0, %s, %d\ns_add_u32 %s, %s, %d' % (s(t4), slot * 4096, s(t0), s(t5), blk * 128))
            for rg in range(4):
                self.dma(XD + rg, SA, s(t0), rg * 1024, 'X%d' % blk)
        for blk in range(6):
            xdma(blk, blk)
        for k in range(4):
            self('v_add_u32 %s, %s, %s' % (v(XR + k), s(t4), v(XR + k)))
        for k in range(8):
            self('v_mov_b32 %s, 0' % v(ST + k))
        if kv:
            self.wvm('W')
            self('s_barrier')
            self.colsum_part(0, 64, MISC)
        for blk in range(7):
            self.wvm('X%d' % blk)
            for k in range(4):
                self.lgi('ds_read_b128 %s, %s offset:%d' % (v(XF + 16 * blk + 4 * k, 4), v(XR + k), (blk % 6) * 4096), 'xf')
            if kv:
                for k in range(4):
                    for ct in range(2):
                        self.trfrag(WF + 8 * k + 4 * ct, vTRa + ct, (4 * blk + k) * 2048, 'wf%d' % k)
            self.wlg('xf')
            if blk == 0:
                xdma(6, 0)
            if blk == 2:
                self('s_mul_i32 %s, %s, 56\ns_and_b32 %s, %s, 1\ns_lshl_b32 %s, %s, 3\ns_sub_u32 %s, %s, %s'
                     % (s(t0), s(sI), s(t1), s(sI), s(t1), s(t1), s(t0), s(t0), s(t1)))
                self('s_mul_i32 %s, %s, %d\ns_add_u32 %s, %s, %s\ns_add_u32 m0, %s, 4096'
                     % (s(t1), s(sW), 7 * 43008, s(t0), s(t0), s(t1), s(t4)))
                for q in range(7):
                    if q:
                        self('s_add_u32 m0, m0, 1024\ns_add_u32 %s, %s, 43008' % (s(t0), s(t0)))
                    self.dma(QD, SB, s(t0), 0, 'WQ')
                self('v_mov_b32 %s, 0' % v(u0))
                self.load(NONV, u0, SC, '0', 0, 'nonl', n=2)
            for q in range(16):
                x = XF + 16 * blk + q
                self('v_dot2c_f32_bf16 %s, %s, %s' % (v(ST + (q & 3)), s(sONE2), v(x)))
                self('v_dot2c_f32_bf16 %s, %s, %s' % (v(ST + 4 + (q & 3)), v(x), v(x)))
            if kv:
                for k in range(4):
                    self.wlg('wf%d' % k)
                    for ct in range(2):
                        w_, x_ = WF + 8 * k + 4 * ct, XF + 16 * blk + 4 * k
                        c = None if blk == 0 and k == 0 else ACC + 16 * ct
                        if kind == 'K':
                            self.mfma(ACC + 16 * ct, w_, x_, c)
                        else:
                            self.mfma(ACC + 16 * ct, x_, w_, c)
        self('v_pk_add_f32 %s, %s, %s\nv_pk_add_f32 %s, %s, %s'
             % (v(ST, 2), v(ST, 2), v(ST + 2, 2), v(ST + 4, 2), v(ST + 4, 2), v(ST + 6, 2)))
        self('v_add_f32 %s, %s, %s\nv_add_f32 %s, %s, %s' % (v(ST), v(ST), v(ST + 1), v(ST + 4), v(ST + 4), v(ST + 5)))
        self.xhalf_add(ST, ST + 1)
        self.xhalf_add(ST + 4, ST + 5)
        self.mean_rstd(ST, ST + 4, 448, ST + 2, vRS)
        self.make_meanfrag(ST + 2, ST + 3)
        if not kv:
            return
        self('s_barrier')
        self.colsum_get(WF, MISC, vCS2)
        if kind == 'K':
            for ct in range(2):
                self.mfma(ACC + 16 * ct, vCS2 + 4 * ct, vMF, ACC + 16 * ct)
            self('s_lshl_b32 %s, %s, 3\nv_add_u32 %s, %s, %s\ns_mov_b32 %s, 225792\ns_mul_i32 %s, %s, 3584\ns_add_u32 %s, %s, %d'
                 % (s(t0), s(sI), v(u0), s(t0), v(vH), s(t1), s(t2), s(sT), s(t2), s(t2), KF))
            for k in range(4):
                self('v_add_u32 %s, %d, %s\nv_mul_u32_u24 %s, 37, %s\nv_lshrrev_b32 %s, 8, %s'
                     % (v(u1), 2 * k, v(u0), v(u2), v(u1), v(u2), v(u2)))
                self('v_mul_lo_u32 %s, %s, %s\nv_lshl_add_u32 %s, %s, 9, %s\nv_lshl_add_u32 %s, %s, 4, %s'
                     % (v(u2), v(u2), s(t1), v(u2), v(u1), v(u2), v(WF + k), v(vM), v(u2)))
            self.scale(ACC, 32, vRS)
            self.pack(WF + 8, ACC, 32)
            for k in range(4):
                self.store(WF + 8 + 4 * k, WF + k, WS, s(t2), 0, 'st')
        else:
            for ct in range(2):
                self.mfma(ACC + 16 * ct, vMF, vCS2 + 4 * ct, ACC + 16 * ct)
            self('s_lshl_b32 %s, %s, 7\ns_add_u32 %s, %s, %d' % (s(t0), s(sW), s(t0), s(t0), RSX))
            self('v_lshl_add_u32 %s, %s, 2, %s\nv_lshl_add_u32 %s, %s, 4, %s' % (v(u0), v(vM), s(t0), v(u1), v(vH), s(t0)))
            self.lgi('ds_write_b32 %s, %s' % (v(u0), v(vRS)), 'rs')
            self.wlg()
            for g in range(4):
                self.lgi('ds_read_b128 %s, %s offset:%d' % (v(WF + 4 * g, 4), v(u1), 32 * g), 'rs')
            self('s_sub_u32 %s, %s, 7\ns_lshl_b32 %s, %s, 6\ns_mov_b32 %s, %d\ns_mul_i32 %s, %s, 1792\ns_add_u32 %s, %s, %d'
                 % (s(t0), s(sI), s(t0), s(t0), s(t1), 114688 - 448, s(t2), s(sT), s(t2), s(t2), VF))
            for ct in range(2):
                self('v_add_u32 %s, %s, %s\nv_add_u32 %s, %d, %s\nv_mul_u32_u24 %s, 2341, %s\nv_lshrrev_b32 %s, 16, %s'
                     % (v(u2), s(t0), v(vPM), v(u2), 32 * ct, v(u2), v(u3), v(u2), v(u3), v(u3)))
                self('v_mul_lo_u32 %s, %s, %s\nv_lshl_add_u32 %s, %s, 4, %s\nv_mul_u32_u24 %s, 448, %s\nv_add_u32 %s, %s, %s'
                     % (v(u3), v(u3), s(t1), v(u3), v(u2), v(u3), v(u2), v(vH), v(u4 + ct), v(u3), v(u2)))
            self.wlg()
            for ct in range(2):
                for k in range(0, 16, 2):
                    r = ACC + 16 * ct + k
                    self('v_pk_mul_f32 %s, %s, %s' % (v(r, 2), v(r, 2), v(WF + k, 2)))
            self.pack(WF + 16, ACC, 32)
            for k in range(4):
                self.store(WF + 16 + 4 * k, u4 + (k >> 1), WS, s(t2), (k & 1) * 896, 'st')

    def p1(self):
        XF, WF, ACC, XD, XR, QD, NONV = self.XF, self.WF, self.ACC, self.XD, self.XR, self.QD, self.NONV
        self.srd(SA, P_X, 2048 * 896)
        self.srd(SB, P_WQKV, 448 * 2688)
        self.rowtile_addrs(896, XD, XR)
        self('v_lshrrev_b32 %s, 2, v0\nv_mul_u32_u24 %s, 2688, %s\nv_and_b32 %s, 3, v0\nv_lshl_add_u32 %s, %s, 4, %s'
             % (v(u0), v(u0), v(u0), v(u1), v(QD), v(u1), v(u0)))
        self('s_lshl_b32 %s, %s, 10\ns_add_u32 %s, %s, %d' % (s(t0), s(sB), s(t0), s(t0), ONES))
        for k in range(4):
            self('v_mov_b32 %s, %s' % (v(WF + k), s(sONE2)))
        self.store(WF, vL16, WS, s(t0), 0, 'ones')
        self('s_cmp_ge_u32 %s, 14\ns_cbranch_scc1 L_p1_N\ns_cmp_ge_u32 %s, 7\ns_cbranch_scc1 L_p1_V' % (s(sI), s(sI)))
        vm0 = list(self.vm)
        for kind in 'KVN':
            self('L_p1_%s:' % kind)
            self.vm, self.lg = list(vm0), []
            self.p1_variant(kind)
            if kind != 'N':
                self('s_branch L_p1_join')
        self('L_p1_join:')
        self.vm, self.lg = ['any'], []
        lp = self.lab('tag')
        self('s_mov_b32 %s, 0\n%s:\ns_waitcnt vmcnt(0)' % (s(sCNT), lp))
        self('v_readfirstlane_b32 %s, %s\nv_readfirstlane_b32 %s, %s' % (s(sNON), v(NONV), s(sNON + 1), v(NONV + 1)))
        self('s_cmp_lg_u32 %s, 0\ns_cbranch_scc1 %s_d' % (s(sNON + 1), lp))
        self('v_mov_b32 %s, 0\nbuffer_load_dwordx2 %s, %s, %s, 0 offen sc1' % (v(u0), v(NONV, 2), v(u0), s(SC, 4)))
        self('s_add_u32 %s, %s, 1\ns_cmp_lt_u32 %s, %d\ns_cbranch_scc1 %s\ns_waitcnt vmcnt(0)\n%s_d:'
             % (s(sCNT), s(sCNT), s(sCNT), POLL_MAX, lp, lp))
        self.vm = []
        self('s_add_u32 %s, %s, %d' % (s(t5), s(sFID), FLAG1))
        self.publish(s(t5), False, with_xcc=True)
        self.stamp(1)
        sk = self.lab('nowo')
        self('s_cmp_ge_u32 %s, 14\ns_cbranch_scc1 %s' % (s(sI), sk))
        self.srd(SA, P_WO, 448 * 896)
        self('s_lshl_b32 %s, %s, 7' % (s(t2), s(sCB)))
        self.image_dma(SA, 896, s(t2), 0, 14, 'WO')
        self('%s:' % sk)
        self('v_bfe_u32 %s, v0, 2, 2\nv_lshl_add_u32 %s, %s, 3, %s\nv_lshlrev_b32 %s, 6, %s' % (v(u0), v(u0), v(vH), v(u0), v(u0), v(u0)))
        self('v_bfe_u32 %s, v0, 4, 1\nv_lshl_add_u32 %s, %s, 5, %s\nv_and_b32 %s, 1, v0\nv_lshl_add_u32 %s, %s, 4, %s'
             % (v(u1), v(u0), v(u1), v(u0), v(u1), v(u0), v(u1), v(u0)))
        self('v_bfe_u32 %s, v0, 1, 1\nv_lshl_add_u32 %s, %s, 3, %s\nv_add_u32 %s, %d, %s' % (v(u1), v(u0), v(u1), v(u0), v(u0), XB + 4096, v(u0)))
        self('v_mov_b32 %s, 0\nv_mov_b32 %s, 0' % (v(u2), v(u3)))
        for ww in range(4):
            if ww:
                self('v_add_u32 %s, 24576, %s' % (v(u0), v(u0)))
            for q in range(7):
                self.trfrag(WF + 4 * q, u0, q * 1024, 'q%d' % q, step=256)
            self.wlg()
            for q in range(28):
                self('v_dot2c_f32_bf16 %s, %s, %s' % (v(u2 + (q & 1)), s(sONE2), v(WF + q)))
            for q in range(7):
                st = 7 * ww + q
                self.mfma(ACC, WF + 4 * q, XF + 4 * st, None if st == 0 else ACC)
        self('v_add_f32 %s, %s, %s' % (v(u2), v(u2), v(u3)))
        self.xhalf_add(u2, u3)
        self.make_csfrag(u2, vCS2)
        self.mfma(ACC, vCS2, vMF, ACC)
        self('v_mul_f32 %s, %s, %s' % (v(u3), f32(math.log2(math.e) / math.sqrt(28.0)), v(vRS)))
        self.scale(ACC, 16, u3)
        self.pack(WF, ACC, 16)
        self('s_bitcmp1_b32 %s, 0\ns_cselect_b64 %s, -1, 0' % (s(sI), s(t0, 2)))
        self('s_andn2_b64 %s, %s, %s\ns_andn2_b64 %s, %s, %s' % (s(t2, 2), s(t0, 2), s(sHI, 2), s(t4, 2), s(sHI, 2), s(t0, 2)))
        for k in range(2):
            self('v_cndmask_b32 %s, %s, 0, %s\nv_cndmask_b32 %s, %s, 0, %s'
                 % (v(WF + k), v(WF + k), s(t2, 2), v(WF + 6 + k), v(WF + 6 + k), s(t4, 2)))
        self('s_lshl_b32 %s, %s, 11\ns_add_u32 %s, %s, %d\nv_add_u32 %s, %s, %s' % (s(t0), s(sW), s(t0), s(t0), MISC, v(u0), s(t0), v(vL16)))
        self.lgi('ds_write_b128 %s, %s' % (v(u0), v(WF, 4)), 'qw')
        self.lgi('ds_write_b128 %s, %s offset:1024' % (v(u0), v(WF + 4, 4)), 'qw')
        self.wlg()
        sk, lp = self.lab('s1skip'), self.lab('s1')
        self('s_cmp_eq_u32 %s, 0\ns_cbranch_scc0 %s\ns_mov_b32 %s, 0\n%s:' % (s(sW), sk, s(sCNT), lp))
        self('buffer_load_dwordx4 %s, %s, %s, 0 offen offset:%d sc1' % (v(WF, 4), v(vL16), s(WS, 4), FLAG1))
        self('buffer_load_dwordx4 %s, %s, %s, 0 offen offset:%d sc1' % (v(WF + 4, 4), v(vL16), s(WS, 4), FLAG1 + 1024))
        self('s_add_u32 %s, %s, 1\ns_waitcnt vmcnt(0)' % (s(sCNT), s(sCNT)))
        for k in range(4):
            self('v_and_b32 %s, -16, %s' % (v(WF + 2 * k), v(WF + 2 * k)))
        for k in range(4):
            self('v_cmp_ne_u64 %s, %s, %s' % (s(t0 + 2 * k, 2), s(sNON, 2), v(WF + 2 * k, 2)))
        self('s_or_b64 %s, %s, %s\ns_or_b64 %s, %s, %s\ns_or_b64 %s, %s, %s'
             % (s(t0, 2), s(t0, 2), s(t2, 2), s(t4, 2), s(t4, 2), s(t6, 2), s(t0, 2), s(t0, 2), s(t4, 2)))
        self('s_cbranch_scc0 %s\ns_cmp_lt_u32 %s, %d\ns_cbranch_scc1 %s\n%s:\ns_barrier' % (sk, s(sCNT), POLL_MAX, lp, sk))
        self.stamp(2)

    Q, O, S, P, KV, VOV, VST = 16, 48, 112, 144, 152, 217, 218

    def kv_addr(self, wave_split):
        VOV, VST = self.VOV, self.VST
        self('s_lshr_b32 %s, %s, 1\ns_mul_i32 %s, %s, 229376\ns_and_b32 %s, %s, 1\ns_mul_i32 %s, %s, 1536\ns_add_u32 %s, %s, %s'
             % (s(t0), s(sI), s(t4), s(t0), s(t0), s(sI), s(t0), s(t0), s(t4), s(t4), s(t0)))
        self('s_add_u32 %s, %s, %d\ns_mul_i32 %s, %s, 114688\ns_add_u32 %s, %s, %d' % (s(t4), s(t4), KF, s(t1), s(sI), s(t1), s(t1), VF))
        if wave_split:
            self('s_mul_i32 %s, %s, %d\ns_add_u32 %s, %s, %s\ns_mul_i32 %s, %s, %d\ns_add_u32 %s, %s, %s'
                 % (s(t0), s(sW), 16 * 3584, s(t4), s(t4), s(t0), s(t0), s(sW), 16 * 1792, s(t1), s(t1), s(t0)))
        self('v_mul_u32_u24 %s, 448, %s\nv_lshl_add_u32 %s, %s, 4, %s\nv_add_u32 %s, %s, %s'
             % (v(u0), v(vH), v(u0), v(vPM), v(u0), v(u0), s(t1), v(u0)))
        self('s_lshl_b32 %s, %s, 10\ns_add_u32 %s, %s, %d' % (s(t0), s(sB), s(t0), s(t0), ONES))
        self('v_mov_b32 %s, %s\nv_mov_b32 %s, 1792\nv_cmp_gt_u32 vcc, 28, %s' % (v(u1), s(t0), v(u2), v(vM)))
        self('v_cndmask_b32 %s, %s, %s, vcc\nv_cndmask_b32 %s, 0, %s, vcc' % (v(VOV), v(u1), v(u0), v(VST), v(u2)))

    def p2(self):
        Q, O, S, P, KV, VOV, VST = self.Q, self.O, self.S, self.P, self.KV, self.VOV, self.VST
        self.vm, self.lg = ['WO'], []
        self.kv_addr(True)

        def kvload(it):
            b = KV + 16 * (it % 4)
            self.load(b, vL16, WS, s(t4), 0, 'K%d' % it)
            self.load(b + 4, vL16, WS, s(t4), 1024, 'K%d' % it)
            self.load(b + 8, VOV, WS, '0', 0, 'V%d' % it)
            self.load(b + 12, VOV, WS, '0', 896, 'V%d' % it)
            if it < 15:
                self('s_add_u32 %s, %s, 3584\nv_add_u32 %s, %s, %s' % (s(t4), s(t4), v(VOV), v(VST), v(VOV)))
        for it in range(3):
            kvload(it)
        for j in range(4):
            self('s_add_u32 %s, %s, %d\ns_and_b32 %s, %s, 3\ns_lshl_b32 %s, %s, 11\ns_add_u32 %s, %s, %d\nv_add_u32 %s, %s, %s'
                 % (s(t0), s(sW), j + 1, s(t0), s(t0), s(t0), s(t0), s(t0), s(t0), MISC, v(u0), s(t0), v(vL16)))
            self.lgi('ds_read_b128 %s, %s' % (v(Q + 8 * j, 4), v(u0)), 'q')
            self.lgi('ds_read_b128 %s, %s offset:1024' % (v(Q + 8 * j + 4, 4), v(u0)), 'q')
        self('s_lshl_b32 %s, %s, 7\ns_add_u32 %s, %s, %d\nv_and_b32 %s, 15, v0\nv_lshlrev_b32 %s, 3, %s'
             % (s(t0), s(sRB), s(t0), s(t0), FLAG1, v(u0), v(u0), v(u0)))
        self.load(219, u0, WS, s(t0), 0, 'pur', n=1)
        self.srd(SA, P_X, 2048 * 896)
        self('s_mul_i32 %s, %s, %d\ns_lshl_b32 %s, %s, 7\ns_add_u32 %s, %s, %s\ns_lshl_b32 %s, %s, 6\ns_add_u32 %s, %s, %s'
             % (s(t0), s(sT3), 32 * 896, s(t1), s(sCB), s(t0), s(t0), s(t1), s(t1), s(sKH), s(t0), s(t0), s(t1)))
        self('v_mul_u32_u24 %s, 896, %s\nv_lshl_add_u32 %s, %s, 4, %s' % (v(u0), v(vM), v(u0), v(vH), v(u0)))
        self.load(vHK, u0, SA, s(t0), 0, 'pf', sc1=False)
        self.load(vHK + 4, u0, SA, s(t0), 32, 'pf', sc1=False)
        self.srd(SB, P_BSP, 4096)
        self('s_lshl_b32 %s, %s, 6\nv_lshlrev_b32 %s, 1, %s' % (s(t0), s(sT), v(u0), v(vM)))
        self.vmi('buffer_load_ushort %s, %s, %s, %s offen' % (v(vBSP), v(u0), s(SB, 4), s(t0)), 'pf')
        self.srd(SA, P_WIN, 448 * 3584)
        self('s_lshl_b32 %s, %s, 7\ns_add_u32 %s, %s, 1792' % (s(t2), s(sI), s(t2), s(t2)))
        self.image_dma(SA, 3584, s(t2), WIN2, 14, 'pf')
        self.wlg()
        wait_kv = self.wvm
        wait_kv('K0')
        self.mfma(S, KV, Q, None)
        self.mfma(S, KV + 4, Q + 4, S)
        for n in range(64):
            it, j = divmod(n, 4)
            Sc, Sn = S + 16 * (n & 1), S + 16 * ((n + 1) & 1)
            ex = ['v_exp_f32 %s, %s' % (v(Sc + k), v(Sc + k)) for k in range(16)]
            pk = ['v_cvt_pk_bf16_f32 %s, %s, %s' % (v(P + k), v(Sc + 2 * k), v(Sc + 2 * k + 1)) for k in range(8)]
            nit, nj = divmod(n + 1, 4)
            pit, pj = divmod(n - 1, 4)
            kb, vb = KV + 16 * (nit % 4), KV + 16 * (pit % 4) + 8

            def qk(t):
                if n + 1 < 64:
                    if t == 0 and nj == 0:
                        wait_kv('K%d' % nit)
                    self.mfma(Sn, kb + 4 * t, Q + 8 * nj + 4 * t, Sn if t else None)

            def pv(t):
                if n > 0:
                    if t == 0 and pj == 0:
                        wait_kv('V%d' % pit)
                    c = None if (pit == 0 and t == 0) else O + 16 * pj
                    self.mfma(O + 16 * pj, vb + 4 * t, P + 4 * t, c)
            qk(0)
            self('\n'.join(ex[0:4]))
            pv(0)
            self('\n'.join(ex[4:8] + pk[0:2]))
            qk(1)
            self('\n'.join(ex[8:12] + pk[2:4]))
            pv(1)
            self('\n'.join(ex[12:16] + pk[4:8]))
            if j == 0 and it + 3 < 16:
                kvload(it + 3)
        self.mfma(O + 48, KV + 16 * 3 + 8, P, O + 48)
        self.mfma(O + 48, KV + 16 * 3 + 12, P + 4, O + 48)
        self.stamp(3)
        for j in range(3):
            self('s_add_u32 %s, %s, %d\ns_and_b32 %s, %s, 3\ns_mul_i32 %s, %s, 12288\ns_add_u32 %s, %s, %d\nv_add_u32 %s, %s, %s'
                 % (s(t0), s(sW), j + 1, s(t0), s(t0), s(t0), s(t0), s(t0), s(t0), RED + 4096 * j, v(u0), s(t0), v(vL16)))
            for q in range(4):
                self.lgi('ds_write_b128 %s, %s offset:%d' % (v(u0), v(O + 16 * j + 4 * q, 4), q * 1024), 'rw')
        self.wvm('pur')
        self('v_and_b32 v219, 15, v219\nv_cmp_ne_u32 vcc, %s, v219\ns_cmp_eq_u64 vcc, 0\ns_cselect_b32 %s, 1, 0' % (s(sXCC), s(sFAST)))
        if self.o.get('noslowfast'):
            self('s_mov_b32 %s, 0' % s(sFAST))
        self('s_mul_i32 %s, %s, 12288\ns_add_u32 %s, %s, %d\nv_add_u32 %s, %s, %s' % (s(t0), s(sW), s(t0), s(t0), RED, v(u0), s(t0), v(vL16)))
        self.wlg()
        self('s_barrier')
        for k in range(12):
            self.lgi('ds_read_b128 %s, %s offset:%d' % (v(O + 4 * k, 4), v(u0), k * 1024), 'r%d' % (k // 4))
        A = O + 48
        for j in range(3):
            self.wlg('r%d' % j)
            for k in range(0, 16, 2):
                self('v_pk_add_f32 %s, %s, %s' % (v(A + k, 2), v(A + k, 2), v(O + 16 * j + k, 2)))
        self('L_att_norm:')
        self('v_mov_b32 %s, %s\nv_mov_b32 %s, %s\nv_permlane32_swap_b32 %s, %s' % (v(u0), v(A + 12), v(u1), v(A + 12), v(u0), v(u1)))
        self('v_cmp_gt_f32 vcc, %s, %s\ns_mov_b64 %s, vcc\nv_cmp_lt_f32 vcc, %s, %s\ns_and_b64 vcc, vcc, %s'
             % (f32(2.0 ** 40), v(u1), s(t0, 2), f32(2.0 ** -40), v(u1), s(t0, 2)))
        force = self.o.get('force_fallback')
        self('s_cmp_eq_u64 vcc, %s\ns_cbranch_scc0 L_att_slow\nL_att_ok:' % ('0' if force else '-1'))
        self('v_rcp_f32 %s, %s' % (v(u1), v(u1)))
        self.scale(A, 16, u1)
        self.pack(P, A, 16)
        self('v_cndmask_b32 %s, %s, 0, %s\nv_cndmask_b32 %s, %s, 0, %s' % (v(P + 6), v(P + 6), s(sHI, 2), v(P + 7), v(P + 7), s(sHI, 2)))
        self('s_lshl_b32 %s, %s, 15\ns_lshl_b32 %s, %s, 11\ns_add_u32 %s, %s, %s\ns_add_u32 %s, %s, %d'
             % (s(t0), s(sT), s(t1), s(sI), s(t2), s(t0), s(t1), s(t2), s(t2), OF))
        self.vm = ['any']

        def st(sc):
            self.store(P, vL16, WS, s(t2), 0, 'st', sc1=sc)
            self.store(P + 4, vL16, WS, s(t2), 1024, 'st', sc1=sc)
        self.local_stores(st)
        self('s_add_u32 %s, %s, %d' % (s(t5), s(sFID), FLAG2))
        self.publish(s(t5), True)
        self.stamp(4)
        self('s_cmp_ge_u32 %s, 14\ns_cbranch_scc1 L_end' % s(sI))

    def att_slow(self):
        Q, O, S, P, KV, VOV, VST = self.Q, self.O, self.S, self.P, self.KV, self.VOV, self.VST
        A, Qo = O + 48, Q + 24
        self('L_att_slow:\ns_waitcnt vmcnt(0)')
        self.kv_addr(False)
        self('s_mov_b32 %s, %s\nv_mov_b32 %s, 0xff800000\ns_mov_b32 %s, 0\nL_slow1:' % (s(t5), s(t4), v(u3), s(sCNT)))
        self('buffer_load_dwordx4 %s, %s, %s, %s offen sc1' % (v(KV, 4), v(vL16), s(WS, 4), s(t5)))
        self('buffer_load_dwordx4 %s, %s, %s, %s offen offset:1024 sc1' % (v(KV + 4, 4), v(vL16), s(WS, 4), s(t5)))
        self('s_add_u32 %s, %s, 3584\ns_waitcnt vmcnt(0)' % (s(t5), s(t5)))
        self.mfma(S, KV, Qo, None)
        self.mfma(S, KV + 4, Qo + 4, S)
        for k in range(0, 16, 2):
            self('v_max3_f32 %s, %s, %s, %s' % (v(u3), v(u3), v(S + k), v(S + k + 1)))
        self('s_add_u32 %s, %s, 1\ns_cmp_lt_u32 %s, 64\ns_cbranch_scc1 L_slow1' % (s(sCNT), s(sCNT), s(sCNT)))
        self('v_mov_b32 %s, %s\nv_permlane32_swap_b32 %s, %s\nv_max_f32 %s, %s, %s' % (v(u4), v(u3), v(u4), v(u3), v(u3), v(u3), v(u4)))
        for k in range(16):
            self('v_mov_b32 %s, 0' % v(A + k))
        self('s_mov_b32 %s, 0\nL_slow2:' % s(sCNT))
        self('buffer_load_dwordx4 %s, %s, %s, %s offen sc1' % (v(KV, 4), v(vL16), s(WS, 4), s(t4)))
        self('buffer_load_dwordx4 %s, %s, %s, %s offen offset:1024 sc1' % (v(KV + 4, 4), v(vL16), s(WS, 4), s(t4)))
        self('buffer_load_dwordx4 %s, %s, %s, 0 offen sc1' % (v(KV + 8, 4), v(VOV), s(WS, 4)))
        self('buffer_load_dwordx4 %s, %s, %s, 0 offen offset:896 sc1' % (v(KV + 12, 4), v(VOV), s(WS, 4)))
        self('s_add_u32 %s, %s, 3584\nv_add_u32 %s, %s, %s\ns_waitcnt vmcnt(0)' % (s(t4), s(t4), v(VOV), v(VST), v(VOV)))
        self.mfma(S, KV, Qo, None)
        self.mfma(S, KV + 4, Qo + 4, S)
        for k in range(16):
            self('v_sub_f32 %s, %s, %s' % (v(S + k), v(S + k), v(u3)))
        for k in range(16):
            self('v_exp_f32 %s, %s' % (v(S + k), v(S + k)))
        self.pack(P, S, 16)
        self.mfma(A, KV + 8, P, A)
        self.mfma(A, KV + 12, P + 4, A)
        self('s_add_u32 %s, %s, 1\ns_cmp_lt_u32 %s, 64\ns_cbranch_scc1 L_slow2' % (s(sCNT), s(sCNT), s(sCNT)))
        self('v_mov_b32 %s, %s\nv_mov_b32 %s, %s\nv_permlane32_swap_b32 %s, %s' % (v(u0), v(A + 12), v(u1), v(A + 12), v(u0), v(u1)))
        self('s_branch L_att_ok')

    def gemm64(self, nk, frag, wbuf, acc, kh_bytes, woff, ftag):
        self('s_mul_i32 %s, %s, %d\ns_lshl_b32 %s, %s, 6' % (s(t0), s(sKH), kh_bytes, s(t1), s(sKH)))
        self('v_xor_b32 %s, %s, %s\nv_xor_b32 %s, %s, %s' % (v(u5), s(t1), v(vTRa), v(u6), s(t1), v(vTRb)))
        self('v_add_u32 %s, %s, %s\nv_add_u32 %s, %s, %s' % (v(u5), s(t0), v(u5), v(u6), s(t0), v(u6)))

        def rd(k):
            for sl in range(2):
                self.trfrag(wbuf + 8 * (k % 4) + 4 * sl, u5 + sl, woff(k), 'w%d' % k)
        for k in range(3):
            rd(k)
        for k in range(nk):
            if k + 3 < nk:
                rd(k + 3)
            self.wvm(ftag(k))
            self.wlg('w%d' % k)
            for sl in range(2):
                self.mfma(acc + 16 * sl, wbuf + 8 * (k % 4) + 4 * sl, frag + 4 * k, None if k == 0 else acc + 16 * sl)

    def pair_reduce(self, acc, tmp, red):
        self('s_lshl_b32 %s, %s, 12\ns_add_u32 %s, %s, %d\nv_add_u32 %s, %s, %s' % (s(t0), s(sW), s(t0), s(t0), red, v(u0), s(t0), v(vL16)))
        self('v_xor_b32 %s, 0x2000, %s' % (v(u1), v(u0)))
        for q in range(4):
            self.lgi('ds_write_b128 %s, %s offset:%d' % (v(u0), v(acc + 16 + 4 * q, 4), q * 1024), 'pw')
        self.wlg()
        self('s_barrier')
        for q in range(4):
            self.lgi('ds_read_b128 %s, %s offset:%d' % (v(tmp + 4 * q, 4), v(u1), q * 1024), 'pr')
        self.wlg()
        for k in range(0, 16, 2):
            self('v_pk_add_f32 %s, %s, %s' % (v(acc + k, 2), v(acc + k, 2), v(tmp + k, 2)))

    def add_bf16(self, acc, src, tmp):
        for k in range(8):
            self('v_lshlrev_b32 %s, 16, %s\nv_and_b32 %s, 0xffff0000, %s' % (v(tmp + 2 * k), v(src + k), v(tmp + 2 * k + 1), v(src + k)))
        for k in range(0, 16, 2):
            self('v_pk_add_f32 %s, %s, %s' % (v(acc + k, 2), v(acc + k, 2), v(tmp + k, 2)))

    def p3(self):
        FR, WB, ACC = 16, 80, 112
        RED3 = 131072
        assert RED3 % 16384 == 0
        self.vm, self.lg = [], []
        self.colsum_part(WIN2, 144, MISC)
        self('s_lshl_b32 %s, %s, 7\ns_add_u32 %s, %s, %d' % (s(t5), s(sRB), s(t5), s(t5), FLAG2))
        self.poll(s(t5), 16)
        self.stamp(5)
        self('s_lshl_b32 %s, %s, 15\ns_lshl_b32 %s, %s, 14\ns_add_u32 %s, %s, %s\ns_add_u32 %s, %s, %d'
             % (s(t2), s(sT3), s(t1), s(sKH), s(t2), s(t2), s(t1), s(t2), s(t2), OF))
        for k in range(16):
            if k and k % 4 == 0:
                self('s_add_u32 %s, %s, 4096' % (s(t2), s(t2)))
            self.load(FR + 4 * k, vL16, WS, s(t2), (k % 4) * 1024, 'f%d' % k)
        self.colsum_get(144, MISC, vCS2)
        self.gemm64(16, FR, WB, ACC, 8 * 3584, lambda k: (k >> 1) * 3584 + (k & 1) * 2048, lambda k: 'f%d' % k)
        self.pair_reduce(ACC, WB, RED3)
        self.add_bf16(ACC, vHK, WB)
        self.pack(vHK, ACC, 16)
        self('v_pk_mul_f32 %s, %s, %s' % (v(WB, 2), v(ACC, 2), v(ACC, 2)))
        for k in range(2, 16, 2):
            self('v_pk_fma_f32 %s, %s, %s, %s' % (v(WB, 2), v(ACC + k, 2), v(ACC + k, 2), v(WB, 2)))
            self('v_pk_add_f32 %s, %s, %s' % (v(ACC, 2), v(ACC, 2), v(ACC + k, 2)))
        self('v_add_f32 %s, %s, %s\nv_add_f32 %s, %s, %s' % (v(ACC), v(ACC), v(ACC + 1), v(ACC + 1), v(WB), v(WB + 1)))
        self.xhalf_add(ACC, WB)
        self.xhalf_add(ACC + 1, WB)
        self('s_lshl_b32 %s, %s, 1\ns_add_u32 %s, %s, %s' % (s(t0), s(sCB), s(t0), s(t0), s(sKH)))
        self('s_mul_i32 %s, %s, 28672\ns_lshl_b32 %s, %s, 11\ns_add_u32 %s, %s, %s\ns_add_u32 %s, %s, %d'
             % (s(t2), s(sT3), s(t1), s(t0), s(t2), s(t2), s(t1), s(t2), s(t2), HF))
        self('s_lshl_b32 %s, %s, 12\ns_lshl_b32 %s, %s, 8\ns_add_u32 %s, %s, %s\ns_add_u32 %s, %s, %d'
             % (s(t3), s(sT3), s(t1), s(t0), s(t3), s(t3), s(t1), s(t3), s(t3), HST))
        self('v_lshlrev_b32 %s, 3, %s' % (v(u3), v(vM)))

        def st(sc):
            self.store(vHK, vL16, WS, s(t2), 0, 'st', sc1=sc)
            self.store(vHK + 4, vL16, WS, s(t2), 1024, 'st', sc1=sc)
            self.store(ACC, u3, WS, s(t3), 0, 'st', n=2, sc1=sc)
        self.local_stores(st)
        self('s_add_u32 %s, %s, %d' % (s(t5), s(sFID), FLAG3))
        self.publish(s(t5), True)
        self.stamp(6)
        self.srd(SA, P_WIN, 448 * 3584)
        self('s_lshl_b32 %s, %s, 7' % (s(t2), s(sI)))
        self.image_dma(SA, 3584, s(t2), 0, 14, 'W1')

    def zpass(self, base, acc, wait_frag):
        HFR, WB = 16, 128
        self('v_add_u32 %s, %d, %s\nv_add_u32 %s, %d, %s' % (v(u5), base, v(vTRa), v(u6), base, v(vTRb)))

        def rd(k):
            for ct in range(2):
                self.trfrag(WB + 8 * (k % 4) + 4 * ct, u5 + ct, k * 2048, 'w%d' % k)
        for k in range(3):
            rd(k)
        for k in range(28):
            if k + 3 < 28:
                rd(k + 3)
            if wait_frag:
                self.wvm('h%d' % k)
            self.wlg('w%d' % k)
            for ct in range(2):
                self.mfma(acc + 16 * ct, WB + 8 * (k % 4) + 4 * ct, HFR + 4 * k, None if k == 0 else acc + 16 * ct)

    def p4(self):
        HFR, WB, A2, A1 = 16, 128, 160, 192
        self('s_lshl_b32 %s, %s, 7\ns_add_u32 %s, %s, %d' % (s(t5), s(sRB), s(t5), s(t5), FLAG3))
        self.poll(s(t5), 14)
        self.stamp(7)
        self('s_mul_i32 %s, %s, 28672\ns_add_u32 %s, %s, %d' % (s(t2), s(sT), s(t2), s(t2), HF))
        self('s_lshl_b32 %s, %s, 12\ns_add_u32 %s, %s, %d' % (s(t3), s(sT), s(t3), s(t3), HST))
        self('v_mul_u32_u24 %s, 1792, %s\nv_lshl_add_u32 %s, %s, 3, %s' % (v(u0), v(vH), v(u0), v(vM), v(u0)))
        for k in range(28):
            if k and k % 4 == 0:
                self('s_add_u32 %s, %s, 4096' % (s(t2), s(t2)))
            self.load(HFR + 4 * k, vL16, WS, s(t2), (k % 4) * 1024, 'h%d' % k)
            if k == 7:
                for q in range(7):
                    self.load(A1 + 2 * q, u0, WS, s(t3), q * 256, 'hs', n=2)
        self.zpass(WIN2, A2, True)
        for q in range(1, 7):
            self('v_pk_add_f32 %s, %s, %s' % (v(A1, 2), v(A1, 2), v(A1 + 2 * q, 2)))
        self.xhalf_add(A1, A1 + 2)
        self.xhalf_add(A1 + 1, A1 + 2)
        self.mean_rstd(A1, A1 + 1, 448, A1 + 2, vRS)
        self.make_meanfrag(A1 + 2, A1 + 3)
        for ct in range(2):
            self.mfma(A2 + 16 * ct, vCS2 + 4 * ct, vMF, A2 + 16 * ct)
        self('v_mov_b32 %s, %s\nv_mov_b32 %s, %s' % (v(u7), s(sK0), v(u8), s(sK0)))
        self.scale(A2, 32, vRS)
        self.gelu(A2, 32, WB)
        self('v_pk_mul_f32 %s, %s, %s\nv_pk_add_f32 %s, %s, %s'
             % (v(WB + 2, 2), v(A2, 2), v(A2, 2), v(WB, 2), v(A2, 2), v(A2 + 2, 2)))
        for k in range(2, 32, 2):
            self('v_pk_fma_f32 %s, %s, %s, %s' % (v(WB + 2, 2), v(A2 + k, 2), v(A2 + k, 2), v(WB + 2, 2)))
            if k > 2:
                self('v_pk_add_f32 %s, %s, %s' % (v(WB, 2), v(WB, 2), v(A2 + k, 2)))
        self('v_add_f32 %s, %s, %s\nv_add_f32 %s, %s, %s' % (v(WB), v(WB), v(WB + 1), v(WB + 1), v(WB + 2), v(WB + 3)))
        self.xhalf_add(WB, WB + 2)
        self.xhalf_add(WB + 1, WB + 2)
        self('v_mov_b32 %s, %s\nv_mov_b32 %s, %s' % (v(WB + 2), s(sNON), v(WB + 3), s(sNON + 1)))
        self('s_lshl_b32 %s, %s, 13\ns_add_u32 %s, %s, %d\ns_lshl_b32 %s, %s, 9\ns_add_u32 %s, %s, %s'
             % (s(t3), s(sT), s(t3), s(t3), ZST, s(t1), s(sI), s(t2), s(t3), s(t1)))
        self('v_lshlrev_b32 %s, 4, %s\ns_not_b64 exec, %s' % (v(u3), v(vM), s(sHI, 2)))
        self.local_stores(lambda sc: self.store(WB, u3, WS, s(t2), 0, 'zs', sc1=sc))
        self('s_mov_b64 exec, -1')
        self.stamp(8)
        self.wvm('W1')
        self('s_barrier')
        self.colsum_z1()
        self.zpass(0, A1, False)
        self.stamp(9)
        lp = self.lab('zs')
        self('v_mul_u32_u24 %s, 3584, %s\nv_lshl_add_u32 %s, %s, 4, %s\ns_mov_b32 %s, 0\n%s:'
             % (v(u0), v(vH), v(u0), v(vM), v(u0), s(sCNT), lp))
        for q in range(7):
            self('buffer_load_dwordx4 %s, %s, %s, %s offen offset:%d sc1' % (v(WB + 4 * q, 4), v(u0), s(WS, 4), s(t3), q * 512))
        self('s_add_u32 %s, %s, 1\ns_mov_b64 %s, 0\ns_waitcnt vmcnt(0)' % (s(sCNT), s(sCNT), s(t0, 2)))
        for q in range(7):
            self('v_cmp_ne_u64 vcc, %s, %s\ns_or_b64 %s, %s, vcc' % (s(sNON, 2), v(WB + 4 * q + 2, 2), s(t0, 2), s(t0, 2)))
        self('s_cbranch_scc0 %s_d\ns_cmp_lt_u32 %s, %d\ns_cbranch_scc1 %s\n%s_d:' % (lp, s(sCNT), POLL_MAX, lp, lp))
        for q in range(1, 7):
            self('v_pk_add_f32 %s, %s, %s' % (v(WB, 2), v(WB, 2), v(WB + 4 * q, 2)))
        self.xhalf_add(WB, WB + 2)
        self.xhalf_add(WB + 1, WB + 2)
        self.mean_rstd(WB, WB + 1, 896, WB + 2, WB + 4)
        self('v_mul_f32 %s, %s, %s\nv_sub_f32 %s, 0, %s' % (v(WB + 5), v(WB + 2), v(WB + 4), v(WB + 6), v(WB + 5)))
        for k in range(0, 32, 2):
            self('v_pk_fma_f32 %s, %s, %s, %s op_sel_hi:[1,0,0]' % (v(A2 + k, 2), v(A2 + k, 2), v(WB + 4, 2), v(WB + 6, 2)))
        self.pack(WB + 8, A2, 32)
        self('s_lshl_b32 %s, %s, 18\ns_lshl_b32 %s, %s, 12\ns_add_u32 %s, %s, %s\ns_add_u32 %s, %s, %d'
             % (s(t2), s(sI), s(t1), s(sT), s(t2), s(t2), s(t1), s(t2), s(t2), ZF))
        self('v_lshlrev_b32 %s, 2, %s\nv_xor_b32 %s, %s, %s\nv_lshlrev_b32 %s, 4, %s\nv_lshl_add_u32 %s, %s, 9, %s'
             % (v(u0), v(vH), v(u0), v(u0), v(vM), v(u0), v(u0), v(u0), v(vH), v(u0)))
        self('v_xor_b32 %s, 0x80, %s\nv_add_u32 %s, 1024, %s' % (v(u1), v(u0), v(u1), v(u1)))
        for k in range(4):
            self.store(WB + 8 + 4 * k, u0 + (k & 1), WS, s(t2), (k >> 1) * 2048, 'st')
        self('s_lshl_b32 %s, %s, 4\ns_add_u32 %s, %s, %s\ns_lshl_b32 %s, %s, 3\ns_add_u32 %s, %s, %d'
             % (s(t5), s(sI), s(t5), s(t5), s(sRB), s(t5), s(t5), s(t5), s(t5), FLAG5))
        self.publish(s(t5), False)
        self.stamp(10)

    def colsum_z1(self):
        A1 = 192
        self('s_mul_i32 %s, %s, 14336' % (s(t0), s(sW)))
        self('v_add_u32 %s, %s, %s\nv_add_u32 %s, %s, %s' % (v(u0), s(t0), v(vTRa), v(u1), s(t0), v(vTRb)))
        bufs = (128, A1)
        for ct in range(2):
            for q in range(7):
                self.trfrag(bufs[ct] + 4 * q, u0 + ct, q * 2048, 'cs%d' % ct)
        for k in range(4):
            self('v_mov_b32 %s, 0' % v(u2 + k))
        for ct in range(2):
            self.wlg('cs%d' % ct)
            for q in range(28):
                self('v_dot2c_f32_bf16 %s, %s, %s' % (v(u2 + 2 * ct + (q & 1)), s(sONE2), v(bufs[ct] + q)))
        self('v_lshlrev_b32 %s, 5, %s\nv_lshl_add_u32 %s, %s, 2, %s' % (v(u0), v(vM), v(u0), v(vH), v(u0)))
        self('s_lshl_b32 %s, %s, 3\ns_add_u32 %s, %s, %d\nv_add_u32 %s, %s, %s'
             % (s(t0), s(sW), s(t0), s(t0), MISC, v(u0), s(t0), v(u0)))
        self('v_add_f32 %s, %s, %s\nv_add_f32 %s, %s, %s' % (v(u2), v(u2), v(u3), v(u4), v(u4), v(u5)))
        self.lgi('ds_write_b32 %s, %s' % (v(u0), v(u2)), 'csw')
        self.lgi('ds_write_b32 %s, %s offset:1024' % (v(u0), v(u4)), 'csw')
        self.wlg()
        self('s_barrier')
        self.colsum_get(128, MISC, vCS1)

    def p5(self):
        A1, ACC, ZB, WB, WD, WR, ZA, ZD = 192, 16, 48, 80, 96, 100, 104, 106
        NZ, NW = self.o.get('nz', 6), self.o.get('nw', 6)
        ZRING, WRING = 0, NZ * 8192
        assert WRING + 4 * NW * 4096 <= LDS_BYTES
        self.vm, self.lg = [], []
        self.srd(SA, P_WSP, 2048 * 4096)
        self.rowtile_addrs(4096, WD, WR)
        self('s_mul_i32 %s, %s, %d\ns_add_u32 %s, %s, %d\ns_lshl_b32 %s, %s, 17' % (s(t4), s(sW), NW * 4096, s(t4), s(t4), WRING, s(t3), s(sT)))
        for k in range(4):
            self('v_add_u32 %s, %s, %s' % (v(WR + k), s(t4), v(WR + k)))

        def wdma(st):
            self('s_add_u32 m0, %s, %d\ns_add_u32 %s, %s, %d' % (s(t4), (st % NW) * 4096, s(t0), s(t3), st * 128))
            for rg in range(4):
                self.dma(WD + rg, SA, s(t0), rg * 1024, 'W%d' % st)

        def zdma(st):
            self('s_add_u32 m0, %s, %d\ns_add_u32 %s, %s, %d' % (s(t1), (st % NZ) * 8192, s(t0), s(t2), st * 8192))
            self.dma(vL16, WS, s(t0), 0, 'Z%d' % st, sc1=True)
            self.dma(vL16, WS, s(t0), 1024, 'Z%d' % st, sc1=True)
        for st in range(NW):
            wdma(st)
        for ct in range(2):
            self.mfma(A1 + 16 * ct, vCS1 + 4 * ct, vMF, A1 + 16 * ct)
        self.scale(A1, 32, vRS)
        self.gelu(A1, 32, 128)
        self('v_lshlrev_b32 %s, 16, %s' % (v(vBSP), v(vBSP)))
        self('v_bfe_u32 %s, v0, 4, 1\nv_and_b32 %s, 1, v0\nv_lshl_add_u32 %s, %s, 1, %s' % (v(u0), v(u1), v(u0), v(u0), v(u1)))
        self('v_lshlrev_b32 %s, 1, %s\nv_xor_b32 %s, %s, %s\nv_lshlrev_b32 %s, 6, %s\nv_lshl_add_u32 %s, %s, 9, %s'
             % (v(u1), v(vH), v(u1), v(u1), v(u0), v(u1), v(u1), v(u1), v(u0), v(u1)))
        self('v_bfe_u32 %s, v0, 2, 2\nv_lshl_add_u32 %s, %s, 4, %s\nv_bfe_u32 %s, v0, 1, 1\nv_lshl_add_u32 %s, %s, 3, %s'
             % (v(u0), v(u1), v(u0), v(u1), v(u0), v(ZA), v(u0), v(u1)))
        self('v_xor_b32 %s, 64, %s' % (v(ZA + 1), v(ZA)))
        self('s_lshl_b32 %s, %s, 7\ns_add_u32 %s, %s, %d' % (s(t5), s(sI), s(t5), s(t5), FLAG5))
        self.poll(s(t5), 16)
        self.stamp(11)
        self('s_lshl_b32 %s, %s, 11\ns_lshl_b32 %s, %s, 18\ns_add_u32 %s, %s, %s\ns_add_u32 %s, %s, %d'
             % (s(t1), s(sW), s(t2), s(sI), s(t2), s(t2), s(t1), s(t2), s(t2), ZF))
        for st in range(NZ - 1):
            zdma(st)

        def rd(g):
            st, k = divmod(g, 4)
            off = (st % NZ) * 8192 + (k >> 1) * 4096 + (k & 1) * 256
            for ct in range(2):
                d = ZB + 8 * (g % 4) + 4 * ct
                self.tr(d, ZA, off + ct * 2048, 'g%d' % g)
                self.tr(d + 2, ZA + 1, off + ct * 2048, 'g%d' % g)
            self.lgi('ds_read_b128 %s, %s offset:%d' % (v(WB + 4 * (g % 4), 4), v(WR + k), (st % NW) * 4096), 'g%d' % g)
        self.wvm('Z0')
        self('s_barrier')
        rd(0)
        rd(1)
        for g in range(128):
            st, k = divmod(g, 4)
            if k == 2 and st + 1 < 32:
                self.wvm('Z%d' % (st + 1))
                self.wvm('W%d' % (st + 1))
                self('s_barrier')
                if st + NZ - 1 < 32:
                    zdma(st + NZ - 1)
                if st >= 1 and st - 1 + NW < 32:
                    wdma(st - 1 + NW)
            if g + 2 < 128:
                rd(g + 2)
            self.wlg('g%d' % g)
            for ct in range(2):
                self.mfma(ACC + 16 * ct, ZB + 8 * (g % 4) + 4 * ct, WB + 4 * (g % 4), None if g == 0 else ACC + 16 * ct)
        self.stamp(12)
        e = vBSP & ~1
        for k in range(0, 32, 2):
            self('v_pk_add_f32 %s, %s, %s op_sel_hi:[1,0]' % (v(ACC + k, 2), v(ACC + k, 2), v(e, 2)))
            self('v_pk_mul_f32 %s, %s, %s' % (v(ACC + k, 2), v(ACC + k, 2), v(A1 + k, 2)))
        self.pack(ZB, ACC, 32)
        self('s_mul_i32 %s, %s, 57344\ns_lshl_b32 %s, %s, 12\ns_add_u32 %s, %s, %s\ns_add_u32 %s, %s, %d'
             % (s(t2), s(sT), s(t1), s(sI), s(t2), s(t2), s(t1), s(t2), s(t2), UF))

        def st_(sc):
            for k in range(4):
                self.store(ZB + 4 * k, vL16, WS, s(t2), k * 1024, 'st', sc1=sc)
        self.local_stores(st_)
        self('s_add_u32 %s, %s, %d' % (s(t5), s(sFID), FLAG6))
        self.publish(s(t5), True)
        self.stamp(13)

    def p6(self):
        FR, WB, ACC = 16, 128, 160
        self.vm, self.lg = [], []
        self.srd(SA, P_WOUT, 896 * 896)
        self('s_lshl_b32 %s, %s, 7' % (s(t2), s(sCB)))
        self.image_dma(SA, 896, s(t2), 0, 28, 'WT')
        self.wvm()
        self('s_lshl_b32 %s, %s, 7\ns_add_u32 %s, %s, %d' % (s(t5), s(sRB), s(t5), s(t5), FLAG6))
        self.poll(s(t5), 14)
        self.stamp(14)
        self('s_mul_i32 %s, %s, 57344\ns_mul_i32 %s, %s, 28672\ns_add_u32 %s, %s, %s\ns_add_u32 %s, %s, %d'
             % (s(t2), s(sT3), s(t1), s(sKH), s(t2), s(t2), s(t1), s(t2), s(t2), UF))
        for k in range(28):
            if k and k % 4 == 0:
                self('s_add_u32 %s, %s, 4096' % (s(t2), s(t2)))
            self.load(FR + 4 * k, vL16, WS, s(t2), (k % 4) * 1024, 'f%d' % k)
        self.gemm64(28, FR, WB, ACC, 57344, lambda k: k * 2048, lambda k: 'f%d' % k)
        self.pair_reduce(ACC, WB, 131072)
        self.add_bf16(ACC, vHK, WB)
        self.pack(WB, ACC, 16)
        self.srd(SA, P_OUT, 2048 * 896)
        self('s_mul_i32 %s, %s, %d\ns_lshl_b32 %s, %s, 7\ns_add_u32 %s, %s, %s\ns_lshl_b32 %s, %s, 6\ns_add_u32 %s, %s, %s'
             % (s(t0), s(sT3), 32 * 896, s(t1), s(sCB), s(t0), s(t0), s(t1), s(t1), s(sKH), s(t0), s(t0), s(t1)))
        self('v_mul_u32_u24 %s, 896, %s\nv_lshl_add_u32 %s, %s, 4, %s' % (v(u0), v(vM), v(u0), v(vH), v(u0)))
        self.store(WB, u0, SA, s(t0), 0, 'st', sc1=False)
        self.store(WB + 4, u0, SA, s(t0), 32, 'st', sc1=False)
        self.stamp(15)

    def build(self):
        stop = self.o.get('stop', 6)
        self.prologue()
        for k, ph in enumerate((self.p1, self.p2, self.p3, self.p4, self.p5, self.p6), 1):
            if k <= stop:
                ph()
        self('L_end:\ns_endpgm')
        if stop >= 2:
            self.att_slow()
        npad = self.a.pad()
        errs = []
        for take in ((), ('L_p1_V',), ('L_p1_N',), ('L_att_slow',)):
            errs += self.a.check_waits(take)
        for e in sorted(set(errs)):
            print('WAITCHECK', e, file=sys.stderr)
        ref = open('cdna_kernels/%s.s.ref' % NAME).read().split('\n')
        head = [l for l in ref if l.startswith(';') and '@launch' not in l and 'Override' not in l and 'grid=ceil' not in l
                and l == l.lstrip()]
        out = '\n'.join(head) + '\n'
        out += '; @launch grid=(256,1,1) block=(256,1,1) lds=%d\n' % LDS_BYTES
        out += '.amdgcn_target "amdgcn-amd-amdhsa--gfx950"\n.text\n.globl %s_kernel\n.p2align 8\n' % NAME
        out += '.type %s_kernel,@function\n%s_kernel:\n' % (NAME, NAME)
        out += self.a.text()
        out += '.section .rodata,"a"\n.p2align 6\n.amdhsa_kernel %s_kernel\n' % NAME
        out += ('  .amdhsa_next_free_vgpr 512\n  .amdhsa_next_free_sgpr 102\n  .amdhsa_accum_offset 256\n'
                '  .amdhsa_group_segment_fixed_size 0\n  .amdhsa_kernarg_size 88\n  .amdhsa_user_sgpr_count 2\n'
                '  .amdhsa_user_sgpr_kernarg_segment_ptr 1\n  .amdhsa_system_sgpr_workgroup_id_x 1\n'
                '.end_amdhsa_kernel\n')
        if self.o.get('showpads'):
            for k, x in enumerate(self.a.L):
                if x.note == 'pad':
                    print(k, x.text, '| prev:', self.a.L[k - 1].text, '| next:', self.a.L[k + 1].text, file=sys.stderr)
        print('instructions %d, pads %d, waitcheck errors %d' % (len(self.a.L), npad, len(set(errs))), file=sys.stderr)
        return out


if __name__ == '__main__':
    opt = {}
    dst = sys.argv[1]
    for a in sys.argv[2:]:
        k, _, val = a.partition('=')
        opt[k] = int(val) if val.isdigit() else (val or 1)
    open(dst, 'w').write(G(opt).build())
```

```python
import sys
import math
import struct
import copy
from asmlib import Asm

NAME = 'sequential_preLN__mha_block__mixer_gmlp__prompt'

FLAG1, FLAG2, FLAG3, FLAG5, FLAG6 = 0x0000, 0x1000, 0x2000, 0x3000, 0x4000
ONES, PROF = 0x40000, 0x80000
ZST, HST = 0x100000, 0x180000
KF, VF, OF, HF, ZF, UF = 0x200000, 0x400000, 0x600000, 0x800000, 0xA00000, 0xE00000
WS_BYTES = 0x1200000

XB = 57344
WQB = 106496
MISC = 155648
RSX = 157696
WIN2 = 57344
RED = 114688
LDS_BYTES = 163840

P_X, P_WQKV, P_WO, P_WIN, P_WSP, P_BSP, P_WOUT, P_OUT, P_DBG, P_WS = 4, 6, 8, 12, 14, 16, 18, 20, 22, 24
sW, sRB, sI, sXCC, sNON, sFAST = 26, 27, 44, 45, 46, 48
WS, SA, SB, SC = 28, 32, 36, 40
sHI = 50
sONE2 = 52
sT = 54
sCB, sKH, sT3 = 55, 56, 57
sK0, sK1 = 58, 60
t0, t1, t2, t3, t4, t5, t6, t7 = 62, 63, 64, 65, 66, 67, 68, 69
sSAVE = 70
sCNT = 72
sPT = 74
sB = 76
sM0, sSO = 80, 81
sFID = 77

vL, vH, vM, vL16, vTRa, vTRb, vPM = 0, 1, 2, 3, 4, 5, 6
u0, u1, u2, u3, u4, u5, u6, u7, u8 = 7, 8, 9, 10, 11, 12, 13, 14, 15
vCS1, vCS2, vMF, vHK, vBSP, vRS = 224, 232, 240, 244, 252, 253

POLL_MAX = 20000


def f32(x):
    return '0x%08x' % struct.unpack('<I', struct.pack('<f', x))[0]


def v(a, n=1):
    return 'v%d' % a if n == 1 else 'v[%d:%d]' % (a, a + n - 1)


def s(a, n=1):
    return 's%d' % a if n == 1 else 's[%d:%d]' % (a, a + n - 1)


class G:
    def __init__(self, opt):
        self.o = opt
        self.a = Asm()
        self.vm = []
        self.lg = []
        self.nlab = 0
        self.names = []
        self.q = []

    def __call__(self, t):
        self.a(t)

    def lab(self, p):
        self.nlab += 1
        return 'L_%s_%d' % (p, self.nlab)

    def vmi(self, text, tag):
        self.a(text)
        self.vm.append(tag)

    def lgi(self, text, tag):
        self.a(text)
        self.lg.append(tag)

    def _n(self, q, tag):
        idx = [k for k, t in enumerate(q) if t == tag]
        return None if not idx else len(q) - 1 - idx[-1]

    def wvm(self, tag=None):
        n = 0 if tag is None else self._n(self.vm, tag)
        if n is None:
            return
        self.a('s_waitcnt vmcnt(%d)' % n)
        self.vm = self.vm[len(self.vm) - n:]

    def wlg(self, tag=None):
        n = 0 if tag is None else self._n(self.lg, tag)
        if n is None:
            return
        n = min(n, 15)
        self.a('s_waitcnt lgkmcnt(%d)' % n)
        self.lg = self.lg[len(self.lg) - n:]

    def srd(self, r, ptr, nbytes):
        self('s_mov_b32 %s, %s\ns_mov_b32 %s, %s\ns_mov_b32 %s, 0x%x\ns_mov_b32 %s, 0x20000'
             % (s(r), s(ptr), s(r + 1), s(ptr + 1), s(r + 2), nbytes, s(r + 3)))

    def bg(self, n=1):
        for _ in range(n):
            if self.q:
                self.q.pop(0)()

    def image_ops(self, va, srd, stride, col_soff, lds_base, ninstr, tag):
        self('v_lshrrev_b32 %s, 3, %s\nv_mul_u32_u24 %s, %d, %s' % (v(va), v(vL), v(va), stride, v(va)))
        self('v_bfe_u32 %s, %s, 4, 1\nv_lshlrev_b32 %s, 2, %s' % (v(va + 1), v(vL), v(va + 1), v(va + 1)))
        self('v_xor_b32 %s, %s, %s\nv_and_b32 %s, 7, %s' % (v(va + 1), v(va + 1), v(vL), v(va + 1), v(va + 1)))
        self('v_lshl_add_u32 %s, %s, 4, %s' % (v(va), v(va + 1), v(va)))
        self('s_mul_i32 %s, %s, %d\ns_add_u32 %s, %s, %s' % (s(t0), s(sW), ninstr * 8 * stride, s(t0), s(t0), col_soff))
        self('v_add_u32 %s, %s, %s\nv_add_u32 %s, %d, %s' % (v(va), s(t0), v(va), v(va + 1), 8 * stride - 1024, v(va)))
        ops = []
        for q in range(ninstr):
            def op(q=q):
                if q % 2 == 0:
                    if q == 0:
                        self('s_mul_i32 %s, %s, %d\ns_add_u32 m0, %s, %d\ns_mov_b32 %s, 0'
                             % (s(sM0), s(sW), ninstr * 1024, s(sM0), lds_base, s(sSO)))
                    else:
                        self('s_add_u32 m0, %s, %d\ns_mov_b32 %s, %d' % (s(sM0), lds_base + q * 1024, s(sSO), q * 8 * stride))
                self.dma(va + (q & 1), srd, s(sSO), (q & 1) * 1024, tag)
            ops.append(op)
        return ops

    def mfma(self, d, a_, b, c=None, pa='v', pb='v'):
        cs = '0' if c is None else v(c, 16)
        self('v_mfma_f32_32x32x16_bf16 %s, %s[%d:%d], %s[%d:%d], %s'
             % (v(d, 16), pa, a_, a_ + 3, pb, b, b + 3, cs))

    def mfsum(self, d, b, first, pb='v'):
        self('v_mfma_f32_16x16x32_bf16 %s, a[252:255], %s[%d:%d], %s' % (v(d, 4), pb, b, b + 3, '0' if first else v(d, 4)))

    def tr(self, dst, addr, off, tag):
        self.lgi('ds_read_b64_tr_b16 %s, %s offset:%d' % (v(dst, 2), v(addr), off), tag)

    def trfrag(self, dst, addr, off, tag, step=512):
        self.tr(dst, addr, off, tag)
        self.tr(dst + 2, addr, off + step, tag)

    def load(self, dst, voff, srd, soff, imm, tag, n=4, sc1=True, pfx='v'):
        op = {4: 'dwordx4', 2: 'dwordx2', 1: 'dword'}[n]
        d = '%s%d' % (pfx, dst) if n == 1 else '%s[%d:%d]' % (pfx, dst, dst + n - 1)
        self.vmi('buffer_load_%s %s, %s, %s, %s offen offset:%d%s'
                 % (op, d, v(voff), s(srd, 4), soff, imm, ' sc1' if sc1 else ''), tag)

    def dma(self, voff, srd, soff, imm, tag, sc1=False):
        self.vmi('buffer_load_dwordx4 %s, %s, %s offen offset:%d%s lds'
                 % (v(voff), s(srd, 4), soff, imm, ' sc1' if sc1 else ''), tag)

    def store(self, src, voff, srd, soff, imm, tag, n=4, sc1=True):
        op = {4: 'dwordx4', 2: 'dwordx2', 1: 'dword'}[n]
        self.vmi('buffer_store_%s %s, %s, %s, %s offen offset:%d%s'
                 % (op, v(src, n), v(voff), s(srd, 4), soff, imm,
                    ' sc1' if sc1 else (' ' + self.o['plainmod'] if srd == WS and self.o.get('plainmod') else '')), tag)

    def local_stores(self, emit):
        emit(True)

    def publish(self, flag_soff, local=False):
        self('v_mov_b32 %s, %s\nv_mov_b32 %s, %s\ns_cmp_eq_u32 %s, 0' % (v(u1), s(sNON), v(u2), s(sNON + 1), s(sW)))
        self.wvm()
        self('s_barrier')
        sk = self.lab('pub')
        self('s_cbranch_scc0 %s\ns_mov_b64 exec, 1' % sk)
        self('buffer_store_dwordx2 %s, v0, %s, %s offen sc1' % (v(u1, 2), s(WS, 4), flag_soff))
        self('s_mov_b64 exec, -1\n%s:' % sk)

    def poll(self, flag_soff, nflags):
        sk, lp = self.lab('pollskip'), self.lab('poll')
        self('s_cmp_eq_u32 %s, 0\ns_cbranch_scc0 %s' % (s(sW), sk))
        self('v_lshlrev_b32 %s, 3, %s' % (v(u0), v(vL)))
        self('s_mov_b64 exec, 0x%x' % ((1 << nflags) - 1))
        self('s_mov_b32 %s, 0\n%s:' % (s(sCNT), lp))
        self('buffer_load_dwordx2 %s, %s, %s, %s offen sc1' % (v(u1, 2), v(u0), s(WS, 4), flag_soff))
        self('s_add_u32 %s, %s, 1' % (s(sCNT), s(sCNT)))
        self('s_waitcnt vmcnt(0)')
        self('v_cmp_ne_u64 vcc, %s, %s' % (s(sNON, 2), v(u1, 2)))
        self('s_cbranch_vccz %s_d' % lp)
        self('s_cmp_lt_u32 %s, %d\ns_cbranch_scc1 %s' % (s(sCNT), POLL_MAX, lp))
        self('%s_d:\ns_mov_b64 exec, -1\n%s:' % (lp, sk))
        self('s_barrier')

    def stamp(self, name, real=False):
        if not self.o.get('prof'):
            return
        if name not in self.names:
            self.names.append(name)
        k = self.names.index(name)
        assert k < 62
        self('s_memtime s[78:79]\ns_waitcnt lgkmcnt(0)\nv_writelane_b32 v255, s78, %d' % k)
        self.lg = []
        if real:
            self('s_memrealtime s[78:79]\ns_waitcnt lgkmcnt(0)\nv_writelane_b32 v255, s78, %d' % (62 if k == 0 else 63))

    def stamp_flush(self):
        if not self.o.get('prof'):
            return
        self('s_lshl_b32 %s, %s, 2\ns_add_u32 %s, %s, %s\ns_lshl_b32 %s, %s, 8\ns_add_u32 %s, %s, %d'
             % (s(t7), s(sB), s(t7), s(t7), s(sW), s(t7), s(t7), s(t7), s(t7), PROF))
        self('v_lshlrev_b32 v254, 2, v0\nbuffer_store_dword v255, v254, %s, %s offen' % (s(WS, 4), s(t7)))

    def xhalf_add(self, r, tmp):
        self('v_mov_b32 %s, %s\nv_permlane32_swap_b32 %s, %s\nv_add_f32 %s, %s, %s'
             % (v(tmp), v(r), v(tmp), v(r), v(r), v(r), v(tmp)))

    def xhalf_add2(self, r, tmp):
        self('v_mov_b32 %s, %s\nv_mov_b32 %s, %s\ns_nop 0\nv_permlane32_swap_b32 %s, %s\nv_permlane32_swap_b32 %s, %s'
             % (v(tmp), v(r), v(tmp + 1), v(r + 1), v(tmp), v(r), v(tmp + 1), v(r + 1)))
        self('v_add_f32 %s, %s, %s\nv_add_f32 %s, %s, %s' % (v(r), v(r), v(tmp), v(r + 1), v(r + 1), v(tmp + 1)))

    def mean_rstd(self, vsum, vsq, n, mean, rstd):
        self('v_mul_f32 %s, %s, %s' % (v(mean), f32(1.0 / n), v(vsum)))
        self('v_mul_f32 %s, %s, %s' % (v(rstd), f32(1.0 / n), v(vsq)))
        self('v_fma_f32 %s, -%s, %s, %s' % (v(rstd), v(mean), v(mean), v(rstd)))
        self('v_max_f32 %s, 0, %s\nv_add_f32 %s, %s, %s' % (v(rstd), v(rstd), v(rstd), f32(1e-5), v(rstd)))
        self('v_rsq_f32 %s, %s' % (v(rstd), v(rstd)))

    def make_meanfrag(self, mean, tmp):
        self('v_sub_f32 %s, 0, %s\nv_cndmask_b32 %s, %s, 0, %s' % (v(tmp), v(mean), v(tmp), v(tmp), s(sHI, 2)))
        self('v_cvt_pk_bf16_f32 %s, %s, 0\nv_lshlrev_b32 %s, 16, %s' % (v(vMF + 1), v(tmp), v(vMF), v(vMF + 1)))
        self('v_sub_f32 %s, %s, %s\nv_cvt_pk_bf16_f32 %s, %s, %s' % (v(vMF), v(tmp), v(vMF), v(vMF), v(tmp), v(vMF)))
        self('v_mov_b32 %s, 0\nv_mov_b32 %s, 0' % (v(vMF + 2), v(vMF + 3)))

    def make_csfrag(self, cs, dst):
        self('v_cvt_pk_bf16_f32 %s, %s, %s\nv_and_b32 %s, 0xffff0000, %s' % (v(dst), v(cs), v(cs), v(dst + 1), v(dst)))
        self('v_sub_f32 %s, %s, %s\nv_cvt_pk_bf16_f32 %s, %s, 0' % (v(dst + 1), v(cs), v(dst + 1), v(dst + 1), v(dst + 1)))
        self('v_mov_b32 %s, 0\nv_mov_b32 %s, 0' % (v(dst + 2), v(dst + 3)))

    def colsum_put(self, c0, c1, xch):
        self('s_lshl_b32 %s, %s, 2\ns_add_u32 %s, %s, %d\nv_lshl_add_u32 %s, %s, 4, %s'
             % (s(t0), s(sW), s(t0), s(t0), xch, v(u0), v(vM), s(t0)))
        self.lgi('ds_write_b32 %s, %s' % (v(u0), v(c0)), 'csw')
        self.lgi('ds_write_b32 %s, %s offset:512' % (v(u0), v(c1)), 'csw')

    def colsum_part(self, base, bufs, acc, xch):
        self('s_mul_i32 %s, %s, 14336\ns_add_u32 %s, %s, %d' % (s(t0), s(sW), s(t0), s(t0), base))
        self('v_add_u32 %s, %s, %s\nv_add_u32 %s, %s, %s' % (v(u0), s(t0), v(vTRa), v(u1), s(t0), v(vTRb)))
        for q in range(7):
            for ct in range(2):
                self.trfrag(bufs[ct] + 4 * q, u0 + ct, q * 2048, 'cs%d' % q)
        for q in range(7):
            self.wlg('cs%d' % q)
            for ct in range(2):
                self.mfsum(acc + 4 * ct, bufs[ct] + 4 * q, q == 0)
        self.colsum_put(acc, acc + 4, xch)

    def colsum_get(self, buf, xch, dst):
        self('v_lshlrev_b32 %s, 4, %s' % (v(u0), v(vM)))
        self('v_add_u32 %s, %d, %s' % (v(u0), xch, v(u0)))
        for ct in range(2):
            self.lgi('ds_read_b128 %s, %s offset:%d' % (v(buf + 4 * ct, 4), v(u0), ct * 512), 'csr')
        self.wlg('csr')
        for ct in range(2):
            b = buf + 4 * ct
            self('v_add_f32 %s, %s, %s\nv_add_f32 %s, %s, %s\nv_add_f32 %s, %s, %s'
                 % (v(b), v(b), v(b + 1), v(b + 2), v(b + 2), v(b + 3), v(b), v(b), v(b + 2)))
            self.make_csfrag(b, dst + 4 * ct)

    def rowtile_dma_addrs(self, stride, vd, sbase):
        self('v_lshrrev_b32 %s, 3, %s\nv_mul_u32_u24 %s, %d, %s' % (v(u0), v(vL), v(u0), stride, v(u0)))
        self('v_lshrrev_b32 %s, 4, %s\nv_xor_b32 %s, %s, %s\nv_and_b32 %s, 7, %s'
             % (v(u1), v(vL), v(u1), v(u1), v(vL), v(u1), v(u1)))
        self('v_lshl_add_u32 %s, %s, 4, %s\nv_xor_b32 %s, 64, %s' % (v(u0), v(u1), v(u0), v(u1), v(u0)))
        self('v_add_u32 %s, %s, %s\nv_add_u32 %s, %s, %s' % (v(vd), sbase, v(u0), v(u1), sbase, v(u1)))
        d = 8 * stride - 1024
        self('v_add_u32 %s, %d, %s\nv_add_u32 %s, %d, %s\nv_add_u32 %s, %d, %s'
             % (v(vd + 1), d, v(u1), v(vd + 2), 2 * d, v(vd), v(vd + 3), 3 * d, v(u1)))

    def rowtile_read_addrs(self, vr, sbase, sxor=None):
        self('v_bfe_u32 %s, %s, 1, 3\nv_xor_b32 %s, %s, %s' % (v(u1), v(vM), v(u1), v(u1), v(vH)))
        self('v_lshlrev_b32 %s, 4, %s\nv_lshl_add_u32 %s, %s, 7, %s' % (v(u1), v(u1), v(u1), v(vM), v(u1)))
        if sxor:
            self('v_xor_b32 %s, %s, %s' % (v(u1), sxor, v(u1)))
        for k in range(4):
            self('v_xor_b32 %s, %d, %s\nv_add_u32 %s, %s, %s' % (v(vr + k), 32 * k, v(u1), v(vr + k), sbase, v(vr + k)))

    def gelu(self, x, n, tmp, nbg):
        for b in range(0, n, 8):
            for k in range(0, 8, 2):
                self('v_pk_mul_f32 %s, %s, %s' % (v(tmp + k, 2), v(x + b + k, 2), v(x + b + k, 2)))
            for k in range(0, 8, 2):
                self('v_pk_fma_f32 %s, %s, %s, %s' % (v(tmp + k, 2), v(tmp + k, 2), s(sK1, 2), v(u7, 2)))
            for k in range(0, 8, 2):
                self('v_pk_mul_f32 %s, %s, %s' % (v(tmp + k, 2), v(tmp + k, 2), v(x + b + k, 2)))
            for k in range(8):
                self('v_exp_f32 %s, %s' % (v(tmp + k), v(tmp + k)))
            for k in range(0, 8, 2):
                self('v_pk_add_f32 %s, %s, 1.0 op_sel_hi:[1,0]' % (v(tmp + k, 2), v(tmp + k, 2)))
            for k in range(8):
                self('v_rcp_f32 %s, %s' % (v(tmp + k), v(tmp + k)))
            self.bg(nbg)
            for k in range(0, 8, 2):
                self('v_pk_mul_f32 %s, %s, %s' % (v(x + b + k, 2), v(x + b + k, 2), v(tmp + k, 2)))

    def scale(self, x, n, r):
        e = r & ~1
        sel = 'op_sel:[0,1] op_sel_hi:[1,1]' if r & 1 else 'op_sel_hi:[1,0]'
        for k in range(0, n, 2):
            self('v_pk_mul_f32 %s, %s, %s %s' % (v(x + k, 2), v(x + k, 2), v(e, 2), sel))

    def pack(self, dst, x, n):
        for k in range(0, n, 2):
            self('v_cvt_pk_bf16_f32 %s, %s, %s' % (v(dst + k // 2), v(x + k), v(x + k + 1)))

    XF, ACC1, GR, SUM, CSA, XD, XR, WD, WT, QD, NONV, SAD, TB = 16, 128, 160, 176, 180, 188, 192, 196, 198, 206, 208, 210, 214
    sROT = 49

    def prologue(self):
        XD, WD = self.XD, self.WD
        self('s_cmp_ge_u32 s2, 256\ns_cbranch_scc1 L_end')
        self.stamp('start', True)
        self('s_load_dwordx16 s[4:19], s[0:1], 0\ns_load_dwordx4 s[20:23], s[0:1], 64\ns_load_dwordx2 s[24:25], s[0:1], 80')
        self('v_lshrrev_b32 v1, 6, v0\nv_and_b32 v0, 63, v0\nv_readfirstlane_b32 %s, v1\ns_mov_b32 %s, s2' % (s(sW), s(sB)))
        self('s_bfe_u32 %s, s2, 0x20001\ns_lshl_b32 %s, %s, 2\ns_lshr_b32 %s, s2, 6\ns_add_u32 %s, %s, %s'
             % (s(t0), s(t0), s(t0), s(t1), s(sRB), s(t0), s(t1)))
        self('s_bfe_u32 %s, s2, 0x30003\ns_lshl_b32 %s, %s, 1\ns_and_b32 %s, s2, 1\ns_add_u32 %s, %s, %s'
             % (s(sCB), s(t0), s(sCB), s(t2), s(sI), s(t0), s(t2)))
        self('s_lshl_b32 %s, %s, 1\ns_add_u32 %s, %s, %s\ns_cmp_ge_u32 %s, 7\ns_cselect_b32 %s, 7, 0\ns_sub_u32 %s, %s, %s'
             % (s(t1), s(t1), s(t1), s(t1), s(sCB), s(t1), s(t0), s(self.sROT), s(t1), s(t0)))
        self('s_lshl_b32 %s, %s, 2\ns_add_u32 %s, %s, %s\ns_mul_i32 %s, %s, %d' % (s(sT), s(sRB), s(sT), s(sT), s(sW), s(t2), s(sT), 32 * 896))
        self.rowtile_dma_addrs(896, XD, s(t2))
        self('v_lshrrev_b32 %s, 3, v0\nv_mul_u32_u24 %s, 2688, %s\nv_bfe_u32 %s, v0, 4, 1\nv_lshlrev_b32 %s, 2, %s'
             % (v(u0), v(u0), v(u0), v(u1), v(u1), v(u1)))
        self('v_xor_b32 %s, %s, v0\nv_and_b32 %s, 7, %s\nv_lshl_add_u32 %s, %s, 4, %s' % (v(u1), v(u1), v(u1), v(u1), v(u0), v(u1), v(u0)))
        self('s_mul_i32 %s, %s, 43008\ns_lshl_b32 %s, %s, 7\ns_add_u32 %s, %s, %s\ns_add_u32 %s, %s, 896\ns_lshl_b32 %s, %s, 11'
             % (s(t0), s(sW), s(t1), s(sI), s(t0), s(t0), s(t1), s(t0), s(t0), s(t3), s(sW)))
        self('v_add_u32 %s, %s, %s\nv_add_u32 %s, %d, %s' % (v(WD), s(t0), v(u0), v(WD + 1), 8 * 2688 - 1024, v(WD)))
        self('s_mul_i32 %s, %s, 12288\ns_add_u32 %s, %s, %d' % (s(t4), s(sW), s(t4), s(t4), XB))
        self('s_mov_b32 %s, 0x%x\ns_mov_b32 %s, 0x20000\ns_mov_b32 %s, 0x%x\ns_mov_b32 %s, 0x20000'
             % (s(SA + 2), 2048 * 896, s(SA + 3), s(SB + 2), 448 * 2688, s(SB + 3)))
        self('s_mov_b32 %s, %s' % (s(t5), s(self.sROT)))
        self('s_cmp_ge_u32 %s, 14\ns_waitcnt lgkmcnt(0)' % s(sI))
        self('s_mov_b32 %s, %s\ns_mov_b32 %s, %s\ns_mov_b32 %s, %s\ns_mov_b32 %s, %s'
             % (s(SA), s(P_X), s(SA + 1), s(P_X + 1), s(SB), s(P_WQKV), s(SB + 1), s(P_WQKV + 1)))

    def setup2(self):
        XR, WT, QD = self.XR, self.WT, self.QD
        self.srd(WS, P_WS, WS_BYTES)
        self.srd(SC, P_DBG, 256)
        sk = self.lab('non')
        self('s_or_b32 %s, %s, %s\ns_cmp_eq_u32 %s, 0\ns_cbranch_scc0 %s' % (s(t0), s(sB), s(sW), s(t0), sk))
        self('s_memrealtime %s\ns_waitcnt lgkmcnt(0)\ns_or_b32 %s, %s, 0x80000000' % (s(t6, 2), s(t7), s(t7)))
        self('v_mov_b32 %s, %s\nv_mov_b32 %s, %s\ns_mov_b64 exec, 1' % (v(u1), s(t6), v(u2), s(t7)))
        self('buffer_store_dwordx2 %s, v0, %s, 0 offen sc1\ns_mov_b64 exec, -1\n%s:' % (v(u1, 2), s(SC, 4), sk))
        lp = self.lab('pc')
        self('s_getpc_b64 %s\n%s:\ns_sub_u32 %s, %s, %s-%s_kernel\ns_subb_u32 %s, %s, 0' % (s(84, 2), lp, s(84), s(84), lp, NAME, s(85), s(85)))
        self('s_mov_b32 s86, L_code_end-%s_kernel\ns_mov_b32 s87, 0x20000' % NAME)
        self('s_lshr_b32 %s, %s, 3\ns_lshl_b32 %s, %s, 2\ns_add_u32 %s, %s, %s\ns_lshl_b32 %s, %s, 9\nv_lshlrev_b32 %s, 3, v0'
             % (s(t0), s(sB), s(t0), s(t0), s(t0), s(t0), s(sW), s(t0), s(t0), v(u0)))
        self.load(250, u0, 84, s(t0), 0, 'code', n=2, sc1=False, pfx='a')
        self('s_mov_b32 %s, 0\ns_mov_b32 %s, -1\ns_mov_b32 %s, 0x3f803f80' % (s(sHI), s(sHI + 1), s(sONE2)))
        k0 = -2.0 * math.sqrt(2.0 / math.pi) * math.log2(math.e)
        self('s_mov_b32 %s, %s' % (s(sK0), f32(k0)))
        self('s_mov_b32 %s, %s\ns_mov_b32 %s, %s' % (s(sK1), f32(k0 * 0.044715), s(sK1 + 1), f32(k0 * 0.044715)))
        self('s_lshl_b32 %s, %s, 4\ns_add_u32 %s, %s, %s\ns_lshl_b32 %s, %s, 3' % (s(sFID), s(sRB), s(sFID), s(sFID), s(sI), s(sFID), s(sFID)))
        self('s_and_b32 %s, %s, 1\ns_lshl_b32 %s, %s, 1\ns_lshr_b32 %s, %s, 1' % (s(t1), s(sI), s(t1), s(t1), s(sKH), s(sW)))
        self('s_lshl_b32 %s, %s, 2\ns_add_u32 %s, %s, %s\ns_and_b32 %s, %s, 1\ns_add_u32 %s, %s, %s'
             % (s(sT3), s(sRB), s(sT3), s(sT3), s(t1), s(t0), s(sW), s(sT3), s(sT3), s(t0)))
        self('v_lshrrev_b32 %s, 5, v0\nv_and_b32 %s, 31, v0\nv_lshlrev_b32 %s, 4, v0' % (v(vH), v(vM), v(vL16)))
        self('v_bfe_u32 %s, v0, 2, 2\nv_lshl_add_u32 %s, %s, 3, %s\nv_lshlrev_b32 %s, 7, %s'
             % (v(u0), v(u1), v(vH), v(u0), v(vTRa), v(u1)))
        self('v_bfe_u32 %s, v0, 4, 1\nv_and_b32 %s, 1, v0\nv_lshl_add_u32 %s, %s, 1, %s' % (v(u1), v(u2), v(u1), v(u1), v(u2)))
        self('v_bfe_u32 %s, v0, 3, 1\nv_lshlrev_b32 %s, 2, %s\nv_xor_b32 %s, %s, %s' % (v(u2), v(u2), v(u2), v(u2), v(u2), v(u1)))
        self('v_lshl_add_u32 %s, %s, 4, %s\nv_bfe_u32 %s, v0, 1, 1\nv_lshl_add_u32 %s, %s, 3, %s'
             % (v(vTRa), v(u2), v(vTRa), v(u2), v(vTRa), v(u2), v(vTRa)))
        self('v_xor_b32 %s, 64, %s' % (v(vTRb), v(vTRa)))
        self('v_and_b32 %s, 0x13, %s\nv_bfe_u32 %s, v0, 2, 1\nv_lshl_or_b32 %s, %s, 3, %s'
             % (v(vPM), v(vM), v(u0), v(vPM), v(u0), v(vPM)))
        self('v_bfe_u32 %s, v0, 3, 1\nv_lshl_or_b32 %s, %s, 2, %s' % (v(u1), v(vPM), v(u1), v(vPM)))
        self('v_bfe_u32 %s, v0, 4, 1\nv_cmp_eq_u32 vcc, %s, %s\nv_mov_b32 %s, %s\nv_cndmask_b32 %s, 0, %s, vcc'
             % (v(u1), v(u0), v(u1), v(u1), s(sONE2), v(u1), v(u1)))
        for k in range(4):
            self('v_accvgpr_write_b32 a%d, %s' % (252 + k, v(u1)))
        self('s_lshl_b32 %s, %s, 5' % (s(t1), s(sW)))
        self.rowtile_read_addrs(XR, s(t4), s(t1))
        for k in range(4):
            self('s_xor_b32 %s, %s, %d\nv_or_b32 %s, %s, %s\nv_or_b32 %s, %s, %s'
                 % (s(t0), s(t3), k * 2048, v(WT + 2 * k), s(t0), v(vTRa), v(WT + 2 * k + 1), s(t0), v(vTRb)))
        self('s_mul_i32 %s, %s, 56\ns_and_b32 %s, %s, 1\ns_lshl_b32 %s, %s, 3\ns_sub_u32 %s, %s, %s'
             % (s(t0), s(sI), s(t1), s(sI), s(t1), s(t1), s(t0), s(t0), s(t1)))
        self('v_lshrrev_b32 %s, 2, v0\nv_mul_u32_u24 %s, 2688, %s\nv_and_b32 %s, 3, v0\nv_lshl_add_u32 %s, %s, 4, %s'
             % (v(u0), v(u0), v(u0), v(u1), v(QD), v(u1), v(u0)))
        self('s_mul_i32 %s, %s, 43008\ns_add_u32 %s, %s, %s\nv_add_u32 %s, %s, %s\ns_lshl_b32 s82, %s, 10'
             % (s(t1), s(sW), s(t0), s(t0), s(t1), v(QD), s(t0), v(QD), s(sW)))

    def p1_variant(self, kind):
        XF, ACC, GR, SUM, CSA, XD, XR, WD, WT, QD, NONV, SAD, TB = (
            self.XF, self.ACC1, self.GR, self.SUM, self.CSA, self.XD, self.XR, self.WD, self.WT, self.QD,
            self.NONV, self.SAD, self.TB)
        kv = kind != 'N'

        def wreg(j, k, ct):
            return 32 * (j & 1) + 8 * k + 4 * ct

        def step(reg):
            self('s_add_u32 %s, %s, 1\ns_cmp_eq_u32 %s, 7\ns_cselect_b32 %s, 0, %s' % (s(reg), s(reg), s(reg), s(reg), s(reg)))

        def block_ops(j):
            ops = []
            if kv:
                def w_():
                    self('s_add_u32 m0, %s, %d\ns_mul_i32 %s, %s, %d' % (s(t3), j * 8192, s(t0), s(t5), 64 * 2688))
                    self.dma(WD, SB, s(t0), 0, 'B%d' % j)
                ops += [w_, lambda: self.dma(WD + 1, SB, s(t0), 1024, 'B%d' % j)]

            def x_():
                self('s_add_u32 m0, %s, %d\ns_lshl_b32 %s, %s, 7' % (s(t4), (j % 3) * 4096, s(t0), s(t5)))
                self.dma(XD, SA, s(t0), 0, 'B%d' % j)
            ops.append(x_)
            for rg in range(1, 4):
                ops.append(lambda rg=rg: self.dma(XD + rg, SA, s(t0), rg * 1024, 'B%d' % j))
            ops.append(lambda: step(t5))
            return ops

        def wq_op(j):
            self('s_add_u32 m0, s82, %d\ns_mul_i32 %s, %s, %d' % (WQB + j * 4096, s(t0), s(t5), 64 * 2688))
            self.dma(QD, SB, s(t0), 0, 'WQ')
            step(t5)
        self.q = block_ops(0) + block_ops(1)
        self.bg(99)
        self.stamp('p1dma')
        keep = list(self.vm)
        self.setup2()
        self.vm = keep + ['code']
        if kind == 'K':
            self('s_lshl_b32 %s, %s, 3\nv_add_u32 %s, %s, %s\ns_mov_b32 %s, 225792\ns_mul_i32 %s, %s, 3584\ns_add_u32 %s, %s, %d'
                 % (s(t0), s(sI), v(u0), s(t0), v(vH), s(t1), s(t2), s(sT), s(t2), s(t2), KF))
            for k in range(4):
                self('v_add_u32 %s, %d, %s\nv_mul_u32_u24 %s, 37, %s\nv_lshrrev_b32 %s, 8, %s'
                     % (v(u1), 2 * k, v(u0), v(u2), v(u1), v(u2), v(u2)))
                self('v_mul_lo_u32 %s, %s, %s\nv_lshl_add_u32 %s, %s, 9, %s\nv_lshl_add_u32 %s, %s, 4, %s'
                     % (v(u2), v(u2), s(t1), v(u2), v(u1), v(u2), v(SAD + k), v(vM), v(u2)))
        elif kind == 'V':
            self('s_sub_u32 %s, %s, 7\ns_lshl_b32 %s, %s, 6\ns_mov_b32 %s, %d\ns_mul_i32 %s, %s, 1792\ns_add_u32 %s, %s, %d'
                 % (s(t0), s(sI), s(t0), s(t0), s(t1), 114688 - 448, s(t2), s(sT), s(t2), s(t2), VF))
            for ct in range(2):
                self('v_add_u32 %s, %s, %s\nv_add_u32 %s, %d, %s\nv_mul_u32_u24 %s, 2341, %s\nv_lshrrev_b32 %s, 16, %s'
                     % (v(u2), s(t0), v(vPM), v(u2), 32 * ct, v(u2), v(u3), v(u2), v(u3), v(u3)))
                self('v_mul_lo_u32 %s, %s, %s\nv_lshl_add_u32 %s, %s, 4, %s\nv_mul_u32_u24 %s, 448, %s\nv_add_u32 %s, %s, %s'
                     % (v(u3), v(u3), s(t1), v(u3), v(u2), v(u3), v(u2), v(vH), v(SAD + ct), v(u3), v(u2)))
            self('s_lshl_b32 %s, %s, 7\ns_add_u32 %s, %s, %d' % (s(t0), s(sW), s(t0), s(t0), RSX))
            self('v_lshl_add_u32 %s, %s, 2, %s\nv_lshl_add_u32 %s, %s, 4, %s' % (v(SAD + 2), v(vM), s(t0), v(SAD + 3), v(vH), s(t0)))
        self.stamp('p1iss')

        def stat_mf(j, k):
            x_ = XF + 16 * j + 4 * k
            first = j == 0 and k == 0
            return [lambda: self.mfma(GR, x_, x_, None if first else GR), lambda: self.mfsum(SUM, x_, first)]

        def main_mf(j, k):
            x_ = XF + 16 * j + 4 * k
            out = []
            for ct in range(2):
                def f(ct=ct):
                    c = None if j == 0 and k == 0 else ACC + 16 * ct
                    if ct == 0:
                        self.wlg('w%d_%d' % (j, k))
                    if kind == 'K':
                        self.mfma(ACC + 16 * ct, wreg(j, k, ct), x_, c, pa='a')
                    else:
                        self.mfma(ACC + 16 * ct, x_, wreg(j, k, ct), c, pb='a')
                out.append(f)
            return out

        def cs_mf(j):
            return [lambda ct=ct: self.mfsum(CSA + 4 * ct, wreg(j, 0, ct), j == 0, pb='a') for ct in range(2)]

        def side_ops(j):
            def head():
                self.wvm('B%d' % j)
                if kv:
                    self('s_barrier')
            side = [head]
            for k in range(4):
                side.append(lambda k=k: self.lgi('ds_read_b128 %s, %s offset:%d' % (
                    v(XF + 16 * j + 4 * k, 4), v(XR + k), (j % 3) * 4096), 'xf%d' % j))
            dm = block_ops(j + 2) if j + 2 < 7 else [lambda q=q: wq_op(q) for q in (range(4) if j == 5 else range(4, 7))]
            if j == 3:
                def non():
                    self('v_mov_b32 %s, 0' % v(u0))
                    self.load(NONV, u0, SC, '0', 0, 'nonl', n=2)
                dm.append(non)
            if kv:
                for k in range(4):
                    for ct in range(2):
                        def rd(k=k, ct=ct):
                            w_ = wreg(j, k, ct)
                            for e in range(2):
                                self.lgi('ds_read_b64_tr_b16 a[%d:%d], %s offset:%d' % (
                                    w_ + 2 * e, w_ + 2 * e + 1, v(WT + 2 * k + ct), j * 8192 + 512 * e), 'w%d_%d' % (j, k))
                        side.append(rd)
                        if dm:
                            side.append(dm.pop(0))
            return side + dm
        self.q = side_ops(0)
        self.bg(99)
        for j in range(7):
            if j in (0, 3, 6):
                self.stamp('p1x%d' % j)
            self.wlg('xf%d' % j)
            self.q = side_ops(j + 1) if j < 6 else []
            seq = []
            if j < 6:
                for k in range(4):
                    st = stat_mf(j, k)
                    seq += ([st[0]] + main_mf(j, k) + [st[1]]) if kv else st
                    if kv and k == 0:
                        seq += cs_mf(j)
                for g, f in enumerate(seq):
                    f()
                    if g >= 1:
                        self.bg(2)
                self.bg(99)
            else:
                for k in range(4):
                    for f in stat_mf(j, k):
                        f()
                if kv:
                    self.wlg('w6_0')
                    for f in cs_mf(j):
                        f()
                hold, self.a = self.a, Asm()
                self.diag(GR, u2)
                self.mean_rstd(SUM, u2, 448, u3, vRS)
                self.make_meanfrag(u3, u4)
                tail = [x.text for x in self.a.L]
                self.a = hold
                if kv:
                    mm = sum((main_mf(j, k) for k in range(4)), [])
                    mm[0]()
                    mm[1]()
                    self.colsum_put(CSA, CSA + 4, MISC)
                    for g in range(2, 8):
                        mm[g]()
                        self('\n'.join(tail[6 * (g - 2):6 * (g - 2) + 6]))
                    self('\n'.join(tail[36:]))
                else:
                    self('\n'.join(tail))
        self.stamp('p1mm')
        if not kv:
            self('s_lshl_b32 %s, %s, 1\ns_add_u32 %s, %s, %s\ns_sub_u32 %s, %s, 14\ns_lshl_b32 %s, %s, 2\ns_add_u32 %s, %s, %s'
                 % (s(t0), s(sRB), s(t0), s(t0), s(sI), s(t0), s(t0), s(t0), s(t0), s(t0), s(t0), s(sW)))
            self.srd(SA, P_WO, 448 * 896)
            self('s_lshl_b32 %s, %s, 12' % (s(t1), s(t0)))
            for q in range(4):
                self.load(64 + 4 * q, vL16, SA, s(t1), q * 1024, 'pf', sc1=False, pfx='a')
            self.srd(SA, P_WIN, 448 * 3584)
            self('s_mul_i32 %s, %s, 13312' % (s(t1), s(t0)))
            for q in range(13):
                if q and q % 4 == 0:
                    self('s_add_u32 %s, %s, 4096' % (s(t1), s(t1)))
                self.load(80 + 4 * q, vL16, SA, s(t1), (q % 4) * 1024, 'pf', sc1=False, pfx='a')
            return
        if kind == 'V':
            self.lgi('ds_write_b32 %s, %s' % (v(SAD + 2), v(vRS)), 'rs')
        self.wlg()
        self('s_barrier')
        if kind == 'V':
            for g in range(4):
                self.lgi('ds_read_b128 %s, %s offset:%d' % (v(TB + 4 * g, 4), v(SAD + 3), 32 * g), 'rs')
        self.colsum_get(GR, MISC, vCS2)
        for ct in range(2):
            if kind == 'K':
                self.mfma(ACC + 16 * ct, vCS2 + 4 * ct, vMF, ACC + 16 * ct)
            else:
                self.mfma(ACC + 16 * ct, vMF, vCS2 + 4 * ct, ACC + 16 * ct)
        for c in range(4):
            if kind == 'K':
                self.scale(ACC + 8 * c, 8, vRS)
            else:
                for k in range(0, 8, 2):
                    r = ACC + 8 * c + k
                    self('v_pk_mul_f32 %s, %s, %s' % (v(r, 2), v(r, 2), v(TB + 8 * (c & 1) + k, 2)))
            self.pack(GR + 4 * c, ACC + 8 * c, 8)
            if kind == 'K':
                self.store(GR + 4 * c, SAD + c, WS, s(t2), 0, 'st')
            else:
                self.store(GR + 4 * c, SAD + (c >> 1), WS, s(t2), (c & 1) * 896, 'st')

    def diag(self, g, dst):
        masks = (0xaaaaaaaa, 0xcccccccc, 0xff00ff00, 0xffff0000)
        n = 16
        for m in masks:
            self('s_mov_b32 vcc_lo, 0x%x\ns_mov_b32 vcc_hi, 0x%x' % (m, m))
            n //= 2
            for k in range(n):
                self('v_cndmask_b32 %s, %s, %s, vcc' % (v(g + k), v(g + 2 * k), v(g + 2 * k + 1)))
        self('v_mov_b32 %s, %s\ns_mov_b32 vcc_lo, 0xf0f0f0f0\ns_mov_b32 vcc_hi, 0xf0f0f0f0\nv_permlane32_swap_b32 %s, %s'
             % (v(g + 1), v(g), v(g), v(g + 1)))
        self('v_cndmask_b32 %s, %s, %s, vcc' % (v(dst), v(g), v(g + 1)))

    def p1(self):
        XF, ACC, GR, SUM, WT, NONV, TB = self.XF, self.ACC1, self.GR, self.SUM, self.WT, self.NONV, self.TB
        self('s_cbranch_scc1 L_p1_N\ns_cmp_ge_u32 %s, 7\ns_cbranch_scc1 L_p1_V' % s(sI))
        for kind in 'KVN':
            self('L_p1_%s:' % kind)
            self.vm, self.lg = [], []
            self.p1_variant(kind)
            if kind != 'N':
                self('s_branch L_p1_join')
        self('L_p1_join:')
        self.stamp('p1st')
        lp = self.lab('tag')
        self('s_mov_b32 %s, 0\ns_add_u32 %s, %s, %d\n%s:\ns_waitcnt vmcnt(0)' % (s(sCNT), s(t5), s(sFID), FLAG1, lp))
        self('v_readfirstlane_b32 %s, %s\nv_readfirstlane_b32 %s, %s' % (s(sNON), v(NONV), s(sNON + 1), v(NONV + 1)))
        self('s_cmp_lg_u32 %s, 0\ns_cbranch_scc1 %s_d' % (s(sNON + 1), lp))
        self('v_mov_b32 %s, 0\nbuffer_load_dwordx2 %s, %s, %s, 0 offen sc1' % (v(u0), v(NONV, 2), v(u0), s(SC, 4)))
        self('s_add_u32 %s, %s, 1\ns_cmp_lt_u32 %s, %d\ns_cbranch_scc1 %s\ns_waitcnt vmcnt(0)\n%s_d:'
             % (s(sCNT), s(sCNT), s(sCNT), POLL_MAX, lp, lp))
        self.vm, self.lg = [], []
        self.publish(s(t5))
        self.stamp('p1pub')
        self('s_lshl_b32 %s, %s, 10\ns_add_u32 %s, %s, %d' % (s(t0), s(sB), s(t0), s(t0), ONES))
        for k in range(4):
            self('v_mov_b32 %s, %s' % (v(TB + k), s(sONE2)))
        self.store(TB, vL16, WS, s(t0), 0, 'ones')
        self('v_bfe_u32 %s, v0, 2, 2\nv_lshl_add_u32 %s, %s, 3, %s\nv_lshlrev_b32 %s, 6, %s' % (v(u0), v(u0), v(vH), v(u0), v(u0), v(u0)))
        self('v_bfe_u32 %s, v0, 4, 1\nv_lshl_add_u32 %s, %s, 5, %s\nv_and_b32 %s, 1, v0\nv_lshl_add_u32 %s, %s, 4, %s'
             % (v(u1), v(u0), v(u1), v(u0), v(u1), v(u0), v(u1), v(u0)))
        self('v_bfe_u32 %s, v0, 1, 1\nv_lshl_add_u32 %s, %s, 3, %s' % (v(u1), v(u0), v(u1), v(u0)))
        for k in range(4):
            self('s_xor_b32 %s, %s, %d\ns_lshl_b32 %s, %s, 10\ns_add_u32 %s, %s, %d\nv_add_u32 %s, %s, %s'
                 % (s(t0), s(sW), k, s(t0), s(t0), s(t0), s(t0), WQB, v(WT + k), s(t0), v(u0)))

        def qrd(j, k):
            for e in range(2):
                r = 16 * (j & 1) + 4 * k + 2 * e
                self.lgi('ds_read_b64_tr_b16 a[%d:%d], %s offset:%d' % (r, r + 1, v(WT + k), j * 4096 + 256 * e), 'q%d_%d' % (j, k))
        for k in range(4):
            qrd(0, k)
        self.cold_setup()
        for j in range(7):
            for k in range(4):
                self.wlg('q%d_%d' % (j, k))
                r = 16 * (j & 1) + 4 * k
                self.mfma(ACC, r, XF + 16 * j + 4 * k, None if j + k == 0 else ACC, pa='a')
                if j < 6:
                    qrd(j + 1, k)
                self.mfsum(SUM, r, j + k == 0, pb='a')
                if k & 1:
                    self.bg(1)
        assert not self.q
        self('v_mul_f32 %s, %s, %s' % (v(u3), f32(math.log2(math.e) / math.sqrt(28.0)), v(vRS)))
        self('s_bitcmp1_b32 %s, 0\ns_cselect_b64 %s, -1, 0' % (s(sI), s(t0, 2)))
        self('s_andn2_b64 %s, %s, %s\ns_andn2_b64 %s, %s, %s' % (s(t2, 2), s(t0, 2), s(sHI, 2), s(t4, 2), s(sHI, 2), s(t0, 2)))
        self('s_lshl_b32 %s, %s, 11\ns_add_u32 %s, %s, %d\nv_add_u32 %s, %s, %s' % (s(t0), s(sW), s(t0), s(t0), MISC, v(u0), s(t0), v(vL16)))
        self.make_csfrag(SUM, vCS2)
        self.mfma(ACC, vCS2, vMF, ACC)
        self.scale(ACC, 16, u3)
        self.pack(GR, ACC, 16)
        for k in range(2):
            self('v_cndmask_b32 %s, %s, 0, %s\nv_cndmask_b32 %s, %s, 0, %s'
                 % (v(GR + k), v(GR + k), s(t2, 2), v(GR + 6 + k), v(GR + 6 + k), s(t4, 2)))
        self.lgi('ds_write_b128 %s, %s' % (v(u0), v(GR, 4)), 'qw')
        self.lgi('ds_write_b128 %s, %s offset:1024' % (v(u0), v(GR + 4, 4)), 'qw')
        self.p2_setup()
        self.wlg()
        self.wvm('ones')
        self.stamp('q')
        WF = ACC
        sk, lp = self.lab('s1skip'), self.lab('s1')
        self('s_cmp_eq_u32 %s, 0\ns_cbranch_scc0 %s\ns_mov_b32 %s, 0\n%s:' % (s(sW), sk, s(sCNT), lp))
        self('buffer_load_dwordx4 %s, %s, %s, 0 offen offset:%d sc1' % (v(WF, 4), v(vL16), s(WS, 4), FLAG1))
        self('buffer_load_dwordx4 %s, %s, %s, 0 offen offset:%d sc1' % (v(WF + 4, 4), v(vL16), s(WS, 4), FLAG1 + 1024))
        self('s_add_u32 %s, %s, 1\ns_waitcnt vmcnt(0)' % (s(sCNT), s(sCNT)))
        for k in range(4):
            self('v_cmp_ne_u64 %s, %s, %s' % (('vcc', s(t0, 2), s(t2, 2), s(t6, 2))[k], s(sNON, 2), v(WF + 2 * k, 2)))
        self('s_or_b64 %s, %s, vcc\ns_or_b64 %s, %s, %s\ns_or_b64 %s, %s, %s'
             % (s(t0, 2), s(t0, 2), s(t2, 2), s(t2, 2), s(t6, 2), s(t0, 2), s(t0, 2), s(t2, 2)))
        self('s_cbranch_scc0 %s\ns_cmp_lt_u32 %s, %d\ns_cbranch_scc1 %s\n%s:\ns_barrier' % (sk, s(sCNT), POLL_MAX, lp, sk))
        self.stamp('s1')

    Q, O, S, P, KV, VOV, VST = 16, 48, 112, 144, 152, 217, 218

    def kv_addr(self, wave_split):
        VOV, VST = self.VOV, self.VST
        self('s_lshr_b32 %s, %s, 1\ns_mul_i32 %s, %s, 229376\ns_and_b32 %s, %s, 1\ns_mul_i32 %s, %s, 1536\ns_add_u32 %s, %s, %s'
             % (s(t0), s(sI), s(t4), s(t0), s(t0), s(sI), s(t0), s(t0), s(t4), s(t4), s(t0)))
        self('s_add_u32 %s, %s, %d\ns_mul_i32 %s, %s, 114688\ns_add_u32 %s, %s, %d' % (s(t4), s(t4), KF, s(t1), s(sI), s(t1), s(t1), VF))
        if wave_split:
            self('s_mul_i32 %s, %s, %d\ns_add_u32 %s, %s, %s\ns_mul_i32 %s, %s, %d\ns_add_u32 %s, %s, %s'
                 % (s(t0), s(sW), 16 * 3584, s(t4), s(t4), s(t0), s(t0), s(sW), 16 * 1792, s(t1), s(t1), s(t0)))
        self('v_mul_u32_u24 %s, 448, %s\nv_lshl_add_u32 %s, %s, 4, %s\nv_add_u32 %s, %s, %s'
             % (v(u0), v(vH), v(u0), v(vPM), v(u0), v(u0), s(t1), v(u0)))
        self('s_lshl_b32 %s, %s, 10\ns_add_u32 %s, %s, %d' % (s(t0), s(sB), s(t0), s(t0), ONES))
        self('v_mov_b32 %s, %s\nv_mov_b32 %s, 1792\nv_cmp_gt_u32 vcc, 28, %s' % (v(u1), s(t0), v(u2), v(vM)))
        self('v_cndmask_b32 %s, %s, %s, vcc\nv_cndmask_b32 %s, 0, %s, vcc' % (v(VOV), v(u1), v(u0), v(VST), v(u2)))

    RW, QA, PD, PR = 226, 230, 234, 238
    SX, SBS, SSP, SWO = 84, 88, 92, 96

    def cold_setup(self):
        SX, SBS, SSP, SWO = self.SX, self.SBS, self.SSP, self.SWO
        self.srd(SX, P_X, 2048 * 896)
        self.srd(SBS, P_BSP, 4096)
        self.srd(SSP, P_WSP, 2048 * 4096)
        self.srd(SWO, P_WOUT, 896 * 896)
        self('s_mul_i32 %s, %s, %d\ns_lshl_b32 %s, %s, 7\ns_add_u32 %s, %s, %s\ns_lshl_b32 %s, %s, 6\ns_add_u32 %s, %s, %s'
             % (s(t0), s(sT3), 32 * 896, s(t1), s(sCB), s(t0), s(t0), s(t1), s(t1), s(sKH), s(t0), s(t0), s(t1)))
        self('v_mul_u32_u24 v224, 896, %s\nv_lshl_add_u32 v224, %s, 4, v224\nv_add_u32 v224, %s, v224' % (v(vM), v(vH), s(t0)))
        self('s_lshl_b32 %s, %s, 6\nv_lshl_add_u32 %s, %s, 1, %s' % (s(t0), s(sT), v(vBSP), v(vM), s(t0)))
        self('s_lshl_b32 %s, %s, 2\ns_add_u32 %s, %s, %s\ns_lshl_b32 %s, %s, 13\ns_lshl_b32 %s, %s, 19\ns_add_u32 %s, %s, %s\nv_add_u32 v225, %s, %s'
             % (s(t0), s(sI), s(t0), s(t0), s(sW), s(t0), s(t0), s(t1), s(sRB), s(t0), s(t0), s(t1), s(t0), v(vL16)))
        self('s_lshl_b32 %s, %s, 2\ns_add_u32 %s, %s, %s\ns_lshl_b32 s82, %s, 10\ns_movk_i32 s83, 4096' % (s(t0), s(sB), s(t0), s(t0), s(sW), s(t0)))
        self.q = [lambda q=q: self.load(216 + 4 * q, 225, SSP, 's83' if q >= 4 else '0', (q % 4) * 1024, 'pf', sc1=False, pfx='a')
                  for q in range(8)]
        self.q += [lambda: self.load(248, vL16, SWO, 's82', 0, 'pf', sc1=False, pfx='a'),
                   lambda: self.load(vHK, 224, SX, '0', 0, 'pf', sc1=False),
                   lambda: self.load(vHK + 4, 224, SX, '0', 32, 'pf', sc1=False),
                   lambda: self.vmi('buffer_load_ushort %s, %s, %s, 0 offen' % (v(vBSP), v(vBSP), s(SBS, 4)), 'pf')]

    def p2_setup(self):
        RW = self.RW
        self.kv_addr(True)
        self.srd(SA, P_WO, 448 * 896)
        self.srd(SB, P_WIN, 448 * 3584)
        self('s_lshl_b32 %s, %s, 7' % (s(t2), s(sCB)))
        wo = self.image_ops(220, SA, 896, s(t2), 0, 14, 'pf')
        self('s_lshl_b32 %s, %s, 7\ns_add_u32 %s, %s, 1792' % (s(t2), s(sI), s(t2), s(t2)))
        win = self.image_ops(222, SB, 3584, s(t2), WIN2, 14, 'pf')
        for j in range(4):
            self('s_add_u32 %s, %s, %d\ns_and_b32 %s, %s, 3\ns_mul_i32 %s, %s, 12288\ns_add_u32 %s, %s, %d\nv_add_u32 %s, %s, %s'
                 % (s(t0), s(sW), j + 1, s(t0), s(t0), s(t1), s(t0), s(t1), s(t1), RED + 4096 * (j % 3), v(RW + j), s(t1), v(vL16)))
            self('s_lshl_b32 %s, %s, 11\ns_add_u32 %s, %s, %d\nv_add_u32 %s, %s, %s' % (s(t0), s(t0), s(t0), s(t0), MISC, v(self.QA + j), s(t0), v(vL16)))
        self('s_lshl_b32 %s, %s, 15\ns_lshl_b32 %s, %s, 11\ns_add_u32 %s, %s, %s\ns_add_u32 s73, %s, %d'
             % (s(t0), s(sT), s(t1), s(sI), s(t2), s(t0), s(t1), s(t2), OF))
        self('s_lshl_b32 %s, %s, 17\ns_mul_i32 s100, %s, 12288\ns_add_u32 s100, s100, %d' % (s(t3), s(sT), s(sW), RED))
        self.rowtile_dma_addrs(4096, self.PD, s(t3))
        self.rowtile_read_addrs(self.PR, 's100')
        self.att_img = [wo[k:k + 2] for k in range(0, 14, 2)] + [win[k:k + 2] for k in range(0, 14, 2)]

    def p2(self):
        Q, O, S, P, KV, VOV, VST, RW = self.Q, self.O, self.S, self.P, self.KV, self.VOV, self.VST, self.RW
        self.vm, self.lg = [], []

        def kvload(it):
            b = KV + 16 * (it % 4)
            self.load(b, vL16, WS, s(t4), 0, 'K%d' % it)
            self.load(b + 4, vL16, WS, s(t4), 1024, 'K%d' % it)
            self.load(b + 8, VOV, WS, '0', 0, 'V%d' % it)
            self.load(b + 12, VOV, WS, '0', 896, 'V%d' % it)
            if it < 15:
                self('s_add_u32 %s, %s, 3584\nv_add_u32 %s, %s, %s' % (s(t4), s(t4), v(VOV), v(VST), v(VOV)))
        for it in range(3):
            kvload(it)
        for j in range(4):
            self.lgi('ds_read_b128 %s, %s' % (v(Q + 8 * j, 4), v(self.QA + j)), 'q')
            self.lgi('ds_read_b128 %s, %s offset:1024' % (v(Q + 8 * j + 4, 4), v(self.QA + j)), 'q')
        self.wlg()
        self('s_barrier')
        wait_kv = self.wvm
        NA = self.o.get('na', 14)
        self.NA = NA
        PD, PR = self.PD, self.PR

        def pre_dma(r):
            self('s_add_u32 m0, s100, %d\ns_movk_i32 s101, %d' % ((r % 3) * 4096, (32 - NA + r) * 128))
            for rg in range(4):
                self.dma(PD + rg, self.SSP, 's101', rg * 1024, 'P%d' % r)

        def pre_read(r):
            self.wvm('P%d' % r)
            for k in range(4):
                self.lgi('ds_read_b128 a[%d:%d], %s offset:%d' % (16 * r + 4 * k, 16 * r + 4 * k + 3, v(PR + k), (r % 3) * 4096), 'pr')
        self.stamp('a_iss')
        wait_kv('K0')
        self.stamp('a_k0')
        self.mfma(S, KV, Q, None)
        self.mfma(S, KV + 4, Q + 4, S)
        for n in range(64):
            it, j = divmod(n, 4)
            Sc, Sn = S + 16 * (n & 1), S + 16 * ((n + 1) & 1)
            ex = ['v_exp_f32 %s, %s' % (v(Sc + k), v(Sc + k)) for k in range(16)]
            pk = ['v_cvt_pk_bf16_f32 %s, %s, %s' % (v(P + k), v(Sc + 2 * k), v(Sc + 2 * k + 1)) for k in range(8)]
            nit, nj = divmod(n + 1, 4)
            pit, pj = divmod(n - 1, 4)
            kb, vb = KV + 16 * (nit % 4), KV + 16 * (pit % 4) + 8

            def qk(t):
                if n + 1 < 64:
                    if t == 0 and nj == 0:
                        wait_kv('K%d' % nit)
                    self.mfma(Sn, kb + 4 * t, Q + 8 * nj + 4 * t, Sn if t else None)

            def pv(t):
                if n > 0:
                    if t == 0 and pj == 0:
                        wait_kv('V%d' % pit)
                    c = None if (pit == 0 and t == 0) else O + 16 * pj
                    self.mfma(O + 16 * pj, vb + 4 * t, P + 4 * t, c)
            qk(0)
            self('\n'.join(ex[0:4]))
            pv(0)
            self('\n'.join(ex[4:8] + pk[0:2]))
            qk(1)
            self('\n'.join(ex[8:12] + pk[2:4]))
            pv(1)
            self('\n'.join(ex[12:16] + pk[4:8]))
            if j == 0 and it + 3 < 16:
                kvload(it + 3)
            if j == 1 and 0 <= it - 2 < NA:
                pre_read(it - 2)
            if j == 2 and it < NA:
                if it >= 3:
                    self.wlg()
                pre_dma(it)
            if j == 3 and 1 <= it <= 14:
                for op in self.att_img[it - 1]:
                    op()
            if n in (15, 31, 47):
                self.stamp('a%d' % n)
        self.mfma(O + 48, KV + 16 * 3 + 8, P, O + 48)
        self.mfma(O + 48, KV + 16 * 3 + 12, P + 4, O + 48)
        self.stamp('att')
        self.wlg()
        self('s_barrier')
        for j in range(3):
            for q in range(4):
                self.lgi('ds_write_b128 %s, %s offset:%d' % (v(RW + j), v(O + 16 * j + 4 * q, 4), q * 1024), 'rw')
        self.wlg()
        self('s_barrier')
        for k in range(12):
            self.lgi('ds_read_b128 %s, %s offset:%d' % (v(O + 4 * k, 4), v(RW + 3), k * 1024), 'r%d' % (k // 4))
        A = O + 48
        for j in range(3):
            self.wlg('r%d' % j)
            for k in range(0, 16, 2):
                self('v_pk_add_f32 %s, %s, %s' % (v(A + k, 2), v(A + k, 2), v(O + 16 * j + k, 2)))
        self.stamp('red')
        self('L_att_norm:')
        self('v_mov_b32 %s, %s\nv_mov_b32 %s, %s\nv_permlane32_swap_b32 %s, %s' % (v(u0), v(A + 12), v(u1), v(A + 12), v(u0), v(u1)))
        self('v_cmp_gt_f32 vcc, %s, %s\ns_mov_b64 %s, vcc\nv_cmp_lt_f32 vcc, %s, %s\ns_and_b64 vcc, vcc, %s'
             % (f32(2.0 ** 40), v(u1), s(t0, 2), f32(2.0 ** -40), v(u1), s(t0, 2)))
        force = self.o.get('force_fallback')
        self('s_cmp_eq_u64 vcc, %s\ns_cbranch_scc0 L_att_slow\nL_att_ok:' % ('0' if force else '-1'))
        self('v_rcp_f32 %s, %s' % (v(u1), v(u1)))
        self.scale(A, 16, u1)
        self.pack(P, A, 16)
        self('v_cndmask_b32 %s, %s, 0, %s\nv_cndmask_b32 %s, %s, 0, %s' % (v(P + 6), v(P + 6), s(sHI, 2), v(P + 7), v(P + 7), s(sHI, 2)))
        self.vm = ['any']

        def st(sc):
            self.store(P, vL16, WS, 's73', 0, 'st', sc1=sc)
            self.store(P + 4, vL16, WS, 's73', 1024, 'st', sc1=sc)
        self.local_stores(st)
        self('s_add_u32 %s, %s, %d' % (s(t5), s(sFID), FLAG2))
        self.publish(s(t5))
        self.stamp('p2pub')
        self('s_cmp_ge_u32 %s, 14\ns_cbranch_scc1 L_fin' % s(sI))

    def att_slow(self):
        Q, O, S, P, KV, VOV, VST = self.Q, self.O, self.S, self.P, self.KV, self.VOV, self.VST
        A, Qo = O + 48, Q + 24
        self('L_att_slow:\ns_waitcnt vmcnt(0)')
        self.kv_addr(False)
        self('s_mov_b32 %s, %s\nv_mov_b32 %s, 0xff800000\ns_mov_b32 %s, 0\nL_slow1:' % (s(t5), s(t4), v(u3), s(sCNT)))
        self('buffer_load_dwordx4 %s, %s, %s, %s offen sc1' % (v(KV, 4), v(vL16), s(WS, 4), s(t5)))
        self('buffer_load_dwordx4 %s, %s, %s, %s offen offset:1024 sc1' % (v(KV + 4, 4), v(vL16), s(WS, 4), s(t5)))
        self('s_add_u32 %s, %s, 3584\ns_waitcnt vmcnt(0)' % (s(t5), s(t5)))
        self.mfma(S, KV, Qo, None)
        self.mfma(S, KV + 4, Qo + 4, S)
        for k in range(0, 16, 2):
            self('v_max3_f32 %s, %s, %s, %s' % (v(u3), v(u3), v(S + k), v(S + k + 1)))
        self('s_add_u32 %s, %s, 1\ns_cmp_lt_u32 %s, 64\ns_cbranch_scc1 L_slow1' % (s(sCNT), s(sCNT), s(sCNT)))
        self('v_mov_b32 %s, %s\nv_permlane32_swap_b32 %s, %s\nv_max_f32 %s, %s, %s' % (v(u4), v(u3), v(u4), v(u3), v(u3), v(u3), v(u4)))
        for k in range(16):
            self('v_mov_b32 %s, 0' % v(A + k))
        self('s_mov_b32 %s, 0\nL_slow2:' % s(sCNT))
        self('buffer_load_dwordx4 %s, %s, %s, %s offen sc1' % (v(KV, 4), v(vL16), s(WS, 4), s(t4)))
        self('buffer_load_dwordx4 %s, %s, %s, %s offen offset:1024 sc1' % (v(KV + 4, 4), v(vL16), s(WS, 4), s(t4)))
        self('buffer_load_dwordx4 %s, %s, %s, 0 offen sc1' % (v(KV + 8, 4), v(VOV), s(WS, 4)))
        self('buffer_load_dwordx4 %s, %s, %s, 0 offen offset:896 sc1' % (v(KV + 12, 4), v(VOV), s(WS, 4)))
        self('s_add_u32 %s, %s, 3584\nv_add_u32 %s, %s, %s\ns_waitcnt vmcnt(0)' % (s(t4), s(t4), v(VOV), v(VST), v(VOV)))
        self.mfma(S, KV, Qo, None)
        self.mfma(S, KV + 4, Qo + 4, S)
        for k in range(16):
            self('v_sub_f32 %s, %s, %s' % (v(S + k), v(S + k), v(u3)))
        for k in range(16):
            self('v_exp_f32 %s, %s' % (v(S + k), v(S + k)))
        self.pack(P, S, 16)
        self.mfma(A, KV + 8, P, A)
        self.mfma(A, KV + 12, P + 4, A)
        self('s_add_u32 %s, %s, 1\ns_cmp_lt_u32 %s, 64\ns_cbranch_scc1 L_slow2' % (s(sCNT), s(sCNT), s(sCNT)))
        self('v_mov_b32 %s, %s\nv_mov_b32 %s, %s\nv_permlane32_swap_b32 %s, %s' % (v(u0), v(A + 12), v(u1), v(A + 12), v(u0), v(u1)))
        self('s_branch L_att_ok')

    def slot_addrs(self, dst, kh_bytes, base):
        self('s_mul_i32 %s, %s, %d\ns_add_u32 %s, %s, %d\ns_lshl_b32 %s, %s, 6' % (s(t0), s(sKH), kh_bytes, s(t0), s(t0), base, s(t1), s(sKH)))
        self('v_xor_b32 %s, %s, %s\nv_xor_b32 %s, %s, %s' % (v(dst), s(t1), v(vTRa), v(dst + 1), s(t1), v(vTRb)))
        self('v_add_u32 %s, %s, %s\nv_add_u32 %s, %s, %s' % (v(dst), s(t0), v(dst), v(dst + 1), s(t0), v(dst + 1)))

    def frag_ops(self, dst, n, sreg, tag):
        ops = []
        for k in range(n):
            def op(k=k):
                if k and k % 4 == 0:
                    self('s_add_u32 %s, %s, 4096' % (s(sreg), s(sreg)))
                self.load(dst + 4 * k, vL16, WS, s(sreg), (k % 4) * 1024, '%s%d' % (tag, k))
            ops.append(op)
        return ops

    def pair_addrs(self, dst, red):
        self('s_lshl_b32 %s, %s, 12\ns_add_u32 %s, %s, %d\nv_add_u32 %s, %s, %s' % (s(t0), s(sW), s(t0), s(t0), red, v(dst), s(t0), v(vL16)))
        self('v_xor_b32 %s, 0x2000, %s' % (v(dst + 1), v(dst)))

    def pair_reduce(self, acc, tmp, adr, res, rtmp):
        for k in range(8):
            self('v_lshlrev_b32 %s, 16, %s\nv_and_b32 %s, 0xffff0000, %s' % (v(rtmp + 2 * k), v(res + k), v(rtmp + 2 * k + 1), v(res + k)))
        for q in range(4):
            self.lgi('ds_write_b128 %s, %s offset:%d' % (v(adr), v(acc + 16 + 4 * q, 4), q * 1024), 'pw')
        for k in range(0, 16, 2):
            self('v_pk_add_f32 %s, %s, %s' % (v(acc + k, 2), v(acc + k, 2), v(rtmp + k, 2)))
        self.wlg()
        self('s_barrier')
        for q in range(4):
            self.lgi('ds_read_b128 %s, %s offset:%d' % (v(tmp + 4 * q, 4), v(adr + 1), q * 1024), 'pr%d' % q)
        for q in range(4):
            self.wlg('pr%d' % q)
            for k in range(4 * q, 4 * q + 4, 2):
                self('v_pk_add_f32 %s, %s, %s' % (v(acc + k, 2), v(acc + k, 2), v(tmp + k, 2)))

    def p3(self):
        FR, ACC, WO, PA = 16, 80, 112, 240
        WB = FR
        RED3 = 131072
        self.vm, self.lg = [], []
        self.slot_addrs(u5, 8 * 3584, 0)
        for k in range(16):
            for sl in range(2):
                for e in range(2):
                    self.tr(WO + 8 * k + 4 * sl + 2 * e, u5 + sl, (k >> 1) * 3584 + (k & 1) * 2048 + 512 * e, 'wo')
        self.pair_addrs(PA, RED3)
        self('s_lshl_b32 %s, %s, 15\ns_lshl_b32 %s, %s, 14\ns_add_u32 %s, %s, %s\ns_add_u32 %s, %s, %d'
             % (s(t4), s(sT3), s(t1), s(sKH), s(t4), s(t4), s(t1), s(t4), s(t4), OF))
        self('s_lshl_b32 %s, %s, 1\ns_add_u32 %s, %s, %s' % (s(t0), s(sCB), s(t0), s(t0), s(sKH)))
        self('s_mul_i32 %s, %s, 28672\ns_lshl_b32 %s, %s, 11\ns_add_u32 %s, %s, %s\ns_add_u32 %s, %s, %d'
             % (s(t2), s(sT3), s(t1), s(t0), s(t2), s(t2), s(t1), s(t2), s(t2), HF))
        self('s_lshl_b32 %s, %s, 12\ns_lshl_b32 %s, %s, 8\ns_add_u32 %s, %s, %s\ns_add_u32 %s, %s, %d'
             % (s(t3), s(sT3), s(t1), s(t0), s(t3), s(t3), s(t1), s(t3), s(t3), HST))
        self('v_lshlrev_b32 %s, 3, %s' % (v(u3), v(vM)))
        self('s_lshl_b32 %s, %s, 7\ns_add_u32 %s, %s, %d' % (s(t5), s(sRB), s(t5), s(t5), FLAG2))
        self.wlg()
        self.poll(s(t5), 16)
        self.stamp('s2')
        self.q = self.frag_ops(FR, 16, t4, 'f')
        self.bg(11)
        for k in range(16):
            self.wvm('f%d' % k)
            for sl in range(2):
                self.mfma(ACC + 16 * sl, WO + 8 * k + 4 * sl, FR + 4 * k, None if k == 0 else ACC + 16 * sl)
            self.bg(1)
        self.stamp('p3mm')
        self.pair_reduce(ACC, WB, PA, vHK, WB + 16)
        self.pack(vHK, ACC, 16)

        def st(sc):
            self.store(vHK, vL16, WS, s(t2), 0, 'st', sc1=sc)
            self.store(vHK + 4, vL16, WS, s(t2), 1024, 'st', sc1=sc)
        self.local_stores(st)
        self('v_pk_mul_f32 %s, %s, %s' % (v(WB, 2), v(ACC, 2), v(ACC, 2)))
        for k in range(2, 16, 2):
            self('v_pk_fma_f32 %s, %s, %s, %s' % (v(WB, 2), v(ACC + k, 2), v(ACC + k, 2), v(WB, 2)))
            self('v_pk_add_f32 %s, %s, %s' % (v(ACC, 2), v(ACC, 2), v(ACC + k, 2)))
        self('v_add_f32 %s, %s, %s\nv_add_f32 %s, %s, %s' % (v(ACC), v(ACC), v(ACC + 1), v(ACC + 1), v(WB), v(WB + 1)))
        self.xhalf_add2(ACC, WB)
        self.local_stores(lambda sc: self.store(ACC, u3, WS, s(t3), 0, 'st', n=2, sc1=sc))
        self('s_add_u32 %s, %s, %d' % (s(t5), s(sFID), FLAG3))
        self.publish(s(t5))
        self.stamp('p3pub')

    def zrd(self, k):
        for ct in range(2):
            self.trfrag(128 + 8 * (k % 4) + 4 * ct, u5 + ct, k * 2048, 'w%d' % k)

    def zpass(self, acc, wait_frag, nbg, k0=0, k1=28):
        HFR, WB = 16, 128
        for k in range(k0, k1):
            if wait_frag:
                self.wvm('h%d' % k)
            self.wlg('w%d' % k)
            self.mfma(acc, WB + 8 * (k % 4), HFR + 4 * k, None if k == 0 else acc)
            if k + 3 < k1:
                self.zrd(k + 3)
            self.mfma(acc + 16, WB + 8 * (k % 4) + 4, HFR + 4 * k, None if k == 0 else acc + 16)
            self.bg(nbg)

    def p4(self):
        HFR, WB, A2, A1 = 16, 128, 160, 192
        KS = self.o.get('ks', 16)
        self.KS = KS
        self.vm, self.lg = [], []
        self('s_lshl_b32 %s, %s, 7' % (s(t2), s(sI)))
        self.q = self.image_ops(224, SB, 3584, s(t2), 0, 14, 'W1')
        self.bg(99)
        self.colsum_part(WIN2, (16, 44), 72, MISC)
        self('s_mul_i32 %s, %s, 28672\ns_add_u32 %s, %s, %d' % (s(t2), s(sT), s(t2), s(t2), HF))
        self('s_lshl_b32 %s, %s, 12\ns_add_u32 %s, %s, %d' % (s(t3), s(sT), s(t3), s(t3), HST))
        self('v_mul_u32_u24 %s, 1792, %s\nv_lshl_add_u32 %s, %s, 3, %s' % (v(u4), v(vH), v(u4), v(vM), v(u4)))
        self('v_add_u32 %s, %d, %s\nv_add_u32 %s, %d, %s' % (v(u5), WIN2, v(vTRa), v(u6), WIN2, v(vTRb)))
        self('v_mov_b32 %s, %s\nv_mov_b32 %s, %s' % (v(u7), s(sK0), v(u8), s(sK0)))
        self('s_lshl_b32 %s, %s, 7\ns_add_u32 %s, %s, %d' % (s(t5), s(sRB), s(t5), s(t5), FLAG3))
        self.wlg()
        self.wvm()
        self.stamp('w1')
        self.poll(s(t5), 14)
        self.stamp('s3')
        hl = self.frag_ops(HFR, 28, t2, 'h')
        hs = [lambda q=q: self.load(A1 + 2 * q, u4, WS, s(t3), q * 256, 'hs', n=2) for q in range(7)]
        self.q = hl + hs
        self.bg(11)
        self.colsum_get(224, MISC, vCS2)
        self.colsum_part(0, (WB, A2), 224, MISC + 1024)
        for k in range(3):
            self.zrd(k)
        self.stamp('p4iss')
        self.zpass(A2, True, 1)
        self.stamp('z2mm')
        self('s_lshl_b32 %s, %s, 13\ns_add_u32 %s, %s, %d\ns_lshl_b32 %s, %s, 9\ns_add_u32 %s, %s, %s'
             % (s(t3), s(sT), s(t3), s(t3), ZST, s(t1), s(sI), s(t2), s(t3), s(t1)))
        self.wvm('hs')
        for q in range(1, 7):
            self('v_pk_add_f32 %s, %s, %s' % (v(A1, 2), v(A1, 2), v(A1 + 2 * q, 2)))
        self.xhalf_add2(A1, A1 + 2)
        self.mean_rstd(A1, A1 + 1, 448, A1 + 2, vRS)
        self.make_meanfrag(A1 + 2, A1 + 3)
        for ct in range(2):
            self.mfma(A2 + 16 * ct, vCS2 + 4 * ct, vMF, A2 + 16 * ct)
        self('v_mov_b32 %s, %s\nv_mov_b32 %s, %s\nv_lshlrev_b32 %s, 4, %s' % (v(u5), v(vTRa), v(u6), v(vTRb), v(u3), v(vM)))
        self('v_mov_b32 %s, %s\nv_mov_b32 %s, %s' % (v(A1 + 6), s(sNON), v(A1 + 7), s(sNON + 1)))
        for k in range(3):
            self.zrd(k)
        self.scale(A2, 32, vRS)
        self.gelu(A2, 32, A1 + 8, 0)
        Z = A1 + 4
        self('v_pk_mul_f32 %s, %s, %s\nv_pk_add_f32 %s, %s, %s'
             % (v(A1, 2), v(A2, 2), v(A2, 2), v(Z, 2), v(A2, 2), v(A2 + 2, 2)))
        for k in range(2, 32, 2):
            self('v_pk_fma_f32 %s, %s, %s, %s' % (v(A1, 2), v(A2 + k, 2), v(A2 + k, 2), v(A1, 2)))
            if k > 2:
                self('v_pk_add_f32 %s, %s, %s' % (v(Z, 2), v(Z, 2), v(A2 + k, 2)))
        self('v_add_f32 %s, %s, %s\nv_add_f32 %s, %s, %s' % (v(Z), v(Z), v(Z + 1), v(Z + 1), v(A1), v(A1 + 1)))
        self.xhalf_add2(Z, A1)
        self('s_not_b64 exec, %s' % s(sHI, 2))
        self.store(Z, u3, WS, s(t2), 0, 'zs')
        self('s_mov_b64 exec, -1')
        self.stamp('zst')
        self('s_lshl_b32 %s, %s, 18\ns_lshl_b32 %s, %s, 12\ns_add_u32 %s, %s, %s\ns_add_u32 %s, %s, %d'
             % (s(t2), s(sI), s(t1), s(sT), s(t2), s(t2), s(t1), s(t2), s(t2), ZF))
        self('v_lshlrev_b32 %s, 2, %s\nv_xor_b32 %s, %s, %s\nv_lshlrev_b32 %s, 4, %s\nv_lshl_add_u32 %s, %s, 9, %s'
             % (v(u3), v(vH), v(u3), v(u3), v(vM), v(u3), v(u3), v(u3), v(vH), v(u3)))
        self('v_xor_b32 %s, 0x80, %s\nv_add_u32 %s, 1024, %s' % (v(u4), v(u3), v(u4), v(u4)))
        self('s_lshl_b32 %s, %s, 4\ns_add_u32 %s, %s, %s\ns_lshl_b32 %s, %s, 3\ns_add_u32 %s, %s, %d'
             % (s(t5), s(sI), s(t5), s(t5), s(sRB), s(t5), s(t5), s(t5), s(t5), FLAG5))
        self('v_mul_u32_u24 %s, 3584, %s\nv_lshl_add_u32 %s, %s, 4, %s\ns_mov_b32 %s, 0' % (v(u0), v(vH), v(u0), v(vM), v(u0), s(sCNT)))
        self.zpass(A1, False, 0, 0, KS)
        self.stamp('z1a')
        lp = self.lab('zs')
        self('%s:' % lp)
        for q in range(7):
            self('buffer_load_dwordx4 %s, %s, %s, %s offen offset:%d sc1' % (v(WB + 4 * q, 4), v(u0), s(WS, 4), s(t3), q * 512))
        self('s_add_u32 %s, %s, 1\ns_waitcnt vmcnt(0)' % (s(sCNT), s(sCNT)))
        for q in range(1, 7):
            self('v_xor_b32 %s, %s, %s\nv_xor_b32 %s, %s, %s' % (v(WB + 4 * q + 2), s(sNON), v(WB + 4 * q + 2),
                                                                v(WB + 4 * q + 3), s(sNON + 1), v(WB + 4 * q + 3)))
        self('v_or3_b32 %s, %s, %s, %s' % (v(u1), v(WB + 6), v(WB + 7), v(WB + 10)))
        for r in ((11, 14), (15, 18), (19, 22), (23, 26)):
            self('v_or3_b32 %s, %s, %s, %s' % (v(u1), v(u1), v(WB + r[0]), v(WB + r[1])))
        self('v_or_b32 %s, %s, %s\nv_cmp_ne_u64 %s, %s, %s\nv_cmp_ne_u32 vcc, 0, %s'
             % (v(u1), v(u1), v(WB + 27), s(t0, 2), s(sNON, 2), v(WB + 2, 2), v(u1)))
        for q in range(1, 7):
            self('v_pk_add_f32 %s, %s, %s' % (v(WB, 2), v(WB, 2), v(WB + 4 * q, 2)))
        self('s_or_b64 %s, %s, vcc' % (s(t0, 2), s(t0, 2)))
        self('s_cbranch_scc0 %s_d\ns_cmp_lt_u32 %s, %d\ns_cbranch_scc1 %s\n%s_d:' % (lp, s(sCNT), POLL_MAX, lp, lp))
        self.vm = []
        self.stamp('s4')
        self.xhalf_add2(WB, WB + 2)
        self.mean_rstd(WB, WB + 1, 896, WB + 2, WB + 4)
        self('v_mul_f32 %s, -%s, %s' % (v(WB + 6), v(WB + 2), v(WB + 4)))
        for c in range(4):
            for k in range(8 * c, 8 * c + 8, 2):
                self('v_pk_fma_f32 %s, %s, %s, %s op_sel_hi:[1,0,0]' % (v(A2 + k, 2), v(A2 + k, 2), v(WB + 4, 2), v(WB + 6, 2)))
            self.pack(WB + 8 + 4 * c, A2 + 8 * c, 8)
            self.store(WB + 8 + 4 * c, u3 + (c & 1), WS, s(t2), (c >> 1) * 2048, 'st')
        self.publish(s(t5))
        self.stamp('p4pub')

    NZ, NW, WRING = 6, 6, 57344

    def p5(self):
        A1, ACC, ZB, WB, WD, WR, ZA, OD = 192, 16, 48, 80, 160, 164, 168, 170
        NZ, NW, WRING, SSP, SWO = self.NZ, self.NW, self.WRING, self.SSP, self.SWO
        self.vm, self.lg = [], []
        NA, KS = self.NA, self.KS
        NS = 32 - NA
        for k in range(KS, KS + 3):
            self.zrd(k)
        self('s_mul_i32 %s, %s, %d\ns_add_u32 %s, %s, %d\ns_lshl_b32 %s, %s, 17' % (s(t4), s(sW), NW * 4096, s(t4), s(t4), WRING, s(t3), s(sT)))
        self.rowtile_dma_addrs(4096, WD, s(t3))
        self.rowtile_read_addrs(WR, s(t4))
        self.colsum_get(172, MISC + 1024, vCS1)

        def w_ops(st):
            def first():
                self('s_add_u32 m0, %s, %d\ns_movk_i32 %s, %d' % (s(t4), (st % NW) * 4096, s(t0), st * 128))
                self.dma(WD, SSP, s(t0), 0, 'W%d' % st)
            return [first] + [lambda rg=rg: self.dma(WD + rg, SSP, s(t0), rg * 1024, 'W%d' % st) for rg in range(1, 4)]

        def z_ops(st):
            def first():
                self('s_add_u32 m0, %s, %d\ns_add_u32 %s, %s, %d' % (s(t1), (st % NZ) * 8192, s(t0), s(t2), st * 8192))
                self.dma(vL16, WS, s(t0), 0, 'Z%d' % st, sc1=True)
            return [first, lambda: self.dma(vL16, WS, s(t0), 1024, 'Z%d' % st, sc1=True)]

        def o_ops(c):
            ops = []
            for hf in range(2):
                def first(hf=hf):
                    if c < 6:
                        self('s_add_u32 m0, %s, %d' % (s(t4), ((NS + c) % 6) * 4096 + hf * 2048))
                    else:
                        self('s_lshl_b32 %s, %s, 12\ns_add_u32 m0, %s, %d' % (s(t0), s(sW), s(t0), 16384 + hf * 2048))
                    self('s_mov_b32 %s, %d' % (s(t0), (32 * c + 16 * hf) * 896))
                    self.dma(OD, SWO, s(t0), 0, 'WT')
                ops += [first, lambda: self.dma(OD + 1, SWO, s(t0), 1024, 'WT')]
            return ops
        self.o_ops = o_ops
        self.q = sum((w_ops(st) for st in range(NW)), [])
        self.zpass(A1, False, 1, KS, 28)
        self.stamp('z1')
        for ct in range(2):
            self.mfma(A1 + 16 * ct, vCS1 + 4 * ct, vMF, A1 + 16 * ct)
        self('v_lshlrev_b32 %s, 16, %s' % (v(vBSP), v(vBSP)))
        self('v_bfe_u32 %s, v0, 4, 1\nv_and_b32 %s, 1, v0\nv_lshl_add_u32 %s, %s, 1, %s' % (v(u0), v(u1), v(u0), v(u0), v(u1)))
        self('v_lshlrev_b32 %s, 1, %s\nv_xor_b32 %s, %s, %s\nv_lshlrev_b32 %s, 6, %s\nv_lshl_add_u32 %s, %s, 9, %s'
             % (v(u1), v(vH), v(u1), v(u1), v(u0), v(u1), v(u1), v(u1), v(u0), v(u1)))
        self('v_bfe_u32 %s, v0, 2, 2\nv_lshl_add_u32 %s, %s, 4, %s\nv_bfe_u32 %s, v0, 1, 1\nv_lshl_add_u32 %s, %s, 3, %s'
             % (v(u0), v(u1), v(u0), v(u1), v(u0), v(ZA), v(u0), v(u1)))
        self('v_xor_b32 %s, 64, %s' % (v(ZA + 1), v(ZA)))
        self('s_lshl_b32 %s, %s, 7' % (s(t2), s(sCB)))
        self.image_ops(OD, SWO, 896, s(t2), 0, 28, 'WT')
        self.scale(A1, 32, vRS)
        self.gelu(A1, 32, 128, 3)
        self.bg(99)
        self.stamp('g1')
        self('s_lshl_b32 %s, %s, 11\ns_lshl_b32 %s, %s, 18\ns_add_u32 %s, %s, %s\ns_add_u32 %s, %s, %d'
             % (s(t1), s(sW), s(t2), s(sI), s(t2), s(t2), s(t1), s(t2), s(t2), ZF))
        self('s_lshl_b32 %s, %s, 7\ns_add_u32 %s, %s, %d' % (s(t5), s(sI), s(t5), s(t5), FLAG5))
        self.poll(s(t5), 16)
        self.stamp('s5')
        self.q = sum((z_ops(st) for st in range(NZ - 1)), [])
        self.bg(99)

        def rdz(g, ct):
            st, k = divmod(g, 4)
            off = (st % NZ) * 8192 + (k >> 1) * 4096 + (k & 1) * 256
            d = ZB + 8 * (g % 4) + 4 * ct
            self.tr(d, ZA, off + ct * 2048, 'g%d' % g)
            self.tr(d + 2, ZA + 1, off + ct * 2048, 'g%d' % g)

        def rdw(g):
            st, k = divmod(g, 4)
            if st < NS:
                self.lgi('ds_read_b128 %s, %s offset:%d' % (v(WB + 4 * (g % 4), 4), v(WR + k), (st % NW) * 4096), 'g%d' % g)

        def mm(g, ct):
            c = None if g == 0 else ACC + 16 * ct
            if g < 4 * NS:
                self.mfma(ACC + 16 * ct, ZB + 8 * (g % 4) + 4 * ct, WB + 4 * (g % 4), c)
            else:
                self.mfma(ACC + 16 * ct, ZB + 8 * (g % 4) + 4 * ct, 4 * (g - 4 * NS), c, pb='a')
        self.wvm('Z0')
        self('s_barrier')
        self.stamp('p5z0')
        for g in range(2):
            rdz(g, 0)
            rdz(g, 1)
            rdw(g)
        for g in range(128):
            st, k = divmod(g, 4)
            if g in (32, 64, 96):
                self.stamp('p5_%d' % g)
            self.wlg('g%d' % g)
            mm(g, 0)
            if k == 2 and st + 1 < 32:
                self.bg(99)
                self.wvm('Z%d' % (st + 1))
                self.wvm('W%d' % (st + 1))
                self('s_barrier')
                if st + NZ - 1 < 32:
                    self.q += z_ops(st + NZ - 1)
                if st >= 1 and st - 1 + NW < NS:
                    self.q += w_ops(st - 1 + NW)
                elif st > NS and (st - NS) % 2 == 1 and (st - NS) // 2 < 6:
                    self.q += o_ops((st - NS) // 2)
                if st == 29:
                    self.q += o_ops(6)
            if g + 2 < 128:
                rdz(g + 2, 0)
                rdw(g + 2)
            mm(g, 1)
            if g + 2 < 128:
                rdz(g + 2, 1)
            self.bg(2)
        self.bg(99)
        self.stamp('p5')
        self('s_mul_i32 %s, %s, 57344\ns_lshl_b32 %s, %s, 12\ns_add_u32 %s, %s, %s\ns_add_u32 %s, %s, %d'
             % (s(t2), s(sT), s(t1), s(sI), s(t2), s(t2), s(t1), s(t2), s(t2), UF))
        self('s_add_u32 %s, %s, %d' % (s(t5), s(sFID), FLAG6))
        e = vBSP & ~1
        for k in range(0, 32, 2):
            self('v_pk_add_f32 %s, %s, %s op_sel_hi:[1,0]' % (v(ACC + k, 2), v(ACC + k, 2), v(e, 2)))
            self('v_pk_mul_f32 %s, %s, %s' % (v(ACC + k, 2), v(ACC + k, 2), v(A1 + k, 2)))
        self.pack(ZB, ACC, 32)

        def st_(sc):
            for k in range(4):
                self.store(ZB + 4 * k, vL16, WS, s(t2), k * 1024, 'st', sc1=sc)
        self.local_stores(st_)
        self.publish(s(t5))
        self.stamp('p5pub')

    def p6(self):
        FR, WB, ACC, AR, AZ, PA = 16, 128, 176, 208, 210, 212
        self.vm, self.lg = [], []
        self.slot_addrs(AR, 49152, self.WRING)
        self.slot_addrs(AZ, 8192, 16384)
        self.pair_addrs(PA, 0)
        self.srd(SA, P_OUT, 2048 * 896)
        self('s_mul_i32 %s, %s, %d\ns_lshl_b32 %s, %s, 7\ns_add_u32 %s, %s, %s\ns_lshl_b32 %s, %s, 6\ns_add_u32 %s, %s, %s'
             % (s(t3), s(sT3), 32 * 896, s(t1), s(sCB), s(t3), s(t3), s(t1), s(t1), s(sKH), s(t3), s(t3), s(t1)))
        self('v_mul_u32_u24 %s, 896, %s\nv_lshl_add_u32 %s, %s, 4, %s' % (v(u4), v(vM), v(u4), v(vH), v(u4)))
        self('s_mul_i32 %s, %s, 57344\ns_mul_i32 %s, %s, 28672\ns_add_u32 %s, %s, %s\ns_add_u32 %s, %s, %d'
             % (s(t2), s(sT3), s(t1), s(sKH), s(t2), s(t2), s(t1), s(t2), s(t2), UF))
        self('s_lshl_b32 %s, %s, 7\ns_add_u32 %s, %s, %d' % (s(t5), s(sRB), s(t5), s(t5), FLAG6))
        self.wvm()
        self.stamp('wout')
        self.poll(s(t5), 14)
        self.stamp('s6')
        self.q = self.frag_ops(FR, 28, t2, 'f')
        self.bg(11)

        def rd(k, sl):
            hi, c = divmod(k >> 1, 7)
            if c < 6:
                adr, off = AR, hi * 24576 + ((32 - self.NA + c) % 6) * 4096
            else:
                adr, off = AZ, hi * 4096
            self.trfrag(WB + 8 * (k % 4) + 4 * sl, adr + sl, off + (k & 1) * 2048, 'w%d' % k)
        for k in range(3):
            rd(k, 0)
            rd(k, 1)
        for k in range(28):
            self.wvm('f%d' % k)
            self.wlg('w%d' % k)
            for sl in range(2):
                self.mfma(ACC + 16 * sl, WB + 8 * (k % 4) + 4 * sl, FR + 4 * k, None if k == 0 else ACC + 16 * sl)
                if k + 3 < 28:
                    rd(k + 3, sl)
            self.bg(1)
        self.stamp('p6mm')
        self.pair_reduce(ACC, WB, PA, vHK, WB + 16)
        self.pack(WB, ACC, 16)
        self.store(WB, u4, SA, s(t3), 0, 'st', sc1=False)
        self.store(WB + 4, u4, SA, s(t3), 32, 'st', sc1=False)
        self.stamp('end', True)

    def build(self):
        stop = self.o.get('stop', 6)
        self.prologue()
        for k, ph in enumerate((self.p1, self.p2, self.p3, self.p4, self.p5, self.p6), 1):
            if k <= stop:
                ph()
        self('L_fin:')
        self.stamp_flush()
        self('L_end:\ns_endpgm')
        if stop >= 2:
            self.att_slow()
        self('L_code_end:')
        npad = self.a.pad()
        errs = []
        for take in ((), ('L_p1_V',), ('L_p1_N',), ('L_att_slow',)):
            errs += self.a.check_waits(take)
        for e in sorted(set(errs)):
            print('WAITCHECK', e, file=sys.stderr)
        ref = open('cdna_kernels/%s.s.ref' % NAME).read().split('\n')
        head = [l for l in ref if l.startswith(';') and '@launch' not in l and 'Override' not in l and 'grid=ceil' not in l
                and l == l.lstrip()]
        out = '\n'.join(head) + '\n'
        if self.names:
            out += '; stamps: ' + ' '.join(self.names) + '\n'
        out += '; @launch grid=(256,1,1) block=(256,1,1) lds=%d\n' % LDS_BYTES
        out += '.amdgcn_target "amdgcn-amd-amdhsa--gfx950"\n.text\n.globl %s_kernel\n.p2align 8\n' % NAME
        out += '.type %s_kernel,@function\n%s_kernel:\n' % (NAME, NAME)
        out += self.a.text()
        out += '.section .rodata,"a"\n.p2align 6\n.amdhsa_kernel %s_kernel\n' % NAME
        out += ('  .amdhsa_next_free_vgpr 512\n  .amdhsa_next_free_sgpr 102\n  .amdhsa_accum_offset 256\n'
                '  .amdhsa_group_segment_fixed_size 0\n  .amdhsa_kernarg_size 88\n  .amdhsa_user_sgpr_count 2\n'
                '  .amdhsa_user_sgpr_kernarg_segment_ptr 1\n  .amdhsa_system_sgpr_workgroup_id_x 1\n'
                '.end_amdhsa_kernel\n')
        if self.o.get('showpads'):
            for k, x in enumerate(self.a.L):
                if x.note == 'pad':
                    print(k, x.text, '| prev:', self.a.L[k - 1].text, '| next:', self.a.L[k + 1].text, file=sys.stderr)
        print('instructions %d, pads %d, waitcheck errors %d' % (len(self.a.L), npad, len(set(errs))), file=sys.stderr)
        return out


if __name__ == '__main__':
    opt = {}
    dst = sys.argv[1]
    for a in sys.argv[2:]:
        k, _, val = a.partition('=')
        opt[k] = int(val) if val.isdigit() else (val or 1)
    open(dst, 'w').write(G(opt).build())
```

```python
import sys
import math
import struct
import copy
from asmlib import Asm

NAME = 'sequential_preLN__mha_block__mixer_gmlp__prompt'

FLAG1, FLAG2, FLAG3, FLAG5, FLAG6 = 0x0000, 0x1000, 0x2000, 0x3000, 0x4000
ONES, PROF = 0x40000, 0x80000
ZST, HST = 0x100000, 0x180000
KF, VF, OF, HF, ZF, UF = 0x200000, 0x400000, 0x600000, 0x800000, 0xA00000, 0xE00000
WS_BYTES = 0x1200000

XB = 57344
WQB = 106496
MISC = 155648
RSX = 157696
WIN2 = 57344
RED = 114688
LDS_BYTES = 163840

P_X, P_WQKV, P_WO, P_WIN, P_WSP, P_BSP, P_WOUT, P_OUT, P_DBG, P_WS = 4, 6, 8, 12, 14, 16, 18, 20, 22, 24
sW, sRB, sI, sXCC, sNON, sFAST = 26, 27, 44, 45, 46, 48
WS, SA, SB, SC = 28, 32, 36, 40
sHI = 50
sONE2 = 52
sT = 54
sCB, sKH, sT3 = 55, 56, 57
sK0, sK1 = 58, 60
t0, t1, t2, t3, t4, t5, t6, t7 = 62, 63, 64, 65, 66, 67, 68, 69
sSAVE = 70
sCNT = 72
sPT = 74
sB = 76
sM0, sSO = 80, 81
sFID = 77

vL, vH, vM, vL16, vTRa, vTRb, vPM = 0, 1, 2, 3, 4, 5, 6
u0, u1, u2, u3, u4, u5, u6, u7, u8 = 7, 8, 9, 10, 11, 12, 13, 14, 15
vCS1, vCS2, vMF, vHK, vBSP, vRS = 224, 232, 240, 244, 252, 253

POLL_MAX = 20000


def f32(x):
    return '0x%08x' % struct.unpack('<I', struct.pack('<f', x))[0]


def v(a, n=1):
    return 'v%d' % a if n == 1 else 'v[%d:%d]' % (a, a + n - 1)


def s(a, n=1):
    return 's%d' % a if n == 1 else 's[%d:%d]' % (a, a + n - 1)


class G:
    def __init__(self, opt):
        self.o = opt
        self.a = Asm()
        self.vm = []
        self.lg = []
        self.nlab = 0
        self.names = []
        self.q = []

    def __call__(self, t):
        self.a(t)

    def lab(self, p):
        self.nlab += 1
        return 'L_%s_%d' % (p, self.nlab)

    def vmi(self, text, tag):
        self.a(text)
        self.vm.append(tag)

    def lgi(self, text, tag):
        self.a(text)
        self.lg.append(tag)

    def _n(self, q, tag):
        idx = [k for k, t in enumerate(q) if t == tag]
        return None if not idx else len(q) - 1 - idx[-1]

    def wvm(self, tag=None):
        n = 0 if tag is None else self._n(self.vm, tag)
        if n is None:
            return
        self.a('s_waitcnt vmcnt(%d)' % n)
        self.vm = self.vm[len(self.vm) - n:]

    def wlg(self, tag=None):
        n = 0 if tag is None else self._n(self.lg, tag)
        if n is None:
            return
        n = min(n, 15)
        self.a('s_waitcnt lgkmcnt(%d)' % n)
        self.lg = self.lg[len(self.lg) - n:]

    def srd(self, r, ptr, nbytes):
        self('s_mov_b32 %s, %s\ns_mov_b32 %s, %s\ns_mov_b32 %s, 0x%x\ns_mov_b32 %s, 0x20000'
             % (s(r), s(ptr), s(r + 1), s(ptr + 1), s(r + 2), nbytes, s(r + 3)))

    def bg(self, n=1):
        for _ in range(n):
            if self.q:
                self.q.pop(0)()

    def image_ops(self, va, srd, stride, col_soff, lds_base, ninstr, tag):
        self('v_lshrrev_b32 %s, 3, %s\nv_mul_u32_u24 %s, %d, %s' % (v(va), v(vL), v(va), stride, v(va)))
        self('v_bfe_u32 %s, %s, 4, 1\nv_lshlrev_b32 %s, 2, %s' % (v(va + 1), v(vL), v(va + 1), v(va + 1)))
        self('v_xor_b32 %s, %s, %s\nv_and_b32 %s, 7, %s' % (v(va + 1), v(va + 1), v(vL), v(va + 1), v(va + 1)))
        self('v_lshl_add_u32 %s, %s, 4, %s' % (v(va), v(va + 1), v(va)))
        self('s_mul_i32 %s, %s, %d\ns_add_u32 %s, %s, %s' % (s(t0), s(sW), ninstr * 8 * stride, s(t0), s(t0), col_soff))
        self('v_add_u32 %s, %s, %s\nv_add_u32 %s, %d, %s' % (v(va), s(t0), v(va), v(va + 1), 8 * stride - 1024, v(va)))
        ops = []
        for q in range(ninstr):
            def op(q=q):
                if q % 2 == 0:
                    if q == 0:
                        self('s_mul_i32 %s, %s, %d\ns_add_u32 m0, %s, %d\ns_mov_b32 %s, 0'
                             % (s(sM0), s(sW), ninstr * 1024, s(sM0), lds_base, s(sSO)))
                    else:
                        self('s_add_u32 m0, %s, %d\ns_mov_b32 %s, %d' % (s(sM0), lds_base + q * 1024, s(sSO), q * 8 * stride))
                self.dma(va + (q & 1), srd, s(sSO), (q & 1) * 1024, tag)
            ops.append(op)
        return ops

    def mfma(self, d, a_, b, c=None, pa='v', pb='v'):
        cs = '0' if c is None else v(c, 16)
        self('v_mfma_f32_32x32x16_bf16 %s, %s[%d:%d], %s[%d:%d], %s'
             % (v(d, 16), pa, a_, a_ + 3, pb, b, b + 3, cs))

    def mfsum(self, d, b, first, pb='v'):
        self('v_mfma_f32_16x16x32_bf16 %s, a[252:255], %s[%d:%d], %s' % (v(d, 4), pb, b, b + 3, '0' if first else v(d, 4)))

    def tr(self, dst, addr, off, tag):
        self.lgi('ds_read_b64_tr_b16 %s, %s offset:%d' % (v(dst, 2), v(addr), off), tag)

    def trfrag(self, dst, addr, off, tag, step=512):
        self.tr(dst, addr, off, tag)
        self.tr(dst + 2, addr, off + step, tag)

    def load(self, dst, voff, srd, soff, imm, tag, n=4, sc1=True, pfx='v'):
        op = {4: 'dwordx4', 2: 'dwordx2', 1: 'dword'}[n]
        d = '%s%d' % (pfx, dst) if n == 1 else '%s[%d:%d]' % (pfx, dst, dst + n - 1)
        self.vmi('buffer_load_%s %s, %s, %s, %s offen offset:%d%s'
                 % (op, d, v(voff), s(srd, 4), soff, imm, ' sc1' if sc1 else ''), tag)

    def dma(self, voff, srd, soff, imm, tag, sc1=False):
        self.vmi('buffer_load_dwordx4 %s, %s, %s offen offset:%d%s lds'
                 % (v(voff), s(srd, 4), soff, imm, ' sc1' if sc1 else ''), tag)

    def store(self, src, voff, srd, soff, imm, tag, n=4, sc1=True):
        op = {4: 'dwordx4', 2: 'dwordx2', 1: 'dword'}[n]
        self.vmi('buffer_store_%s %s, %s, %s, %s offen offset:%d%s'
                 % (op, v(src, n), v(voff), s(srd, 4), soff, imm,
                    ' sc1' if sc1 else (' ' + self.o['plainmod'] if srd == WS and self.o.get('plainmod') else '')), tag)

    def local_stores(self, emit):
        emit(True)

    def publish(self, flag_soff, local=False):
        self('v_mov_b32 %s, %s\nv_mov_b32 %s, %s\ns_cmp_eq_u32 %s, 0' % (v(u1), s(sNON), v(u2), s(sNON + 1), s(sW)))
        self.wvm()
        self('s_barrier')
        sk = self.lab('pub')
        self('s_cbranch_scc0 %s\ns_mov_b64 exec, 1' % sk)
        self('buffer_store_dwordx2 %s, v0, %s, %s offen sc1' % (v(u1, 2), s(WS, 4), flag_soff))
        self('s_mov_b64 exec, -1\n%s:' % sk)

    def poll(self, flag_soff, nflags):
        sk, lp = self.lab('pollskip'), self.lab('poll')
        self('s_cmp_eq_u32 %s, 0\ns_cbranch_scc0 %s' % (s(sW), sk))
        self('v_lshlrev_b32 %s, 3, %s' % (v(u0), v(vL)))
        self('s_mov_b64 exec, 0x%x' % ((1 << nflags) - 1))
        self('s_mov_b32 %s, 0\n%s:' % (s(sCNT), lp))
        self('buffer_load_dwordx2 %s, %s, %s, %s offen sc1' % (v(u1, 2), v(u0), s(WS, 4), flag_soff))
        self('s_add_u32 %s, %s, 1' % (s(sCNT), s(sCNT)))
        self('s_waitcnt vmcnt(0)')
        self('v_cmp_ne_u64 vcc, %s, %s' % (s(sNON, 2), v(u1, 2)))
        self('s_cbranch_vccz %s_d' % lp)
        self('s_cmp_lt_u32 %s, %d\ns_cbranch_scc1 %s' % (s(sCNT), POLL_MAX, lp))
        self('%s_d:\ns_mov_b64 exec, -1\n%s:' % (lp, sk))
        self('s_barrier')

    def stamp(self, name, real=False):
        if self.o.get('padfrom') == name:
            self('s_memrealtime %s\ns_waitcnt lgkmcnt(0)' % s(sPT, 2))
            self.lg = []
        if not self.o.get('prof'):
            return
        if name not in self.names:
            self.names.append(name)
        k = self.names.index(name)
        assert k < 62
        self('s_memtime s[78:79]\ns_waitcnt lgkmcnt(0)\nv_writelane_b32 v255, s78, %d' % k)
        self.lg = []
        if real:
            self('s_memrealtime s[78:79]\ns_waitcnt lgkmcnt(0)\nv_writelane_b32 v255, s78, %d' % (62 if k == 0 else 63))

    def stamp_flush(self):
        if not self.o.get('prof'):
            return
        self('s_lshl_b32 %s, %s, 2\ns_add_u32 %s, %s, %s\ns_lshl_b32 %s, %s, 8\ns_add_u32 %s, %s, %d'
             % (s(t7), s(sB), s(t7), s(t7), s(sW), s(t7), s(t7), s(t7), s(t7), PROF))
        self('v_lshlrev_b32 v254, 2, v0\nbuffer_store_dword v255, v254, %s, %s offen' % (s(WS, 4), s(t7)))

    def xhalf_add(self, r, tmp):
        self('v_mov_b32 %s, %s\nv_permlane32_swap_b32 %s, %s\nv_add_f32 %s, %s, %s'
             % (v(tmp), v(r), v(tmp), v(r), v(r), v(r), v(tmp)))

    def xhalf_add2(self, r, tmp):
        self('v_mov_b32 %s, %s\nv_mov_b32 %s, %s\ns_nop 0\nv_permlane32_swap_b32 %s, %s\nv_permlane32_swap_b32 %s, %s'
             % (v(tmp), v(r), v(tmp + 1), v(r + 1), v(tmp), v(r), v(tmp + 1), v(r + 1)))
        self('v_add_f32 %s, %s, %s\nv_add_f32 %s, %s, %s' % (v(r), v(r), v(tmp), v(r + 1), v(r + 1), v(tmp + 1)))

    def mean_rstd(self, vsum, vsq, n, mean, rstd):
        self('v_mul_f32 %s, %s, %s' % (v(mean), f32(1.0 / n), v(vsum)))
        self('v_mul_f32 %s, %s, %s' % (v(rstd), f32(1.0 / n), v(vsq)))
        self('v_fma_f32 %s, -%s, %s, %s' % (v(rstd), v(mean), v(mean), v(rstd)))
        self('v_max_f32 %s, 0, %s\nv_add_f32 %s, %s, %s' % (v(rstd), v(rstd), v(rstd), f32(1e-5), v(rstd)))
        self('v_rsq_f32 %s, %s' % (v(rstd), v(rstd)))

    def make_meanfrag(self, mean, tmp):
        self('v_sub_f32 %s, 0, %s\nv_cndmask_b32 %s, %s, 0, %s' % (v(tmp), v(mean), v(tmp), v(tmp), s(sHI, 2)))
        self('v_cvt_pk_bf16_f32 %s, %s, 0\nv_lshlrev_b32 %s, 16, %s' % (v(vMF + 1), v(tmp), v(vMF), v(vMF + 1)))
        self('v_sub_f32 %s, %s, %s\nv_cvt_pk_bf16_f32 %s, %s, %s' % (v(vMF), v(tmp), v(vMF), v(vMF), v(tmp), v(vMF)))
        self('v_mov_b32 %s, 0\nv_mov_b32 %s, 0' % (v(vMF + 2), v(vMF + 3)))

    def make_csfrag(self, cs, dst):
        self('v_cvt_pk_bf16_f32 %s, %s, %s\nv_and_b32 %s, 0xffff0000, %s' % (v(dst), v(cs), v(cs), v(dst + 1), v(dst)))
        self('v_sub_f32 %s, %s, %s\nv_cvt_pk_bf16_f32 %s, %s, 0' % (v(dst + 1), v(cs), v(dst + 1), v(dst + 1), v(dst + 1)))
        self('v_mov_b32 %s, 0\nv_mov_b32 %s, 0' % (v(dst + 2), v(dst + 3)))

    def colsum_put(self, c0, c1, xch):
        self('s_lshl_b32 %s, %s, 2\ns_add_u32 %s, %s, %d\nv_lshl_add_u32 %s, %s, 4, %s'
             % (s(t0), s(sW), s(t0), s(t0), xch, v(u0), v(vM), s(t0)))
        self.lgi('ds_write_b32 %s, %s' % (v(u0), v(c0)), 'csw')
        self.lgi('ds_write_b32 %s, %s offset:512' % (v(u0), v(c1)), 'csw')

    def colsum_part(self, base, bufs, acc, xch):
        self('s_mul_i32 %s, %s, 14336\ns_add_u32 %s, %s, %d' % (s(t0), s(sW), s(t0), s(t0), base))
        self('v_add_u32 %s, %s, %s\nv_add_u32 %s, %s, %s' % (v(u0), s(t0), v(vTRa), v(u1), s(t0), v(vTRb)))
        for q in range(7):
            for ct in range(2):
                self.trfrag(bufs[ct] + 4 * q, u0 + ct, q * 2048, 'cs%d' % q)
        for q in range(7):
            self.wlg('cs%d' % q)
            for ct in range(2):
                self.mfsum(acc + 4 * ct, bufs[ct] + 4 * q, q == 0)
        self.colsum_put(acc, acc + 4, xch)

    def colsum_get(self, buf, xch, dst):
        self('v_lshlrev_b32 %s, 4, %s' % (v(u0), v(vM)))
        self('v_add_u32 %s, %d, %s' % (v(u0), xch, v(u0)))
        for ct in range(2):
            self.lgi('ds_read_b128 %s, %s offset:%d' % (v(buf + 4 * ct, 4), v(u0), ct * 512), 'csr')
        self.wlg('csr')
        for ct in range(2):
            b = buf + 4 * ct
            self('v_add_f32 %s, %s, %s\nv_add_f32 %s, %s, %s\nv_add_f32 %s, %s, %s'
                 % (v(b), v(b), v(b + 1), v(b + 2), v(b + 2), v(b + 3), v(b), v(b), v(b + 2)))
            self.make_csfrag(b, dst + 4 * ct)

    def rowtile_dma_addrs(self, stride, vd, sbase):
        self('v_lshrrev_b32 %s, 3, %s\nv_mul_u32_u24 %s, %d, %s' % (v(u0), v(vL), v(u0), stride, v(u0)))
        self('v_lshrrev_b32 %s, 4, %s\nv_xor_b32 %s, %s, %s\nv_and_b32 %s, 7, %s'
             % (v(u1), v(vL), v(u1), v(u1), v(vL), v(u1), v(u1)))
        self('v_lshl_add_u32 %s, %s, 4, %s\nv_xor_b32 %s, 64, %s' % (v(u0), v(u1), v(u0), v(u1), v(u0)))
        self('v_add_u32 %s, %s, %s\nv_add_u32 %s, %s, %s' % (v(vd), sbase, v(u0), v(u1), sbase, v(u1)))
        d = 8 * stride - 1024
        self('v_add_u32 %s, %d, %s\nv_add_u32 %s, %d, %s\nv_add_u32 %s, %d, %s'
             % (v(vd + 1), d, v(u1), v(vd + 2), 2 * d, v(vd), v(vd + 3), 3 * d, v(u1)))

    def rowtile_read_addrs(self, vr, sbase, sxor=None):
        self('v_bfe_u32 %s, %s, 1, 3\nv_xor_b32 %s, %s, %s' % (v(u1), v(vM), v(u1), v(u1), v(vH)))
        self('v_lshlrev_b32 %s, 4, %s\nv_lshl_add_u32 %s, %s, 7, %s' % (v(u1), v(u1), v(u1), v(vM), v(u1)))
        if sxor:
            self('v_xor_b32 %s, %s, %s' % (v(u1), sxor, v(u1)))
        for k in range(4):
            self('v_xor_b32 %s, %d, %s\nv_add_u32 %s, %s, %s' % (v(vr + k), 32 * k, v(u1), v(vr + k), sbase, v(vr + k)))

    def gelu(self, x, n, tmp, nbg):
        for b in range(0, n, 8):
            for k in range(0, 8, 2):
                self('v_pk_mul_f32 %s, %s, %s' % (v(tmp + k, 2), v(x + b + k, 2), v(x + b + k, 2)))
            for k in range(0, 8, 2):
                self('v_pk_fma_f32 %s, %s, %s, %s' % (v(tmp + k, 2), v(tmp + k, 2), s(sK1, 2), v(u7, 2)))
            for k in range(0, 8, 2):
                self('v_pk_mul_f32 %s, %s, %s' % (v(tmp + k, 2), v(tmp + k, 2), v(x + b + k, 2)))
            for k in range(8):
                self('v_exp_f32 %s, %s' % (v(tmp + k), v(tmp + k)))
            for k in range(0, 8, 2):
                self('v_pk_add_f32 %s, %s, 1.0 op_sel_hi:[1,0]' % (v(tmp + k, 2), v(tmp + k, 2)))
            for k in range(8):
                self('v_rcp_f32 %s, %s' % (v(tmp + k), v(tmp + k)))
            self.bg(nbg)
            for k in range(0, 8, 2):
                self('v_pk_mul_f32 %s, %s, %s' % (v(x + b + k, 2), v(x + b + k, 2), v(tmp + k, 2)))

    def scale(self, x, n, r):
        e = r & ~1
        sel = 'op_sel:[0,1] op_sel_hi:[1,1]' if r & 1 else 'op_sel_hi:[1,0]'
        for k in range(0, n, 2):
            self('v_pk_mul_f32 %s, %s, %s %s' % (v(x + k, 2), v(x + k, 2), v(e, 2), sel))

    def pack(self, dst, x, n):
        for k in range(0, n, 2):
            self('v_cvt_pk_bf16_f32 %s, %s, %s' % (v(dst + k // 2), v(x + k), v(x + k + 1)))

    XF, ACC1, GR, SUM, CSA, XD, XR, WD, WT, QD, NONV, SAD, TB = 16, 128, 160, 176, 180, 188, 192, 196, 198, 206, 208, 210, 214
    sROT = 49

    def prologue(self):
        XD, WD = self.XD, self.WD
        self('s_cmp_ge_u32 s2, 256\ns_cbranch_scc1 L_end')
        self.stamp('start', True)
        self('s_load_dwordx16 s[4:19], s[0:1], 0\ns_load_dwordx4 s[20:23], s[0:1], 64\ns_load_dwordx2 s[24:25], s[0:1], 80')
        self('v_lshrrev_b32 v1, 6, v0\nv_and_b32 v0, 63, v0\nv_readfirstlane_b32 %s, v1\ns_mov_b32 %s, s2' % (s(sW), s(sB)))
        self('s_bfe_u32 %s, s2, 0x20001\ns_lshl_b32 %s, %s, 2\ns_lshr_b32 %s, s2, 6\ns_add_u32 %s, %s, %s'
             % (s(t0), s(t0), s(t0), s(t1), s(sRB), s(t0), s(t1)))
        self('s_bfe_u32 %s, s2, 0x30003\ns_lshl_b32 %s, %s, 1\ns_and_b32 %s, s2, 1\ns_add_u32 %s, %s, %s'
             % (s(sCB), s(t0), s(sCB), s(t2), s(sI), s(t0), s(t2)))
        self('s_lshl_b32 %s, %s, 1\ns_add_u32 %s, %s, %s\ns_cmp_ge_u32 %s, 7\ns_cselect_b32 %s, 7, 0\ns_sub_u32 %s, %s, %s'
             % (s(t1), s(t1), s(t1), s(t1), s(sCB), s(t1), s(t0), s(self.sROT), s(t1), s(t0)))
        self('s_lshl_b32 %s, %s, 2\ns_add_u32 %s, %s, %s\ns_mul_i32 %s, %s, %d' % (s(sT), s(sRB), s(sT), s(sT), s(sW), s(t2), s(sT), 32 * 896))
        self.rowtile_dma_addrs(896, XD, s(t2))
        self('v_lshrrev_b32 %s, 3, v0\nv_mul_u32_u24 %s, 2688, %s\nv_bfe_u32 %s, v0, 4, 1\nv_lshlrev_b32 %s, 2, %s'
             % (v(u0), v(u0), v(u0), v(u1), v(u1), v(u1)))
        self('v_xor_b32 %s, %s, v0\nv_and_b32 %s, 7, %s\nv_lshl_add_u32 %s, %s, 4, %s' % (v(u1), v(u1), v(u1), v(u1), v(u0), v(u1), v(u0)))
        self('s_mul_i32 %s, %s, 43008\ns_lshl_b32 %s, %s, 7\ns_add_u32 %s, %s, %s\ns_add_u32 %s, %s, 896\ns_lshl_b32 %s, %s, 11'
             % (s(t0), s(sW), s(t1), s(sI), s(t0), s(t0), s(t1), s(t0), s(t0), s(t3), s(sW)))
        self('v_add_u32 %s, %s, %s\nv_add_u32 %s, %d, %s' % (v(WD), s(t0), v(u0), v(WD + 1), 8 * 2688 - 1024, v(WD)))
        self('s_mul_i32 %s, %s, 12288\ns_add_u32 %s, %s, %d' % (s(t4), s(sW), s(t4), s(t4), XB))
        self('s_mov_b32 %s, 0x%x\ns_mov_b32 %s, 0x20000\ns_mov_b32 %s, 0x%x\ns_mov_b32 %s, 0x20000'
             % (s(SA + 2), 2048 * 896, s(SA + 3), s(SB + 2), 448 * 2688, s(SB + 3)))
        self('s_mov_b32 %s, %s' % (s(t5), s(self.sROT)))
        self('s_cmp_ge_u32 %s, 14\ns_waitcnt lgkmcnt(0)' % s(sI))
        self('s_mov_b32 %s, %s\ns_mov_b32 %s, %s\ns_mov_b32 %s, %s\ns_mov_b32 %s, %s'
             % (s(SA), s(P_X), s(SA + 1), s(P_X + 1), s(SB), s(P_WQKV), s(SB + 1), s(P_WQKV + 1)))

    def setup2(self):
        XR, WT, QD = self.XR, self.WT, self.QD
        self.srd(WS, P_WS, WS_BYTES)
        self.srd(SC, P_DBG, 256)
        sk = self.lab('non')
        self('s_or_b32 %s, %s, %s\ns_cmp_eq_u32 %s, 0\ns_cbranch_scc0 %s' % (s(t0), s(sB), s(sW), s(t0), sk))
        self('s_memrealtime %s\ns_waitcnt lgkmcnt(0)\ns_or_b32 %s, %s, 0x80000000' % (s(t6, 2), s(t7), s(t7)))
        self('v_mov_b32 %s, %s\nv_mov_b32 %s, %s\ns_mov_b64 exec, 1' % (v(u1), s(t6), v(u2), s(t7)))
        self('buffer_store_dwordx2 %s, v0, %s, 0 offen sc1\ns_mov_b64 exec, -1\n%s:' % (v(u1, 2), s(SC, 4), sk))
        lp = self.lab('pc')
        self('s_getpc_b64 %s\n%s:\ns_sub_u32 %s, %s, %s-%s_kernel\ns_subb_u32 %s, %s, 0' % (s(84, 2), lp, s(84), s(84), lp, NAME, s(85), s(85)))
        self('s_mov_b32 s86, L_code_end-%s_kernel\ns_mov_b32 s87, 0x20000' % NAME)
        self('s_lshr_b32 %s, %s, 3\ns_lshl_b32 %s, %s, 2\ns_add_u32 %s, %s, %s\ns_lshl_b32 %s, %s, 9\nv_lshlrev_b32 %s, 3, v0'
             % (s(t0), s(sB), s(t0), s(t0), s(t0), s(t0), s(sW), s(t0), s(t0), v(u0)))
        self.load(250, u0, 84, s(t0), 0, 'code', n=2, sc1=False, pfx='a')
        self('s_mov_b32 %s, 0\ns_mov_b32 %s, -1\ns_mov_b32 %s, 0x3f803f80' % (s(sHI), s(sHI + 1), s(sONE2)))
        k0 = -2.0 * math.sqrt(2.0 / math.pi) * math.log2(math.e)
        self('s_mov_b32 %s, %s' % (s(sK0), f32(k0)))
        self('s_mov_b32 %s, %s\ns_mov_b32 %s, %s' % (s(sK1), f32(k0 * 0.044715), s(sK1 + 1), f32(k0 * 0.044715)))
        self('s_lshl_b32 %s, %s, 4\ns_add_u32 %s, %s, %s\ns_lshl_b32 %s, %s, 3' % (s(sFID), s(sRB), s(sFID), s(sFID), s(sI), s(sFID), s(sFID)))
        self('s_and_b32 %s, %s, 1\ns_lshl_b32 %s, %s, 1\ns_lshr_b32 %s, %s, 1' % (s(t1), s(sI), s(t1), s(t1), s(sKH), s(sW)))
        self('s_lshl_b32 %s, %s, 2\ns_add_u32 %s, %s, %s\ns_and_b32 %s, %s, 1\ns_add_u32 %s, %s, %s'
             % (s(sT3), s(sRB), s(sT3), s(sT3), s(t1), s(t0), s(sW), s(sT3), s(sT3), s(t0)))
        self('v_lshrrev_b32 %s, 5, v0\nv_and_b32 %s, 31, v0\nv_lshlrev_b32 %s, 4, v0' % (v(vH), v(vM), v(vL16)))
        self('v_bfe_u32 %s, v0, 2, 2\nv_lshl_add_u32 %s, %s, 3, %s\nv_lshlrev_b32 %s, 7, %s'
             % (v(u0), v(u1), v(vH), v(u0), v(vTRa), v(u1)))
        self('v_bfe_u32 %s, v0, 4, 1\nv_and_b32 %s, 1, v0\nv_lshl_add_u32 %s, %s, 1, %s' % (v(u1), v(u2), v(u1), v(u1), v(u2)))
        self('v_bfe_u32 %s, v0, 3, 1\nv_lshlrev_b32 %s, 2, %s\nv_xor_b32 %s, %s, %s' % (v(u2), v(u2), v(u2), v(u2), v(u2), v(u1)))
        self('v_lshl_add_u32 %s, %s, 4, %s\nv_bfe_u32 %s, v0, 1, 1\nv_lshl_add_u32 %s, %s, 3, %s'
             % (v(vTRa), v(u2), v(vTRa), v(u2), v(vTRa), v(u2), v(vTRa)))
        self('v_xor_b32 %s, 64, %s' % (v(vTRb), v(vTRa)))
        self('v_and_b32 %s, 0x13, %s\nv_bfe_u32 %s, v0, 2, 1\nv_lshl_or_b32 %s, %s, 3, %s'
             % (v(vPM), v(vM), v(u0), v(vPM), v(u0), v(vPM)))
        self('v_bfe_u32 %s, v0, 3, 1\nv_lshl_or_b32 %s, %s, 2, %s' % (v(u1), v(vPM), v(u1), v(vPM)))
        self('v_bfe_u32 %s, v0, 4, 1\nv_cmp_eq_u32 vcc, %s, %s\nv_mov_b32 %s, %s\nv_cndmask_b32 %s, 0, %s, vcc'
             % (v(u1), v(u0), v(u1), v(u1), s(sONE2), v(u1), v(u1)))
        for k in range(4):
            self('v_accvgpr_write_b32 a%d, %s' % (252 + k, v(u1)))
        self('s_lshl_b32 %s, %s, 5' % (s(t1), s(sW)))
        self.rowtile_read_addrs(XR, s(t4), s(t1))
        for k in range(4):
            self('s_xor_b32 %s, %s, %d\nv_or_b32 %s, %s, %s\nv_or_b32 %s, %s, %s'
                 % (s(t0), s(t3), k * 2048, v(WT + 2 * k), s(t0), v(vTRa), v(WT + 2 * k + 1), s(t0), v(vTRb)))
        self('s_mul_i32 %s, %s, 56\ns_and_b32 %s, %s, 1\ns_lshl_b32 %s, %s, 3\ns_sub_u32 %s, %s, %s'
             % (s(t0), s(sI), s(t1), s(sI), s(t1), s(t1), s(t0), s(t0), s(t1)))
        self('v_lshrrev_b32 %s, 2, v0\nv_mul_u32_u24 %s, 2688, %s\nv_and_b32 %s, 3, v0\nv_lshl_add_u32 %s, %s, 4, %s'
             % (v(u0), v(u0), v(u0), v(u1), v(QD), v(u1), v(u0)))
        self('s_mul_i32 %s, %s, 43008\ns_add_u32 %s, %s, %s\nv_add_u32 %s, %s, %s\ns_lshl_b32 s82, %s, 10'
             % (s(t1), s(sW), s(t0), s(t0), s(t1), v(QD), s(t0), v(QD), s(sW)))

    def p1_variant(self, kind):
        XF, ACC, GR, SUM, CSA, XD, XR, WD, WT, QD, NONV, SAD, TB = (
            self.XF, self.ACC1, self.GR, self.SUM, self.CSA, self.XD, self.XR, self.WD, self.WT, self.QD,
            self.NONV, self.SAD, self.TB)
        kv = kind != 'N'

        def wreg(j, k, ct):
            return 32 * (j & 1) + 8 * k + 4 * ct

        def step(reg):
            self('s_add_u32 %s, %s, 1\ns_cmp_eq_u32 %s, 7\ns_cselect_b32 %s, 0, %s' % (s(reg), s(reg), s(reg), s(reg), s(reg)))

        def block_ops(j):
            ops = []
            if kv:
                def w_():
                    self('s_add_u32 m0, %s, %d\ns_mul_i32 %s, %s, %d' % (s(t3), j * 8192, s(t0), s(t5), 64 * 2688))
                    self.dma(WD, SB, s(t0), 0, 'B%d' % j)
                ops += [w_, lambda: self.dma(WD + 1, SB, s(t0), 1024, 'B%d' % j)]

            def x_():
                self('s_add_u32 m0, %s, %d\ns_lshl_b32 %s, %s, 7' % (s(t4), (j % 3) * 4096, s(t0), s(t5)))
                self.dma(XD, SA, s(t0), 0, 'B%d' % j)
            ops.append(x_)
            for rg in range(1, 4):
                ops.append(lambda rg=rg: self.dma(XD + rg, SA, s(t0), rg * 1024, 'B%d' % j))
            ops.append(lambda: step(t5))
            return ops

        def wq_op(j):
            self('s_add_u32 m0, s82, %d\ns_mul_i32 %s, %s, %d' % (WQB + j * 4096, s(t0), s(t5), 64 * 2688))
            self.dma(QD, SB, s(t0), 0, 'WQ')
            step(t5)
        self.q = block_ops(0) + block_ops(1)
        self.bg(99)
        self.stamp('p1dma')
        keep = list(self.vm)
        self.setup2()
        self.vm = keep + ['code']
        if kind == 'K':
            self('s_lshl_b32 %s, %s, 3\nv_add_u32 %s, %s, %s\ns_mov_b32 %s, 225792\ns_mul_i32 %s, %s, 3584\ns_add_u32 %s, %s, %d'
                 % (s(t0), s(sI), v(u0), s(t0), v(vH), s(t1), s(t2), s(sT), s(t2), s(t2), KF))
            for k in range(4):
                self('v_add_u32 %s, %d, %s\nv_mul_u32_u24 %s, 37, %s\nv_lshrrev_b32 %s, 8, %s'
                     % (v(u1), 2 * k, v(u0), v(u2), v(u1), v(u2), v(u2)))
                self('v_mul_lo_u32 %s, %s, %s\nv_lshl_add_u32 %s, %s, 9, %s\nv_lshl_add_u32 %s, %s, 4, %s'
                     % (v(u2), v(u2), s(t1), v(u2), v(u1), v(u2), v(SAD + k), v(vM), v(u2)))
        elif kind == 'V':
            self('s_sub_u32 %s, %s, 7\ns_lshl_b32 %s, %s, 6\ns_mov_b32 %s, %d\ns_mul_i32 %s, %s, 1792\ns_add_u32 %s, %s, %d'
                 % (s(t0), s(sI), s(t0), s(t0), s(t1), 114688 - 448, s(t2), s(sT), s(t2), s(t2), VF))
            for ct in range(2):
                self('v_add_u32 %s, %s, %s\nv_add_u32 %s, %d, %s\nv_mul_u32_u24 %s, 2341, %s\nv_lshrrev_b32 %s, 16, %s'
                     % (v(u2), s(t0), v(vPM), v(u2), 32 * ct, v(u2), v(u3), v(u2), v(u3), v(u3)))
                self('v_mul_lo_u32 %s, %s, %s\nv_lshl_add_u32 %s, %s, 4, %s\nv_mul_u32_u24 %s, 448, %s\nv_add_u32 %s, %s, %s'
                     % (v(u3), v(u3), s(t1), v(u3), v(u2), v(u3), v(u2), v(vH), v(SAD + ct), v(u3), v(u2)))
            self('s_lshl_b32 %s, %s, 7\ns_add_u32 %s, %s, %d' % (s(t0), s(sW), s(t0), s(t0), RSX))
            self('v_lshl_add_u32 %s, %s, 2, %s\nv_lshl_add_u32 %s, %s, 4, %s' % (v(SAD + 2), v(vM), s(t0), v(SAD + 3), v(vH), s(t0)))
        self.stamp('p1iss')

        def stat_mf(j, k):
            x_ = XF + 16 * j + 4 * k
            first = j == 0 and k == 0
            return [lambda: self.mfma(GR, x_, x_, None if first else GR), lambda: self.mfsum(SUM, x_, first)]

        def main_mf(j, k):
            x_ = XF + 16 * j + 4 * k
            out = []
            for ct in range(2):
                def f(ct=ct):
                    c = None if j == 0 and k == 0 else ACC + 16 * ct
                    if ct == 0:
                        self.wlg('w%d_%d' % (j, k))
                    if kind == 'K':
                        self.mfma(ACC + 16 * ct, wreg(j, k, ct), x_, c, pa='a')
                    else:
                        self.mfma(ACC + 16 * ct, x_, wreg(j, k, ct), c, pb='a')
                out.append(f)
            return out

        def cs_mf(j):
            return [lambda ct=ct: self.mfsum(CSA + 4 * ct, wreg(j, 0, ct), j == 0, pb='a') for ct in range(2)]

        def side_ops(j):
            def head():
                self.wvm('B%d' % j)
                if kv:
                    self('s_barrier')
            side = [head]
            for k in range(4):
                side.append(lambda k=k: self.lgi('ds_read_b128 %s, %s offset:%d' % (
                    v(XF + 16 * j + 4 * k, 4), v(XR + k), (j % 3) * 4096), 'xf%d' % j))
            dm = block_ops(j + 2) if j + 2 < 7 else [lambda q=q: wq_op(q) for q in (range(4) if j == 5 else range(4, 7))]
            if j == 3:
                def non():
                    self('v_mov_b32 %s, 0' % v(u0))
                    self.load(NONV, u0, SC, '0', 0, 'nonl', n=2)
                dm.append(non)
            if kv:
                for k in range(4):
                    for ct in range(2):
                        def rd(k=k, ct=ct):
                            w_ = wreg(j, k, ct)
                            for e in range(2):
                                self.lgi('ds_read_b64_tr_b16 a[%d:%d], %s offset:%d' % (
                                    w_ + 2 * e, w_ + 2 * e + 1, v(WT + 2 * k + ct), j * 8192 + 512 * e), 'w%d_%d' % (j, k))
                        side.append(rd)
                        if dm:
                            side.append(dm.pop(0))
            return side + dm
        self.q = side_ops(0)
        self.bg(99)
        for j in range(7):
            if j in (0, 3, 6):
                self.stamp('p1x%d' % j)
            self.wlg('xf%d' % j)
            self.q = side_ops(j + 1) if j < 6 else []
            seq = []
            if j < 6:
                for k in range(4):
                    st = stat_mf(j, k)
                    seq += ([st[0]] + main_mf(j, k) + [st[1]]) if kv else st
                    if kv and k == 0:
                        seq += cs_mf(j)
                for g, f in enumerate(seq):
                    f()
                    if g >= 1:
                        self.bg(2)
                self.bg(99)
            else:
                for k in range(4):
                    for f in stat_mf(j, k):
                        f()
                if kv:
                    self.wlg('w6_0')
                    for f in cs_mf(j):
                        f()
                hold, self.a = self.a, Asm()
                self.diag(GR, u2)
                self.mean_rstd(SUM, u2, 448, u3, vRS)
                self.make_meanfrag(u3, u4)
                tail = [x.text for x in self.a.L]
                self.a = hold
                if kv:
                    mm = sum((main_mf(j, k) for k in range(4)), [])
                    mm[0]()
                    mm[1]()
                    self.colsum_put(CSA, CSA + 4, MISC)
                    for g in range(2, 8):
                        mm[g]()
                        self('\n'.join(tail[6 * (g - 2):6 * (g - 2) + 6]))
                    self('\n'.join(tail[36:]))
                else:
                    self('\n'.join(tail))
        self.stamp('p1mm')
        if not kv:
            self('s_lshl_b32 %s, %s, 1\ns_add_u32 %s, %s, %s\ns_sub_u32 %s, %s, 14\ns_lshl_b32 %s, %s, 2\ns_add_u32 %s, %s, %s'
                 % (s(t0), s(sRB), s(t0), s(t0), s(sI), s(t0), s(t0), s(t0), s(t0), s(t0), s(t0), s(sW)))
            self.srd(SA, P_WO, 448 * 896)
            self('s_lshl_b32 %s, %s, 12' % (s(t1), s(t0)))
            for q in range(4):
                self.load(64 + 4 * q, vL16, SA, s(t1), q * 1024, 'pf', sc1=False, pfx='a')
            self.srd(SA, P_WIN, 448 * 3584)
            self('s_mul_i32 %s, %s, 13312' % (s(t1), s(t0)))
            for q in range(13):
                if q and q % 4 == 0:
                    self('s_add_u32 %s, %s, 4096' % (s(t1), s(t1)))
                self.load(80 + 4 * q, vL16, SA, s(t1), (q % 4) * 1024, 'pf', sc1=False, pfx='a')
            return
        if kind == 'V':
            self.lgi('ds_write_b32 %s, %s' % (v(SAD + 2), v(vRS)), 'rs')
        self.wlg()
        self('s_barrier')
        if kind == 'V':
            for g in range(4):
                self.lgi('ds_read_b128 %s, %s offset:%d' % (v(TB + 4 * g, 4), v(SAD + 3), 32 * g), 'rs')
        self.colsum_get(GR, MISC, vCS2)
        for ct in range(2):
            if kind == 'K':
                self.mfma(ACC + 16 * ct, vCS2 + 4 * ct, vMF, ACC + 16 * ct)
            else:
                self.mfma(ACC + 16 * ct, vMF, vCS2 + 4 * ct, ACC + 16 * ct)
        for c in range(4):
            if kind == 'K':
                self.scale(ACC + 8 * c, 8, vRS)
            else:
                for k in range(0, 8, 2):
                    r = ACC + 8 * c + k
                    self('v_pk_mul_f32 %s, %s, %s' % (v(r, 2), v(r, 2), v(TB + 8 * (c & 1) + k, 2)))
            self.pack(GR + 4 * c, ACC + 8 * c, 8)
            if kind == 'K':
                self.store(GR + 4 * c, SAD + c, WS, s(t2), 0, 'st')
            else:
                self.store(GR + 4 * c, SAD + (c >> 1), WS, s(t2), (c & 1) * 896, 'st')

    def diag(self, g, dst):
        masks = (0xaaaaaaaa, 0xcccccccc, 0xff00ff00, 0xffff0000)
        n = 16
        for m in masks:
            self('s_mov_b32 vcc_lo, 0x%x\ns_mov_b32 vcc_hi, 0x%x' % (m, m))
            n //= 2
            for k in range(n):
                self('v_cndmask_b32 %s, %s, %s, vcc' % (v(g + k), v(g + 2 * k), v(g + 2 * k + 1)))
        self('v_mov_b32 %s, %s\ns_mov_b32 vcc_lo, 0xf0f0f0f0\ns_mov_b32 vcc_hi, 0xf0f0f0f0\nv_permlane32_swap_b32 %s, %s'
             % (v(g + 1), v(g), v(g), v(g + 1)))
        self('v_cndmask_b32 %s, %s, %s, vcc' % (v(dst), v(g), v(g + 1)))

    def p1(self):
        XF, ACC, GR, SUM, WT, NONV, TB = self.XF, self.ACC1, self.GR, self.SUM, self.WT, self.NONV, self.TB
        self('s_cbranch_scc1 L_p1_N\ns_cmp_ge_u32 %s, 7\ns_cbranch_scc1 L_p1_V' % s(sI))
        for kind in 'KVN':
            self('L_p1_%s:' % kind)
            self.vm, self.lg = [], []
            self.p1_variant(kind)
            if kind != 'N':
                self('s_branch L_p1_join')
        self('L_p1_join:')
        self.stamp('p1st')
        lp = self.lab('tag')
        self('s_mov_b32 %s, 0\ns_add_u32 %s, %s, %d\n%s:\ns_waitcnt vmcnt(0)' % (s(sCNT), s(t5), s(sFID), FLAG1, lp))
        self('v_readfirstlane_b32 %s, %s\nv_readfirstlane_b32 %s, %s' % (s(sNON), v(NONV), s(sNON + 1), v(NONV + 1)))
        self('s_cmp_lg_u32 %s, 0\ns_cbranch_scc1 %s_d' % (s(sNON + 1), lp))
        self('v_mov_b32 %s, 0\nbuffer_load_dwordx2 %s, %s, %s, 0 offen sc1' % (v(u0), v(NONV, 2), v(u0), s(SC, 4)))
        self('s_add_u32 %s, %s, 1\ns_cmp_lt_u32 %s, %d\ns_cbranch_scc1 %s\ns_waitcnt vmcnt(0)\n%s_d:'
             % (s(sCNT), s(sCNT), s(sCNT), POLL_MAX, lp, lp))
        self.vm, self.lg = [], []
        self.publish(s(t5))
        self.stamp('p1pub')
        self('s_lshl_b32 %s, %s, 10\ns_add_u32 %s, %s, %d' % (s(t0), s(sB), s(t0), s(t0), ONES))
        for k in range(4):
            self('v_mov_b32 %s, %s' % (v(TB + k), s(sONE2)))
        self.store(TB, vL16, WS, s(t0), 0, 'ones')
        self('v_bfe_u32 %s, v0, 2, 2\nv_lshl_add_u32 %s, %s, 3, %s\nv_lshlrev_b32 %s, 6, %s' % (v(u0), v(u0), v(vH), v(u0), v(u0), v(u0)))
        self('v_bfe_u32 %s, v0, 4, 1\nv_lshl_add_u32 %s, %s, 5, %s\nv_and_b32 %s, 1, v0\nv_lshl_add_u32 %s, %s, 4, %s'
             % (v(u1), v(u0), v(u1), v(u0), v(u1), v(u0), v(u1), v(u0)))
        self('v_bfe_u32 %s, v0, 1, 1\nv_lshl_add_u32 %s, %s, 3, %s' % (v(u1), v(u0), v(u1), v(u0)))
        for k in range(4):
            self('s_xor_b32 %s, %s, %d\ns_lshl_b32 %s, %s, 10\ns_add_u32 %s, %s, %d\nv_add_u32 %s, %s, %s'
                 % (s(t0), s(sW), k, s(t0), s(t0), s(t0), s(t0), WQB, v(WT + k), s(t0), v(u0)))

        def qrd(j, k):
            for e in range(2):
                r = 16 * (j & 1) + 4 * k + 2 * e
                self.lgi('ds_read_b64_tr_b16 a[%d:%d], %s offset:%d' % (r, r + 1, v(WT + k), j * 4096 + 256 * e), 'q%d_%d' % (j, k))
        for k in range(4):
            qrd(0, k)
        self.cold_setup()
        for j in range(7):
            for k in range(4):
                self.wlg('q%d_%d' % (j, k))
                r = 16 * (j & 1) + 4 * k
                self.mfma(ACC, r, XF + 16 * j + 4 * k, None if j + k == 0 else ACC, pa='a')
                if j < 6:
                    qrd(j + 1, k)
                self.mfsum(SUM, r, j + k == 0, pb='a')
                if k & 1:
                    self.bg(1)
        assert not self.q
        self('v_mul_f32 %s, %s, %s' % (v(u3), f32(math.log2(math.e) / math.sqrt(28.0)), v(vRS)))
        self('s_bitcmp1_b32 %s, 0\ns_cselect_b64 %s, -1, 0' % (s(sI), s(t0, 2)))
        self('s_andn2_b64 %s, %s, %s\ns_andn2_b64 %s, %s, %s' % (s(t2, 2), s(t0, 2), s(sHI, 2), s(t4, 2), s(sHI, 2), s(t0, 2)))
        self('s_lshl_b32 %s, %s, 11\ns_add_u32 %s, %s, %d\nv_add_u32 %s, %s, %s' % (s(t0), s(sW), s(t0), s(t0), MISC, v(u0), s(t0), v(vL16)))
        self.make_csfrag(SUM, vCS2)
        self.mfma(ACC, vCS2, vMF, ACC)
        self.scale(ACC, 16, u3)
        self.pack(GR, ACC, 16)
        for k in range(2):
            self('v_cndmask_b32 %s, %s, 0, %s\nv_cndmask_b32 %s, %s, 0, %s'
                 % (v(GR + k), v(GR + k), s(t2, 2), v(GR + 6 + k), v(GR + 6 + k), s(t4, 2)))
        self.lgi('ds_write_b128 %s, %s' % (v(u0), v(GR, 4)), 'qw')
        self.lgi('ds_write_b128 %s, %s offset:1024' % (v(u0), v(GR + 4, 4)), 'qw')
        self.p2_setup()
        self.wlg()
        self.wvm('ones')
        self.stamp('q')
        WF = ACC
        sk, lp = self.lab('s1skip'), self.lab('s1')
        self('s_cmp_eq_u32 %s, 0\ns_cbranch_scc0 %s\ns_mov_b32 %s, 0\n%s:' % (s(sW), sk, s(sCNT), lp))
        self('buffer_load_dwordx4 %s, %s, %s, 0 offen offset:%d sc1' % (v(WF, 4), v(vL16), s(WS, 4), FLAG1))
        self('buffer_load_dwordx4 %s, %s, %s, 0 offen offset:%d sc1' % (v(WF + 4, 4), v(vL16), s(WS, 4), FLAG1 + 1024))
        self('s_add_u32 %s, %s, 1\ns_waitcnt vmcnt(0)' % (s(sCNT), s(sCNT)))
        for k in range(4):
            self('v_cmp_ne_u64 %s, %s, %s' % (('vcc', s(t0, 2), s(t2, 2), s(t6, 2))[k], s(sNON, 2), v(WF + 2 * k, 2)))
        self('s_or_b64 %s, %s, vcc\ns_or_b64 %s, %s, %s\ns_or_b64 %s, %s, %s'
             % (s(t0, 2), s(t0, 2), s(t2, 2), s(t2, 2), s(t6, 2), s(t0, 2), s(t0, 2), s(t2, 2)))
        self('s_cbranch_scc0 %s\ns_cmp_lt_u32 %s, %d\ns_cbranch_scc1 %s\n%s:\ns_barrier' % (sk, s(sCNT), POLL_MAX, lp, sk))
        self.stamp('s1')

    Q, O, S, P, KV, VOV, VST = 16, 48, 112, 144, 152, 217, 218

    def kv_addr(self, wave_split):
        VOV, VST = self.VOV, self.VST
        self('s_lshr_b32 %s, %s, 1\ns_mul_i32 %s, %s, 229376\ns_and_b32 %s, %s, 1\ns_mul_i32 %s, %s, 1536\ns_add_u32 %s, %s, %s'
             % (s(t0), s(sI), s(t4), s(t0), s(t0), s(sI), s(t0), s(t0), s(t4), s(t4), s(t0)))
        self('s_add_u32 %s, %s, %d\ns_mul_i32 %s, %s, 114688\ns_add_u32 %s, %s, %d' % (s(t4), s(t4), KF, s(t1), s(sI), s(t1), s(t1), VF))
        if wave_split:
            self('s_mul_i32 %s, %s, %d\ns_add_u32 %s, %s, %s\ns_mul_i32 %s, %s, %d\ns_add_u32 %s, %s, %s'
                 % (s(t0), s(sW), 16 * 3584, s(t4), s(t4), s(t0), s(t0), s(sW), 16 * 1792, s(t1), s(t1), s(t0)))
        self('v_mul_u32_u24 %s, 448, %s\nv_lshl_add_u32 %s, %s, 4, %s\nv_add_u32 %s, %s, %s'
             % (v(u0), v(vH), v(u0), v(vPM), v(u0), v(u0), s(t1), v(u0)))
        self('s_lshl_b32 %s, %s, 10\ns_add_u32 %s, %s, %d' % (s(t0), s(sB), s(t0), s(t0), ONES))
        self('v_mov_b32 %s, %s\nv_mov_b32 %s, 1792\nv_cmp_gt_u32 vcc, 28, %s' % (v(u1), s(t0), v(u2), v(vM)))
        self('v_cndmask_b32 %s, %s, %s, vcc\nv_cndmask_b32 %s, 0, %s, vcc' % (v(VOV), v(u1), v(u0), v(VST), v(u2)))

    RW, QA, PD, PR = 226, 230, 234, 238
    SX, SBS, SSP, SWO = 84, 88, 92, 96

    def cold_setup(self):
        SX, SBS, SSP, SWO = self.SX, self.SBS, self.SSP, self.SWO
        self.srd(SX, P_X, 2048 * 896)
        self.srd(SBS, P_BSP, 4096)
        self.srd(SSP, P_WSP, 2048 * 4096)
        self.srd(SWO, P_WOUT, 896 * 896)
        self('s_mul_i32 %s, %s, %d\ns_lshl_b32 %s, %s, 7\ns_add_u32 %s, %s, %s\ns_lshl_b32 %s, %s, 6\ns_add_u32 %s, %s, %s'
             % (s(t0), s(sT3), 32 * 896, s(t1), s(sCB), s(t0), s(t0), s(t1), s(t1), s(sKH), s(t0), s(t0), s(t1)))
        self('v_mul_u32_u24 v224, 896, %s\nv_lshl_add_u32 v224, %s, 4, v224\nv_add_u32 v224, %s, v224' % (v(vM), v(vH), s(t0)))
        self('s_lshl_b32 %s, %s, 6\nv_lshl_add_u32 %s, %s, 1, %s' % (s(t0), s(sT), v(vBSP), v(vM), s(t0)))
        self('s_lshl_b32 %s, %s, 2\ns_add_u32 %s, %s, %s\ns_lshl_b32 %s, %s, 13\ns_lshl_b32 %s, %s, 19\ns_add_u32 %s, %s, %s\nv_add_u32 v225, %s, %s'
             % (s(t0), s(sI), s(t0), s(t0), s(sW), s(t0), s(t0), s(t1), s(sRB), s(t0), s(t0), s(t1), s(t0), v(vL16)))
        self('s_lshl_b32 %s, %s, 2\ns_add_u32 %s, %s, %s\ns_lshl_b32 s82, %s, 10\ns_movk_i32 s83, 4096' % (s(t0), s(sB), s(t0), s(t0), s(sW), s(t0)))
        self.q = [lambda q=q: self.load(216 + 4 * q, 225, SSP, 's83' if q >= 4 else '0', (q % 4) * 1024, 'pf', sc1=False, pfx='a')
                  for q in range(8)]
        self.q += [lambda: self.load(248, vL16, SWO, 's82', 0, 'pf', sc1=False, pfx='a'),
                   lambda: self.load(vHK, 224, SX, '0', 0, 'pf', sc1=False),
                   lambda: self.load(vHK + 4, 224, SX, '0', 32, 'pf', sc1=False),
                   lambda: self.vmi('buffer_load_ushort %s, %s, %s, 0 offen' % (v(vBSP), v(vBSP), s(SBS, 4)), 'pf')]

    def p2_setup(self):
        RW = self.RW
        self.kv_addr(True)
        self.srd(SA, P_WO, 448 * 896)
        self.srd(SB, P_WIN, 448 * 3584)
        self('s_lshl_b32 %s, %s, 7' % (s(t2), s(sCB)))
        wo = self.image_ops(220, SA, 896, s(t2), 0, 14, 'pf')
        self('s_lshl_b32 %s, %s, 7\ns_add_u32 %s, %s, 1792' % (s(t2), s(sI), s(t2), s(t2)))
        win = self.image_ops(222, SB, 3584, s(t2), WIN2, 14, 'pf')
        for j in range(4):
            self('s_add_u32 %s, %s, %d\ns_and_b32 %s, %s, 3\ns_mul_i32 %s, %s, 12288\ns_add_u32 %s, %s, %d\nv_add_u32 %s, %s, %s'
                 % (s(t0), s(sW), j + 1, s(t0), s(t0), s(t1), s(t0), s(t1), s(t1), RED + 4096 * (j % 3), v(RW + j), s(t1), v(vL16)))
            self('s_lshl_b32 %s, %s, 11\ns_add_u32 %s, %s, %d\nv_add_u32 %s, %s, %s' % (s(t0), s(t0), s(t0), s(t0), MISC, v(self.QA + j), s(t0), v(vL16)))
        self('s_lshl_b32 %s, %s, 15\ns_lshl_b32 %s, %s, 11\ns_add_u32 %s, %s, %s\ns_add_u32 s73, %s, %d'
             % (s(t0), s(sT), s(t1), s(sI), s(t2), s(t0), s(t1), s(t2), OF))
        self('s_lshl_b32 %s, %s, 17\ns_mul_i32 s100, %s, 12288\ns_add_u32 s100, s100, %d' % (s(t3), s(sT), s(sW), RED))
        self.rowtile_dma_addrs(4096, self.PD, s(t3))
        self.rowtile_read_addrs(self.PR, 's100')
        self.att_img = [wo[k:k + 2] for k in range(0, 14, 2)] + [win[k:k + 2] for k in range(0, 14, 2)]

    def p2(self):
        Q, O, S, P, KV, VOV, VST, RW = self.Q, self.O, self.S, self.P, self.KV, self.VOV, self.VST, self.RW
        self.vm, self.lg = [], []

        def kvload(it):
            b = KV + 16 * (it % 4)
            self.load(b, vL16, WS, s(t4), 0, 'K%d' % it)
            self.load(b + 4, vL16, WS, s(t4), 1024, 'K%d' % it)
            self.load(b + 8, VOV, WS, '0', 0, 'V%d' % it)
            self.load(b + 12, VOV, WS, '0', 896, 'V%d' % it)
            if it < 15:
                self('s_add_u32 %s, %s, 3584\nv_add_u32 %s, %s, %s' % (s(t4), s(t4), v(VOV), v(VST), v(VOV)))
        for it in range(3):
            kvload(it)
        for j in range(4):
            self.lgi('ds_read_b128 %s, %s' % (v(Q + 8 * j, 4), v(self.QA + j)), 'q')
            self.lgi('ds_read_b128 %s, %s offset:1024' % (v(Q + 8 * j + 4, 4), v(self.QA + j)), 'q')
        self.wlg()
        self('s_barrier')
        wait_kv = self.wvm
        NA = self.o.get('na', 14)
        self.NA = NA
        PD, PR = self.PD, self.PR

        def pre_dma(r):
            self('s_add_u32 m0, s100, %d\ns_movk_i32 s101, %d' % ((r % 3) * 4096, (32 - NA + r) * 128))
            for rg in range(4):
                self.dma(PD + rg, self.SSP, 's101', rg * 1024, 'P%d' % r)

        def pre_read(r):
            self.wvm('P%d' % r)
            for k in range(4):
                self.lgi('ds_read_b128 a[%d:%d], %s offset:%d' % (16 * r + 4 * k, 16 * r + 4 * k + 3, v(PR + k), (r % 3) * 4096), 'pr')
        self.stamp('a_iss')
        wait_kv('K0')
        self.stamp('a_k0')
        self.mfma(S, KV, Q, None)
        self.mfma(S, KV + 4, Q + 4, S)
        for n in range(64):
            it, j = divmod(n, 4)
            Sc, Sn = S + 16 * (n & 1), S + 16 * ((n + 1) & 1)
            ex = ['v_exp_f32 %s, %s' % (v(Sc + k), v(Sc + k)) for k in range(16)]
            pk = ['v_cvt_pk_bf16_f32 %s, %s, %s' % (v(P + k), v(Sc + 2 * k), v(Sc + 2 * k + 1)) for k in range(8)]
            nit, nj = divmod(n + 1, 4)
            pit, pj = divmod(n - 1, 4)
            kb, vb = KV + 16 * (nit % 4), KV + 16 * (pit % 4) + 8

            def qk(t):
                if n + 1 < 64:
                    if t == 0 and nj == 0:
                        wait_kv('K%d' % nit)
                    self.mfma(Sn, kb + 4 * t, Q + 8 * nj + 4 * t, Sn if t else None)

            def pv(t):
                if n > 0:
                    if t == 0 and pj == 0:
                        wait_kv('V%d' % pit)
                    c = None if (pit == 0 and t == 0) else O + 16 * pj
                    self.mfma(O + 16 * pj, vb + 4 * t, P + 4 * t, c)
            qk(0)
            self('\n'.join(ex[0:4]))
            pv(0)
            self('\n'.join(ex[4:8] + pk[0:2]))
            qk(1)
            self('\n'.join(ex[8:12] + pk[2:4]))
            pv(1)
            self('\n'.join(ex[12:16] + pk[4:8]))
            if j == 0 and it + 3 < 16:
                kvload(it + 3)
            if j == 1 and 0 <= it - 2 < NA:
                pre_read(it - 2)
            if j == 2 and it < NA:
                if it >= 3:
                    self.wlg()
                pre_dma(it)
            if j == 3 and 1 <= it <= 14:
                for op in self.att_img[it - 1]:
                    op()
            if n in (15, 31, 47):
                self.stamp('a%d' % n)
        self.mfma(O + 48, KV + 16 * 3 + 8, P, O + 48)
        self.mfma(O + 48, KV + 16 * 3 + 12, P + 4, O + 48)
        self.stamp('att')
        self.wlg()
        self('s_barrier')
        for j in range(3):
            for q in range(4):
                self.lgi('ds_write_b128 %s, %s offset:%d' % (v(RW + j), v(O + 16 * j + 4 * q, 4), q * 1024), 'rw')
        self.wlg()
        self('s_barrier')
        for k in range(12):
            self.lgi('ds_read_b128 %s, %s offset:%d' % (v(O + 4 * k, 4), v(RW + 3), k * 1024), 'r%d' % (k // 4))
        A = O + 48
        for j in range(3):
            self.wlg('r%d' % j)
            for k in range(0, 16, 2):
                self('v_pk_add_f32 %s, %s, %s' % (v(A + k, 2), v(A + k, 2), v(O + 16 * j + k, 2)))
        self.stamp('red')
        self('L_att_norm:')
        self('v_mov_b32 %s, %s\nv_mov_b32 %s, %s\nv_permlane32_swap_b32 %s, %s' % (v(u0), v(A + 12), v(u1), v(A + 12), v(u0), v(u1)))
        self('v_cmp_gt_f32 vcc, %s, %s\ns_mov_b64 %s, vcc\nv_cmp_lt_f32 vcc, %s, %s\ns_and_b64 vcc, vcc, %s'
             % (f32(2.0 ** 40), v(u1), s(t0, 2), f32(2.0 ** -40), v(u1), s(t0, 2)))
        force = self.o.get('force_fallback')
        self('s_cmp_eq_u64 vcc, %s\ns_cbranch_scc0 L_att_slow\nL_att_ok:' % ('0' if force else '-1'))
        self('v_rcp_f32 %s, %s' % (v(u1), v(u1)))
        self.scale(A, 16, u1)
        self.pack(P, A, 16)
        self('v_cndmask_b32 %s, %s, 0, %s\nv_cndmask_b32 %s, %s, 0, %s' % (v(P + 6), v(P + 6), s(sHI, 2), v(P + 7), v(P + 7), s(sHI, 2)))
        self.vm = ['any']

        def st(sc):
            self.store(P, vL16, WS, 's73', 0, 'st', sc1=sc)
            self.store(P + 4, vL16, WS, 's73', 1024, 'st', sc1=sc)
        self.local_stores(st)
        self('s_add_u32 %s, %s, %d' % (s(t5), s(sFID), FLAG2))
        self.publish(s(t5))
        self.stamp('p2pub')
        self('s_cmp_ge_u32 %s, 14\ns_cbranch_scc1 L_fin' % s(sI))

    def att_slow(self):
        Q, O, S, P, KV, VOV, VST = self.Q, self.O, self.S, self.P, self.KV, self.VOV, self.VST
        A, Qo = O + 48, Q + 24
        self('L_att_slow:\ns_waitcnt vmcnt(0)')
        self.kv_addr(False)
        self('s_mov_b32 %s, %s\nv_mov_b32 %s, 0xff800000\ns_mov_b32 %s, 0\nL_slow1:' % (s(t5), s(t4), v(u3), s(sCNT)))
        self('buffer_load_dwordx4 %s, %s, %s, %s offen sc1' % (v(KV, 4), v(vL16), s(WS, 4), s(t5)))
        self('buffer_load_dwordx4 %s, %s, %s, %s offen offset:1024 sc1' % (v(KV + 4, 4), v(vL16), s(WS, 4), s(t5)))
        self('s_add_u32 %s, %s, 3584\ns_waitcnt vmcnt(0)' % (s(t5), s(t5)))
        self.mfma(S, KV, Qo, None)
        self.mfma(S, KV + 4, Qo + 4, S)
        for k in range(0, 16, 2):
            self('v_max3_f32 %s, %s, %s, %s' % (v(u3), v(u3), v(S + k), v(S + k + 1)))
        self('s_add_u32 %s, %s, 1\ns_cmp_lt_u32 %s, 64\ns_cbranch_scc1 L_slow1' % (s(sCNT), s(sCNT), s(sCNT)))
        self('v_mov_b32 %s, %s\nv_permlane32_swap_b32 %s, %s\nv_max_f32 %s, %s, %s' % (v(u4), v(u3), v(u4), v(u3), v(u3), v(u3), v(u4)))
        for k in range(16):
            self('v_mov_b32 %s, 0' % v(A + k))
        self('s_mov_b32 %s, 0\nL_slow2:' % s(sCNT))
        self('buffer_load_dwordx4 %s, %s, %s, %s offen sc1' % (v(KV, 4), v(vL16), s(WS, 4), s(t4)))
        self('buffer_load_dwordx4 %s, %s, %s, %s offen offset:1024 sc1' % (v(KV + 4, 4), v(vL16), s(WS, 4), s(t4)))
        self('buffer_load_dwordx4 %s, %s, %s, 0 offen sc1' % (v(KV + 8, 4), v(VOV), s(WS, 4)))
        self('buffer_load_dwordx4 %s, %s, %s, 0 offen offset:896 sc1' % (v(KV + 12, 4), v(VOV), s(WS, 4)))
        self('s_add_u32 %s, %s, 3584\nv_add_u32 %s, %s, %s\ns_waitcnt vmcnt(0)' % (s(t4), s(t4), v(VOV), v(VST), v(VOV)))
        self.mfma(S, KV, Qo, None)
        self.mfma(S, KV + 4, Qo + 4, S)
        for k in range(16):
            self('v_sub_f32 %s, %s, %s' % (v(S + k), v(S + k), v(u3)))
        for k in range(16):
            self('v_exp_f32 %s, %s' % (v(S + k), v(S + k)))
        self.pack(P, S, 16)
        self.mfma(A, KV + 8, P, A)
        self.mfma(A, KV + 12, P + 4, A)
        self('s_add_u32 %s, %s, 1\ns_cmp_lt_u32 %s, 64\ns_cbranch_scc1 L_slow2' % (s(sCNT), s(sCNT), s(sCNT)))
        self('v_mov_b32 %s, %s\nv_mov_b32 %s, %s\nv_permlane32_swap_b32 %s, %s' % (v(u0), v(A + 12), v(u1), v(A + 12), v(u0), v(u1)))
        self('s_branch L_att_ok')

    def slot_addrs(self, dst, kh_bytes, base):
        self('s_mul_i32 %s, %s, %d\ns_add_u32 %s, %s, %d\ns_lshl_b32 %s, %s, 6' % (s(t0), s(sKH), kh_bytes, s(t0), s(t0), base, s(t1), s(sKH)))
        self('v_xor_b32 %s, %s, %s\nv_xor_b32 %s, %s, %s' % (v(dst), s(t1), v(vTRa), v(dst + 1), s(t1), v(vTRb)))
        self('v_add_u32 %s, %s, %s\nv_add_u32 %s, %s, %s' % (v(dst), s(t0), v(dst), v(dst + 1), s(t0), v(dst + 1)))

    def frag_ops(self, dst, n, sreg, tag):
        ops = []
        for k in range(n):
            def op(k=k):
                if k and k % 4 == 0:
                    self('s_add_u32 %s, %s, 4096' % (s(sreg), s(sreg)))
                self.load(dst + 4 * k, vL16, WS, s(sreg), (k % 4) * 1024, '%s%d' % (tag, k))
            ops.append(op)
        return ops

    def pair_addrs(self, dst, red):
        self('s_lshl_b32 %s, %s, 12\ns_add_u32 %s, %s, %d\nv_add_u32 %s, %s, %s' % (s(t0), s(sW), s(t0), s(t0), red, v(dst), s(t0), v(vL16)))
        self('v_xor_b32 %s, 0x2000, %s' % (v(dst + 1), v(dst)))

    def pair_reduce(self, acc, tmp, adr, res, rtmp):
        for k in range(8):
            self('v_lshlrev_b32 %s, 16, %s\nv_and_b32 %s, 0xffff0000, %s' % (v(rtmp + 2 * k), v(res + k), v(rtmp + 2 * k + 1), v(res + k)))
        for q in range(4):
            self.lgi('ds_write_b128 %s, %s offset:%d' % (v(adr), v(acc + 16 + 4 * q, 4), q * 1024), 'pw')
        for k in range(0, 16, 2):
            self('v_pk_add_f32 %s, %s, %s' % (v(acc + k, 2), v(acc + k, 2), v(rtmp + k, 2)))
        self.wlg()
        self('s_barrier')
        for q in range(4):
            self.lgi('ds_read_b128 %s, %s offset:%d' % (v(tmp + 4 * q, 4), v(adr + 1), q * 1024), 'pr%d' % q)
        for q in range(4):
            self.wlg('pr%d' % q)
            for k in range(4 * q, 4 * q + 4, 2):
                self('v_pk_add_f32 %s, %s, %s' % (v(acc + k, 2), v(acc + k, 2), v(tmp + k, 2)))

    def p3(self):
        FR, ACC, WO, PA = 16, 80, 112, 240
        WB = FR
        RED3 = 131072
        self.vm, self.lg = [], []
        self.slot_addrs(u5, 8 * 3584, 0)
        for k in range(16):
            for sl in range(2):
                for e in range(2):
                    self.tr(WO + 8 * k + 4 * sl + 2 * e, u5 + sl, (k >> 1) * 3584 + (k & 1) * 2048 + 512 * e, 'wo')
        self.pair_addrs(PA, RED3)
        self('s_lshl_b32 %s, %s, 15\ns_lshl_b32 %s, %s, 14\ns_add_u32 %s, %s, %s\ns_add_u32 %s, %s, %d'
             % (s(t4), s(sT3), s(t1), s(sKH), s(t4), s(t4), s(t1), s(t4), s(t4), OF))
        self('s_lshl_b32 %s, %s, 1\ns_add_u32 %s, %s, %s' % (s(t0), s(sCB), s(t0), s(t0), s(sKH)))
        self('s_mul_i32 %s, %s, 28672\ns_lshl_b32 %s, %s, 11\ns_add_u32 %s, %s, %s\ns_add_u32 %s, %s, %d'
             % (s(t2), s(sT3), s(t1), s(t0), s(t2), s(t2), s(t1), s(t2), s(t2), HF))
        self('s_lshl_b32 %s, %s, 12\ns_lshl_b32 %s, %s, 8\ns_add_u32 %s, %s, %s\ns_add_u32 %s, %s, %d'
             % (s(t3), s(sT3), s(t1), s(t0), s(t3), s(t3), s(t1), s(t3), s(t3), HST))
        self('v_lshlrev_b32 %s, 3, %s' % (v(u3), v(vM)))
        self('s_lshl_b32 %s, %s, 7\ns_add_u32 %s, %s, %d' % (s(t5), s(sRB), s(t5), s(t5), FLAG2))
        self.wlg()
        self.poll(s(t5), 16)
        self.stamp('s2')
        self.q = self.frag_ops(FR, 16, t4, 'f')
        self.bg(11)
        for k in range(16):
            self.wvm('f%d' % k)
            for sl in range(2):
                self.mfma(ACC + 16 * sl, WO + 8 * k + 4 * sl, FR + 4 * k, None if k == 0 else ACC + 16 * sl)
            self.bg(1)
        self.stamp('p3mm')
        self.pair_reduce(ACC, WB, PA, vHK, WB + 16)
        self.pack(vHK, ACC, 16)

        def st(sc):
            self.store(vHK, vL16, WS, s(t2), 0, 'st', sc1=sc)
            self.store(vHK + 4, vL16, WS, s(t2), 1024, 'st', sc1=sc)
        self.local_stores(st)
        self('v_pk_mul_f32 %s, %s, %s' % (v(WB, 2), v(ACC, 2), v(ACC, 2)))
        for k in range(2, 16, 2):
            self('v_pk_fma_f32 %s, %s, %s, %s' % (v(WB, 2), v(ACC + k, 2), v(ACC + k, 2), v(WB, 2)))
            self('v_pk_add_f32 %s, %s, %s' % (v(ACC, 2), v(ACC, 2), v(ACC + k, 2)))
        self('v_add_f32 %s, %s, %s\nv_add_f32 %s, %s, %s' % (v(ACC), v(ACC), v(ACC + 1), v(ACC + 1), v(WB), v(WB + 1)))
        self.xhalf_add2(ACC, WB)
        self.local_stores(lambda sc: self.store(ACC, u3, WS, s(t3), 0, 'st', n=2, sc1=sc))
        self('s_add_u32 %s, %s, %d' % (s(t5), s(sFID), FLAG3))
        self.publish(s(t5))
        self.stamp('p3pub')

    def zrd(self, k):
        for ct in range(2):
            self.trfrag(128 + 8 * (k % 4) + 4 * ct, u5 + ct, k * 2048, 'w%d' % k)

    def zpass(self, acc, wait_frag, nbg, k0=0, k1=28):
        HFR, WB = 16, 128
        for k in range(k0, k1):
            if wait_frag:
                self.wvm('h%d' % k)
            self.wlg('w%d' % k)
            self.mfma(acc, WB + 8 * (k % 4), HFR + 4 * k, None if k == 0 else acc)
            if k + 3 < k1:
                self.zrd(k + 3)
            self.mfma(acc + 16, WB + 8 * (k % 4) + 4, HFR + 4 * k, None if k == 0 else acc + 16)
            self.bg(nbg)

    def p4(self):
        HFR, WB, A2, A1 = 16, 128, 160, 192
        KS = self.o.get('ks', 16)
        self.KS = KS
        self.vm, self.lg = [], []
        self('s_lshl_b32 %s, %s, 7' % (s(t2), s(sI)))
        self.q = self.image_ops(224, SB, 3584, s(t2), 0, 14, 'W1')
        self.bg(99)
        self.colsum_part(WIN2, (16, 44), 72, MISC)
        self('s_mul_i32 %s, %s, 28672\ns_add_u32 %s, %s, %d' % (s(t2), s(sT), s(t2), s(t2), HF))
        self('s_lshl_b32 %s, %s, 12\ns_add_u32 %s, %s, %d' % (s(t3), s(sT), s(t3), s(t3), HST))
        self('v_mul_u32_u24 %s, 1792, %s\nv_lshl_add_u32 %s, %s, 3, %s' % (v(u4), v(vH), v(u4), v(vM), v(u4)))
        self('v_add_u32 %s, %d, %s\nv_add_u32 %s, %d, %s' % (v(u5), WIN2, v(vTRa), v(u6), WIN2, v(vTRb)))
        self('v_mov_b32 %s, %s\nv_mov_b32 %s, %s' % (v(u7), s(sK0), v(u8), s(sK0)))
        self('s_lshl_b32 %s, %s, 7\ns_add_u32 %s, %s, %d' % (s(t5), s(sRB), s(t5), s(t5), FLAG3))
        self.wlg()
        self.wvm()
        self.stamp('w1')
        self.poll(s(t5), 14)
        self.stamp('s3')
        hl = self.frag_ops(HFR, 28, t2, 'h')
        hs = [lambda q=q: self.load(A1 + 2 * q, u4, WS, s(t3), q * 256, 'hs', n=2) for q in range(7)]
        self.q = hl + hs
        self.bg(11)
        self.colsum_get(224, MISC, vCS2)
        self.colsum_part(0, (WB, A2), 224, MISC + 1024)
        for k in range(3):
            self.zrd(k)
        self.stamp('p4iss')
        self.zpass(A2, True, 1)
        self.stamp('z2mm')
        self('s_lshl_b32 %s, %s, 13\ns_add_u32 %s, %s, %d\ns_lshl_b32 %s, %s, 9\ns_add_u32 %s, %s, %s'
             % (s(t3), s(sT), s(t3), s(t3), ZST, s(t1), s(sI), s(t2), s(t3), s(t1)))
        self.wvm('hs')
        for q in range(1, 7):
            self('v_pk_add_f32 %s, %s, %s' % (v(A1, 2), v(A1, 2), v(A1 + 2 * q, 2)))
        self.xhalf_add2(A1, A1 + 2)
        self.mean_rstd(A1, A1 + 1, 448, A1 + 2, vRS)
        self.make_meanfrag(A1 + 2, A1 + 3)
        for ct in range(2):
            self.mfma(A2 + 16 * ct, vCS2 + 4 * ct, vMF, A2 + 16 * ct)
        self('v_mov_b32 %s, %s\nv_mov_b32 %s, %s\nv_lshlrev_b32 %s, 4, %s' % (v(u5), v(vTRa), v(u6), v(vTRb), v(u3), v(vM)))
        self('v_mov_b32 %s, %s\nv_mov_b32 %s, %s' % (v(A1 + 6), s(sNON), v(A1 + 7), s(sNON + 1)))
        for k in range(3):
            self.zrd(k)
        self.scale(A2, 32, vRS)
        self.gelu(A2, 32, A1 + 8, 0)
        Z = A1 + 4
        self('v_pk_mul_f32 %s, %s, %s\nv_pk_add_f32 %s, %s, %s'
             % (v(A1, 2), v(A2, 2), v(A2, 2), v(Z, 2), v(A2, 2), v(A2 + 2, 2)))
        for k in range(2, 32, 2):
            self('v_pk_fma_f32 %s, %s, %s, %s' % (v(A1, 2), v(A2 + k, 2), v(A2 + k, 2), v(A1, 2)))
            if k > 2:
                self('v_pk_add_f32 %s, %s, %s' % (v(Z, 2), v(Z, 2), v(A2 + k, 2)))
        self('v_add_f32 %s, %s, %s\nv_add_f32 %s, %s, %s' % (v(Z), v(Z), v(Z + 1), v(Z + 1), v(A1), v(A1 + 1)))
        self.xhalf_add2(Z, A1)
        self('s_not_b64 exec, %s' % s(sHI, 2))
        self.store(Z, u3, WS, s(t2), 0, 'zs')
        self('s_mov_b64 exec, -1')
        self.stamp('zst')
        self('s_lshl_b32 %s, %s, 18\ns_lshl_b32 %s, %s, 12\ns_add_u32 %s, %s, %s\ns_add_u32 %s, %s, %d'
             % (s(t2), s(sI), s(t1), s(sT), s(t2), s(t2), s(t1), s(t2), s(t2), ZF))
        self('v_lshlrev_b32 %s, 2, %s\nv_xor_b32 %s, %s, %s\nv_lshlrev_b32 %s, 4, %s\nv_lshl_add_u32 %s, %s, 9, %s'
             % (v(u3), v(vH), v(u3), v(u3), v(vM), v(u3), v(u3), v(u3), v(vH), v(u3)))
        self('v_xor_b32 %s, 0x80, %s\nv_add_u32 %s, 1024, %s' % (v(u4), v(u3), v(u4), v(u4)))
        self('s_lshl_b32 %s, %s, 4\ns_add_u32 %s, %s, %s\ns_lshl_b32 %s, %s, 3\ns_add_u32 %s, %s, %d'
             % (s(t5), s(sI), s(t5), s(t5), s(sRB), s(t5), s(t5), s(t5), s(t5), FLAG5))
        self('v_mul_u32_u24 %s, 3584, %s\nv_lshl_add_u32 %s, %s, 4, %s\ns_mov_b32 %s, 0' % (v(u0), v(vH), v(u0), v(vM), v(u0), s(sCNT)))
        self.zpass(A1, False, 0, 0, KS)
        self.stamp('z1a')
        lp = self.lab('zs')
        self('%s:' % lp)
        for q in range(7):
            self('buffer_load_dwordx4 %s, %s, %s, %s offen offset:%d sc1' % (v(WB + 4 * q, 4), v(u0), s(WS, 4), s(t3), q * 512))
        self('s_add_u32 %s, %s, 1\ns_waitcnt vmcnt(0)' % (s(sCNT), s(sCNT)))
        for q in range(1, 7):
            self('v_xor_b32 %s, %s, %s\nv_xor_b32 %s, %s, %s' % (v(WB + 4 * q + 2), s(sNON), v(WB + 4 * q + 2),
                                                                v(WB + 4 * q + 3), s(sNON + 1), v(WB + 4 * q + 3)))
        self('v_or3_b32 %s, %s, %s, %s' % (v(u1), v(WB + 6), v(WB + 7), v(WB + 10)))
        for r in ((11, 14), (15, 18), (19, 22), (23, 26)):
            self('v_or3_b32 %s, %s, %s, %s' % (v(u1), v(u1), v(WB + r[0]), v(WB + r[1])))
        self('v_or_b32 %s, %s, %s\nv_cmp_ne_u64 %s, %s, %s\nv_cmp_ne_u32 vcc, 0, %s'
             % (v(u1), v(u1), v(WB + 27), s(t0, 2), s(sNON, 2), v(WB + 2, 2), v(u1)))
        for q in range(1, 7):
            self('v_pk_add_f32 %s, %s, %s' % (v(WB, 2), v(WB, 2), v(WB + 4 * q, 2)))
        self('s_or_b64 %s, %s, vcc' % (s(t0, 2), s(t0, 2)))
        self('s_cbranch_scc0 %s_d\ns_cmp_lt_u32 %s, %d\ns_cbranch_scc1 %s\n%s_d:' % (lp, s(sCNT), POLL_MAX, lp, lp))
        self.vm = []
        self.stamp('s4')
        self.xhalf_add2(WB, WB + 2)
        self.mean_rstd(WB, WB + 1, 896, WB + 2, WB + 4)
        self('v_mul_f32 %s, -%s, %s' % (v(WB + 6), v(WB + 2), v(WB + 4)))
        for c in range(4):
            for k in range(8 * c, 8 * c + 8, 2):
                self('v_pk_fma_f32 %s, %s, %s, %s op_sel_hi:[1,0,0]' % (v(A2 + k, 2), v(A2 + k, 2), v(WB + 4, 2), v(WB + 6, 2)))
            self.pack(WB + 8 + 4 * c, A2 + 8 * c, 8)
            self.store(WB + 8 + 4 * c, u3 + (c & 1), WS, s(t2), (c >> 1) * 2048, 'st')
        self.publish(s(t5))
        self.stamp('p4pub')

    NZ, NW, WRING = 6, 6, 57344

    def p5(self):
        A1, ACC, ZB, WB, WD, WR, ZA, OD = 192, 16, 48, 80, 160, 164, 168, 170
        NZ, NW, WRING, SSP, SWO = self.NZ, self.NW, self.WRING, self.SSP, self.SWO
        self.vm, self.lg = [], []
        NA, KS = self.NA, self.KS
        NS = 32 - NA
        for k in range(KS, KS + 3):
            self.zrd(k)
        self('s_mul_i32 %s, %s, %d\ns_add_u32 %s, %s, %d\ns_lshl_b32 %s, %s, 17' % (s(t4), s(sW), NW * 4096, s(t4), s(t4), WRING, s(t3), s(sT)))
        self.rowtile_dma_addrs(4096, WD, s(t3))
        self.rowtile_read_addrs(WR, s(t4))
        self.colsum_get(172, MISC + 1024, vCS1)

        def w_ops(st):
            def first():
                self('s_add_u32 m0, %s, %d\ns_movk_i32 %s, %d' % (s(t4), (st % NW) * 4096, s(t0), st * 128))
                self.dma(WD, SSP, s(t0), 0, 'W%d' % st)
            return [first] + [lambda rg=rg: self.dma(WD + rg, SSP, s(t0), rg * 1024, 'W%d' % st) for rg in range(1, 4)]

        def z_ops(st):
            def first():
                self('s_add_u32 m0, %s, %d\ns_add_u32 %s, %s, %d' % (s(t1), (st % NZ) * 8192, s(t0), s(t2), st * 8192))
                self.dma(vL16, WS, s(t0), 0, 'Z%d' % st, sc1=True)
            return [first, lambda: self.dma(vL16, WS, s(t0), 1024, 'Z%d' % st, sc1=True)]

        def o_ops(c):
            ops = []
            for hf in range(2):
                def first(hf=hf):
                    if c < 6:
                        self('s_add_u32 m0, %s, %d' % (s(t4), ((NS + c) % 6) * 4096 + hf * 2048))
                    else:
                        self('s_lshl_b32 %s, %s, 12\ns_add_u32 m0, %s, %d' % (s(t0), s(sW), s(t0), 16384 + hf * 2048))
                    self('s_mov_b32 %s, %d' % (s(t0), (32 * c + 16 * hf) * 896))
                    self.dma(OD, SWO, s(t0), 0, 'WT')
                ops += [first, lambda: self.dma(OD + 1, SWO, s(t0), 1024, 'WT')]
            return ops
        self.o_ops = o_ops
        self.q = sum((w_ops(st) for st in range(NW)), [])
        self.zpass(A1, False, 1, KS, 28)
        self.stamp('z1')
        for ct in range(2):
            self.mfma(A1 + 16 * ct, vCS1 + 4 * ct, vMF, A1 + 16 * ct)
        self('v_lshlrev_b32 %s, 16, %s' % (v(vBSP), v(vBSP)))
        self('v_bfe_u32 %s, v0, 4, 1\nv_and_b32 %s, 1, v0\nv_lshl_add_u32 %s, %s, 1, %s' % (v(u0), v(u1), v(u0), v(u0), v(u1)))
        self('v_lshlrev_b32 %s, 1, %s\nv_xor_b32 %s, %s, %s\nv_lshlrev_b32 %s, 6, %s\nv_lshl_add_u32 %s, %s, 9, %s'
             % (v(u1), v(vH), v(u1), v(u1), v(u0), v(u1), v(u1), v(u1), v(u0), v(u1)))
        self('v_bfe_u32 %s, v0, 2, 2\nv_lshl_add_u32 %s, %s, 4, %s\nv_bfe_u32 %s, v0, 1, 1\nv_lshl_add_u32 %s, %s, 3, %s'
             % (v(u0), v(u1), v(u0), v(u1), v(u0), v(ZA), v(u0), v(u1)))
        self('v_xor_b32 %s, 64, %s' % (v(ZA + 1), v(ZA)))
        self('s_lshl_b32 %s, %s, 7' % (s(t2), s(sCB)))
        self.image_ops(OD, SWO, 896, s(t2), 0, 28, 'WT')
        self.scale(A1, 32, vRS)
        self.gelu(A1, 32, 128, 3)
        self.bg(99)
        self.stamp('g1')
        self('s_lshl_b32 %s, %s, 11\ns_lshl_b32 %s, %s, 18\ns_add_u32 %s, %s, %s\ns_add_u32 %s, %s, %d'
             % (s(t1), s(sW), s(t2), s(sI), s(t2), s(t2), s(t1), s(t2), s(t2), ZF))
        self('s_lshl_b32 %s, %s, 7\ns_add_u32 %s, %s, %d' % (s(t5), s(sI), s(t5), s(t5), FLAG5))
        self.poll(s(t5), 16)
        self.stamp('s5')
        self.q = sum((z_ops(st) for st in range(NZ - 1)), [])
        self.bg(99)

        def rdz(g, ct):
            st, k = divmod(g, 4)
            off = (st % NZ) * 8192 + (k >> 1) * 4096 + (k & 1) * 256
            d = ZB + 8 * (g % 4) + 4 * ct
            self.tr(d, ZA, off + ct * 2048, 'g%d' % g)
            self.tr(d + 2, ZA + 1, off + ct * 2048, 'g%d' % g)

        def rdw(g):
            st, k = divmod(g, 4)
            if st < NS:
                self.lgi('ds_read_b128 %s, %s offset:%d' % (v(WB + 4 * (g % 4), 4), v(WR + k), (st % NW) * 4096), 'g%d' % g)

        def mm(g, ct):
            c = None if g == 0 else ACC + 16 * ct
            if g < 4 * NS:
                self.mfma(ACC + 16 * ct, ZB + 8 * (g % 4) + 4 * ct, WB + 4 * (g % 4), c)
            else:
                self.mfma(ACC + 16 * ct, ZB + 8 * (g % 4) + 4 * ct, 4 * (g - 4 * NS), c, pb='a')
        self.wvm('Z0')
        self('s_barrier')
        self.stamp('p5z0')
        for g in range(2):
            rdz(g, 0)
            rdz(g, 1)
            rdw(g)
        for g in range(128):
            st, k = divmod(g, 4)
            if g in (32, 64, 96):
                self.stamp('p5_%d' % g)
            self.wlg('g%d' % g)
            mm(g, 0)
            if k == 2 and st + 1 < 32:
                self.bg(99)
                self.wvm('Z%d' % (st + 1))
                self.wvm('W%d' % (st + 1))
                self('s_barrier')
                if st + NZ - 1 < 32:
                    self.q += z_ops(st + NZ - 1)
                if st >= 1 and st - 1 + NW < NS:
                    self.q += w_ops(st - 1 + NW)
                elif st > NS and (st - NS) % 2 == 1 and (st - NS) // 2 < 6:
                    self.q += o_ops((st - NS) // 2)
                if st == 29:
                    self.q += o_ops(6)
            if g + 2 < 128:
                rdz(g + 2, 0)
                rdw(g + 2)
            mm(g, 1)
            if g + 2 < 128:
                rdz(g + 2, 1)
            self.bg(2)
        self.bg(99)
        self.stamp('p5')
        self('s_mul_i32 %s, %s, 57344\ns_lshl_b32 %s, %s, 12\ns_add_u32 %s, %s, %s\ns_add_u32 %s, %s, %d'
             % (s(t2), s(sT), s(t1), s(sI), s(t2), s(t2), s(t1), s(t2), s(t2), UF))
        self('s_add_u32 %s, %s, %d' % (s(t5), s(sFID), FLAG6))
        e = vBSP & ~1
        for k in range(0, 32, 2):
            self('v_pk_add_f32 %s, %s, %s op_sel_hi:[1,0]' % (v(ACC + k, 2), v(ACC + k, 2), v(e, 2)))
            self('v_pk_mul_f32 %s, %s, %s' % (v(ACC + k, 2), v(ACC + k, 2), v(A1 + k, 2)))
        self.pack(ZB, ACC, 32)

        def st_(sc):
            for k in range(4):
                self.store(ZB + 4 * k, vL16, WS, s(t2), k * 1024, 'st', sc1=sc)
        self.local_stores(st_)
        self.publish(s(t5))
        self.stamp('p5pub')

    def p6(self):
        FR, WB, ACC, AR, AZ, PA = 16, 128, 176, 208, 210, 212
        self.vm, self.lg = [], []
        self.slot_addrs(AR, 49152, self.WRING)
        self.slot_addrs(AZ, 8192, 16384)
        self.pair_addrs(PA, 0)
        self.srd(SA, P_OUT, 2048 * 896)
        self('s_mul_i32 %s, %s, %d\ns_lshl_b32 %s, %s, 7\ns_add_u32 %s, %s, %s\ns_lshl_b32 %s, %s, 6\ns_add_u32 %s, %s, %s'
             % (s(t3), s(sT3), 32 * 896, s(t1), s(sCB), s(t3), s(t3), s(t1), s(t1), s(sKH), s(t3), s(t3), s(t1)))
        self('v_mul_u32_u24 %s, 896, %s\nv_lshl_add_u32 %s, %s, 4, %s' % (v(u4), v(vM), v(u4), v(vH), v(u4)))
        self('s_mul_i32 %s, %s, 57344\ns_mul_i32 %s, %s, 28672\ns_add_u32 %s, %s, %s\ns_add_u32 %s, %s, %d'
             % (s(t2), s(sT3), s(t1), s(sKH), s(t2), s(t2), s(t1), s(t2), s(t2), UF))
        self('s_lshl_b32 %s, %s, 7\ns_add_u32 %s, %s, %d' % (s(t5), s(sRB), s(t5), s(t5), FLAG6))
        self.wvm()
        self.stamp('wout')
        self.poll(s(t5), 14)
        self.stamp('s6')
        self.q = self.frag_ops(FR, 28, t2, 'f')
        self.bg(11)

        def rd(k, sl):
            hi, c = divmod(k >> 1, 7)
            if c < 6:
                adr, off = AR, hi * 24576 + ((32 - self.NA + c) % 6) * 4096
            else:
                adr, off = AZ, hi * 4096
            self.trfrag(WB + 8 * (k % 4) + 4 * sl, adr + sl, off + (k & 1) * 2048, 'w%d' % k)
        for k in range(3):
            rd(k, 0)
            rd(k, 1)
        for k in range(28):
            self.wvm('f%d' % k)
            self.wlg('w%d' % k)
            for sl in range(2):
                self.mfma(ACC + 16 * sl, WB + 8 * (k % 4) + 4 * sl, FR + 4 * k, None if k == 0 else ACC + 16 * sl)
                if k + 3 < 28:
                    rd(k + 3, sl)
            self.bg(1)
        self.stamp('p6mm')
        self.pair_reduce(ACC, WB, PA, vHK, WB + 16)
        self.pack(WB, ACC, 16)
        self.store(WB, u4, SA, s(t3), 0, 'st', sc1=not self.o.get('outplain'))
        self.store(WB + 4, u4, SA, s(t3), 32, 'st', sc1=not self.o.get('outplain'))
        self.stamp('end', True)

    def build(self):
        stop = self.o.get('stop', 6)
        self.prologue()
        for k, ph in enumerate((self.p1, self.p2, self.p3, self.p4, self.p5, self.p6), 1):
            if k <= stop:
                ph()
        if self.o.get('padfrom'):
            self('s_mov_b32 %s, 0\nL_hold:\ns_memrealtime s[78:79]\ns_add_u32 %s, %s, 1\ns_waitcnt lgkmcnt(0)' % (s(sCNT), s(sCNT), s(sCNT)))
            self('s_sub_u32 s78, s78, %s\ns_cmp_ge_u32 s78, 10000\ns_cbranch_scc1 L_fin\ns_cmp_lt_u32 %s, 100000\ns_cbranch_scc1 L_hold' % (s(sPT), s(sCNT)))
        self('L_fin:')
        self.stamp_flush()
        self('L_end:\ns_endpgm')
        if stop >= 2:
            self.att_slow()
        self('L_code_end:')
        npad = self.a.pad()
        errs = []
        for take in ((), ('L_p1_V',), ('L_p1_N',), ('L_att_slow',)):
            errs += self.a.check_waits(take)
        for e in sorted(set(errs)):
            print('WAITCHECK', e, file=sys.stderr)
        ref = open('cdna_kernels/%s.s.ref' % NAME).read().split('\n')
        head = [l for l in ref if l.startswith(';') and '@launch' not in l and 'Override' not in l and 'grid=ceil' not in l
                and l == l.lstrip()]
        out = '\n'.join(head) + '\n'
        if self.names:
            out += '; stamps: ' + ' '.join(self.names) + '\n'
        out += '; @launch grid=(256,1,1) block=(256,1,1) lds=%d\n' % LDS_BYTES
        out += '.amdgcn_target "amdgcn-amd-amdhsa--gfx950"\n.text\n.globl %s_kernel\n.p2align 8\n' % NAME
        out += '.type %s_kernel,@function\n%s_kernel:\n' % (NAME, NAME)
        out += self.a.text()
        out += '.section .rodata,"a"\n.p2align 6\n.amdhsa_kernel %s_kernel\n' % NAME
        out += ('  .amdhsa_next_free_vgpr 512\n  .amdhsa_next_free_sgpr 102\n  .amdhsa_accum_offset 256\n'
                '  .amdhsa_group_segment_fixed_size 0\n  .amdhsa_kernarg_size 88\n  .amdhsa_user_sgpr_count 2\n'
                '  .amdhsa_user_sgpr_kernarg_segment_ptr 1\n  .amdhsa_system_sgpr_workgroup_id_x 1\n'
                '.end_amdhsa_kernel\n')
        if self.o.get('showpads'):
            for k, x in enumerate(self.a.L):
                if x.note == 'pad':
                    print(k, x.text, '| prev:', self.a.L[k - 1].text, '| next:', self.a.L[k + 1].text, file=sys.stderr)
        print('instructions %d, pads %d, waitcheck errors %d' % (len(self.a.L), npad, len(set(errs))), file=sys.stderr)
        return out


if __name__ == '__main__':
    opt = {}
    dst = sys.argv[1]
    for a in sys.argv[2:]:
        k, _, val = a.partition('=')
        opt[k] = int(val) if val.isdigit() else (val or 1)
    open(dst, 'w').write(G(opt).build())
```

```python
import sys
import math
import struct
import copy
from asmlib import Asm

NAME = 'sequential_preLN__mha_block__mixer_gmlp__prompt'

FLAG1, FLAG2, FLAG3, FLAG5, FLAG6 = 0x0000, 0x1000, 0x2000, 0x3000, 0x4000
ONES, PROF = 0x40000, 0x80000
ZST, HST = 0x100000, 0x180000
KF, VF, OF, HF, ZF, UF = 0x200000, 0x400000, 0x600000, 0x800000, 0xA00000, 0xE00000
XST = 0x1200000
WS_BYTES = 0x1280000

XB = 57344
WQB = 106496
MISC = 155648
RSX = 157696
WIN2 = 57344
RED = 114688
LDS_BYTES = 163840

P_X, P_WQKV, P_WO, P_WIN, P_WSP, P_BSP, P_WOUT, P_OUT, P_DBG, P_WS = 4, 6, 8, 12, 14, 16, 18, 20, 22, 24
sW, sRB, sI, sXCC, sNON, sFAST = 26, 27, 44, 45, 46, 48
WS, SA, SB, SC = 28, 32, 36, 40
sHI = 50
sONE2 = 52
sT = 54
sCB, sKH, sT3 = 55, 56, 57
sK0, sK1 = 58, 60
t0, t1, t2, t3, t4, t5, t6, t7 = 62, 63, 64, 65, 66, 67, 68, 69
sSAVE = 70
sCNT = 72
sPT = 74
sB = 76
sM0, sSO = 80, 81
sFID = 77

vL, vH, vM, vL16, vTRa, vTRb, vPM = 0, 1, 2, 3, 4, 5, 6
u0, u1, u2, u3, u4, u5, u6, u7, u8 = 7, 8, 9, 10, 11, 12, 13, 14, 15
vCS1, vCS2, vMF, vHK, vBSP, vRS = 224, 232, 240, 244, 252, 253

POLL_MAX = 8000


def f32(x):
    return '0x%08x' % struct.unpack('<I', struct.pack('<f', x))[0]


def v(a, n=1):
    return 'v%d' % a if n == 1 else 'v[%d:%d]' % (a, a + n - 1)


def s(a, n=1):
    return 's%d' % a if n == 1 else 's[%d:%d]' % (a, a + n - 1)


class G:
    def __init__(self, opt):
        self.o = opt
        self.a = Asm()
        self.vm = []
        self.lg = []
        self.nlab = 0
        self.names = []
        self.q = []
        self.issued = set()
        self.stubs = []
        self.fill = []
        self.NB, self.NC, self.ND = opt.get('nb', 0), opt.get('nc', 0), opt.get('nd', 2)
        self.NA = 14 - self.NB - self.NC - self.ND
        assert self.NA <= 13

    def __call__(self, t):
        self.a(t)

    def lab(self, p):
        self.nlab += 1
        return 'L_%s_%d' % (p, self.nlab)

    def vmi(self, text, tag):
        self.a(text)
        self.vm.append(tag)
        self.issued.add(tag)

    def lgi(self, text, tag):
        self.a(text)
        self.lg.append(tag)

    def _n(self, q, tag):
        idx = [k for k, t in enumerate(q) if t == tag]
        return None if not idx else len(q) - 1 - idx[-1]

    def wvm(self, tag=None):
        n = 0 if tag is None else self._n(self.vm, tag)
        assert tag is None or tag in self.issued, tag
        if n is None:
            return
        self.a('s_waitcnt vmcnt(%d)' % n)
        self.vm = self.vm[len(self.vm) - n:]

    def wlg(self, tag=None):
        n = 0 if tag is None else self._n(self.lg, tag)
        if n is None:
            return
        n = min(n, 15)
        self.a('s_waitcnt lgkmcnt(%d)' % n)
        self.lg = self.lg[len(self.lg) - n:]

    def srd(self, r, ptr, nbytes):
        self('s_mov_b32 %s, %s\ns_mov_b32 %s, %s\ns_mov_b32 %s, 0x%x\ns_mov_b32 %s, 0x20000'
             % (s(r), s(ptr), s(r + 1), s(ptr + 1), s(r + 2), nbytes, s(r + 3)))

    def bg(self, n=1):
        for _ in range(n):
            if self.q:
                self.q.pop(0)()

    def cap(self, fn):
        hold, self.a = self.a, Asm()
        fn()
        lines = [x.text for x in self.a.L]
        assert all(x.kind in ('valu', 'salu', 'nop') for x in self.a.L), [x.text for x in self.a.L if x.kind not in ('valu', 'salu', 'nop')]
        self.a = hold
        out = []
        for l in lines:
            if out and l.startswith(('s_cselect', 's_subb', 's_addc')):
                out[-1] += '\n' + l
            else:
                out.append(l)
        return out

    def drip(self, n):
        for _ in range(n):
            if self.fill:
                self(self.fill.pop(0))

    def retry(self, test, reload):
        st, bk = self.lab('again'), self.lab('have')
        self('%s\ns_cbranch_vccnz %s\n%s:' % (test, st, bk))
        self.stubs.append((st, bk, test, reload))

    def emit_stubs(self):
        for st, bk, test, reload in self.stubs:
            self('%s:\ns_mov_b32 %s, 0\n%s_l:\n%s' % (st, s(sCNT), st, reload))
            self('s_add_u32 %s, %s, 1\ns_waitcnt vmcnt(0)\n%s\ns_cbranch_vccz %s' % (s(sCNT), s(sCNT), test, bk))
            self('s_cmp_lt_u32 %s, %d\ns_cbranch_scc1 %s_l\ns_branch %s' % (s(sCNT), POLL_MAX, st, bk))

    def image_ops(self, va, srd, stride, col_soff, lds_base, ninstr, tag):
        self('v_lshrrev_b32 %s, 3, %s\nv_mul_u32_u24 %s, %d, %s' % (v(va), v(vL), v(va), stride, v(va)))
        self('v_bfe_u32 %s, %s, 4, 1\nv_lshlrev_b32 %s, 2, %s' % (v(va + 1), v(vL), v(va + 1), v(va + 1)))
        self('v_xor_b32 %s, %s, %s\nv_and_b32 %s, 7, %s' % (v(va + 1), v(va + 1), v(vL), v(va + 1), v(va + 1)))
        self('v_lshl_add_u32 %s, %s, 4, %s' % (v(va), v(va + 1), v(va)))
        self('s_mul_i32 %s, %s, %d\ns_add_u32 %s, %s, %s' % (s(t0), s(sW), ninstr * 8 * stride, s(t0), s(t0), col_soff))
        self('v_add_u32 %s, %s, %s\nv_add_u32 %s, %d, %s' % (v(va), s(t0), v(va), v(va + 1), 8 * stride - 1024, v(va)))
        ops = []
        for q in range(ninstr):
            def op(q=q):
                if q % 2 == 0:
                    if q == 0:
                        self('s_mul_i32 %s, %s, %d\ns_add_u32 m0, %s, %d\ns_mov_b32 %s, 0'
                             % (s(sM0), s(sW), ninstr * 1024, s(sM0), lds_base, s(sSO)))
                    else:
                        self('s_add_u32 m0, %s, %d\ns_mov_b32 %s, %d' % (s(sM0), lds_base + q * 1024, s(sSO), q * 8 * stride))
                self.dma(va + (q & 1), srd, s(sSO), (q & 1) * 1024, tag)
            ops.append(op)
        return ops

    def mfma(self, d, a_, b, c=None, pa='v', pb='v'):
        cs = '0' if c is None else v(c, 16)
        self('v_mfma_f32_32x32x16_bf16 %s, %s[%d:%d], %s[%d:%d], %s'
             % (v(d, 16), pa, a_, a_ + 3, pb, b, b + 3, cs))

    def mfsum(self, d, b, first, pb='v'):
        self('v_mfma_f32_16x16x32_bf16 %s, a[252:255], %s[%d:%d], %s' % (v(d, 4), pb, b, b + 3, '0' if first else v(d, 4)))

    def tr(self, dst, addr, off, tag):
        self.lgi('ds_read_b64_tr_b16 %s, %s offset:%d' % (v(dst, 2), v(addr), off), tag)

    def trfrag(self, dst, addr, off, tag, step=512):
        self.tr(dst, addr, off, tag)
        self.tr(dst + 2, addr, off + step, tag)

    def load(self, dst, voff, srd, soff, imm, tag, n=4, sc1=True, pfx='v'):
        op = {4: 'dwordx4', 2: 'dwordx2', 1: 'dword'}[n]
        d = '%s%d' % (pfx, dst) if n == 1 else '%s[%d:%d]' % (pfx, dst, dst + n - 1)
        self.vmi('buffer_load_%s %s, %s, %s, %s offen offset:%d%s'
                 % (op, d, v(voff), s(srd, 4), soff, imm, ' sc1' if sc1 else ''), tag)

    def dma(self, voff, srd, soff, imm, tag, sc1=False):
        self.vmi('buffer_load_dwordx4 %s, %s, %s offen offset:%d%s lds'
                 % (v(voff), s(srd, 4), soff, imm, ' sc1' if sc1 else ''), tag)

    def store(self, src, voff, srd, soff, imm, tag, n=4, sc1=True):
        op = {4: 'dwordx4', 2: 'dwordx2', 1: 'dword'}[n]
        self.vmi('buffer_store_%s %s, %s, %s, %s offen offset:%d%s'
                 % (op, v(src, n), v(voff), s(srd, 4), soff, imm,
                    ' sc1' if sc1 else (' ' + self.o['plainmod'] if srd == WS and self.o.get('plainmod') else '')), tag)

    def local_stores(self, emit):
        emit(True)

    def publish(self, flag_soff, local=False):
        self('v_mov_b32 %s, %s\nv_mov_b32 %s, %s\ns_cmp_eq_u32 %s, 0' % (v(u1), s(sNON), v(u2), s(sNON + 1), s(sW)))
        self.wvm()
        self('s_barrier')
        sk = self.lab('pub')
        self('s_cbranch_scc0 %s\ns_mov_b64 exec, 1' % sk)
        self('buffer_store_dwordx2 %s, v0, %s, %s offen sc1' % (v(u1, 2), s(WS, 4), flag_soff))
        self('s_mov_b64 exec, -1\n%s:' % sk)

    def poll_first(self, flag_soff, nflags, reg):
        self('v_cmp_gt_u32 vcc, %d, v0\nv_lshlrev_b32 %s, 3, v0\nv_cndmask_b32 %s, 0, %s, vcc' % (nflags, v(reg), v(reg), v(reg)))
        self.load(reg, reg, WS, flag_soff, 0, 'flag', n=2)

    def poll(self, flag_soff, nflags, first=None):
        sk, lp = self.lab('pollskip'), self.lab('poll')
        if first is not None:
            self.wvm('flag')
            self('v_cmp_ne_u64 vcc, %s, %s\ns_cbranch_vccz %s' % (s(sNON, 2), v(first, 2), sk))
        self('s_cmp_eq_u32 %s, 0\ns_cbranch_scc0 %s' % (s(sW), sk))
        self('v_lshlrev_b32 %s, 3, %s' % (v(u0), v(vL)))
        self('s_mov_b64 exec, 0x%x' % ((1 << nflags) - 1))
        self('s_mov_b32 %s, 0\n%s:' % (s(sCNT), lp))
        self('buffer_load_dwordx2 %s, %s, %s, %s offen sc1' % (v(u1, 2), v(u0), s(WS, 4), flag_soff))
        self('s_add_u32 %s, %s, 1' % (s(sCNT), s(sCNT)))
        self('s_waitcnt vmcnt(0)')
        self('v_cmp_ne_u64 vcc, %s, %s' % (s(sNON, 2), v(u1, 2)))
        self('s_cbranch_vccz %s_d' % lp)
        self('s_cmp_lt_u32 %s, %d\ns_cbranch_scc1 %s' % (s(sCNT), POLL_MAX, lp))
        self('%s_d:\ns_mov_b64 exec, -1\n%s:' % (lp, sk))
        self('s_barrier')

    def stamp(self, name, real=False):
        if self.o.get('padfrom') == name:
            self('s_memrealtime %s\ns_waitcnt lgkmcnt(0)' % s(sPT, 2))
            self.lg = []
        if not self.o.get('prof'):
            return
        if name not in self.names:
            self.names.append(name)
        k = self.names.index(name)
        assert k < 62
        self('s_memtime s[78:79]\ns_waitcnt lgkmcnt(0)\nv_writelane_b32 v255, s78, %d' % k)
        self.lg = []
        if self.o['prof'] == 2:
            self('s_memrealtime s[78:79]\ns_waitcnt lgkmcnt(0)\nv_writelane_b32 v254, s78, %d' % k)
        if real:
            self('s_memrealtime s[78:79]\ns_waitcnt lgkmcnt(0)\nv_writelane_b32 v255, s78, %d' % (62 if k == 0 else 63))

    def stamp_flush(self):
        if not self.o.get('prof'):
            return
        self('s_lshl_b32 %s, %s, 2\ns_add_u32 %s, %s, %s\ns_lshl_b32 %s, %s, 8\ns_add_u32 %s, %s, %d'
             % (s(t7), s(sB), s(t7), s(t7), s(sW), s(t7), s(t7), s(t7), s(t7), PROF))
        self('v_lshlrev_b32 v7, 2, v0\nbuffer_store_dword v255, v7, %s, %s offen' % (s(WS, 4), s(t7)))
        self('s_add_u32 %s, %s, 0x40000\nbuffer_store_dword v254, v7, %s, %s offen' % (s(t7), s(t7), s(WS, 4), s(t7)))

    def xhalf_add(self, r, tmp):
        self('v_mov_b32 %s, %s\nv_permlane32_swap_b32 %s, %s\nv_add_f32 %s, %s, %s'
             % (v(tmp), v(r), v(tmp), v(r), v(r), v(r), v(tmp)))

    def xhalf_add2(self, r, tmp):
        self('v_mov_b32 %s, %s\nv_mov_b32 %s, %s\ns_nop 0\nv_permlane32_swap_b32 %s, %s\nv_permlane32_swap_b32 %s, %s'
             % (v(tmp), v(r), v(tmp + 1), v(r + 1), v(tmp), v(r), v(tmp + 1), v(r + 1)))
        self('v_add_f32 %s, %s, %s\nv_add_f32 %s, %s, %s' % (v(r), v(r), v(tmp), v(r + 1), v(r + 1), v(tmp + 1)))

    def mean_rstd(self, vsum, vsq, n, mean, rstd):
        self('v_mul_f32 %s, %s, %s' % (v(mean), f32(1.0 / n), v(vsum)))
        self('v_mul_f32 %s, %s, %s' % (v(rstd), f32(1.0 / n), v(vsq)))
        self('v_fma_f32 %s, -%s, %s, %s' % (v(rstd), v(mean), v(mean), v(rstd)))
        self('v_max_f32 %s, 0, %s\nv_add_f32 %s, %s, %s' % (v(rstd), v(rstd), v(rstd), f32(1e-5), v(rstd)))
        self('v_rsq_f32 %s, %s' % (v(rstd), v(rstd)))

    def make_meanfrag(self, mean, tmp):
        self('v_sub_f32 %s, 0, %s\nv_cndmask_b32 %s, %s, 0, %s' % (v(tmp), v(mean), v(tmp), v(tmp), s(sHI, 2)))
        self('v_cvt_pk_bf16_f32 %s, %s, 0\nv_lshlrev_b32 %s, 16, %s' % (v(vMF + 1), v(tmp), v(vMF), v(vMF + 1)))
        self('v_sub_f32 %s, %s, %s\nv_cvt_pk_bf16_f32 %s, %s, %s' % (v(vMF), v(tmp), v(vMF), v(vMF), v(tmp), v(vMF)))
        self('v_mov_b32 %s, 0\nv_mov_b32 %s, 0' % (v(vMF + 2), v(vMF + 3)))

    def make_csfrag(self, cs, dst):
        self('v_cvt_pk_bf16_f32 %s, %s, %s\nv_and_b32 %s, 0xffff0000, %s' % (v(dst), v(cs), v(cs), v(dst + 1), v(dst)))
        self('v_sub_f32 %s, %s, %s\nv_cvt_pk_bf16_f32 %s, %s, 0' % (v(dst + 1), v(cs), v(dst + 1), v(dst + 1), v(dst + 1)))
        self('v_mov_b32 %s, 0\nv_mov_b32 %s, 0' % (v(dst + 2), v(dst + 3)))

    def colsum_put(self, c0, c1, xch):
        self('s_lshl_b32 %s, %s, 2\ns_add_u32 %s, %s, %d\nv_lshl_add_u32 %s, %s, 4, %s'
             % (s(t0), s(sW), s(t0), s(t0), xch, v(u0), v(vM), s(t0)))
        self.lgi('ds_write_b32 %s, %s' % (v(u0), v(c0)), 'csw')
        self.lgi('ds_write_b32 %s, %s offset:512' % (v(u0), v(c1)), 'csw')

    def colsum_part(self, base, bufs, acc, xch):
        self('s_mul_i32 %s, %s, 14336\ns_add_u32 %s, %s, %d' % (s(t0), s(sW), s(t0), s(t0), base))
        self('v_add_u32 %s, %s, %s\nv_add_u32 %s, %s, %s' % (v(u0), s(t0), v(vTRa), v(u1), s(t0), v(vTRb)))
        for q in range(7):
            for ct in range(2):
                self.trfrag(bufs[ct] + 4 * q, u0 + ct, q * 2048, 'cs%d' % q)
        for q in range(7):
            self.wlg('cs%d' % q)
            for ct in range(2):
                self.mfsum(acc + 4 * ct, bufs[ct] + 4 * q, q == 0)
        self.colsum_put(acc, acc + 4, xch)

    def colsum_get(self, buf, xch, dst):
        self('v_lshlrev_b32 %s, 4, %s' % (v(u0), v(vM)))
        self('v_add_u32 %s, %d, %s' % (v(u0), xch, v(u0)))
        for ct in range(2):
            self.lgi('ds_read_b128 %s, %s offset:%d' % (v(buf + 4 * ct, 4), v(u0), ct * 512), 'csr')
        self.wlg('csr')
        for ct in range(2):
            b = buf + 4 * ct
            self('v_add_f32 %s, %s, %s\nv_add_f32 %s, %s, %s\nv_add_f32 %s, %s, %s'
                 % (v(b), v(b), v(b + 1), v(b + 2), v(b + 2), v(b + 3), v(b), v(b), v(b + 2)))
            self.make_csfrag(b, dst + 4 * ct)

    def rowtile_dma_addrs(self, stride, vd, sbase):
        self('v_lshrrev_b32 %s, 3, %s\nv_mul_u32_u24 %s, %d, %s' % (v(u0), v(vL), v(u0), stride, v(u0)))
        self('v_lshrrev_b32 %s, 4, %s\nv_xor_b32 %s, %s, %s\nv_and_b32 %s, 7, %s'
             % (v(u1), v(vL), v(u1), v(u1), v(vL), v(u1), v(u1)))
        self('v_lshl_add_u32 %s, %s, 4, %s\nv_xor_b32 %s, 64, %s' % (v(u0), v(u1), v(u0), v(u1), v(u0)))
        self('v_add_u32 %s, %s, %s\nv_add_u32 %s, %s, %s' % (v(vd), sbase, v(u0), v(u1), sbase, v(u1)))
        d = 8 * stride - 1024
        self('v_add_u32 %s, %d, %s\nv_add_u32 %s, %d, %s\nv_add_u32 %s, %d, %s'
             % (v(vd + 1), d, v(u1), v(vd + 2), 2 * d, v(vd), v(vd + 3), 3 * d, v(u1)))

    def rowtile_read_addrs(self, vr, sbase, sxor=None):
        self('v_bfe_u32 %s, %s, 1, 3\nv_xor_b32 %s, %s, %s' % (v(u1), v(vM), v(u1), v(u1), v(vH)))
        self('v_lshlrev_b32 %s, 4, %s\nv_lshl_add_u32 %s, %s, 7, %s' % (v(u1), v(u1), v(u1), v(vM), v(u1)))
        if sxor:
            self('v_xor_b32 %s, %s, %s' % (v(u1), sxor, v(u1)))
        for k in range(4):
            self('v_xor_b32 %s, %d, %s\nv_add_u32 %s, %s, %s' % (v(vr + k), 32 * k, v(u1), v(vr + k), sbase, v(vr + k)))

    def gelu(self, x, n, tmp, nbg):
        for b in range(0, n, 8):
            for k in range(0, 8, 2):
                self('v_pk_mul_f32 %s, %s, %s' % (v(tmp + k, 2), v(x + b + k, 2), v(x + b + k, 2)))
            for k in range(0, 8, 2):
                self('v_pk_fma_f32 %s, %s, %s, %s' % (v(tmp + k, 2), v(tmp + k, 2), s(sK1, 2), v(u7, 2)))
            for k in range(0, 8, 2):
                self('v_pk_mul_f32 %s, %s, %s' % (v(tmp + k, 2), v(tmp + k, 2), v(x + b + k, 2)))
            for k in range(8):
                self('v_exp_f32 %s, %s' % (v(tmp + k), v(tmp + k)))
            for k in range(0, 8, 2):
                self('v_pk_add_f32 %s, %s, 1.0 op_sel_hi:[1,0]' % (v(tmp + k, 2), v(tmp + k, 2)))
            for k in range(8):
                self('v_rcp_f32 %s, %s' % (v(tmp + k), v(tmp + k)))
            self.bg(nbg)
            for k in range(0, 8, 2):
                self('v_pk_mul_f32 %s, %s, %s' % (v(x + b + k, 2), v(x + b + k, 2), v(tmp + k, 2)))

    def scale(self, x, n, r):
        e = r & ~1
        sel = 'op_sel:[0,1] op_sel_hi:[1,1]' if r & 1 else 'op_sel_hi:[1,0]'
        for k in range(0, n, 2):
            self('v_pk_mul_f32 %s, %s, %s %s' % (v(x + k, 2), v(x + k, 2), v(e, 2), sel))

    def pack(self, dst, x, n):
        for k in range(0, n, 2):
            self('v_cvt_pk_bf16_f32 %s, %s, %s' % (v(dst + k // 2), v(x + k), v(x + k + 1)))

    XF, ACC1, GR, SUM, CSA, XD, XR, WD, WT, QD, NONV, SAD, TB = 16, 128, 160, 176, 180, 188, 192, 196, 198, 206, 208, 210, 214
    sROT = 49

    def prologue(self):
        XD, WD = self.XD, self.WD
        self('s_cmp_ge_u32 s2, 256\ns_cbranch_scc1 L_end')
        self.stamp('start', True)
        self('s_load_dwordx16 s[4:19], s[0:1], 0\ns_load_dwordx4 s[20:23], s[0:1], 64\ns_load_dwordx2 s[24:25], s[0:1], 80')
        self('v_lshrrev_b32 v1, 6, v0\nv_and_b32 v0, 63, v0\nv_readfirstlane_b32 %s, v1\ns_mov_b32 %s, s2' % (s(sW), s(sB)))
        self('s_bfe_u32 %s, s2, 0x20001\ns_lshl_b32 %s, %s, 2\ns_lshr_b32 %s, s2, 6\ns_add_u32 %s, %s, %s'
             % (s(t0), s(t0), s(t0), s(t1), s(sRB), s(t0), s(t1)))
        self('s_bfe_u32 %s, s2, 0x30003\ns_lshl_b32 %s, %s, 1\ns_and_b32 %s, s2, 1\ns_add_u32 %s, %s, %s'
             % (s(sCB), s(t0), s(sCB), s(t2), s(sI), s(t0), s(t2)))
        self('s_lshl_b32 %s, %s, 1\ns_add_u32 %s, %s, %s\ns_cmp_ge_u32 %s, 7\ns_cselect_b32 %s, 7, 0\ns_sub_u32 %s, %s, %s'
             % (s(t1), s(t1), s(t1), s(t1), s(sCB), s(t1), s(t0), s(self.sROT), s(t1), s(t0)))
        self('s_lshl_b32 %s, %s, 2\ns_add_u32 %s, %s, %s\ns_mul_i32 %s, %s, %d' % (s(sT), s(sRB), s(sT), s(sT), s(sW), s(t2), s(sT), 32 * 896))
        self.rowtile_dma_addrs(896, XD, s(t2))
        self('v_lshrrev_b32 %s, 3, v0\nv_mul_u32_u24 %s, 2688, %s\nv_bfe_u32 %s, v0, 4, 1\nv_lshlrev_b32 %s, 2, %s'
             % (v(u0), v(u0), v(u0), v(u1), v(u1), v(u1)))
        self('v_xor_b32 %s, %s, v0\nv_and_b32 %s, 7, %s\nv_lshl_add_u32 %s, %s, 4, %s' % (v(u1), v(u1), v(u1), v(u1), v(u0), v(u1), v(u0)))
        self('s_mul_i32 %s, %s, 43008\ns_lshl_b32 %s, %s, 7\ns_add_u32 %s, %s, %s\ns_add_u32 %s, %s, 896\ns_lshl_b32 %s, %s, 11'
             % (s(t0), s(sW), s(t1), s(sI), s(t0), s(t0), s(t1), s(t0), s(t0), s(t3), s(sW)))
        self('v_add_u32 %s, %s, %s\nv_add_u32 %s, %d, %s' % (v(WD), s(t0), v(u0), v(WD + 1), 8 * 2688 - 1024, v(WD)))
        self('s_mul_i32 %s, %s, 12288\ns_add_u32 %s, %s, %d' % (s(t4), s(sW), s(t4), s(t4), XB))
        self('s_mov_b32 %s, 0x%x\ns_mov_b32 %s, 0x20000\ns_mov_b32 %s, 0x%x\ns_mov_b32 %s, 0x20000'
             % (s(SA + 2), 2048 * 896, s(SA + 3), s(SB + 2), 448 * 2688, s(SB + 3)))
        self('s_mov_b32 %s, %s' % (s(t5), s(self.sROT)))
        self('s_waitcnt lgkmcnt(0)')
        self('s_mov_b32 %s, %s\ns_mov_b32 %s, %s\ns_mov_b32 %s, %s\ns_mov_b32 %s, %s'
             % (s(SA), s(P_X), s(SA + 1), s(P_X + 1), s(SB), s(P_WQKV), s(SB + 1), s(P_WQKV + 1)))
        self.srd(SC, P_DBG, 256)
        sk = self.lab('non')
        self('s_or_b32 %s, %s, %s\ns_cbranch_scc1 %s' % (s(t0), s(sB), s(sW), sk))
        self('s_memrealtime %s\ns_waitcnt lgkmcnt(0)\ns_or_b32 %s, %s, 0x80000000' % (s(t6, 2), s(t7), s(t7)))
        self('v_mov_b32 %s, %s\nv_mov_b32 %s, %s\ns_mov_b64 exec, 1' % (v(u1), s(t6), v(u2), s(t7)))
        self('buffer_store_dwordx2 %s, v0, %s, 0 offen sc1\ns_mov_b64 exec, -1\n%s:\ns_cmp_ge_u32 %s, 14' % (v(u1, 2), s(SC, 4), sk, s(sI)))

    def setup2(self):
        XR, WT = self.XR, self.WT
        self('s_mov_b32 %s, 0x3f803f80' % s(sONE2))
        self('v_lshrrev_b32 %s, 5, v0\nv_and_b32 %s, 31, v0\nv_lshlrev_b32 %s, 4, v0' % (v(vH), v(vM), v(vL16)))
        self('v_bfe_u32 %s, v0, 2, 2\nv_lshl_add_u32 %s, %s, 3, %s\nv_lshlrev_b32 %s, 7, %s'
             % (v(u0), v(u1), v(vH), v(u0), v(vTRa), v(u1)))
        self('v_bfe_u32 %s, v0, 4, 1\nv_and_b32 %s, 1, v0\nv_lshl_add_u32 %s, %s, 1, %s' % (v(u3), v(u2), v(u1), v(u3), v(u2)))
        self('v_bfe_u32 %s, v0, 3, 1\nv_lshlrev_b32 %s, 2, %s\nv_xor_b32 %s, %s, %s' % (v(u2), v(u2), v(u2), v(u2), v(u2), v(u1)))
        self('v_lshl_add_u32 %s, %s, 4, %s\nv_bfe_u32 %s, v0, 1, 1\nv_lshl_add_u32 %s, %s, 3, %s'
             % (v(vTRa), v(u2), v(vTRa), v(u2), v(vTRa), v(u2), v(vTRa)))
        self('v_bfe_u32 %s, v0, 2, 1\nv_cmp_eq_u32 vcc, %s, %s\nv_xor_b32 %s, 64, %s\nv_mov_b32 %s, %s\nv_cndmask_b32 %s, 0, %s, vcc'
             % (v(u0), v(u0), v(u3), v(vTRb), v(vTRa), v(u1), s(sONE2), v(u1), v(u1)))
        for k in range(4):
            self('v_accvgpr_write_b32 a%d, %s' % (252 + k, v(u1)))
        self('s_lshl_b32 %s, %s, 5' % (s(t1), s(sW)))
        self.rowtile_read_addrs(XR, s(t4), s(t1))
        for k in range(4):
            self('s_xor_b32 %s, %s, %d\nv_or_b32 %s, %s, %s\nv_or_b32 %s, %s, %s'
                 % (s(t0), s(t3), k * 2048, v(WT + 2 * k), s(t0), v(vTRa), v(WT + 2 * k + 1), s(t0), v(vTRb)))
        lp = self.lab('pc')
        self('s_getpc_b64 %s\n%s:\ns_sub_u32 %s, %s, %s-%s_kernel\ns_subb_u32 %s, %s, 0' % (s(84, 2), lp, s(84), s(84), lp, NAME, s(85), s(85)))
        self('s_mov_b32 s86, L_code_end-%s_kernel\ns_mov_b32 s87, 0x20000' % NAME)
        self('s_lshr_b32 %s, %s, 3\ns_lshl_b32 %s, %s, 2\ns_add_u32 %s, %s, %s\ns_lshl_b32 %s, %s, 9\nv_lshlrev_b32 %s, 3, v0'
             % (s(t0), s(sB), s(t0), s(t0), s(t0), s(t0), s(sW), s(t0), s(t0), v(u0)))
        self.load(250, u0, 84, s(t0), 0, 'code', n=2, sc1=False, pfx='a')
        self.srd(WS, P_WS, WS_BYTES)

    def setup3(self):
        QD = self.QD
        self('s_mov_b32 %s, 0\ns_mov_b32 %s, -1' % (s(sHI), s(sHI + 1)))
        k0 = -2.0 * math.sqrt(2.0 / math.pi) * math.log2(math.e)
        self('s_mov_b32 %s, %s' % (s(sK0), f32(k0)))
        self('s_mov_b32 %s, %s\ns_mov_b32 %s, %s' % (s(sK1), f32(k0 * 0.044715), s(sK1 + 1), f32(k0 * 0.044715)))
        self('s_lshl_b32 %s, %s, 4\ns_add_u32 %s, %s, %s\ns_lshl_b32 %s, %s, 3' % (s(sFID), s(sRB), s(sFID), s(sFID), s(sI), s(sFID), s(sFID)))
        self('s_and_b32 %s, %s, 1\ns_lshl_b32 %s, %s, 1\ns_lshr_b32 %s, %s, 1' % (s(t7), s(sI), s(t7), s(t7), s(sKH), s(sW)))
        self('s_lshl_b32 %s, %s, 2\ns_add_u32 %s, %s, %s\ns_and_b32 %s, %s, 1\ns_add_u32 %s, %s, %s'
             % (s(sT3), s(sRB), s(sT3), s(sT3), s(t7), s(t6), s(sW), s(sT3), s(sT3), s(t6)))
        self('v_and_b32 %s, 0x13, %s\nv_bfe_u32 %s, v0, 2, 1\nv_lshl_or_b32 %s, %s, 3, %s'
             % (v(vPM), v(vM), v(u0), v(vPM), v(u0), v(vPM)))
        self('v_bfe_u32 %s, v0, 3, 1\nv_lshl_or_b32 %s, %s, 2, %s' % (v(u1), v(vPM), v(u1), v(vPM)))
        self('s_mul_i32 %s, %s, 56\ns_and_b32 %s, %s, 1\ns_lshl_b32 %s, %s, 3\ns_sub_u32 %s, %s, %s'
             % (s(t6), s(sI), s(t7), s(sI), s(t7), s(t7), s(t6), s(t6), s(t7)))
        self('v_lshrrev_b32 %s, 2, v0\nv_mul_u32_u24 %s, 2688, %s\nv_and_b32 %s, 3, v0\nv_lshl_add_u32 %s, %s, 4, %s'
             % (v(u0), v(u0), v(u0), v(u1), v(QD), v(u1), v(u0)))
        self('s_mul_i32 %s, %s, 43008\ns_add_u32 %s, %s, %s\nv_add_u32 %s, %s, %s\ns_lshl_b32 s82, %s, 10'
             % (s(t7), s(sW), s(t6), s(t6), s(t7), v(QD), s(t6), v(QD), s(sW)))

    def p1_variant(self, kind):
        XF, ACC, GR, SUM, CSA, XD, XR, WD, WT, QD, NONV, SAD, TB = (
            self.XF, self.ACC1, self.GR, self.SUM, self.CSA, self.XD, self.XR, self.WD, self.WT, self.QD,
            self.NONV, self.SAD, self.TB)
        kv = kind != 'N'

        def wreg(j, k, ct):
            return 32 * (j & 1) + 8 * k + 4 * ct

        def step(reg):
            self('s_add_u32 %s, %s, 1\ns_cmp_eq_u32 %s, 7\ns_cselect_b32 %s, 0, %s' % (s(reg), s(reg), s(reg), s(reg), s(reg)))

        def block_ops(j):
            ops = []
            if kv:
                def w_():
                    self('s_add_u32 m0, %s, %d\ns_mul_i32 %s, %s, %d' % (s(t3), j * 8192, s(t0), s(t5), 64 * 2688))
                    self.dma(WD, SB, s(t0), 0, 'B%d' % j)
                ops += [w_, lambda: self.dma(WD + 1, SB, s(t0), 1024, 'B%d' % j)]

            def x_():
                self('s_add_u32 m0, %s, %d\ns_lshl_b32 %s, %s, 7' % (s(t4), (j % 3) * 4096, s(t0), s(t5)))
                self.dma(XD, SA, s(t0), 0, 'B%d' % j)
            ops.append(x_)
            for rg in range(1, 4):
                ops.append(lambda rg=rg: self.dma(XD + rg, SA, s(t0), rg * 1024, 'B%d' % j))
            ops.append(lambda: step(t5))
            return ops

        def wq_op(j):
            self('s_add_u32 m0, s82, %d\ns_mul_i32 %s, %s, %d' % (WQB + j * 4096, s(t0), s(t5), 64 * 2688))
            self.dma(QD, SB, s(t0), 0, 'WQ')
            step(t5)
        self.q = block_ops(0) + block_ops(1)
        self.bg(99)
        self.stamp('p1dma')
        self.setup2()
        XS, XG = TB, TB + 8

        def epi_addrs():
            if kind == 'K':
                self('s_lshl_b32 %s, %s, 3\nv_add_u32 %s, %s, %s\ns_mov_b32 %s, 225792\ns_mul_i32 %s, %s, 3584\ns_add_u32 %s, %s, %d'
                     % (s(t6), s(sI), v(u0), s(t6), v(vH), s(t7), s(t2), s(sT), s(t2), s(t2), KF))
                for k in range(4):
                    self('v_add_u32 %s, %d, %s\nv_mul_u32_u24 %s, 37, %s\nv_lshrrev_b32 %s, 8, %s'
                         % (v(u1), 2 * k, v(u0), v(u2), v(u1), v(u2), v(u2)))
                    self('v_mul_lo_u32 %s, %s, %s\nv_lshl_add_u32 %s, %s, 9, %s\nv_lshl_add_u32 %s, %s, 4, %s'
                         % (v(u2), v(u2), s(t7), v(u2), v(u1), v(u2), v(SAD + k), v(vM), v(u2)))
            elif kind == 'V':
                self('s_sub_u32 %s, %s, 7\ns_lshl_b32 %s, %s, 6\ns_mov_b32 %s, %d\ns_mul_i32 %s, %s, 1792\ns_add_u32 %s, %s, %d'
                     % (s(t6), s(sI), s(t6), s(t6), s(t7), 114688 - 448, s(t2), s(sT), s(t2), s(t2), VF))
                for ct in range(2):
                    self('v_add_u32 %s, %s, %s\nv_add_u32 %s, %d, %s\nv_mul_u32_u24 %s, 2341, %s\nv_lshrrev_b32 %s, 16, %s'
                         % (v(u2), s(t6), v(vPM), v(u2), 32 * ct, v(u2), v(u3), v(u2), v(u3), v(u3)))
                    self('v_mul_lo_u32 %s, %s, %s\nv_lshl_add_u32 %s, %s, 4, %s\nv_mul_u32_u24 %s, 448, %s\nv_add_u32 %s, %s, %s'
                         % (v(u3), v(u3), s(t7), v(u3), v(u2), v(u3), v(u2), v(vH), v(SAD + ct), v(u3), v(u2)))
                self('s_lshl_b32 %s, %s, 7\ns_add_u32 %s, %s, %d' % (s(t6), s(sW), s(t6), s(t6), RSX))
                self('v_lshl_add_u32 %s, %s, 2, %s\nv_lshl_add_u32 %s, %s, 4, %s' % (v(SAD + 2), v(vM), s(t6), v(SAD + 3), v(vH), s(t6)))
            if kv:
                self('s_lshl_b32 %s, %s, 2\ns_add_u32 %s, %s, %d\nv_lshl_add_u32 %s, %s, 4, %s'
                     % (s(t6), s(sW), s(t6), s(t6), MISC, v(XG + 2), v(vM), s(t6)))

        def xs_addrs():
            self('s_lshl_b32 s88, %s, 13\ns_add_u32 s88, s88, %d\ns_lshl_b32 %s, %s, 9\ns_add_u32 s89, s88, %s'
                 % (s(sT), XST, s(t6), s(sI), s(t6)))
            self('s_and_b32 %s, %s, 512\ns_add_u32 s88, s88, %s\nv_lshlrev_b32 %s, 4, %s' % (s(t6), s(t6), s(t6), v(XS + 4), v(vM)))
            self('v_lshl_add_u32 %s, %s, 12, %s\nv_mul_u32_u24 %s, 3072, %s\nv_add_u32 %s, %s, %s'
                 % (v(XG), v(vH), v(XS + 4), v(XG + 1), v(vH), v(XG + 1), v(XG + 1), v(XS + 4)))
        self.stamp('p1iss')

        def stat_mf(j, k):
            x_ = XF + 16 * j + 4 * k
            first = j == 0 and k == 0
            return [lambda: self.mfma(GR, x_, x_, None if first else GR), lambda: self.mfsum(SUM, x_, first)]

        def main_mf(j, k):
            x_ = XF + 16 * j + 4 * k
            out = []
            for ct in range(2):
                def f(ct=ct):
                    c = None if j == 0 and k == 0 else ACC + 16 * ct
                    if ct == 0:
                        self.wlg('w%d_%d' % (j, k))
                    if kind == 'K':
                        self.mfma(ACC + 16 * ct, wreg(j, k, ct), x_, c, pa='a')
                    else:
                        self.mfma(ACC + 16 * ct, x_, wreg(j, k, ct), c, pb='a')
                out.append(f)
            return out

        def cs_mf(j):
            return [lambda ct=ct: self.mfsum(CSA + 4 * ct, wreg(j, 0, ct), j == 0, pb='a') for ct in range(2)]

        def side_ops(j):
            def head():
                self.wvm('B%d' % j)
                if kv:
                    self('s_barrier')
            side = [head]
            for k in range(4):
                side.append(lambda k=k: self.lgi('ds_read_b128 %s, %s offset:%d' % (
                    v(XF + 16 * j + 4 * k, 4), v(XR + k), (j % 3) * 4096), 'xf%d' % j))
            dm = block_ops(j + 2) if j + 2 < 7 else [lambda q=q: wq_op(q) for q in (range(4) if j == 5 else range(4, 7))]
            if j == (0 if kv else 3):
                def non():
                    self('v_mov_b32 %s, 0' % v(NONV))
                    self.load(NONV, NONV, SC, '0', 0, 'nonl', n=2)
                dm.insert(0, non)
            if kv and j == 6:
                dm = [lambda q=q: self.load(GR + 4 * q, XG + (q == 3), WS, 's88', q * 1024, 'xg') for q in range(4)] + dm
            if kv:
                for k in range(4):
                    for ct in range(2):
                        def rd(k=k, ct=ct):
                            w_ = wreg(j, k, ct)
                            for e in range(2):
                                self.lgi('ds_read_b64_tr_b16 a[%d:%d], %s offset:%d' % (
                                    w_ + 2 * e, w_ + 2 * e + 1, v(WT + 2 * k + ct), j * 8192 + 512 * e), 'w%d_%d' % (j, k))
                        side.append(rd)
                        if dm:
                            side.append(dm.pop(0))
            return side + dm
        tagtest = 'v_cmp_eq_u32 vcc, 0, %s' % v(NONV + 1)
        tagload = 'v_mov_b32 %s, 0\nbuffer_load_dwordx2 %s, %s, %s, 0 offen sc1' % (v(NONV), v(NONV, 2), v(NONV), s(SC, 4))

        def take_tag():
            self.wvm('nonl')
            self.retry(tagtest, tagload)
            self('v_readfirstlane_b32 %s, %s\nv_readfirstlane_b32 %s, %s' % (s(sNON), v(NONV), s(sNON + 1), v(NONV + 1)))
        self.q = side_ops(0)
        self.bg(99)
        self.fill = self.cap(self.setup3) + self.cap(xs_addrs)
        for j in range(7):
            if j in (0, 3, 6):
                self.stamp('p1x%d' % j)
            self.wlg('xf%d' % j)
            self.q = side_ops(j + 1) if j < 6 else []
            if not kv:
                for k in range(4):
                    for f in stat_mf(j, k):
                        f()
                        self.bg(2)
                        self.drip(2)
                self.bg(99)
                self.drip(99)
                if j == 6:
                    take_tag()
                    self.diag(GR, u2)
                    self.mean_rstd(SUM, u2, 448, u3, vRS)
                    self.make_meanfrag(u3, u4)
                continue
            seq = []
            for k in range(4):
                st = stat_mf(j, k) if j == 0 else []
                seq += st[:1] + main_mf(j, k) + st[1:]
                if k == 0:
                    seq += cs_mf(j)
            if j == 1:
                self.fill += self.cap(lambda: (self.diag(GR, XS + 1), self('v_mov_b32 %s, %s' % (v(XS), v(SUM)))))
            if j == 2:
                self.drip(99)
                take_tag()
                self('v_mov_b32 %s, %s\nv_mov_b32 %s, %s\ns_not_b64 exec, %s' % (v(XS + 2), v(NONV), v(XS + 3), v(NONV + 1), s(sHI, 2)))
                self.store(XS, XS + 4, WS, 's89', 0, 'xs')
                self('s_mov_b64 exec, -1')
                self.fill = self.cap(epi_addrs)
            if j == 6:
                self.drip(99)
                for f in seq[:6]:
                    f()
                seq = seq[6:]
                self.lgi('ds_write_b32 %s, %s' % (v(XG + 2), v(CSA)), 'csw')
                self.lgi('ds_write_b32 %s, %s offset:512' % (v(XG + 2), v(CSA + 4)), 'csw')
                self.wvm('xg')
                test = ''
                for q in range(4):
                    test += 'v_cmp_ne_u64 %s, %s, %s\n' % (('vcc', s(t0, 2), 's[90:91]', s(t6, 2))[q], s(sNON, 2), v(GR + 4 * q + 2, 2))
                test += 's_or_b64 %s, %s, s[90:91]\ns_or_b64 vcc, vcc, %s\ns_or_b64 vcc, vcc, %s' % (s(t0, 2), s(t0, 2), s(t6, 2), s(t0, 2))
                self.retry(test, '\n'.join('buffer_load_dwordx4 %s, %s, %s, s88 offen offset:%d sc1'
                                           % (v(GR + 4 * q, 4), v(XG + (q == 3)), s(WS, 4), q * 1024) for q in range(4)))

                def fin():
                    for e in range(2):
                        self('v_cndmask_b32 %s, %s, 0, %s\nv_add_f32 %s, %s, %s\nv_add_f32 %s, %s, %s\nv_add_f32 %s, %s, %s'
                             % (v(GR + 12 + e), v(GR + 12 + e), s(sHI, 2), v(GR + e), v(GR + e), v(GR + 4 + e),
                                v(GR + 8 + e), v(GR + 8 + e), v(GR + 12 + e), v(GR + e), v(GR + e), v(GR + 8 + e)))
                    self.xhalf_add2(GR, GR + 2)
                    self.mean_rstd(GR, GR + 1, 448, u3, vRS)
                    self.make_meanfrag(u3, u4)
                self.fill = self.cap(fin)
            for g, f in enumerate(seq):
                f()
                if g >= 1 or j == 6:
                    self.bg(3 if j else 2)
                    self.drip(6 if j == 6 else 1)
            self.bg(99)
        self.drip(99)
        self.stamp('p1mm')
        if not kv:
            self('s_lshl_b32 %s, %s, 1\ns_add_u32 %s, %s, %s\ns_sub_u32 %s, %s, 14\ns_lshl_b32 %s, %s, 2\ns_add_u32 %s, %s, %s'
                 % (s(t0), s(sRB), s(t0), s(t0), s(sI), s(t0), s(t0), s(t0), s(t0), s(t0), s(t0), s(sW)))
            self.srd(SA, P_WO, 448 * 896)
            self('s_lshl_b32 %s, %s, 12' % (s(t1), s(t0)))
            for q in range(4):
                self.load(64 + 4 * q, vL16, SA, s(t1), q * 1024, 'pf', sc1=False, pfx='a')
            self.srd(SA, P_WIN, 448 * 3584)
            self('s_mul_i32 %s, %s, 13312' % (s(t1), s(t0)))
            for q in range(13):
                if q and q % 4 == 0:
                    self('s_add_u32 %s, %s, 4096' % (s(t1), s(t1)))
                self.load(80 + 4 * q, vL16, SA, s(t1), (q % 4) * 1024, 'pf', sc1=False, pfx='a')
            return
        if kind == 'V':
            self.lgi('ds_write_b32 %s, %s' % (v(SAD + 2), v(vRS)), 'rs')
        self.wlg()
        self('s_barrier')
        if kind == 'V':
            for g in range(4):
                self.lgi('ds_read_b128 %s, %s offset:%d' % (v(TB + 4 * g, 4), v(SAD + 3), 32 * g), 'rs')
        self.colsum_get(GR, MISC, vCS2)
        for ct in range(2):
            if kind == 'K':
                self.mfma(ACC + 16 * ct, vCS2 + 4 * ct, vMF, ACC + 16 * ct)
            else:
                self.mfma(ACC + 16 * ct, vMF, vCS2 + 4 * ct, ACC + 16 * ct)
        for c in range(4):
            if kind == 'K':
                self.scale(ACC + 8 * c, 8, vRS)
            else:
                for k in range(0, 8, 2):
                    r = ACC + 8 * c + k
                    self('v_pk_mul_f32 %s, %s, %s' % (v(r, 2), v(r, 2), v(TB + 8 * (c & 1) + k, 2)))
            self.pack(GR + 4 * c, ACC + 8 * c, 8)
            if kind == 'K':
                self.store(GR + 4 * c, SAD + c, WS, s(t2), 0, 'st')
            else:
                self.store(GR + 4 * c, SAD + (c >> 1), WS, s(t2), (c & 1) * 896, 'st')

    def diag(self, g, dst):
        masks = (0xaaaaaaaa, 0xcccccccc, 0xff00ff00, 0xffff0000)
        n = 16
        for m in masks:
            self('s_mov_b32 vcc_lo, 0x%x\ns_mov_b32 vcc_hi, 0x%x' % (m, m))
            n //= 2
            for k in range(n):
                self('v_cndmask_b32 %s, %s, %s, vcc' % (v(g + k), v(g + 2 * k), v(g + 2 * k + 1)))
        self('v_mov_b32 %s, %s\ns_mov_b32 vcc_lo, 0xf0f0f0f0\ns_mov_b32 vcc_hi, 0xf0f0f0f0\nv_permlane32_swap_b32 %s, %s'
             % (v(g + 1), v(g), v(g), v(g + 1)))
        self('v_cndmask_b32 %s, %s, %s, vcc' % (v(dst), v(g), v(g + 1)))

    def p1(self):
        XF, ACC, GR, SUM, WT, NONV, TB = self.XF, self.ACC1, self.GR, self.SUM, self.WT, self.NONV, self.TB
        self('s_cbranch_scc1 L_p1_N\ns_cmp_ge_u32 %s, 7\ns_cbranch_scc1 L_p1_V' % s(sI))
        for kind in 'KVN':
            self('L_p1_%s:' % kind)
            self.vm, self.lg = [], []
            self.p1_variant(kind)
            if kind != 'N':
                self('s_branch L_p1_join')
        self('L_p1_join:')
        self.stamp('p1st')
        self('s_add_u32 %s, %s, %d' % (s(t5), s(sFID), FLAG1))
        self.vm, self.lg = ['any'], []
        self.publish(s(t5))
        self.stamp('p1pub')
        self('s_lshl_b32 %s, %s, 10\ns_add_u32 %s, %s, %d' % (s(t0), s(sB), s(t0), s(t0), ONES))
        for k in range(4):
            self('v_mov_b32 %s, %s' % (v(TB + k), s(sONE2)))
        self.store(TB, vL16, WS, s(t0), 0, 'ones')
        self('v_bfe_u32 %s, v0, 2, 2\nv_lshl_add_u32 %s, %s, 3, %s\nv_lshlrev_b32 %s, 6, %s' % (v(u0), v(u0), v(vH), v(u0), v(u0), v(u0)))
        self('v_bfe_u32 %s, v0, 4, 1\nv_lshl_add_u32 %s, %s, 5, %s\nv_and_b32 %s, 1, v0\nv_lshl_add_u32 %s, %s, 4, %s'
             % (v(u1), v(u0), v(u1), v(u0), v(u1), v(u0), v(u1), v(u0)))
        self('v_bfe_u32 %s, v0, 1, 1\nv_lshl_add_u32 %s, %s, 3, %s' % (v(u1), v(u0), v(u1), v(u0)))
        for k in range(4):
            self('s_xor_b32 %s, %s, %d\ns_lshl_b32 %s, %s, 10\ns_add_u32 %s, %s, %d\nv_add_u32 %s, %s, %s'
                 % (s(t0), s(sW), k, s(t0), s(t0), s(t0), s(t0), WQB, v(WT + k), s(t0), v(u0)))

        def qrd(j, k):
            for e in range(2):
                r = 16 * (j & 1) + 4 * k + 2 * e
                self.lgi('ds_read_b64_tr_b16 a[%d:%d], %s offset:%d' % (r, r + 1, v(WT + k), j * 4096 + 256 * e), 'q%d_%d' % (j, k))
        for k in range(4):
            qrd(0, k)
        self.cold_setup()
        for j in range(7):
            for k in range(4):
                self.wlg('q%d_%d' % (j, k))
                r = 16 * (j & 1) + 4 * k
                self.mfma(ACC, r, XF + 16 * j + 4 * k, None if j + k == 0 else ACC, pa='a')
                if j < 6:
                    qrd(j + 1, k)
                self.mfsum(SUM, r, j + k == 0, pb='a')
                if k & 1:
                    self.bg(1)
        assert not self.q
        self('v_mul_f32 %s, %s, %s' % (v(u3), f32(math.log2(math.e) / math.sqrt(28.0)), v(vRS)))
        self('s_bitcmp1_b32 %s, 0\ns_cselect_b64 %s, -1, 0' % (s(sI), s(t0, 2)))
        self('s_andn2_b64 %s, %s, %s\ns_andn2_b64 %s, %s, %s' % (s(t2, 2), s(t0, 2), s(sHI, 2), s(t4, 2), s(sHI, 2), s(t0, 2)))
        self('s_lshl_b32 %s, %s, 11\ns_add_u32 %s, %s, %d\nv_add_u32 %s, %s, %s' % (s(t0), s(sW), s(t0), s(t0), MISC, v(u0), s(t0), v(vL16)))
        self.make_csfrag(SUM, vCS2)
        self.mfma(ACC, vCS2, vMF, ACC)
        self.scale(ACC, 16, u3)
        self.pack(GR, ACC, 16)
        for k in range(2):
            self('v_cndmask_b32 %s, %s, 0, %s\nv_cndmask_b32 %s, %s, 0, %s'
                 % (v(GR + k), v(GR + k), s(t2, 2), v(GR + 6 + k), v(GR + 6 + k), s(t4, 2)))
        self.lgi('ds_write_b128 %s, %s' % (v(u0), v(GR, 4)), 'qw')
        self.lgi('ds_write_b128 %s, %s offset:1024' % (v(u0), v(GR + 4, 4)), 'qw')
        self.p2_setup()
        self.wlg()
        self.vm_s1 = list(self.vm)
        self.stamp('q')
        WF = ACC
        sk, lp = self.lab('s1skip'), self.lab('s1')
        self('s_cmp_eq_u32 %s, 0\ns_cbranch_scc0 %s\ns_mov_b32 %s, 0\n%s:' % (s(sW), sk, s(sCNT), lp))
        self('buffer_load_dwordx4 %s, %s, %s, 0 offen offset:%d sc1' % (v(WF, 4), v(vL16), s(WS, 4), FLAG1))
        self('buffer_load_dwordx4 %s, %s, %s, 0 offen offset:%d sc1' % (v(WF + 4, 4), v(vL16), s(WS, 4), FLAG1 + 1024))
        self('s_add_u32 %s, %s, 1\ns_waitcnt vmcnt(0)' % (s(sCNT), s(sCNT)))
        for k in range(4):
            self('v_cmp_ne_u64 %s, %s, %s' % (('vcc', s(t0, 2), s(t2, 2), s(t6, 2))[k], s(sNON, 2), v(WF + 2 * k, 2)))
        self('s_or_b64 %s, %s, vcc\ns_or_b64 %s, %s, %s\ns_or_b64 %s, %s, %s'
             % (s(t0, 2), s(t0, 2), s(t2, 2), s(t2, 2), s(t6, 2), s(t0, 2), s(t0, 2), s(t2, 2)))
        self('s_cbranch_scc0 %s\ns_cmp_lt_u32 %s, %d\ns_cbranch_scc1 %s\n%s:\ns_barrier' % (sk, s(sCNT), POLL_MAX, lp, sk))
        self.stamp('s1')

    Q, O, S, P, KV, VOV, VST = 16, 48, 112, 144, 152, 217, 218

    def kv_addr(self, wave_split):
        VOV, VST = self.VOV, self.VST
        self('s_lshr_b32 %s, %s, 1\ns_mul_i32 %s, %s, 229376\ns_and_b32 %s, %s, 1\ns_mul_i32 %s, %s, 1536\ns_add_u32 %s, %s, %s'
             % (s(t0), s(sI), s(t4), s(t0), s(t0), s(sI), s(t0), s(t0), s(t4), s(t4), s(t0)))
        self('s_add_u32 %s, %s, %d\ns_mul_i32 %s, %s, 114688\ns_add_u32 %s, %s, %d' % (s(t4), s(t4), KF, s(t1), s(sI), s(t1), s(t1), VF))
        if wave_split:
            self('s_mul_i32 %s, %s, %d\ns_add_u32 %s, %s, %s\ns_mul_i32 %s, %s, %d\ns_add_u32 %s, %s, %s'
                 % (s(t0), s(sW), 16 * 3584, s(t4), s(t4), s(t0), s(t0), s(sW), 16 * 1792, s(t1), s(t1), s(t0)))
        self('v_mul_u32_u24 %s, 448, %s\nv_lshl_add_u32 %s, %s, 4, %s\nv_add_u32 %s, %s, %s'
             % (v(u0), v(vH), v(u0), v(vPM), v(u0), v(u0), s(t1), v(u0)))
        self('s_lshl_b32 %s, %s, 10\ns_add_u32 %s, %s, %d' % (s(t0), s(sB), s(t0), s(t0), ONES))
        self('v_mov_b32 %s, %s\nv_cmp_lt_u32 vcc, 28, %s\nv_mov_b32 %s, 0x7ff00000\nv_cndmask_b32 %s, %s, %s, vcc'
             % (v(u1), s(t0), v(vM), v(u2), v(u1), v(u1), v(u2)))
        self('v_mov_b32 %s, 1792\nv_cmp_gt_u32 vcc, 28, %s' % (v(u2), v(vM)))
        self('v_cndmask_b32 %s, %s, %s, vcc\nv_cndmask_b32 %s, 0, %s, vcc' % (v(VOV), v(u1), v(u0), v(VST), v(u2)))

    RW, QA, PD, PR = 226, 230, 234, 238
    SX, SBS, SSP, SWO = 84, 88, 92, 96

    def unit_addrs(self, pd, pr, sbase, stride):
        self('s_lshl_b32 %s, %s, 17\ns_mul_i32 %s, %s, %d\ns_add_u32 %s, %s, %d'
             % (s(t0), s(sT), sbase, s(sW), stride[1], sbase, sbase, stride[0]))
        self.rowtile_dma_addrs(4096, pd, s(t0))
        self.rowtile_read_addrs(pr, sbase)

    def unit_ops(self, u, slot, pd, sbase):
        def first():
            self('s_add_u32 m0, %s, %d\ns_add_u32 s101, s83, %d\ns_and_b32 s101, s101, 0xf80' % (sbase, slot * 4096, u * 128))
            self.dma(pd, self.SSP, 's101', 0, 'U%d' % u)
        return [first] + [lambda rg=rg: self.dma(pd + rg, self.SSP, 's101', rg * 1024, 'U%d' % u) for rg in range(1, 4)]

    def unit_read(self, u, slot, pr):
        for k in range(4):
            self.lgi('ds_read_b128 a[%d:%d], %s offset:%d' % (16 * u + 4 * k, 16 * u + 4 * k + 3, v(pr + k), slot * 4096), 'ur')

    def cold_setup(self):
        SX, SBS, SSP, SWO = self.SX, self.SBS, self.SSP, self.SWO
        self.srd(SX, P_X, 2048 * 896)
        self.srd(SBS, P_BSP, 4096)
        self.srd(SSP, P_WSP, 2048 * 4096)
        self.srd(SWO, P_WOUT, 896 * 896)
        self('s_mul_i32 %s, %s, %d\ns_lshl_b32 %s, %s, 7\ns_add_u32 %s, %s, %s\ns_lshl_b32 %s, %s, 6\ns_add_u32 %s, %s, %s'
             % (s(t0), s(sT3), 32 * 896, s(t1), s(sCB), s(t0), s(t0), s(t1), s(t1), s(sKH), s(t0), s(t0), s(t1)))
        self('v_mul_u32_u24 v224, 896, %s\nv_lshl_add_u32 v224, %s, 4, v224\nv_add_u32 v224, %s, v224' % (v(vM), v(vH), s(t0)))
        self('s_lshl_b32 %s, %s, 6\nv_lshl_add_u32 %s, %s, 1, %s' % (s(t0), s(sT), v(vBSP), v(vM), s(t0)))
        self('s_lshl_b32 %s, %s, 2\ns_add_u32 %s, %s, %s\ns_lshl_b32 %s, %s, 13\ns_lshl_b32 %s, %s, 19\ns_add_u32 %s, %s, %s\nv_add_u32 v225, %s, %s'
             % (s(t0), s(sI), s(t0), s(t0), s(sW), s(t0), s(t0), s(t1), s(sRB), s(t0), s(t0), s(t1), s(t0), v(vL16)))
        self('s_lshl_b32 %s, %s, 2\ns_add_u32 %s, %s, %s\ns_lshl_b32 s82, %s, 10\ns_lshl_b32 s83, %s, 8\ns_movk_i32 s101, 4096'
             % (s(t0), s(sB), s(t0), s(t0), s(sW), s(t0), s(sI)))
        self.q = [lambda q=q: self.load(216 + 4 * q, 225, SSP, 's101' if q >= 4 else '0', (q % 4) * 1024, 'pf', sc1=False, pfx='a')
                  for q in range(8)]
        self.q += [lambda: self.load(248, vL16, SWO, 's82', 0, 'pf', sc1=False, pfx='a'),
                   lambda: self.load(vHK, 224, SX, '0', 0, 'pf', sc1=False),
                   lambda: self.load(vHK + 4, 224, SX, '0', 32, 'pf', sc1=False),
                   lambda: self.vmi('buffer_load_ushort %s, %s, %s, 0 offen' % (v(vBSP), v(vBSP), s(SBS, 4)), 'pf')]

    def p2_setup(self):
        RW = self.RW
        self.kv_addr(True)
        self.srd(SA, P_WO, 448 * 896)
        self.srd(SB, P_WIN, 448 * 3584)
        self('s_lshl_b32 %s, %s, 7' % (s(t2), s(sCB)))
        wo = self.image_ops(220, SA, 896, s(t2), 0, 14, 'pf')
        self('s_lshl_b32 %s, %s, 7\ns_add_u32 %s, %s, 1792' % (s(t2), s(sI), s(t2), s(t2)))
        win = self.image_ops(222, SB, 3584, s(t2), WIN2, 14, 'pf')
        for j in range(4):
            self('s_add_u32 %s, %s, %d\ns_and_b32 %s, %s, 3\ns_mul_i32 %s, %s, 12288\ns_add_u32 %s, %s, %d\nv_add_u32 %s, %s, %s'
                 % (s(t0), s(sW), j + 1, s(t0), s(t0), s(t1), s(t0), s(t1), s(t1), RED + 4096 * (j % 3), v(RW + j), s(t1), v(vL16)))
            self('s_lshl_b32 %s, %s, 11\ns_add_u32 %s, %s, %d\nv_add_u32 %s, %s, %s' % (s(t0), s(t0), s(t0), s(t0), MISC, v(self.QA + j), s(t0), v(vL16)))
        self('s_lshl_b32 %s, %s, 15\ns_lshl_b32 %s, %s, 11\ns_add_u32 %s, %s, %s\ns_add_u32 s73, %s, %d'
             % (s(t0), s(sT), s(t1), s(sI), s(t2), s(t0), s(t1), s(t2), OF))
        self.unit_addrs(self.PD, self.PR, 's100', (RED, 12288))
        self.att_img = [wo[k:k + 2] for k in range(0, 14, 2)] + [win[k:k + 2] for k in range(0, 14, 2)]

    def p2(self):
        Q, O, S, P, KV, VOV, VST, RW = self.Q, self.O, self.S, self.P, self.KV, self.VOV, self.VST, self.RW
        self.vm, self.lg = self.vm_s1, []
        self.wvm('ones')

        def kvload(it):
            b = KV + 16 * (it % 4)
            self.load(b, vL16, WS, s(t4), 0, 'K%d' % it)
            self.load(b + 4, vL16, WS, s(t4), 1024, 'K%d' % it)
            self.load(b + 8, VOV, WS, '0', 0, 'V%d' % it)
            self.load(b + 12, VOV, WS, '0', 896, 'V%d' % it)
            if it < 15:
                self('s_add_u32 %s, %s, 3584\nv_add_u32 %s, %s, %s' % (s(t4), s(t4), v(VOV), v(VST), v(VOV)))
        for it in range(3):
            kvload(it)
        for j in range(4):
            self.lgi('ds_read_b128 %s, %s' % (v(Q + 8 * j, 4), v(self.QA + j)), 'q')
            self.lgi('ds_read_b128 %s, %s offset:1024' % (v(Q + 8 * j + 4, 4), v(self.QA + j)), 'q')
        self.wlg()
        self('s_barrier')
        wait_kv = self.wvm
        NA = self.NA
        self.stamp('a_iss')
        wait_kv('K0')
        self.stamp('a_k0')
        self.mfma(S, KV, Q, None)
        self.mfma(S, KV + 4, Q + 4, S)
        for n in range(64):
            it, j = divmod(n, 4)
            Sc, Sn = S + 16 * (n & 1), S + 16 * ((n + 1) & 1)
            ex = ['v_exp_f32 %s, %s' % (v(Sc + k), v(Sc + k)) for k in range(16)]
            pk = ['v_cvt_pk_bf16_f32 %s, %s, %s' % (v(P + k), v(Sc + 2 * k), v(Sc + 2 * k + 1)) for k in range(8)]
            nit, nj = divmod(n + 1, 4)
            pit, pj = divmod(n - 1, 4)
            kb, vb = KV + 16 * (nit % 4), KV + 16 * (pit % 4) + 8

            def qk(t):
                if n + 1 < 64:
                    if t == 0 and nj == 0:
                        wait_kv('K%d' % nit)
                    self.mfma(Sn, kb + 4 * t, Q + 8 * nj + 4 * t, Sn if t else None)

            def pv(t):
                if n > 0:
                    if t == 0 and pj == 0:
                        wait_kv('V%d' % pit)
                    c = None if (pit == 0 and t == 0) else O + 16 * pj
                    self.mfma(O + 16 * pj, vb + 4 * t, P + 4 * t, c)
            qk(0)
            self('\n'.join(ex[0:4]))
            pv(0)
            self('\n'.join(ex[4:8] + pk[0:2]))
            qk(1)
            self('\n'.join(ex[8:12] + pk[2:4]))
            pv(1)
            self('\n'.join(ex[12:16] + pk[4:8]))
            if j == 0 and it + 3 < 16:
                kvload(it + 3)
            if j == 1 and 0 <= it - 3 < NA:
                self.wvm('U%d' % (it - 3))
                self.unit_read(it - 3, it % 3, self.PR)
            if j == 2 and 0 <= it - 1 < NA:
                if it >= 4:
                    self.wlg()
                for op in self.unit_ops(it - 1, (it - 1) % 3, self.PD, 's100'):
                    op()
            if j == 3 and 1 <= it <= 14:
                for op in self.att_img[it - 1]:
                    op()
            if n in (15, 31, 47):
                self.stamp('a%d' % n)
        self.mfma(O + 48, KV + 16 * 3 + 8, P, O + 48)
        self.mfma(O + 48, KV + 16 * 3 + 12, P + 4, O + 48)
        self.stamp('att')
        if NA:
            self.wlg()
            self('s_barrier')
        for j in range(3):
            for q in range(4):
                self.lgi('ds_write_b128 %s, %s offset:%d' % (v(RW + j), v(O + 16 * j + 4 * q, 4), q * 1024), 'rw')
        self.wlg()
        self('s_barrier')
        for k in range(12):
            self.lgi('ds_read_b128 %s, %s offset:%d' % (v(O + 4 * k, 4), v(RW + 3), k * 1024), 'r%d' % (k // 4))
        A = O + 48
        for j in range(3):
            self.wlg('r%d' % j)
            for k in range(0, 16, 2):
                self('v_pk_add_f32 %s, %s, %s' % (v(A + k, 2), v(A + k, 2), v(O + 16 * j + k, 2)))
        self.stamp('red')
        self('L_att_norm:')
        self('v_mov_b32 %s, %s\nv_mov_b32 %s, %s\nv_permlane32_swap_b32 %s, %s' % (v(u0), v(A + 12), v(u1), v(A + 12), v(u0), v(u1)))
        self('v_cmp_gt_f32 vcc, %s, %s\ns_mov_b64 %s, vcc\nv_cmp_lt_f32 vcc, %s, %s\ns_and_b64 vcc, vcc, %s'
             % (f32(2.0 ** 40), v(u1), s(t0, 2), f32(2.0 ** -40), v(u1), s(t0, 2)))
        force = self.o.get('force_fallback')
        self('s_cmp_eq_u64 vcc, %s\ns_cbranch_scc0 L_att_slow\nL_att_ok:' % ('0' if force else '-1'))
        self('v_rcp_f32 %s, %s' % (v(u1), v(u1)))
        self.scale(A, 16, u1)
        self.pack(P, A, 16)
        self('v_cndmask_b32 %s, %s, 0, %s\nv_cndmask_b32 %s, %s, 0, %s' % (v(P + 6), v(P + 6), s(sHI, 2), v(P + 7), v(P + 7), s(sHI, 2)))
        self.vm = ['any']

        def st(sc):
            self.store(P, vL16, WS, 's73', 0, 'st', sc1=sc)
            self.store(P + 4, vL16, WS, 's73', 1024, 'st', sc1=sc)
        self.local_stores(st)
        self('s_add_u32 %s, %s, %d' % (s(t5), s(sFID), FLAG2))
        self.publish(s(t5))
        self.stamp('p2pub')
        self('s_cmp_ge_u32 %s, 14\ns_cbranch_scc1 L_fin' % s(sI))

    def att_slow(self):
        Q, O, S, P, KV, VOV, VST = self.Q, self.O, self.S, self.P, self.KV, self.VOV, self.VST
        A, Qo = O + 48, Q + 24
        self('L_att_slow:\ns_waitcnt vmcnt(0)')
        self.kv_addr(False)
        self('s_mov_b32 %s, %s\nv_mov_b32 %s, 0xff800000\ns_mov_b32 %s, 0\nL_slow1:' % (s(t5), s(t4), v(u3), s(sCNT)))
        self('buffer_load_dwordx4 %s, %s, %s, %s offen sc1' % (v(KV, 4), v(vL16), s(WS, 4), s(t5)))
        self('buffer_load_dwordx4 %s, %s, %s, %s offen offset:1024 sc1' % (v(KV + 4, 4), v(vL16), s(WS, 4), s(t5)))
        self('s_add_u32 %s, %s, 3584\ns_waitcnt vmcnt(0)' % (s(t5), s(t5)))
        self.mfma(S, KV, Qo, None)
        self.mfma(S, KV + 4, Qo + 4, S)
        for k in range(0, 16, 2):
            self('v_max3_f32 %s, %s, %s, %s' % (v(u3), v(u3), v(S + k), v(S + k + 1)))
        self('s_add_u32 %s, %s, 1\ns_cmp_lt_u32 %s, 64\ns_cbranch_scc1 L_slow1' % (s(sCNT), s(sCNT), s(sCNT)))
        self('v_mov_b32 %s, %s\nv_permlane32_swap_b32 %s, %s\nv_max_f32 %s, %s, %s' % (v(u4), v(u3), v(u4), v(u3), v(u3), v(u3), v(u4)))
        for k in range(16):
            self('v_mov_b32 %s, 0' % v(A + k))
        self('s_mov_b32 %s, 0\nL_slow2:' % s(sCNT))
        self('buffer_load_dwordx4 %s, %s, %s, %s offen sc1' % (v(KV, 4), v(vL16), s(WS, 4), s(t4)))
        self('buffer_load_dwordx4 %s, %s, %s, %s offen offset:1024 sc1' % (v(KV + 4, 4), v(vL16), s(WS, 4), s(t4)))
        self('buffer_load_dwordx4 %s, %s, %s, 0 offen sc1' % (v(KV + 8, 4), v(VOV), s(WS, 4)))
        self('buffer_load_dwordx4 %s, %s, %s, 0 offen offset:896 sc1' % (v(KV + 12, 4), v(VOV), s(WS, 4)))
        self('s_add_u32 %s, %s, 3584\nv_add_u32 %s, %s, %s\ns_waitcnt vmcnt(0)' % (s(t4), s(t4), v(VOV), v(VST), v(VOV)))
        self.mfma(S, KV, Qo, None)
        self.mfma(S, KV + 4, Qo + 4, S)
        for k in range(16):
            self('v_sub_f32 %s, %s, %s' % (v(S + k), v(S + k), v(u3)))
        for k in range(16):
            self('v_exp_f32 %s, %s' % (v(S + k), v(S + k)))
        self.pack(P, S, 16)
        self.mfma(A, KV + 8, P, A)
        self.mfma(A, KV + 12, P + 4, A)
        self('s_add_u32 %s, %s, 1\ns_cmp_lt_u32 %s, 64\ns_cbranch_scc1 L_slow2' % (s(sCNT), s(sCNT), s(sCNT)))
        self('v_mov_b32 %s, %s\nv_mov_b32 %s, %s\nv_permlane32_swap_b32 %s, %s' % (v(u0), v(A + 12), v(u1), v(A + 12), v(u0), v(u1)))
        self('s_branch L_att_ok')

    def slot_addrs(self, dst, kh_bytes, base):
        self('s_mul_i32 %s, %s, %d\ns_add_u32 %s, %s, %d\ns_lshl_b32 %s, %s, 6' % (s(t0), s(sKH), kh_bytes, s(t0), s(t0), base, s(t1), s(sKH)))
        self('v_xor_b32 %s, %s, %s\nv_xor_b32 %s, %s, %s' % (v(dst), s(t1), v(vTRa), v(dst + 1), s(t1), v(vTRb)))
        self('v_add_u32 %s, %s, %s\nv_add_u32 %s, %s, %s' % (v(dst), s(t0), v(dst), v(dst + 1), s(t0), v(dst + 1)))

    def frag_ops(self, dst, n, sreg, tag):
        ops = []
        for k in range(n):
            def op(k=k):
                if k and k % 4 == 0:
                    self('s_add_u32 %s, %s, 4096' % (s(sreg), s(sreg)))
                self.load(dst + 4 * k, vL16, WS, s(sreg), (k % 4) * 1024, '%s%d' % (tag, k))
            ops.append(op)
        return ops

    def pair_addrs(self, dst, red):
        self('s_lshl_b32 %s, %s, 12\ns_add_u32 %s, %s, %d\nv_add_u32 %s, %s, %s' % (s(t0), s(sW), s(t0), s(t0), red, v(dst), s(t0), v(vL16)))
        self('v_xor_b32 %s, 0x2000, %s' % (v(dst + 1), v(dst)))

    def pair_reduce(self, acc, tmp, adr, res, rtmp):
        for k in range(8):
            self('v_lshlrev_b32 %s, 16, %s\nv_and_b32 %s, 0xffff0000, %s' % (v(rtmp + 2 * k), v(res + k), v(rtmp + 2 * k + 1), v(res + k)))
        for q in range(4):
            self.lgi('ds_write_b128 %s, %s offset:%d' % (v(adr), v(acc + 16 + 4 * q, 4), q * 1024), 'pw')
        for k in range(0, 16, 2):
            self('v_pk_add_f32 %s, %s, %s' % (v(acc + k, 2), v(acc + k, 2), v(rtmp + k, 2)))
        self.wlg()
        self('s_barrier')
        for q in range(4):
            self.lgi('ds_read_b128 %s, %s offset:%d' % (v(tmp + 4 * q, 4), v(adr + 1), q * 1024), 'pr%d' % q)
        for q in range(4):
            self.wlg('pr%d' % q)
            for k in range(4 * q, 4 * q + 4, 2):
                self('v_pk_add_f32 %s, %s, %s' % (v(acc + k, 2), v(acc + k, 2), v(tmp + k, 2)))

    def p3(self):
        FR, ACC, WO, PA = 16, 80, 112, 240
        WB = FR
        RED3 = 131072
        self.vm, self.lg = [], []
        U0 = self.NA
        if self.NB:
            self.unit_addrs(FR, FR + 4, 's100', (RED, 12288))
            self.q = sum((self.unit_ops(U0 + r, r, FR, 's100') for r in range(self.NB)), [])
            self.bg(99)
        self.slot_addrs(u5, 8 * 3584, 0)
        for k in range(16):
            for sl in range(2):
                for e in range(2):
                    self.tr(WO + 8 * k + 4 * sl + 2 * e, u5 + sl, (k >> 1) * 3584 + (k & 1) * 2048 + 512 * e, 'wo')
        self.pair_addrs(PA, RED3)
        self('s_lshl_b32 %s, %s, 15\ns_lshl_b32 %s, %s, 14\ns_add_u32 %s, %s, %s\ns_add_u32 %s, %s, %d'
             % (s(t4), s(sT3), s(t1), s(sKH), s(t4), s(t4), s(t1), s(t4), s(t4), OF))
        self('s_lshl_b32 %s, %s, 1\ns_add_u32 %s, %s, %s' % (s(t0), s(sCB), s(t0), s(t0), s(sKH)))
        self('s_mul_i32 %s, %s, 28672\ns_lshl_b32 %s, %s, 11\ns_add_u32 %s, %s, %s\ns_add_u32 %s, %s, %d'
             % (s(t2), s(sT3), s(t1), s(t0), s(t2), s(t2), s(t1), s(t2), s(t2), HF))
        self('s_lshl_b32 %s, %s, 12\ns_lshl_b32 %s, %s, 8\ns_add_u32 %s, %s, %s\ns_add_u32 %s, %s, %d'
             % (s(t3), s(sT3), s(t1), s(t0), s(t3), s(t3), s(t1), s(t3), s(t3), HST))
        self('v_lshlrev_b32 %s, 3, %s' % (v(u3), v(vM)))
        self('s_lshl_b32 %s, %s, 7\ns_add_u32 %s, %s, %d' % (s(t5), s(sRB), s(t5), s(t5), FLAG2))
        self.wvm()
        self.poll_first(s(t5), 16, FR + 8)
        for r in range(self.NB):
            self.unit_read(U0 + r, r, FR + 4)
        self.wlg()
        self.stamp('wb')
        self.poll(s(t5), 16, FR + 8)
        self.stamp('s2')
        self.q = self.frag_ops(FR, 16, t4, 'f')
        self.bg(11)
        for k in range(16):
            self.wvm('f%d' % k)
            for sl in range(2):
                self.mfma(ACC + 16 * sl, WO + 8 * k + 4 * sl, FR + 4 * k, None if k == 0 else ACC + 16 * sl)
            self.bg(1)
        self.stamp('p3mm')
        self.pair_reduce(ACC, WB, PA, vHK, WB + 16)
        self.pack(vHK, ACC, 16)

        def st(sc):
            self.store(vHK, vL16, WS, s(t2), 0, 'st', sc1=sc)
            self.store(vHK + 4, vL16, WS, s(t2), 1024, 'st', sc1=sc)
        self.local_stores(st)
        self('v_pk_mul_f32 %s, %s, %s' % (v(WB, 2), v(ACC, 2), v(ACC, 2)))
        for k in range(2, 16, 2):
            self('v_pk_fma_f32 %s, %s, %s, %s' % (v(WB, 2), v(ACC + k, 2), v(ACC + k, 2), v(WB, 2)))
            self('v_pk_add_f32 %s, %s, %s' % (v(ACC, 2), v(ACC, 2), v(ACC + k, 2)))
        self('v_add_f32 %s, %s, %s\nv_add_f32 %s, %s, %s' % (v(ACC), v(ACC), v(ACC + 1), v(ACC + 1), v(WB), v(WB + 1)))
        self.xhalf_add2(ACC, WB)
        self.local_stores(lambda sc: self.store(ACC, u3, WS, s(t3), 0, 'st', n=2, sc1=sc))
        self('s_add_u32 %s, %s, %d' % (s(t5), s(sFID), FLAG3))
        self.publish(s(t5))
        self.stamp('p3pub')

    def zrd(self, k):
        for ct in range(2):
            self.trfrag(128 + 8 * (k % 4) + 4 * ct, u5 + ct, k * 2048, 'w%d' % k)

    def zpass(self, acc, wait_frag, nbg, k0=0, k1=28, kend=None):
        HFR, WB = 16, 128
        kend = kend or k1
        for k in range(k0, k1):
            if wait_frag:
                self.wvm('h%d' % k)
            self.wlg('w%d' % k)
            self.mfma(acc, WB + 8 * (k % 4), HFR + 4 * k, None if k == 0 else acc)
            if k + 3 < kend:
                self.zrd(k + 3)
            self.mfma(acc + 16, WB + 8 * (k % 4) + 4, HFR + 4 * k, None if k == 0 else acc + 16)
            self.bg(nbg)

    def p4(self):
        HFR, WB, A2, A1 = 16, 128, 160, 192
        KS = self.o.get('ks', 16)
        self.KS = KS
        self.vm, self.lg = [], []
        self('s_lshl_b32 %s, %s, 7' % (s(t2), s(sI)))
        self.q = self.image_ops(224, SB, 3584, s(t2), 0, 14, 'W1')
        self.bg(99)
        U0 = self.NA + self.NB
        if self.NC:
            self.unit_addrs(80, 84, 's100', (RED, 8192))
            self.q = sum((self.unit_ops(U0 + r, r, 80, 's100') for r in range(self.NC)), [])
            self.bg(99)
        self.colsum_part(WIN2, (16, 44), 72, MISC)
        self('s_mul_i32 %s, %s, 28672\ns_add_u32 %s, %s, %d' % (s(t2), s(sT), s(t2), s(t2), HF))
        self('s_lshl_b32 %s, %s, 12\ns_add_u32 %s, %s, %d' % (s(t3), s(sT), s(t3), s(t3), HST))
        self('v_mul_u32_u24 %s, 1792, %s\nv_lshl_add_u32 %s, %s, 3, %s' % (v(u4), v(vH), v(u4), v(vM), v(u4)))
        self('v_add_u32 %s, %d, %s\nv_add_u32 %s, %d, %s' % (v(u5), WIN2, v(vTRa), v(u6), WIN2, v(vTRb)))
        self('v_mov_b32 %s, %s\nv_mov_b32 %s, %s' % (v(u7), s(sK0), v(u8), s(sK0)))
        self('s_lshl_b32 %s, %s, 7\ns_add_u32 %s, %s, %d' % (s(t5), s(sRB), s(t5), s(t5), FLAG3))
        self.wvm()
        self.poll_first(s(t5), 14, 88)
        for r in range(self.NC):
            self.unit_read(U0 + r, r, 84)
        self.wlg()
        self.stamp('w1')
        self.poll(s(t5), 14, 88)
        self.stamp('s3')
        hl = self.frag_ops(HFR, 28, t2, 'h')
        hs = [lambda q=q: self.load(A1 + 2 * q, u4, WS, s(t3), q * 256, 'hs', n=2) for q in range(7)]
        self.q = hl + hs
        self.bg(11)
        self.colsum_get(224, MISC, vCS2)
        self.colsum_part(0, (WB, A2), 224, MISC + 1024)
        for k in range(3):
            self.zrd(k)
        self.stamp('p4iss')
        self.zpass(A2, True, 1)
        self.stamp('z2mm')
        self('s_lshl_b32 %s, %s, 13\ns_add_u32 %s, %s, %d\ns_lshl_b32 %s, %s, 9\ns_add_u32 %s, %s, %s'
             % (s(t3), s(sT), s(t3), s(t3), ZST, s(t1), s(sI), s(t2), s(t3), s(t1)))
        self.wvm('hs')
        for q in range(1, 7):
            self('v_pk_add_f32 %s, %s, %s' % (v(A1, 2), v(A1, 2), v(A1 + 2 * q, 2)))
        self.xhalf_add2(A1, A1 + 2)
        self.mean_rstd(A1, A1 + 1, 448, A1 + 2, vRS)
        self.make_meanfrag(A1 + 2, A1 + 3)
        for ct in range(2):
            self.mfma(A2 + 16 * ct, vCS2 + 4 * ct, vMF, A2 + 16 * ct)
        self('v_mov_b32 %s, %s\nv_mov_b32 %s, %s\nv_lshlrev_b32 %s, 4, %s' % (v(u5), v(vTRa), v(u6), v(vTRb), v(u3), v(vM)))
        self('v_mov_b32 %s, %s\nv_mov_b32 %s, %s' % (v(A1 + 6), s(sNON), v(A1 + 7), s(sNON + 1)))
        for k in range(3):
            self.zrd(k)
        self.scale(A2, 32, vRS)
        self.gelu(A2, 32, A1 + 8, 0)
        Z = A1 + 4
        self('v_pk_mul_f32 %s, %s, %s\nv_pk_add_f32 %s, %s, %s'
             % (v(A1, 2), v(A2, 2), v(A2, 2), v(Z, 2), v(A2, 2), v(A2 + 2, 2)))
        for k in range(2, 32, 2):
            self('v_pk_fma_f32 %s, %s, %s, %s' % (v(A1, 2), v(A2 + k, 2), v(A2 + k, 2), v(A1, 2)))
            if k > 2:
                self('v_pk_add_f32 %s, %s, %s' % (v(Z, 2), v(Z, 2), v(A2 + k, 2)))
        self('v_add_f32 %s, %s, %s\nv_add_f32 %s, %s, %s' % (v(Z), v(Z), v(Z + 1), v(Z + 1), v(A1), v(A1 + 1)))
        self.xhalf_add2(Z, A1)
        self('s_not_b64 exec, %s' % s(sHI, 2))
        self.store(Z, u3, WS, s(t2), 0, 'zs')
        self('s_mov_b64 exec, -1')
        self.stamp('zst')
        self('s_lshl_b32 %s, %s, 18\ns_lshl_b32 %s, %s, 12\ns_add_u32 %s, %s, %s\ns_add_u32 %s, %s, %d'
             % (s(t2), s(sI), s(t1), s(sT), s(t2), s(t2), s(t1), s(t2), s(t2), ZF))
        self('v_lshlrev_b32 %s, 2, %s\nv_xor_b32 %s, %s, %s\nv_lshlrev_b32 %s, 4, %s\nv_lshl_add_u32 %s, %s, 9, %s'
             % (v(u3), v(vH), v(u3), v(u3), v(vM), v(u3), v(u3), v(u3), v(vH), v(u3)))
        self('v_xor_b32 %s, 0x80, %s\nv_add_u32 %s, 1024, %s' % (v(u4), v(u3), v(u4), v(u4)))
        self('s_lshl_b32 %s, %s, 4\ns_add_u32 %s, %s, %s\ns_lshl_b32 %s, %s, 3\ns_add_u32 %s, %s, %d'
             % (s(t5), s(sI), s(t5), s(t5), s(sRB), s(t5), s(t5), s(t5), s(t5), FLAG5))
        self('v_mul_u32_u24 %s, 3584, %s\nv_lshl_add_u32 %s, %s, 4, %s\ns_mov_b32 %s, 0' % (v(u0), v(vH), v(u0), v(vM), v(u0), s(sCNT)))
        self('v_mov_b32 %s, %s' % (v(u2), v(u0)))
        U0 += self.NC
        self.unit_addrs(224, 228, 's100', (RED, 8192))
        self.q = sum((self.unit_ops(U0 + r, r, 224, 's100') for r in range(self.ND)), [])
        KG = self.o.get('kg', 10)
        self.zpass(A1, False, 2, 0, KG, KS)
        self.q = [lambda q=q: self.load(224 + 4 * q, u2, WS, s(t3), q * 512, 'zg', pfx='a') for q in range(7)]
        self.zpass(A1, False, 2, KG, KS)
        self.bg(99)
        self.stamp('z1a')
        lp = self.lab('zs')
        self.wvm('zg')
        for q in range(28):
            self('v_accvgpr_read_b32 %s, a%d' % (v(WB + q), 224 + q))
        self('s_branch %s_c\n%s:' % (lp, lp))
        for q in range(7):
            self('buffer_load_dwordx4 %s, %s, %s, %s offen offset:%d sc1' % (v(WB + 4 * q, 4), v(u2), s(WS, 4), s(t3), q * 512))
        self('s_add_u32 %s, %s, 1\ns_waitcnt vmcnt(0)\n%s_c:' % (s(sCNT), s(sCNT), lp))
        for q in range(1, 7):
            self('v_xor_b32 %s, %s, %s\nv_xor_b32 %s, %s, %s' % (v(WB + 4 * q + 2), s(sNON), v(WB + 4 * q + 2),
                                                                v(WB + 4 * q + 3), s(sNON + 1), v(WB + 4 * q + 3)))
        self('v_or3_b32 %s, %s, %s, %s' % (v(u1), v(WB + 6), v(WB + 7), v(WB + 10)))
        for r in ((11, 14), (15, 18), (19, 22), (23, 26)):
            self('v_or3_b32 %s, %s, %s, %s' % (v(u1), v(u1), v(WB + r[0]), v(WB + r[1])))
        self('v_or_b32 %s, %s, %s\nv_cmp_ne_u64 %s, %s, %s\nv_cmp_ne_u32 vcc, 0, %s'
             % (v(u1), v(u1), v(WB + 27), s(t0, 2), s(sNON, 2), v(WB + 2, 2), v(u1)))
        for q in range(1, 7):
            self('v_pk_add_f32 %s, %s, %s' % (v(WB, 2), v(WB, 2), v(WB + 4 * q, 2)))
        self('s_or_b64 %s, %s, vcc' % (s(t0, 2), s(t0, 2)))
        self('s_cbranch_scc0 %s_d\ns_cmp_lt_u32 %s, %d\ns_cbranch_scc1 %s\n%s_d:' % (lp, s(sCNT), POLL_MAX, lp, lp))
        self.vm = []
        self.stamp('s4')
        self.xhalf_add2(WB, WB + 2)
        self.mean_rstd(WB, WB + 1, 896, WB + 2, WB + 4)
        self('v_mul_f32 %s, -%s, %s' % (v(WB + 6), v(WB + 2), v(WB + 4)))
        for c in range(4):
            for k in range(8 * c, 8 * c + 8, 2):
                self('v_pk_fma_f32 %s, %s, %s, %s op_sel_hi:[1,0,0]' % (v(A2 + k, 2), v(A2 + k, 2), v(WB + 4, 2), v(WB + 6, 2)))
            self.pack(WB + 8 + 4 * c, A2 + 8 * c, 8)
            self.store(WB + 8 + 4 * c, u3 + (c & 1), WS, s(t2), (c >> 1) * 2048, 'st')
        for r in range(self.ND):
            self.unit_read(U0 + r, r, 228)
        self.wlg()
        self.publish(s(t5))
        self.stamp('p4pub')

    NZ, NW, WRING = 6, 6, 57344

    def p5(self):
        A1, ACC, ZB, WB, WD, WR, ZA, OD, FL = 192, 16, 48, 80, 160, 164, 168, 170, 172
        NZ, NW, WRING, SWO, KS = self.NZ, self.NW, self.WRING, self.SWO, self.KS
        order = []
        for k in range(14):
            order += [14 + k, k]
        order += [28, 29, 30, 31]
        self.vm, self.lg = [], []
        for k in range(KS, KS + 3):
            self.zrd(k)
        self.unit_addrs(WD, WR, s(t4), (WRING, NW * 4096))
        self.colsum_get(172, MISC + 1024, vCS1)

        def w_ops(r):
            return self.unit_ops(14 + r, r % NW, WD, s(t4))

        def z_ops(p):
            def first():
                self('s_add_u32 m0, %s, %d\ns_add_u32 %s, s82, %d\ns_and_b32 %s, %s, 0x3e000\ns_add_u32 %s, %s, %s'
                     % (s(t1), (p % NZ) * 8192, s(t0), order[p] * 8192, s(t0), s(t0), s(t0), s(t0), s(t2)))
                self.dma(vL16, WS, s(t0), 0, 'Z%d' % p, sc1=True)
            return [first, lambda: self.dma(vL16, WS, s(t0), 1024, 'Z%d' % p, sc1=True)]

        def o_ops(c):
            ops = []
            for hf in range(2):
                def first(hf=hf):
                    if c < 6:
                        self('s_add_u32 m0, %s, %d' % (s(t4), c * 4096 + hf * 2048))
                    else:
                        self('s_lshl_b32 %s, %s, 12\ns_add_u32 m0, %s, %d' % (s(t0), s(sW), s(t0), 16384 + hf * 2048))
                    self('s_mov_b32 %s, %d' % (s(t0), (32 * c + 16 * hf) * 896))
                    self.dma(OD, SWO, s(t0), 0, 'WT')
                ops += [first, lambda: self.dma(OD + 1, SWO, s(t0), 1024, 'WT')]
            return ops
        self.o_ops = o_ops
        self.q = sum((w_ops(r) for r in range(NW)), [])
        self.zpass(A1, False, 2, KS, 28)
        self.bg(99)
        self.stamp('z1')
        for ct in range(2):
            self.mfma(A1 + 16 * ct, vCS1 + 4 * ct, vMF, A1 + 16 * ct)
        self('v_lshlrev_b32 %s, 16, %s' % (v(vBSP), v(vBSP)))
        self('v_bfe_u32 %s, v0, 4, 1\nv_and_b32 %s, 1, v0\nv_lshl_add_u32 %s, %s, 1, %s' % (v(u0), v(u1), v(u0), v(u0), v(u1)))
        self('v_lshlrev_b32 %s, 1, %s\nv_xor_b32 %s, %s, %s\nv_lshlrev_b32 %s, 6, %s\nv_lshl_add_u32 %s, %s, 9, %s'
             % (v(u1), v(vH), v(u1), v(u1), v(u0), v(u1), v(u1), v(u1), v(u0), v(u1)))
        self('v_bfe_u32 %s, v0, 2, 2\nv_lshl_add_u32 %s, %s, 4, %s\nv_bfe_u32 %s, v0, 1, 1\nv_lshl_add_u32 %s, %s, 3, %s'
             % (v(u0), v(u1), v(u0), v(u1), v(u0), v(ZA), v(u0), v(u1)))
        self('v_xor_b32 %s, 64, %s' % (v(ZA + 1), v(ZA)))
        self('s_lshl_b32 %s, %s, 7' % (s(t2), s(sCB)))
        self.image_ops(OD, SWO, 896, s(t2), 0, 28, 'WT')
        self('s_lshl_b32 %s, %s, 11\ns_lshl_b32 %s, %s, 18\ns_add_u32 %s, %s, %s\ns_add_u32 %s, %s, %d\ns_lshl_b32 s82, %s, 14'
             % (s(t1), s(sW), s(t2), s(sI), s(t2), s(t2), s(t1), s(t2), s(t2), ZF, s(sI)))
        self('s_lshl_b32 %s, %s, 7\ns_add_u32 %s, %s, %d' % (s(t5), s(sI), s(t5), s(t5), FLAG5))
        self.scale(A1, 32, vRS)
        GS = self.o.get('gs', 16)
        self.gelu(A1, GS - 8, 128, 0)
        self.poll_first(s(t5), 16, FL)
        self.gelu(A1 + GS - 8, 8, 128, 0)
        self.stamp('g1')
        self.poll(s(t5), 16, FL)
        self.stamp('s5')
        self.q = sum((z_ops(p) for p in range(NZ - 1)), [])
        self.bg(99)
        self.gelu(A1 + GS, 32 - GS, 128, 0)

        def rdz(g, ct):
            p, k = divmod(g, 4)
            off = (p % NZ) * 8192 + (k >> 1) * 4096 + (k & 1) * 256
            d = ZB + 8 * (g % 4) + 4 * ct
            self.tr(d, ZA, off + ct * 2048, 'g%d' % g)
            self.tr(d + 2, ZA + 1, off + ct * 2048, 'g%d' % g)

        def rdw(g):
            p, k = divmod(g, 4)
            if order[p] >= 14:
                self.lgi('ds_read_b128 %s, %s offset:%d' % (v(WB + 4 * (g % 4), 4), v(WR + k), ((order[p] - 14) % NW) * 4096), 'g%d' % g)

        def mm(g, ct):
            p, k = divmod(g, 4)
            c = None if g == 0 else ACC + 16 * ct
            if order[p] >= 14:
                self.mfma(ACC + 16 * ct, ZB + 8 * (g % 4) + 4 * ct, WB + 4 * (g % 4), c)
            else:
                self.mfma(ACC + 16 * ct, ZB + 8 * (g % 4) + 4 * ct, 16 * order[p] + 4 * k, c, pb='a')
        self.wvm('Z0')
        self('s_barrier')
        self.stamp('p5z0')
        for g in range(2):
            rdz(g, 0)
            rdz(g, 1)
            rdw(g)
        for g in range(128):
            p, k = divmod(g, 4)
            if g in (32, 64, 96):
                self.stamp('p5_%d' % g)
            self.wlg('g%d' % g)
            mm(g, 0)
            if k == 2 and p + 1 < 32:
                self.wvm('Z%d' % (p + 1))
                self.wvm('U%d' % order[p + 1])
                self('s_barrier')
                if p + NZ - 1 < 32:
                    self.q += z_ops(p + NZ - 1)
                if p >= 1 and order[p - 1] >= 14:
                    r = order[p - 1] - 14
                    self.q += w_ops(r + NW) if r + NW < 18 else o_ops(r % NW)
            if g + 2 < 128:
                rdz(g + 2, 0)
                rdw(g + 2)
            mm(g, 1)
            if g + 2 < 128:
                rdz(g + 2, 1)
            self.bg(1)
        self.bg(99)
        self.stamp('p5')
        self('s_mul_i32 %s, %s, 57344\ns_lshl_b32 %s, %s, 12\ns_add_u32 %s, %s, %s\ns_add_u32 %s, %s, %d'
             % (s(t2), s(sT), s(t1), s(sI), s(t2), s(t2), s(t1), s(t2), s(t2), UF))
        self('s_add_u32 %s, %s, %d' % (s(t5), s(sFID), FLAG6))
        e = vBSP & ~1
        for k in range(0, 32, 2):
            self('v_pk_add_f32 %s, %s, %s op_sel_hi:[1,0]' % (v(ACC + k, 2), v(ACC + k, 2), v(e, 2)))
            self('v_pk_mul_f32 %s, %s, %s' % (v(ACC + k, 2), v(ACC + k, 2), v(A1 + k, 2)))
        self.pack(ZB, ACC, 32)

        def st_(sc):
            for k in range(4):
                self.store(ZB + 4 * k, vL16, WS, s(t2), k * 1024, 'st', sc1=sc)
        self.local_stores(st_)
        self.publish(s(t5))
        self.stamp('p5pub')

    def p6(self):
        FR, WB, ACC, AR, AZ, PA = 16, 128, 176, 208, 210, 212
        self.vm, self.lg = [], []
        self.q = self.o_ops(4) + self.o_ops(5) + self.o_ops(6)
        self.bg(99)
        self.slot_addrs(AR, 49152, self.WRING)
        self.slot_addrs(AZ, 8192, 16384)
        self.pair_addrs(PA, 0)
        self.srd(SA, P_OUT, 2048 * 896)
        self('s_mul_i32 %s, %s, %d\ns_lshl_b32 %s, %s, 7\ns_add_u32 %s, %s, %s\ns_lshl_b32 %s, %s, 6\ns_add_u32 %s, %s, %s'
             % (s(t3), s(sT3), 32 * 896, s(t1), s(sCB), s(t3), s(t3), s(t1), s(t1), s(sKH), s(t3), s(t3), s(t1)))
        self('v_mul_u32_u24 %s, 896, %s\nv_lshl_add_u32 %s, %s, 4, %s' % (v(u4), v(vM), v(u4), v(vH), v(u4)))
        self('s_mul_i32 %s, %s, 57344\ns_mul_i32 %s, %s, 28672\ns_add_u32 %s, %s, %s\ns_add_u32 %s, %s, %d'
             % (s(t2), s(sT3), s(t1), s(sKH), s(t2), s(t2), s(t1), s(t2), s(t2), UF))
        self('s_lshl_b32 %s, %s, 7\ns_add_u32 %s, %s, %d' % (s(t5), s(sRB), s(t5), s(t5), FLAG6))
        self.poll_first(s(t5), 14, 214)
        self.stamp('wout')
        self.poll(s(t5), 14, 214)
        self.stamp('s6')
        self.q = self.frag_ops(FR, 28, t2, 'f')
        self.bg(11)

        def rd(k, sl):
            hi, c = divmod(k >> 1, 7)
            if c < 6:
                adr, off = AR, hi * 24576 + c * 4096
            else:
                adr, off = AZ, hi * 4096
            self.trfrag(WB + 8 * (k % 4) + 4 * sl, adr + sl, off + (k & 1) * 2048, 'w%d' % k)
        for k in range(3):
            rd(k, 0)
            rd(k, 1)
        for k in range(28):
            self.wvm('f%d' % k)
            self.wlg('w%d' % k)
            for sl in range(2):
                self.mfma(ACC + 16 * sl, WB + 8 * (k % 4) + 4 * sl, FR + 4 * k, None if k == 0 else ACC + 16 * sl)
                if k + 3 < 28:
                    rd(k + 3, sl)
            self.bg(1)
        self.stamp('p6mm')
        self.pair_reduce(ACC, WB, PA, vHK, WB + 16)
        self.pack(WB, ACC, 16)
        self.store(WB, u4, SA, s(t3), 0, 'st', sc1=not self.o.get('outplain'))
        self.store(WB + 4, u4, SA, s(t3), 32, 'st', sc1=not self.o.get('outplain'))
        self.stamp('end', True)

    def build(self):
        stop = self.o.get('stop', 6)
        self.prologue()
        for k, ph in enumerate((self.p1, self.p2, self.p3, self.p4, self.p5, self.p6), 1):
            if k <= stop:
                ph()
        if self.o.get('padfrom') == 'tag':
            self('s_mov_b32 %s, %s' % (s(sPT), s(sNON)))
        if self.o.get('padfrom'):
            self('s_mov_b32 %s, 0\nL_hold:\ns_memrealtime s[78:79]\ns_add_u32 %s, %s, 1\ns_waitcnt lgkmcnt(0)' % (s(sCNT), s(sCNT), s(sCNT)))
            self('s_sub_u32 s78, s78, %s\ns_cmp_ge_u32 s78, 10000\ns_cbranch_scc1 L_fin\ns_cmp_lt_u32 %s, 100000\ns_cbranch_scc1 L_hold' % (s(sPT), s(sCNT)))
        self('L_fin:')
        self.stamp_flush()
        self('L_end:\ns_endpgm')
        if stop >= 2:
            self.att_slow()
        self.emit_stubs()
        self('L_code_end:')
        npad = self.a.pad()
        errs = []
        for take in ((), ('L_p1_V',), ('L_p1_N',), ('L_att_slow',)):
            errs += self.a.check_waits(take)
        for e in sorted(set(errs)):
            print('WAITCHECK', e, file=sys.stderr)
        ref = open('cdna_kernels/%s.s.ref' % NAME).read().split('\n')
        head = [l for l in ref if l.startswith(';') and '@launch' not in l and 'Override' not in l and 'grid=ceil' not in l
                and l == l.lstrip()]
        out = '\n'.join(head) + '\n'
        if self.names:
            out += '; stamps: ' + ' '.join(self.names) + '\n'
        out += '; @launch grid=(256,1,1) block=(256,1,1) lds=%d\n' % LDS_BYTES
        out += '.amdgcn_target "amdgcn-amd-amdhsa--gfx950"\n.text\n.globl %s_kernel\n.p2align 8\n' % NAME
        out += '.type %s_kernel,@function\n%s_kernel:\n' % (NAME, NAME)
        out += self.a.text()
        out += '.section .rodata,"a"\n.p2align 6\n.amdhsa_kernel %s_kernel\n' % NAME
        out += ('  .amdhsa_next_free_vgpr 512\n  .amdhsa_next_free_sgpr 102\n  .amdhsa_accum_offset 256\n'
                '  .amdhsa_group_segment_fixed_size 0\n  .amdhsa_kernarg_size 88\n  .amdhsa_user_sgpr_count 2\n'
                '  .amdhsa_user_sgpr_kernarg_segment_ptr 1\n  .amdhsa_system_sgpr_workgroup_id_x 1\n'
                '.end_amdhsa_kernel\n')
        if self.o.get('showpads'):
            for k, x in enumerate(self.a.L):
                if x.note == 'pad':
                    print(k, x.text, '| prev:', self.a.L[k - 1].text, '| next:', self.a.L[k + 1].text, file=sys.stderr)
        print('instructions %d, pads %d, waitcheck errors %d' % (len(self.a.L), npad, len(set(errs))), file=sys.stderr)
        return out


if __name__ == '__main__':
    opt = {}
    dst = sys.argv[1]
    for a in sys.argv[2:]:
        k, _, val = a.partition('=')
        opt[k] = int(val) if val.isdigit() else (val or 1)
    open(dst, 'w').write(G(opt).build())
```

```python
import sys
import math
import struct
import copy
from asmlib import Asm

NAME = 'sequential_preLN__mha_block__mixer_gmlp__prompt'

FLAG1, FLAG2, FLAG3, FLAG6, FLAG5 = 0x0000, 0x1000, 0x2000, 0x3000, 0x6000
ONES, PROF = 0x40000, 0x80000
ZST, HST = 0x100000, 0x180000
KF, VF, OF, HF, ZF, UF = 0x200000, 0x400000, 0x600000, 0x800000, 0xA00000, 0xE00000
WS_BYTES = 0x1200000

XB = 57344
WQB = 106496
MISC = 155648
RSX = 157696
WIN2 = 57344
RED = 114688
LDS_BYTES = 163840

P_X, P_WQKV, P_WO, P_WIN, P_WSP, P_BSP, P_WOUT, P_OUT, P_DBG, P_WS = 4, 6, 8, 12, 14, 16, 18, 20, 22, 24
sW, sRB, sI, sXCC, sNON, sFAST = 26, 27, 44, 45, 46, 48
WS, SA, SB, SC = 28, 32, 36, 40
sHI = 50
sONE2 = 52
sT = 54
sCB, sKH, sT3 = 55, 56, 57
sK0, sK1 = 58, 60
t0, t1, t2, t3, t4, t5, t6, t7 = 62, 63, 64, 65, 66, 67, 68, 69
sSAVE = 70
sCNT = 72
sPT = 70
sB = 76
sM0, sSO = 80, 81
sFID = 77

vL, vH, vM, vL16, vTRa, vTRb, vPM = 0, 1, 2, 3, 4, 5, 6
u0, u1, u2, u3, u4, u5, u6, u7, u8 = 7, 8, 9, 10, 11, 12, 13, 14, 15
vCS1, vCS2, vMF, vHK, vBSP, vRS = 224, 232, 240, 244, 252, 253

POLL_MAX = 8000


def f32(x):
    return '0x%08x' % struct.unpack('<I', struct.pack('<f', x))[0]


def v(a, n=1):
    return 'v%d' % a if n == 1 else 'v[%d:%d]' % (a, a + n - 1)


def s(a, n=1):
    return 's%d' % a if n == 1 else 's[%d:%d]' % (a, a + n - 1)


class G:
    def __init__(self, opt):
        self.o = opt
        self.a = Asm()
        self.vm = []
        self.lg = []
        self.nlab = 0
        self.names = []
        self.q = []
        self.issued = set()
        self.NB, self.NC, self.ND = opt.get('nb', 0), opt.get('nc', 0), opt.get('nd', 2)
        self.NA = 14 - self.NB - self.NC - self.ND
        assert self.NA <= 13

    def __call__(self, t):
        self.a(t)

    def lab(self, p):
        self.nlab += 1
        return 'L_%s_%d' % (p, self.nlab)

    def vmi(self, text, tag):
        self.a(text)
        self.vm.append(tag)
        self.issued.add(tag)

    def lgi(self, text, tag):
        self.a(text)
        self.lg.append(tag)

    def _n(self, q, tag):
        idx = [k for k, t in enumerate(q) if t == tag]
        return None if not idx else len(q) - 1 - idx[-1]

    def wvm(self, tag=None):
        n = 0 if tag is None else self._n(self.vm, tag)
        assert tag is None or tag in self.issued, tag
        if n is None:
            return
        self.a('s_waitcnt vmcnt(%d)' % n)
        self.vm = self.vm[len(self.vm) - n:]

    def wlg(self, tag=None):
        n = 0 if tag is None else self._n(self.lg, tag)
        if n is None:
            return
        n = min(n, 15)
        self.a('s_waitcnt lgkmcnt(%d)' % n)
        self.lg = self.lg[len(self.lg) - n:]

    def srd(self, r, ptr, nbytes):
        self('s_mov_b32 %s, %s\ns_mov_b32 %s, %s\ns_mov_b32 %s, 0x%x\ns_mov_b32 %s, 0x20000'
             % (s(r), s(ptr), s(r + 1), s(ptr + 1), s(r + 2), nbytes, s(r + 3)))

    def bg(self, n=1):
        for _ in range(n):
            if self.q:
                self.q.pop(0)()

    def image_ops(self, va, srd, stride, col_soff, lds_base, ninstr, tag):
        self('v_lshrrev_b32 %s, 3, %s\nv_mul_u32_u24 %s, %d, %s' % (v(va), v(vL), v(va), stride, v(va)))
        self('v_bfe_u32 %s, %s, 4, 1\nv_lshlrev_b32 %s, 2, %s' % (v(va + 1), v(vL), v(va + 1), v(va + 1)))
        self('v_xor_b32 %s, %s, %s\nv_and_b32 %s, 7, %s' % (v(va + 1), v(va + 1), v(vL), v(va + 1), v(va + 1)))
        self('v_lshl_add_u32 %s, %s, 4, %s' % (v(va), v(va + 1), v(va)))
        self('s_mul_i32 %s, %s, %d\ns_add_u32 %s, %s, %s' % (s(t0), s(sW), ninstr * 8 * stride, s(t0), s(t0), col_soff))
        self('v_add_u32 %s, %s, %s\nv_add_u32 %s, %d, %s' % (v(va), s(t0), v(va), v(va + 1), 8 * stride - 1024, v(va)))
        ops = []
        for q in range(ninstr):
            def op(q=q):
                if q % 2 == 0:
                    if q == 0:
                        self('s_mul_i32 %s, %s, %d\ns_add_u32 m0, %s, %d\ns_mov_b32 %s, 0'
                             % (s(sM0), s(sW), ninstr * 1024, s(sM0), lds_base, s(sSO)))
                    else:
                        self('s_add_u32 m0, %s, %d\ns_mov_b32 %s, %d' % (s(sM0), lds_base + q * 1024, s(sSO), q * 8 * stride))
                self.dma(va + (q & 1), srd, s(sSO), (q & 1) * 1024, tag)
            ops.append(op)
        return ops

    def mfma(self, d, a_, b, c=None, pa='v', pb='v'):
        cs = '0' if c is None else v(c, 16)
        self('v_mfma_f32_32x32x16_bf16 %s, %s[%d:%d], %s[%d:%d], %s'
             % (v(d, 16), pa, a_, a_ + 3, pb, b, b + 3, cs))

    def mfsum(self, d, b, first, pb='v'):
        self('v_mfma_f32_16x16x32_bf16 %s, a[252:255], %s[%d:%d], %s' % (v(d, 4), pb, b, b + 3, '0' if first else v(d, 4)))

    def tr(self, dst, addr, off, tag):
        self.lgi('ds_read_b64_tr_b16 %s, %s offset:%d' % (v(dst, 2), v(addr), off), tag)

    def trfrag(self, dst, addr, off, tag, step=512):
        self.tr(dst, addr, off, tag)
        self.tr(dst + 2, addr, off + step, tag)

    def load(self, dst, voff, srd, soff, imm, tag, n=4, sc1=True, pfx='v'):
        op = {4: 'dwordx4', 2: 'dwordx2', 1: 'dword'}[n]
        d = '%s%d' % (pfx, dst) if n == 1 else '%s[%d:%d]' % (pfx, dst, dst + n - 1)
        self.vmi('buffer_load_%s %s, %s, %s, %s offen offset:%d%s'
                 % (op, d, v(voff), s(srd, 4), soff, imm, ' sc1' if sc1 else ''), tag)

    def dma(self, voff, srd, soff, imm, tag, sc1=False):
        self.vmi('buffer_load_dwordx4 %s, %s, %s offen offset:%d%s lds'
                 % (v(voff), s(srd, 4), soff, imm, ' sc1' if sc1 else ''), tag)

    def store(self, src, voff, srd, soff, imm, tag, n=4, sc1=True):
        op = {4: 'dwordx4', 2: 'dwordx2', 1: 'dword'}[n]
        self.vmi('buffer_store_%s %s, %s, %s, %s offen offset:%d%s'
                 % (op, v(src, n), v(voff), s(srd, 4), soff, imm,
                    ' sc1' if sc1 else (' ' + self.o['plainmod'] if srd == WS and self.o.get('plainmod') else '')), tag)

    def local_stores(self, emit):
        lp, lj = self.lab('plain'), self.lab('join')
        self('s_cmp_eq_u32 %s, 1\ns_cbranch_scc1 %s' % (s(sFAST), lp))
        keep = list(self.vm)
        emit(True)
        self('s_branch %s\n%s:' % (lj, lp))
        self.vm = keep
        emit(False)
        self('%s:' % lj)

    def publish(self, flag_soff, local=False, xcc=False):
        if xcc:
            self('s_or_b32 %s, %s, %s\nv_mov_b32 %s, %s' % (s(t0), s(sNON), s(sXCC), v(u1), s(t0)))
        else:
            self('v_mov_b32 %s, %s' % (v(u1), s(sNON)))
        self('v_mov_b32 %s, %s\ns_cmp_eq_u32 %s, 0' % (v(u2), s(sNON + 1), s(sW)))
        self.wvm()
        self('s_barrier')
        sk = self.lab('pub')
        self('s_cbranch_scc0 %s\ns_mov_b64 exec, 1' % sk)
        st = 'buffer_store_dwordx2 %s, v0, %s, %s offen' % (v(u1, 2), s(WS, 4), flag_soff)
        if local:
            self.local_stores(lambda sc: self(st + (' sc1' if sc else '')))
        else:
            self(st + ' sc1')
        self('s_mov_b64 exec, -1\n%s:' % sk)

    def poll_first(self, flag_soff, nflags, reg):
        self('v_cmp_gt_u32 vcc, %d, v0\nv_lshlrev_b32 %s, 3, v0\nv_cndmask_b32 %s, 0, %s, vcc' % (nflags, v(reg), v(reg), v(reg)))
        self.load(reg, reg, WS, flag_soff, 0, 'flag', n=2)

    def poll(self, flag_soff, nflags, first=None):
        sk, lp = self.lab('pollskip'), self.lab('poll')
        if first is not None:
            self.wvm('flag')
            self('v_cmp_ne_u64 vcc, %s, %s\ns_cbranch_vccz %s' % (s(sNON, 2), v(first, 2), sk))
        self('s_cmp_eq_u32 %s, 0\ns_cbranch_scc0 %s' % (s(sW), sk))
        self('v_lshlrev_b32 %s, 3, %s' % (v(u0), v(vL)))
        self('s_mov_b64 exec, 0x%x' % ((1 << nflags) - 1))
        self('s_mov_b32 %s, 0\n%s:' % (s(sCNT), lp))
        self('buffer_load_dwordx2 %s, %s, %s, %s offen sc1' % (v(u1, 2), v(u0), s(WS, 4), flag_soff))
        self('s_add_u32 %s, %s, 1' % (s(sCNT), s(sCNT)))
        self('s_waitcnt vmcnt(0)')
        self('v_cmp_ne_u64 vcc, %s, %s' % (s(sNON, 2), v(u1, 2)))
        self('s_cbranch_vccz %s_d' % lp)
        self('s_cmp_lt_u32 %s, %d\ns_cbranch_scc1 %s' % (s(sCNT), POLL_MAX, lp))
        self('%s_d:\ns_mov_b64 exec, -1\n%s:' % (lp, sk))
        self('s_barrier')

    def stamp(self, name, real=False):
        if self.o.get('padfrom') == name:
            self('s_memrealtime %s\ns_waitcnt lgkmcnt(0)' % s(sPT, 2))
            self.lg = []
        if not self.o.get('prof'):
            return
        if name not in self.names:
            self.names.append(name)
        k = self.names.index(name)
        assert k < 62
        self('s_memtime s[78:79]\ns_waitcnt lgkmcnt(0)\nv_writelane_b32 v255, s78, %d' % k)
        self.lg = []
        if self.o['prof'] == 2:
            self('s_memrealtime s[78:79]\ns_waitcnt lgkmcnt(0)\nv_writelane_b32 v254, s78, %d' % k)
        if real:
            self('s_memrealtime s[78:79]\ns_waitcnt lgkmcnt(0)\nv_writelane_b32 v255, s78, %d' % (62 if k == 0 else 63))

    def stamp_flush(self):
        if not self.o.get('prof'):
            return
        self('s_lshl_b32 %s, %s, 2\ns_add_u32 %s, %s, %s\ns_lshl_b32 %s, %s, 8\ns_add_u32 %s, %s, %d'
             % (s(t7), s(sB), s(t7), s(t7), s(sW), s(t7), s(t7), s(t7), s(t7), PROF))
        self('v_lshlrev_b32 v7, 2, v0\nbuffer_store_dword v255, v7, %s, %s offen' % (s(WS, 4), s(t7)))
        self('s_add_u32 %s, %s, 0x40000\nbuffer_store_dword v254, v7, %s, %s offen' % (s(t7), s(t7), s(WS, 4), s(t7)))

    def xhalf_add(self, r, tmp):
        self('v_mov_b32 %s, %s\nv_permlane32_swap_b32 %s, %s\nv_add_f32 %s, %s, %s'
             % (v(tmp), v(r), v(tmp), v(r), v(r), v(r), v(tmp)))

    def xhalf_add2(self, r, tmp):
        self('v_mov_b32 %s, %s\nv_mov_b32 %s, %s\ns_nop 0\nv_permlane32_swap_b32 %s, %s\nv_permlane32_swap_b32 %s, %s'
             % (v(tmp), v(r), v(tmp + 1), v(r + 1), v(tmp), v(r), v(tmp + 1), v(r + 1)))
        self('v_add_f32 %s, %s, %s\nv_add_f32 %s, %s, %s' % (v(r), v(r), v(tmp), v(r + 1), v(r + 1), v(tmp + 1)))

    def mean_rstd(self, vsum, vsq, n, mean, rstd):
        self('v_mul_f32 %s, %s, %s' % (v(mean), f32(1.0 / n), v(vsum)))
        self('v_mul_f32 %s, %s, %s' % (v(rstd), f32(1.0 / n), v(vsq)))
        self('v_fma_f32 %s, -%s, %s, %s' % (v(rstd), v(mean), v(mean), v(rstd)))
        self('v_max_f32 %s, 0, %s\nv_add_f32 %s, %s, %s' % (v(rstd), v(rstd), v(rstd), f32(1e-5), v(rstd)))
        self('v_rsq_f32 %s, %s' % (v(rstd), v(rstd)))

    def make_meanfrag(self, mean, tmp):
        self('v_sub_f32 %s, 0, %s\nv_cndmask_b32 %s, %s, 0, %s' % (v(tmp), v(mean), v(tmp), v(tmp), s(sHI, 2)))
        self('v_cvt_pk_bf16_f32 %s, %s, 0\nv_lshlrev_b32 %s, 16, %s' % (v(vMF + 1), v(tmp), v(vMF), v(vMF + 1)))
        self('v_sub_f32 %s, %s, %s\nv_cvt_pk_bf16_f32 %s, %s, %s' % (v(vMF), v(tmp), v(vMF), v(vMF), v(tmp), v(vMF)))
        self('v_mov_b32 %s, 0\nv_mov_b32 %s, 0' % (v(vMF + 2), v(vMF + 3)))

    def make_csfrag(self, cs, dst):
        self('v_cvt_pk_bf16_f32 %s, %s, %s\nv_and_b32 %s, 0xffff0000, %s' % (v(dst), v(cs), v(cs), v(dst + 1), v(dst)))
        self('v_sub_f32 %s, %s, %s\nv_cvt_pk_bf16_f32 %s, %s, 0' % (v(dst + 1), v(cs), v(dst + 1), v(dst + 1), v(dst + 1)))
        self('v_mov_b32 %s, 0\nv_mov_b32 %s, 0' % (v(dst + 2), v(dst + 3)))

    def colsum_put(self, c0, c1, xch):
        self('s_lshl_b32 %s, %s, 2\ns_add_u32 %s, %s, %d\nv_lshl_add_u32 %s, %s, 4, %s'
             % (s(t0), s(sW), s(t0), s(t0), xch, v(u0), v(vM), s(t0)))
        self.lgi('ds_write_b32 %s, %s' % (v(u0), v(c0)), 'csw')
        self.lgi('ds_write_b32 %s, %s offset:512' % (v(u0), v(c1)), 'csw')

    def colsum_part(self, base, bufs, acc, xch):
        self('s_mul_i32 %s, %s, 14336\ns_add_u32 %s, %s, %d' % (s(t0), s(sW), s(t0), s(t0), base))
        self('v_add_u32 %s, %s, %s\nv_add_u32 %s, %s, %s' % (v(u0), s(t0), v(vTRa), v(u1), s(t0), v(vTRb)))
        for q in range(7):
            for ct in range(2):
                self.trfrag(bufs[ct] + 4 * q, u0 + ct, q * 2048, 'cs%d' % q)
        for q in range(7):
            self.wlg('cs%d' % q)
            for ct in range(2):
                self.mfsum(acc + 4 * ct, bufs[ct] + 4 * q, q == 0)
        self.colsum_put(acc, acc + 4, xch)

    def colsum_get(self, buf, xch, dst):
        self('v_lshlrev_b32 %s, 4, %s' % (v(u0), v(vM)))
        self('v_add_u32 %s, %d, %s' % (v(u0), xch, v(u0)))
        for ct in range(2):
            self.lgi('ds_read_b128 %s, %s offset:%d' % (v(buf + 4 * ct, 4), v(u0), ct * 512), 'csr')
        self.wlg('csr')
        for ct in range(2):
            b = buf + 4 * ct
            self('v_add_f32 %s, %s, %s\nv_add_f32 %s, %s, %s\nv_add_f32 %s, %s, %s'
                 % (v(b), v(b), v(b + 1), v(b + 2), v(b + 2), v(b + 3), v(b), v(b), v(b + 2)))
            self.make_csfrag(b, dst + 4 * ct)

    def rowtile_dma_addrs(self, stride, vd, sbase):
        self('v_lshrrev_b32 %s, 3, %s\nv_mul_u32_u24 %s, %d, %s' % (v(u0), v(vL), v(u0), stride, v(u0)))
        self('v_lshrrev_b32 %s, 4, %s\nv_xor_b32 %s, %s, %s\nv_and_b32 %s, 7, %s'
             % (v(u1), v(vL), v(u1), v(u1), v(vL), v(u1), v(u1)))
        self('v_lshl_add_u32 %s, %s, 4, %s\nv_xor_b32 %s, 64, %s' % (v(u0), v(u1), v(u0), v(u1), v(u0)))
        self('v_add_u32 %s, %s, %s\nv_add_u32 %s, %s, %s' % (v(vd), sbase, v(u0), v(u1), sbase, v(u1)))
        d = 8 * stride - 1024
        self('v_add_u32 %s, %d, %s\nv_add_u32 %s, %d, %s\nv_add_u32 %s, %d, %s'
             % (v(vd + 1), d, v(u1), v(vd + 2), 2 * d, v(vd), v(vd + 3), 3 * d, v(u1)))

    def rowtile_read_addrs(self, vr, sbase, sxor=None):
        self('v_bfe_u32 %s, %s, 1, 3\nv_xor_b32 %s, %s, %s' % (v(u1), v(vM), v(u1), v(u1), v(vH)))
        self('v_lshlrev_b32 %s, 4, %s\nv_lshl_add_u32 %s, %s, 7, %s' % (v(u1), v(u1), v(u1), v(vM), v(u1)))
        if sxor:
            self('v_xor_b32 %s, %s, %s' % (v(u1), sxor, v(u1)))
        for k in range(4):
            self('v_xor_b32 %s, %d, %s\nv_add_u32 %s, %s, %s' % (v(vr + k), 32 * k, v(u1), v(vr + k), sbase, v(vr + k)))

    def gelu(self, x, n, tmp, nbg):
        for b in range(0, n, 8):
            for k in range(0, 8, 2):
                self('v_pk_mul_f32 %s, %s, %s' % (v(tmp + k, 2), v(x + b + k, 2), v(x + b + k, 2)))
            for k in range(0, 8, 2):
                self('v_pk_fma_f32 %s, %s, %s, %s' % (v(tmp + k, 2), v(tmp + k, 2), s(sK1, 2), v(u7, 2)))
            for k in range(0, 8, 2):
                self('v_pk_mul_f32 %s, %s, %s' % (v(tmp + k, 2), v(tmp + k, 2), v(x + b + k, 2)))
            for k in range(8):
                self('v_exp_f32 %s, %s' % (v(tmp + k), v(tmp + k)))
            for k in range(0, 8, 2):
                self('v_pk_add_f32 %s, %s, 1.0 op_sel_hi:[1,0]' % (v(tmp + k, 2), v(tmp + k, 2)))
            for k in range(8):
                self('v_rcp_f32 %s, %s' % (v(tmp + k), v(tmp + k)))
            self.bg(nbg)
            for k in range(0, 8, 2):
                self('v_pk_mul_f32 %s, %s, %s' % (v(x + b + k, 2), v(x + b + k, 2), v(tmp + k, 2)))

    def scale(self, x, n, r):
        e = r & ~1
        sel = 'op_sel:[0,1] op_sel_hi:[1,1]' if r & 1 else 'op_sel_hi:[1,0]'
        for k in range(0, n, 2):
            self('v_pk_mul_f32 %s, %s, %s %s' % (v(x + k, 2), v(x + k, 2), v(e, 2), sel))

    def pack(self, dst, x, n):
        for k in range(0, n, 2):
            self('v_cvt_pk_bf16_f32 %s, %s, %s' % (v(dst + k // 2), v(x + k), v(x + k + 1)))

    XF, ACC1, GR, SUM, CSA, XD, XR, WD, WT, QD, NONV, SAD, TB = 16, 128, 160, 176, 180, 188, 192, 196, 198, 206, 208, 210, 214
    sROT = 49

    def prologue(self):
        XD, WD = self.XD, self.WD
        self('s_cmp_ge_u32 s2, 256\ns_cbranch_scc1 L_end')
        self.stamp('start', True)
        self('s_load_dwordx16 s[4:19], s[0:1], 0\ns_load_dwordx4 s[20:23], s[0:1], 64\ns_load_dwordx2 s[24:25], s[0:1], 80')
        self('v_lshrrev_b32 v1, 6, v0\nv_and_b32 v0, 63, v0\nv_readfirstlane_b32 %s, v1\ns_mov_b32 %s, s2' % (s(sW), s(sB)))
        if self.o.get('map', 'local') == 'q48':
            self('s_bfe_u32 %s, s2, 0x20001\ns_lshl_b32 %s, %s, 2\ns_lshr_b32 %s, s2, 6\ns_add_u32 %s, %s, %s'
                 % (s(t0), s(t0), s(t0), s(t1), s(sRB), s(t0), s(t1)))
            self('s_bfe_u32 %s, s2, 0x30003\ns_lshl_b32 %s, %s, 1\ns_and_b32 %s, s2, 1\ns_add_u32 %s, %s, %s'
                 % (s(sCB), s(t0), s(sCB), s(t2), s(sI), s(t0), s(t2)))
            self('s_lshl_b32 %s, %s, 1\ns_add_u32 %s, %s, %s' % (s(t1), s(t1), s(t1), s(t1), s(sCB)))
        else:
            self('s_and_b32 %s, s2, 7\ns_lshl_b32 %s, %s, 1\ns_lshr_b32 %s, s2, 7\ns_add_u32 %s, %s, %s'
                 % (s(t0), s(t0), s(t0), s(t1), s(sRB), s(t0), s(t1)))
            self('s_bfe_u32 %s, s2, 0x40003\ns_lshr_b32 %s, %s, 1\ns_mul_i32 %s, %s, 3\ns_add_u32 %s, %s, %s'
                 % (s(sI), s(sCB), s(sI), s(t1), s(t1), s(t1), s(t1), s(sCB)))
        self('s_cmp_ge_u32 %s, 7\ns_cselect_b32 %s, 7, 0\ns_sub_u32 %s, %s, %s' % (s(t1), s(t0), s(self.sROT), s(t1), s(t0)))
        self('s_lshl_b32 %s, %s, 2\ns_add_u32 %s, %s, %s\ns_mul_i32 %s, %s, %d' % (s(sT), s(sRB), s(sT), s(sT), s(sW), s(t2), s(sT), 32 * 896))
        self.rowtile_dma_addrs(896, XD, s(t2))
        self('v_lshrrev_b32 %s, 3, v0\nv_mul_u32_u24 %s, 2688, %s\nv_bfe_u32 %s, v0, 4, 1\nv_lshlrev_b32 %s, 2, %s'
             % (v(u0), v(u0), v(u0), v(u1), v(u1), v(u1)))
        self('v_xor_b32 %s, %s, v0\nv_and_b32 %s, 7, %s\nv_lshl_add_u32 %s, %s, 4, %s' % (v(u1), v(u1), v(u1), v(u1), v(u0), v(u1), v(u0)))
        self('s_mul_i32 %s, %s, 43008\ns_lshl_b32 %s, %s, 7\ns_add_u32 %s, %s, %s\ns_add_u32 %s, %s, 896\ns_lshl_b32 %s, %s, 11'
             % (s(t0), s(sW), s(t1), s(sI), s(t0), s(t0), s(t1), s(t0), s(t0), s(t3), s(sW)))
        self('v_add_u32 %s, %s, %s\nv_add_u32 %s, %d, %s' % (v(WD), s(t0), v(u0), v(WD + 1), 8 * 2688 - 1024, v(WD)))
        self('s_mul_i32 %s, %s, 12288\ns_add_u32 %s, %s, %d' % (s(t4), s(sW), s(t4), s(t4), XB))
        self('s_mov_b32 %s, 0x%x\ns_mov_b32 %s, 0x20000\ns_mov_b32 %s, 0x%x\ns_mov_b32 %s, 0x20000'
             % (s(SA + 2), 2048 * 896, s(SA + 3), s(SB + 2), 448 * 2688, s(SB + 3)))
        self('s_mov_b32 %s, %s' % (s(t5), s(self.sROT)))
        self('s_cmp_ge_u32 %s, 14\ns_waitcnt lgkmcnt(0)' % s(sI))
        self('s_mov_b32 %s, %s\ns_mov_b32 %s, %s\ns_mov_b32 %s, %s\ns_mov_b32 %s, %s'
             % (s(SA), s(P_X), s(SA + 1), s(P_X + 1), s(SB), s(P_WQKV), s(SB + 1), s(P_WQKV + 1)))

    def setup2(self):
        XR, WT, QD = self.XR, self.WT, self.QD
        self.srd(WS, P_WS, WS_BYTES)
        self.srd(SC, P_DBG, 256)
        sk = self.lab('non')
        self('s_or_b32 %s, %s, %s\ns_cmp_eq_u32 %s, 0\ns_cbranch_scc0 %s' % (s(t0), s(sB), s(sW), s(t0), sk))
        self('s_memrealtime %s\ns_waitcnt lgkmcnt(0)\ns_lshl_b64 %s, %s, 4\ns_or_b32 %s, %s, 0x80000000' % (s(t6, 2), s(t6, 2), s(t6, 2), s(t7), s(t7)))
        self('v_mov_b32 %s, %s\nv_mov_b32 %s, %s\ns_mov_b64 exec, 1' % (v(u1), s(t6), v(u2), s(t7)))
        self('buffer_store_dwordx2 %s, v0, %s, 0 offen sc1\ns_mov_b64 exec, -1\n%s:' % (v(u1, 2), s(SC, 4), sk))
        lp = self.lab('pc')
        self('s_getpc_b64 %s\n%s:\ns_sub_u32 %s, %s, %s-%s_kernel\ns_subb_u32 %s, %s, 0' % (s(84, 2), lp, s(84), s(84), lp, NAME, s(85), s(85)))
        self('s_mov_b32 s86, L_code_end-%s_kernel\ns_mov_b32 s87, 0x20000' % NAME)
        self('s_lshr_b32 %s, %s, 3\ns_lshl_b32 %s, %s, 2\ns_add_u32 %s, %s, %s\ns_lshl_b32 %s, %s, 9\nv_lshlrev_b32 %s, 3, v0'
             % (s(t0), s(sB), s(t0), s(t0), s(t0), s(t0), s(sW), s(t0), s(t0), v(u0)))
        self.load(250, u0, 84, s(t0), 0, 'code', n=2, sc1=False, pfx='a')
        self('s_getreg_b32 %s, hwreg(HW_REG_XCC_ID, 0, 4)' % s(sXCC))
        self('s_mov_b32 %s, 0\ns_mov_b32 %s, -1\ns_mov_b32 %s, 0x3f803f80' % (s(sHI), s(sHI + 1), s(sONE2)))
        k0 = -2.0 * math.sqrt(2.0 / math.pi) * math.log2(math.e)
        self('s_mov_b32 %s, %s' % (s(sK0), f32(k0)))
        self('s_mov_b32 %s, %s\ns_mov_b32 %s, %s' % (s(sK1), f32(k0 * 0.044715), s(sK1 + 1), f32(k0 * 0.044715)))
        self('s_lshl_b32 %s, %s, 4\ns_add_u32 %s, %s, %s\ns_lshl_b32 %s, %s, 3' % (s(sFID), s(sRB), s(sFID), s(sFID), s(sI), s(sFID), s(sFID)))
        self('s_and_b32 %s, %s, 1\ns_lshl_b32 %s, %s, 1\ns_lshr_b32 %s, %s, 1' % (s(t1), s(sI), s(t1), s(t1), s(sKH), s(sW)))
        self('s_lshl_b32 %s, %s, 2\ns_add_u32 %s, %s, %s\ns_and_b32 %s, %s, 1\ns_add_u32 %s, %s, %s'
             % (s(sT3), s(sRB), s(sT3), s(sT3), s(t1), s(t0), s(sW), s(sT3), s(sT3), s(t0)))
        self('v_lshrrev_b32 %s, 5, v0\nv_and_b32 %s, 31, v0\nv_lshlrev_b32 %s, 4, v0' % (v(vH), v(vM), v(vL16)))
        self('v_bfe_u32 %s, v0, 2, 2\nv_lshl_add_u32 %s, %s, 3, %s\nv_lshlrev_b32 %s, 7, %s'
             % (v(u0), v(u1), v(vH), v(u0), v(vTRa), v(u1)))
        self('v_bfe_u32 %s, v0, 4, 1\nv_and_b32 %s, 1, v0\nv_lshl_add_u32 %s, %s, 1, %s' % (v(u1), v(u2), v(u1), v(u1), v(u2)))
        self('v_bfe_u32 %s, v0, 3, 1\nv_lshlrev_b32 %s, 2, %s\nv_xor_b32 %s, %s, %s' % (v(u2), v(u2), v(u2), v(u2), v(u2), v(u1)))
        self('v_lshl_add_u32 %s, %s, 4, %s\nv_bfe_u32 %s, v0, 1, 1\nv_lshl_add_u32 %s, %s, 3, %s'
             % (v(vTRa), v(u2), v(vTRa), v(u2), v(vTRa), v(u2), v(vTRa)))
        self('v_xor_b32 %s, 64, %s' % (v(vTRb), v(vTRa)))
        self('v_and_b32 %s, 0x13, %s\nv_bfe_u32 %s, v0, 2, 1\nv_lshl_or_b32 %s, %s, 3, %s'
             % (v(vPM), v(vM), v(u0), v(vPM), v(u0), v(vPM)))
        self('v_bfe_u32 %s, v0, 3, 1\nv_lshl_or_b32 %s, %s, 2, %s' % (v(u1), v(vPM), v(u1), v(vPM)))
        self('v_bfe_u32 %s, v0, 4, 1\nv_cmp_eq_u32 vcc, %s, %s\nv_mov_b32 %s, %s\nv_cndmask_b32 %s, 0, %s, vcc'
             % (v(u1), v(u0), v(u1), v(u1), s(sONE2), v(u1), v(u1)))
        for k in range(4):
            self('v_accvgpr_write_b32 a%d, %s' % (252 + k, v(u1)))
        self('s_lshl_b32 %s, %s, 5' % (s(t1), s(sW)))
        self.rowtile_read_addrs(XR, s(t4), s(t1))
        for k in range(4):
            self('s_xor_b32 %s, %s, %d\nv_or_b32 %s, %s, %s\nv_or_b32 %s, %s, %s'
                 % (s(t0), s(t3), k * 2048, v(WT + 2 * k), s(t0), v(vTRa), v(WT + 2 * k + 1), s(t0), v(vTRb)))
        self('s_mul_i32 %s, %s, 56\ns_and_b32 %s, %s, 1\ns_lshl_b32 %s, %s, 3\ns_sub_u32 %s, %s, %s'
             % (s(t0), s(sI), s(t1), s(sI), s(t1), s(t1), s(t0), s(t0), s(t1)))
        self('v_lshrrev_b32 %s, 2, v0\nv_mul_u32_u24 %s, 2688, %s\nv_and_b32 %s, 3, v0\nv_lshl_add_u32 %s, %s, 4, %s'
             % (v(u0), v(u0), v(u0), v(u1), v(QD), v(u1), v(u0)))
        self('s_mul_i32 %s, %s, 43008\ns_add_u32 %s, %s, %s\nv_add_u32 %s, %s, %s\ns_lshl_b32 s82, %s, 10'
             % (s(t1), s(sW), s(t0), s(t0), s(t1), v(QD), s(t0), v(QD), s(sW)))

    def p1_variant(self, kind):
        XF, ACC, GR, SUM, CSA, XD, XR, WD, WT, QD, NONV, SAD, TB = (
            self.XF, self.ACC1, self.GR, self.SUM, self.CSA, self.XD, self.XR, self.WD, self.WT, self.QD,
            self.NONV, self.SAD, self.TB)
        kv = kind != 'N'

        def wreg(j, k, ct):
            return 32 * (j & 1) + 8 * k + 4 * ct

        def step(reg):
            self('s_add_u32 %s, %s, 1\ns_cmp_eq_u32 %s, 7\ns_cselect_b32 %s, 0, %s' % (s(reg), s(reg), s(reg), s(reg), s(reg)))

        def block_ops(j):
            ops = []
            if kv:
                def w_():
                    self('s_add_u32 m0, %s, %d\ns_mul_i32 %s, %s, %d' % (s(t3), j * 8192, s(t0), s(t5), 64 * 2688))
                    self.dma(WD, SB, s(t0), 0, 'B%d' % j)
                ops += [w_, lambda: self.dma(WD + 1, SB, s(t0), 1024, 'B%d' % j)]

            def x_():
                self('s_add_u32 m0, %s, %d\ns_lshl_b32 %s, %s, 7' % (s(t4), (j % 3) * 4096, s(t0), s(t5)))
                self.dma(XD, SA, s(t0), 0, 'B%d' % j)
            ops.append(x_)
            for rg in range(1, 4):
                ops.append(lambda rg=rg: self.dma(XD + rg, SA, s(t0), rg * 1024, 'B%d' % j))
            ops.append(lambda: step(t5))
            return ops

        def wq_op(j):
            self('s_add_u32 m0, s82, %d\ns_mul_i32 %s, %s, %d' % (WQB + j * 4096, s(t0), s(t5), 64 * 2688))
            self.dma(QD, SB, s(t0), 0, 'WQ')
            step(t5)
        self.q = block_ops(0) + block_ops(1)
        self.bg(99)
        self.stamp('p1dma')
        keep = list(self.vm)
        self.setup2()
        self.vm = keep + ['code']
        if kind == 'K':
            self('s_lshl_b32 %s, %s, 3\nv_add_u32 %s, %s, %s\ns_mov_b32 %s, 225792\ns_mul_i32 %s, %s, 3584\ns_add_u32 %s, %s, %d'
                 % (s(t0), s(sI), v(u0), s(t0), v(vH), s(t1), s(t2), s(sT), s(t2), s(t2), KF))
            for k in range(4):
                self('v_add_u32 %s, %d, %s\nv_mul_u32_u24 %s, 37, %s\nv_lshrrev_b32 %s, 8, %s'
                     % (v(u1), 2 * k, v(u0), v(u2), v(u1), v(u2), v(u2)))
                self('v_mul_lo_u32 %s, %s, %s\nv_lshl_add_u32 %s, %s, 9, %s\nv_lshl_add_u32 %s, %s, 4, %s'
                     % (v(u2), v(u2), s(t1), v(u2), v(u1), v(u2), v(SAD + k), v(vM), v(u2)))
        elif kind == 'V':
            self('s_sub_u32 %s, %s, 7\ns_lshl_b32 %s, %s, 6\ns_mov_b32 %s, %d\ns_mul_i32 %s, %s, 1792\ns_add_u32 %s, %s, %d'
                 % (s(t0), s(sI), s(t0), s(t0), s(t1), 114688 - 448, s(t2), s(sT), s(t2), s(t2), VF))
            for ct in range(2):
                self('v_add_u32 %s, %s, %s\nv_add_u32 %s, %d, %s\nv_mul_u32_u24 %s, 2341, %s\nv_lshrrev_b32 %s, 16, %s'
                     % (v(u2), s(t0), v(vPM), v(u2), 32 * ct, v(u2), v(u3), v(u2), v(u3), v(u3)))
                self('v_mul_lo_u32 %s, %s, %s\nv_lshl_add_u32 %s, %s, 4, %s\nv_mul_u32_u24 %s, 448, %s\nv_add_u32 %s, %s, %s'
                     % (v(u3), v(u3), s(t1), v(u3), v(u2), v(u3), v(u2), v(vH), v(SAD + ct), v(u3), v(u2)))
            self('s_lshl_b32 %s, %s, 7\ns_add_u32 %s, %s, %d' % (s(t0), s(sW), s(t0), s(t0), RSX))
            self('v_lshl_add_u32 %s, %s, 2, %s\nv_lshl_add_u32 %s, %s, 4, %s' % (v(SAD + 2), v(vM), s(t0), v(SAD + 3), v(vH), s(t0)))
        self.stamp('p1iss')

        def stat_mf(j, k):
            x_ = XF + 16 * j + 4 * k
            first = j == 0 and k == 0
            return [lambda: self.mfma(GR, x_, x_, None if first else GR), lambda: self.mfsum(SUM, x_, first)]

        def main_mf(j, k):
            x_ = XF + 16 * j + 4 * k
            out = []
            for ct in range(2):
                def f(ct=ct):
                    c = None if j == 0 and k == 0 else ACC + 16 * ct
                    if ct == 0:
                        self.wlg('w%d_%d' % (j, k))
                    if kind == 'K':
                        self.mfma(ACC + 16 * ct, wreg(j, k, ct), x_, c, pa='a')
                    else:
                        self.mfma(ACC + 16 * ct, x_, wreg(j, k, ct), c, pb='a')
                out.append(f)
            return out

        def cs_mf(j):
            return [lambda ct=ct: self.mfsum(CSA + 4 * ct, wreg(j, 0, ct), j == 0, pb='a') for ct in range(2)]

        def side_ops(j):
            def head():
                self.wvm('B%d' % j)
                if kv:
                    self('s_barrier')
            side = [head]
            for k in range(4):
                side.append(lambda k=k: self.lgi('ds_read_b128 %s, %s offset:%d' % (
                    v(XF + 16 * j + 4 * k, 4), v(XR + k), (j % 3) * 4096), 'xf%d' % j))
            dm = block_ops(j + 2) if j + 2 < 7 else [lambda q=q: wq_op(q) for q in (range(4) if j == 5 else range(4, 7))]
            if j == 3:
                def non():
                    self('v_mov_b32 %s, 0' % v(u0))
                    self.load(NONV, u0, SC, '0', 0, 'nonl', n=2)
                dm.append(non)
            if kv:
                for k in range(4):
                    for ct in range(2):
                        def rd(k=k, ct=ct):
                            w_ = wreg(j, k, ct)
                            for e in range(2):
                                self.lgi('ds_read_b64_tr_b16 a[%d:%d], %s offset:%d' % (
                                    w_ + 2 * e, w_ + 2 * e + 1, v(WT + 2 * k + ct), j * 8192 + 512 * e), 'w%d_%d' % (j, k))
                        side.append(rd)
                        if dm:
                            side.append(dm.pop(0))
            return side + dm
        self.q = side_ops(0)
        self.bg(99)
        for j in range(7):
            if j in (0, 3, 6):
                self.stamp('p1x%d' % j)
            self.wlg('xf%d' % j)
            self.q = side_ops(j + 1) if j < 6 else []
            seq = []
            if j < 6:
                for k in range(4):
                    st = stat_mf(j, k)
                    seq += ([st[0]] + main_mf(j, k) + [st[1]]) if kv else st
                    if kv and k == 0:
                        seq += cs_mf(j)
                for g, f in enumerate(seq):
                    f()
                    if g >= 1:
                        self.bg(2)
                self.bg(99)
            else:
                for k in range(4):
                    for f in stat_mf(j, k):
                        f()
                if kv:
                    self.wlg('w6_0')
                    for f in cs_mf(j):
                        f()
                hold, self.a = self.a, Asm()
                self.diag(GR, u2)
                self.mean_rstd(SUM, u2, 448, u3, vRS)
                self.make_meanfrag(u3, u4)
                tail = [x.text for x in self.a.L]
                self.a = hold
                if kv:
                    mm = sum((main_mf(j, k) for k in range(4)), [])
                    mm[0]()
                    mm[1]()
                    self.colsum_put(CSA, CSA + 4, MISC)
                    for g in range(2, 8):
                        mm[g]()
                        self('\n'.join(tail[6 * (g - 2):6 * (g - 2) + 6]))
                    self('\n'.join(tail[36:]))
                else:
                    self('\n'.join(tail))
        self.stamp('p1mm')
        if not kv:
            self('s_lshl_b32 %s, %s, 1\ns_add_u32 %s, %s, %s\ns_sub_u32 %s, %s, 14\ns_lshl_b32 %s, %s, 2\ns_add_u32 %s, %s, %s'
                 % (s(t0), s(sRB), s(t0), s(t0), s(sI), s(t0), s(t0), s(t0), s(t0), s(t0), s(t0), s(sW)))
            self.srd(SA, P_WO, 448 * 896)
            self('s_lshl_b32 %s, %s, 12' % (s(t1), s(t0)))
            for q in range(4):
                self.load(64 + 4 * q, vL16, SA, s(t1), q * 1024, 'pf', sc1=False, pfx='a')
            self.srd(SA, P_WIN, 448 * 3584)
            self('s_mul_i32 %s, %s, 13312' % (s(t1), s(t0)))
            for q in range(13):
                if q and q % 4 == 0:
                    self('s_add_u32 %s, %s, 4096' % (s(t1), s(t1)))
                self.load(80 + 4 * q, vL16, SA, s(t1), (q % 4) * 1024, 'pf', sc1=False, pfx='a')
            return
        if kind == 'V':
            self.lgi('ds_write_b32 %s, %s' % (v(SAD + 2), v(vRS)), 'rs')
        self.wlg()
        self('s_barrier')
        if kind == 'V':
            for g in range(4):
                self.lgi('ds_read_b128 %s, %s offset:%d' % (v(TB + 4 * g, 4), v(SAD + 3), 32 * g), 'rs')
        self.colsum_get(GR, MISC, vCS2)
        for ct in range(2):
            if kind == 'K':
                self.mfma(ACC + 16 * ct, vCS2 + 4 * ct, vMF, ACC + 16 * ct)
            else:
                self.mfma(ACC + 16 * ct, vMF, vCS2 + 4 * ct, ACC + 16 * ct)
        for c in range(4):
            if kind == 'K':
                self.scale(ACC + 8 * c, 8, vRS)
            else:
                for k in range(0, 8, 2):
                    r = ACC + 8 * c + k
                    self('v_pk_mul_f32 %s, %s, %s' % (v(r, 2), v(r, 2), v(TB + 8 * (c & 1) + k, 2)))
            self.pack(GR + 4 * c, ACC + 8 * c, 8)
            if kind == 'K':
                self.store(GR + 4 * c, SAD + c, WS, s(t2), 0, 'st')
            else:
                self.store(GR + 4 * c, SAD + (c >> 1), WS, s(t2), (c & 1) * 896, 'st')

    def diag(self, g, dst):
        masks = (0xaaaaaaaa, 0xcccccccc, 0xff00ff00, 0xffff0000)
        n = 16
        for m in masks:
            self('s_mov_b32 vcc_lo, 0x%x\ns_mov_b32 vcc_hi, 0x%x' % (m, m))
            n //= 2
            for k in range(n):
                self('v_cndmask_b32 %s, %s, %s, vcc' % (v(g + k), v(g + 2 * k), v(g + 2 * k + 1)))
        self('v_mov_b32 %s, %s\ns_mov_b32 vcc_lo, 0xf0f0f0f0\ns_mov_b32 vcc_hi, 0xf0f0f0f0\nv_permlane32_swap_b32 %s, %s'
             % (v(g + 1), v(g), v(g), v(g + 1)))
        self('v_cndmask_b32 %s, %s, %s, vcc' % (v(dst), v(g), v(g + 1)))

    def p1(self):
        XF, ACC, GR, SUM, WT, NONV, TB = self.XF, self.ACC1, self.GR, self.SUM, self.WT, self.NONV, self.TB
        self('s_cbranch_scc1 L_p1_N\ns_cmp_ge_u32 %s, 7\ns_cbranch_scc1 L_p1_V' % s(sI))
        for kind in 'KVN':
            self('L_p1_%s:' % kind)
            self.vm, self.lg = [], []
            self.p1_variant(kind)
            if kind != 'N':
                self('s_branch L_p1_join')
        self('L_p1_join:')
        self.stamp('p1st')
        lp = self.lab('tag')
        self('s_mov_b32 %s, 0\ns_add_u32 %s, %s, %d\n%s:\ns_waitcnt vmcnt(0)' % (s(sCNT), s(t5), s(sFID), FLAG1, lp))
        self('v_readfirstlane_b32 %s, %s\nv_readfirstlane_b32 %s, %s' % (s(sNON), v(NONV), s(sNON + 1), v(NONV + 1)))
        self('s_cmp_lg_u32 %s, 0\ns_cbranch_scc1 %s_d' % (s(sNON + 1), lp))
        self('v_mov_b32 %s, 0\nbuffer_load_dwordx2 %s, %s, %s, 0 offen sc1' % (v(u0), v(NONV, 2), v(u0), s(SC, 4)))
        self('s_add_u32 %s, %s, 1\ns_cmp_lt_u32 %s, %d\ns_cbranch_scc1 %s\ns_waitcnt vmcnt(0)\n%s_d:'
             % (s(sCNT), s(sCNT), s(sCNT), POLL_MAX, lp, lp))
        self.vm, self.lg = [], []
        self.publish(s(t5), xcc=True)
        self.stamp('p1pub')
        self('s_lshl_b32 %s, %s, 10\ns_add_u32 %s, %s, %d' % (s(t0), s(sB), s(t0), s(t0), ONES))
        for k in range(4):
            self('v_mov_b32 %s, %s' % (v(TB + k), s(sONE2)))
        self.store(TB, vL16, WS, s(t0), 0, 'ones')
        self('v_bfe_u32 %s, v0, 2, 2\nv_lshl_add_u32 %s, %s, 3, %s\nv_lshlrev_b32 %s, 6, %s' % (v(u0), v(u0), v(vH), v(u0), v(u0), v(u0)))
        self('v_bfe_u32 %s, v0, 4, 1\nv_lshl_add_u32 %s, %s, 5, %s\nv_and_b32 %s, 1, v0\nv_lshl_add_u32 %s, %s, 4, %s'
             % (v(u1), v(u0), v(u1), v(u0), v(u1), v(u0), v(u1), v(u0)))
        self('v_bfe_u32 %s, v0, 1, 1\nv_lshl_add_u32 %s, %s, 3, %s' % (v(u1), v(u0), v(u1), v(u0)))
        for k in range(4):
            self('s_xor_b32 %s, %s, %d\ns_lshl_b32 %s, %s, 10\ns_add_u32 %s, %s, %d\nv_add_u32 %s, %s, %s'
                 % (s(t0), s(sW), k, s(t0), s(t0), s(t0), s(t0), WQB, v(WT + k), s(t0), v(u0)))

        def qrd(j, k):
            for e in range(2):
                r = 16 * (j & 1) + 4 * k + 2 * e
                self.lgi('ds_read_b64_tr_b16 a[%d:%d], %s offset:%d' % (r, r + 1, v(WT + k), j * 4096 + 256 * e), 'q%d_%d' % (j, k))
        for k in range(4):
            qrd(0, k)
        self.cold_setup()
        for j in range(7):
            for k in range(4):
                self.wlg('q%d_%d' % (j, k))
                r = 16 * (j & 1) + 4 * k
                self.mfma(ACC, r, XF + 16 * j + 4 * k, None if j + k == 0 else ACC, pa='a')
                if j < 6:
                    qrd(j + 1, k)
                self.mfsum(SUM, r, j + k == 0, pb='a')
                if k & 1 or j < 2:
                    self.bg(1)
        assert not self.q
        self('v_mul_f32 %s, %s, %s' % (v(u3), f32(math.log2(math.e) / math.sqrt(28.0)), v(vRS)))
        self('s_bitcmp1_b32 %s, 0\ns_cselect_b64 %s, -1, 0' % (s(sI), s(t0, 2)))
        self('s_andn2_b64 %s, %s, %s\ns_andn2_b64 %s, %s, %s' % (s(t2, 2), s(t0, 2), s(sHI, 2), s(t4, 2), s(sHI, 2), s(t0, 2)))
        self('s_lshl_b32 %s, %s, 11\ns_add_u32 %s, %s, %d\nv_add_u32 %s, %s, %s' % (s(t0), s(sW), s(t0), s(t0), MISC, v(u0), s(t0), v(vL16)))
        self.make_csfrag(SUM, vCS2)
        self.mfma(ACC, vCS2, vMF, ACC)
        self.scale(ACC, 16, u3)
        self.pack(GR, ACC, 16)
        for k in range(2):
            self('v_cndmask_b32 %s, %s, 0, %s\nv_cndmask_b32 %s, %s, 0, %s'
                 % (v(GR + k), v(GR + k), s(t2, 2), v(GR + 6 + k), v(GR + 6 + k), s(t4, 2)))
        self.lgi('ds_write_b128 %s, %s' % (v(u0), v(GR, 4)), 'qw')
        self.lgi('ds_write_b128 %s, %s offset:1024' % (v(u0), v(GR + 4, 4)), 'qw')
        self.p2_setup()
        self.wlg()
        self.vm_s1 = list(self.vm)
        self.stamp('q')
        WF = ACC
        sk, lp = self.lab('s1skip'), self.lab('s1')
        self('s_cmp_eq_u32 %s, 0\ns_cbranch_scc0 %s\ns_mov_b32 %s, 0\n%s:' % (s(sW), sk, s(sCNT), lp))
        self('buffer_load_dwordx4 %s, %s, %s, 0 offen offset:%d sc1' % (v(WF, 4), v(vL16), s(WS, 4), FLAG1))
        self('buffer_load_dwordx4 %s, %s, %s, 0 offen offset:%d sc1' % (v(WF + 4, 4), v(vL16), s(WS, 4), FLAG1 + 1024))
        self('s_add_u32 %s, %s, 1\ns_waitcnt vmcnt(0)' % (s(sCNT), s(sCNT)))
        for k in range(4):
            self('v_and_b32 %s, -16, %s' % (v(WF + 2 * k), v(WF + 2 * k)))
        for k in range(4):
            self('v_cmp_ne_u64 %s, %s, %s' % (('vcc', s(t0, 2), s(t2, 2), s(t6, 2))[k], s(sNON, 2), v(WF + 2 * k, 2)))
        self('s_or_b64 %s, %s, vcc\ns_or_b64 %s, %s, %s\ns_or_b64 %s, %s, %s'
             % (s(t0, 2), s(t0, 2), s(t2, 2), s(t2, 2), s(t6, 2), s(t0, 2), s(t0, 2), s(t2, 2)))
        self('s_cbranch_scc0 %s\ns_cmp_lt_u32 %s, %d\ns_cbranch_scc1 %s\n%s:\ns_barrier' % (sk, s(sCNT), POLL_MAX, lp, sk))
        self.stamp('s1')

    Q, O, S, P, KV, VOV, VST = 16, 48, 112, 144, 152, 217, 218

    def kv_addr(self, wave_split):
        VOV, VST = self.VOV, self.VST
        self('s_lshr_b32 %s, %s, 1\ns_mul_i32 %s, %s, 229376\ns_and_b32 %s, %s, 1\ns_mul_i32 %s, %s, 1536\ns_add_u32 %s, %s, %s'
             % (s(t0), s(sI), s(t4), s(t0), s(t0), s(sI), s(t0), s(t0), s(t4), s(t4), s(t0)))
        self('s_add_u32 %s, %s, %d\ns_mul_i32 %s, %s, 114688\ns_add_u32 %s, %s, %d' % (s(t4), s(t4), KF, s(t1), s(sI), s(t1), s(t1), VF))
        if wave_split:
            self('s_mul_i32 %s, %s, %d\ns_add_u32 %s, %s, %s\ns_mul_i32 %s, %s, %d\ns_add_u32 %s, %s, %s'
                 % (s(t0), s(sW), 16 * 3584, s(t4), s(t4), s(t0), s(t0), s(sW), 16 * 1792, s(t1), s(t1), s(t0)))
        self('v_mul_u32_u24 %s, 448, %s\nv_lshl_add_u32 %s, %s, 4, %s\nv_add_u32 %s, %s, %s'
             % (v(u0), v(vH), v(u0), v(vPM), v(u0), v(u0), s(t1), v(u0)))
        self('s_lshl_b32 %s, %s, 10\ns_add_u32 %s, %s, %d' % (s(t0), s(sB), s(t0), s(t0), ONES))
        self('v_mov_b32 %s, %s\nv_cmp_lt_u32 vcc, 28, %s\nv_mov_b32 %s, 0x7ff00000\nv_cndmask_b32 %s, %s, %s, vcc'
             % (v(u1), s(t0), v(vM), v(u2), v(u1), v(u1), v(u2)))
        self('v_mov_b32 %s, 1792\nv_cmp_gt_u32 vcc, 28, %s' % (v(u2), v(vM)))
        self('v_cndmask_b32 %s, %s, %s, vcc\nv_cndmask_b32 %s, 0, %s, vcc' % (v(VOV), v(u1), v(u0), v(VST), v(u2)))

    RW, QA, PD, PR = 226, 230, 234, 238
    SX, SBS, SSP, SWO = 84, 88, 92, 96

    def unit_addrs(self, pd, pr, sbase, stride):
        self('s_lshl_b32 %s, %s, 17\ns_mul_i32 %s, %s, %d\ns_add_u32 %s, %s, %d'
             % (s(t0), s(sT), sbase, s(sW), stride[1], sbase, sbase, stride[0]))
        self.rowtile_dma_addrs(4096, pd, s(t0))
        self.rowtile_read_addrs(pr, sbase)

    def unit_ops(self, u, slot, pd, sbase):
        def first():
            self('s_add_u32 m0, %s, %d\ns_add_u32 s101, s83, %d\ns_and_b32 s101, s101, 0xf80' % (sbase, slot * 4096, u * 128))
            self.dma(pd, self.SSP, 's101', 0, 'U%d' % u)
        return [first] + [lambda rg=rg: self.dma(pd + rg, self.SSP, 's101', rg * 1024, 'U%d' % u) for rg in range(1, 4)]

    def unit_read(self, u, slot, pr):
        for k in range(4):
            self.lgi('ds_read_b128 a[%d:%d], %s offset:%d' % (16 * u + 4 * k, 16 * u + 4 * k + 3, v(pr + k), slot * 4096), 'ur')

    def cold_setup(self):
        SX, SBS, SSP, SWO = self.SX, self.SBS, self.SSP, self.SWO
        self.srd(SX, P_X, 2048 * 896)
        self.srd(SBS, P_BSP, 4096)
        self.srd(SSP, P_WSP, 2048 * 4096)
        self.srd(SWO, P_WOUT, 896 * 896)
        self('s_mul_i32 %s, %s, %d\ns_lshl_b32 %s, %s, 7\ns_add_u32 %s, %s, %s\ns_lshl_b32 %s, %s, 6\ns_add_u32 %s, %s, %s'
             % (s(t0), s(sT3), 32 * 896, s(t1), s(sCB), s(t0), s(t0), s(t1), s(t1), s(sKH), s(t0), s(t0), s(t1)))
        self('v_mul_u32_u24 v224, 896, %s\nv_lshl_add_u32 v224, %s, 4, v224\nv_add_u32 v224, %s, v224' % (v(vM), v(vH), s(t0)))
        self('s_lshl_b32 %s, %s, 6\nv_lshl_add_u32 %s, %s, 1, %s' % (s(t0), s(sT), v(vBSP), v(vM), s(t0)))
        self('s_lshl_b32 %s, %s, 2\ns_add_u32 %s, %s, %s\ns_lshl_b32 %s, %s, 13\ns_lshl_b32 %s, %s, 19\ns_add_u32 %s, %s, %s\nv_add_u32 v225, %s, %s'
             % (s(t0), s(sI), s(t0), s(t0), s(sW), s(t0), s(t0), s(t1), s(sRB), s(t0), s(t0), s(t1), s(t0), v(vL16)))
        self('s_lshl_b32 %s, %s, 2\ns_add_u32 %s, %s, %s\ns_lshl_b32 s82, %s, 10\ns_lshl_b32 s83, %s, 8\ns_movk_i32 s101, 4096'
             % (s(t0), s(sB), s(t0), s(t0), s(sW), s(t0), s(sI)))
        self.q = [lambda q=q: self.load(216 + 4 * q, 225, SSP, 's101' if q >= 4 else '0', (q % 4) * 1024, 'pf', sc1=False, pfx='a')
                  for q in range(8)]
        self.q += [lambda: self.load(248, vL16, SWO, 's82', 0, 'pf', sc1=False, pfx='a'),
                   lambda: self.load(vHK, 224, SX, '0', 0, 'pf', sc1=False),
                   lambda: self.load(vHK + 4, 224, SX, '0', 32, 'pf', sc1=False),
                   lambda: self.vmi('buffer_load_ushort %s, %s, %s, 0 offen' % (v(vBSP), v(vBSP), s(SBS, 4)), 'pf')]
        self('s_lshl_b32 %s, %s, 15\ns_lshl_b32 %s, %s, 11\ns_add_u32 %s, %s, %s\ns_add_u32 s73, %s, %d'
             % (s(t0), s(sT), s(t1), s(sI), s(t2), s(t0), s(t1), s(t2), OF))
        self('s_lshl_b32 %s, %s, 13\ns_lshl_b32 %s, %s, 9\ns_add_u32 %s, %s, %s\ns_add_u32 %s, %s, %d\ns_lshl_b32 %s, %s, 7'
             % (s(t0), s(sT), s(t1), s(sI), s(t0), s(t0), s(t1), s(t0), s(t0), ZST - 512, s(t1), s(sRB)))
        self('v_and_b32 v222, 3, v0\nv_lshlrev_b32 v222, 12, v222\nv_add_u32 v222, %d, v222\nv_add_u32 v222, %s, v222' % (FLAG2, s(t1)))
        self('v_add_u32 v223, %s, %s\nv_cndmask_b32 v222, v222, v223, %s' % (s(t0), v(vL16), s(sHI, 2)))
        self.q.insert(0, lambda: self.load(208, 222, WS, '0', 0, 'pf', n=1, pfx='a'))

    def p2_setup(self):
        RW = self.RW
        self.kv_addr(True)
        self.srd(SA, P_WO, 448 * 896)
        self.srd(SB, P_WIN, 448 * 3584)
        self('s_lshl_b32 %s, %s, 7' % (s(t2), s(sCB)))
        wo = self.image_ops(220, SA, 896, s(t2), 0, 14, 'pf')
        self('s_lshl_b32 %s, %s, 7\ns_add_u32 %s, %s, 1792' % (s(t2), s(sI), s(t2), s(t2)))
        win = self.image_ops(222, SB, 3584, s(t2), WIN2, 14, 'pf')
        for j in range(4):
            self('s_add_u32 %s, %s, %d\ns_and_b32 %s, %s, 3\ns_mul_i32 %s, %s, 12288\ns_add_u32 %s, %s, %d\nv_add_u32 %s, %s, %s'
                 % (s(t0), s(sW), j + 1, s(t0), s(t0), s(t1), s(t0), s(t1), s(t1), RED + 4096 * (j % 3), v(RW + j), s(t1), v(vL16)))
            self('s_lshl_b32 %s, %s, 11\ns_add_u32 %s, %s, %d\nv_add_u32 %s, %s, %s' % (s(t0), s(t0), s(t0), s(t0), MISC, v(self.QA + j), s(t0), v(vL16)))
        self.unit_addrs(self.PD, self.PR, 's100', (RED, 12288))
        self('s_lshl_b32 %s, %s, 7\ns_add_u32 %s, %s, %d\nv_and_b32 v219, 15, v0\nv_lshl_add_u32 v219, v219, 3, %s'
             % (s(t0), s(sRB), s(t0), s(t0), FLAG1, s(t0)))
        self.att_img = [wo[k:k + 2] for k in range(0, 14, 2)] + [win[k:k + 2] for k in range(0, 14, 2)]

    def p2(self):
        Q, O, S, P, KV, VOV, VST, RW = self.Q, self.O, self.S, self.P, self.KV, self.VOV, self.VST, self.RW
        self.vm, self.lg = self.vm_s1, []
        self.wvm('ones')

        def kvload(it):
            b = KV + 16 * (it % 4)
            self.load(b, vL16, WS, s(t4), 0, 'K%d' % it)
            self.load(b + 4, vL16, WS, s(t4), 1024, 'K%d' % it)
            self.load(b + 8, VOV, WS, '0', 0, 'V%d' % it)
            self.load(b + 12, VOV, WS, '0', 896, 'V%d' % it)
            if it < 15:
                self('s_add_u32 %s, %s, 3584\nv_add_u32 %s, %s, %s' % (s(t4), s(t4), v(VOV), v(VST), v(VOV)))
        for it in range(3):
            kvload(it)
        for j in range(4):
            self.lgi('ds_read_b128 %s, %s' % (v(Q + 8 * j, 4), v(self.QA + j)), 'q')
            self.lgi('ds_read_b128 %s, %s offset:1024' % (v(Q + 8 * j + 4, 4), v(self.QA + j)), 'q')
        self.wlg()
        self('s_barrier')
        wait_kv = self.wvm
        NA = self.NA
        self.stamp('a_iss')
        wait_kv('K0')
        self.stamp('a_k0')
        self.mfma(S, KV, Q, None)
        self.mfma(S, KV + 4, Q + 4, S)
        for n in range(64):
            it, j = divmod(n, 4)
            Sc, Sn = S + 16 * (n & 1), S + 16 * ((n + 1) & 1)
            ex = ['v_exp_f32 %s, %s' % (v(Sc + k), v(Sc + k)) for k in range(16)]
            pk = ['v_cvt_pk_bf16_f32 %s, %s, %s' % (v(P + k), v(Sc + 2 * k), v(Sc + 2 * k + 1)) for k in range(8)]
            nit, nj = divmod(n + 1, 4)
            pit, pj = divmod(n - 1, 4)
            kb, vb = KV + 16 * (nit % 4), KV + 16 * (pit % 4) + 8

            def qk(t):
                if n + 1 < 64:
                    if t == 0 and nj == 0:
                        wait_kv('K%d' % nit)
                    self.mfma(Sn, kb + 4 * t, Q + 8 * nj + 4 * t, Sn if t else None)

            def pv(t):
                if n > 0:
                    if t == 0 and pj == 0:
                        wait_kv('V%d' % pit)
                    c = None if (pit == 0 and t == 0) else O + 16 * pj
                    self.mfma(O + 16 * pj, vb + 4 * t, P + 4 * t, c)
            qk(0)
            self('\n'.join(ex[0:4]))
            pv(0)
            self('\n'.join(ex[4:8] + pk[0:2]))
            qk(1)
            self('\n'.join(ex[8:12] + pk[2:4]))
            pv(1)
            self('\n'.join(ex[12:16] + pk[4:8]))
            if j == 0 and it + 3 < 16:
                kvload(it + 3)
            if j == 1 and 0 <= it - 3 < NA:
                self.wvm('U%d' % (it - 3))
                self.unit_read(it - 3, it % 3, self.PR)
            if j == 2 and 0 <= it - 1 < NA:
                if it >= 4:
                    self.wlg()
                for op in self.unit_ops(it - 1, (it - 1) % 3, self.PD, 's100'):
                    op()
            if n == 2:
                self.load(219, 219, WS, '0', 0, 'pur', n=1)
            if j == 3 and 1 <= it <= 14:
                for op in self.att_img[it - 1]:
                    op()
            if n in (15, 31, 47):
                self.stamp('a%d' % n)
        self.mfma(O + 48, KV + 16 * 3 + 8, P, O + 48)
        self.mfma(O + 48, KV + 16 * 3 + 12, P + 4, O + 48)
        self.stamp('att')
        if NA:
            self.wlg()
            self('s_barrier')
        for j in range(3):
            for q in range(4):
                self.lgi('ds_write_b128 %s, %s offset:%d' % (v(RW + j), v(O + 16 * j + 4 * q, 4), q * 1024), 'rw')
        self('v_and_b32 v219, 15, v219\nv_cmp_ne_u32 vcc, %s, v219\ns_cmp_eq_u64 vcc, 0\ns_cselect_b32 %s, %d, 0'
             % (s(sXCC), s(sFAST), 0 if self.o.get('slowsync') else 1))
        self.wlg()
        self('s_barrier')
        for k in range(12):
            self.lgi('ds_read_b128 %s, %s offset:%d' % (v(O + 4 * k, 4), v(RW + 3), k * 1024), 'r%d' % (k // 4))
        A = O + 48
        for j in range(3):
            self.wlg('r%d' % j)
            for k in range(0, 16, 2):
                self('v_pk_add_f32 %s, %s, %s' % (v(A + k, 2), v(A + k, 2), v(O + 16 * j + k, 2)))
        self.stamp('red')
        self('L_att_norm:')
        self('v_mov_b32 %s, %s\nv_mov_b32 %s, %s\nv_permlane32_swap_b32 %s, %s' % (v(u0), v(A + 12), v(u1), v(A + 12), v(u0), v(u1)))
        self('v_cmp_gt_f32 vcc, %s, %s\ns_mov_b64 %s, vcc\nv_cmp_lt_f32 vcc, %s, %s\ns_and_b64 vcc, vcc, %s'
             % (f32(2.0 ** 40), v(u1), s(t0, 2), f32(2.0 ** -40), v(u1), s(t0, 2)))
        force = self.o.get('force_fallback')
        self('s_cmp_eq_u64 vcc, %s\ns_cbranch_scc0 L_att_slow\nL_att_ok:' % ('0' if force else '-1'))
        self('v_rcp_f32 %s, %s' % (v(u1), v(u1)))
        self.scale(A, 16, u1)
        self.pack(P, A, 16)
        self('v_cndmask_b32 %s, %s, 0, %s\nv_cndmask_b32 %s, %s, 0, %s' % (v(P + 6), v(P + 6), s(sHI, 2), v(P + 7), v(P + 7), s(sHI, 2)))
        self.vm = ['any']

        def st(sc):
            self.store(P, vL16, WS, 's73', 0, 'st', sc1=sc)
            self.store(P + 4, vL16, WS, 's73', 1024, 'st', sc1=sc)
        st(True)
        self('s_add_u32 %s, %s, %d' % (s(t5), s(sFID), FLAG2))
        self.publish(s(t5), True)
        self.stamp('p2pub')
        self('s_cmp_ge_u32 %s, 14\ns_cbranch_scc1 L_fin' % s(sI))

    def att_slow(self):
        Q, O, S, P, KV, VOV, VST = self.Q, self.O, self.S, self.P, self.KV, self.VOV, self.VST
        A, Qo = O + 48, Q + 24
        self('L_att_slow:\ns_waitcnt vmcnt(0)')
        self.kv_addr(False)
        self('s_mov_b32 %s, %s\nv_mov_b32 %s, 0xff800000\ns_mov_b32 %s, 0\nL_slow1:' % (s(t5), s(t4), v(u3), s(sCNT)))
        self('buffer_load_dwordx4 %s, %s, %s, %s offen sc1' % (v(KV, 4), v(vL16), s(WS, 4), s(t5)))
        self('buffer_load_dwordx4 %s, %s, %s, %s offen offset:1024 sc1' % (v(KV + 4, 4), v(vL16), s(WS, 4), s(t5)))
        self('s_add_u32 %s, %s, 3584\ns_waitcnt vmcnt(0)' % (s(t5), s(t5)))
        self.mfma(S, KV, Qo, None)
        self.mfma(S, KV + 4, Qo + 4, S)
        for k in range(0, 16, 2):
            self('v_max3_f32 %s, %s, %s, %s' % (v(u3), v(u3), v(S + k), v(S + k + 1)))
        self('s_add_u32 %s, %s, 1\ns_cmp_lt_u32 %s, 64\ns_cbranch_scc1 L_slow1' % (s(sCNT), s(sCNT), s(sCNT)))
        self('v_mov_b32 %s, %s\nv_permlane32_swap_b32 %s, %s\nv_max_f32 %s, %s, %s' % (v(u4), v(u3), v(u4), v(u3), v(u3), v(u3), v(u4)))
        for k in range(16):
            self('v_mov_b32 %s, 0' % v(A + k))
        self('s_mov_b32 %s, 0\nL_slow2:' % s(sCNT))
        self('buffer_load_dwordx4 %s, %s, %s, %s offen sc1' % (v(KV, 4), v(vL16), s(WS, 4), s(t4)))
        self('buffer_load_dwordx4 %s, %s, %s, %s offen offset:1024 sc1' % (v(KV + 4, 4), v(vL16), s(WS, 4), s(t4)))
        self('buffer_load_dwordx4 %s, %s, %s, 0 offen sc1' % (v(KV + 8, 4), v(VOV), s(WS, 4)))
        self('buffer_load_dwordx4 %s, %s, %s, 0 offen offset:896 sc1' % (v(KV + 12, 4), v(VOV), s(WS, 4)))
        self('s_add_u32 %s, %s, 3584\nv_add_u32 %s, %s, %s\ns_waitcnt vmcnt(0)' % (s(t4), s(t4), v(VOV), v(VST), v(VOV)))
        self.mfma(S, KV, Qo, None)
        self.mfma(S, KV + 4, Qo + 4, S)
        for k in range(16):
            self('v_sub_f32 %s, %s, %s' % (v(S + k), v(S + k), v(u3)))
        for k in range(16):
            self('v_exp_f32 %s, %s' % (v(S + k), v(S + k)))
        self.pack(P, S, 16)
        self.mfma(A, KV + 8, P, A)
        self.mfma(A, KV + 12, P + 4, A)
        self('s_add_u32 %s, %s, 1\ns_cmp_lt_u32 %s, 64\ns_cbranch_scc1 L_slow2' % (s(sCNT), s(sCNT), s(sCNT)))
        self('v_mov_b32 %s, %s\nv_mov_b32 %s, %s\nv_permlane32_swap_b32 %s, %s' % (v(u0), v(A + 12), v(u1), v(A + 12), v(u0), v(u1)))
        self('s_branch L_att_ok')

    def slot_addrs(self, dst, kh_bytes, base):
        self('s_mul_i32 %s, %s, %d\ns_add_u32 %s, %s, %d\ns_lshl_b32 %s, %s, 6' % (s(t0), s(sKH), kh_bytes, s(t0), s(t0), base, s(t1), s(sKH)))
        self('v_xor_b32 %s, %s, %s\nv_xor_b32 %s, %s, %s' % (v(dst), s(t1), v(vTRa), v(dst + 1), s(t1), v(vTRb)))
        self('v_add_u32 %s, %s, %s\nv_add_u32 %s, %s, %s' % (v(dst), s(t0), v(dst), v(dst + 1), s(t0), v(dst + 1)))

    def frag_ops(self, dst, n, sreg, tag, second=None):
        ops = []
        for k in range(n):
            def op(k=k):
                if k and k % 4 == 0:
                    self('s_add_u32 %s, %s, 4096' % (s(sreg), s(second if k == 4 and second else sreg)))
                self.load(dst + 4 * k, vL16, WS, s(sreg), (k % 4) * 1024, '%s%d' % (tag, k))
            ops.append(op)
        return ops

    def pair_addrs(self, dst, red):
        self('s_lshl_b32 %s, %s, 12\ns_add_u32 %s, %s, %d\nv_add_u32 %s, %s, %s' % (s(t0), s(sW), s(t0), s(t0), red, v(dst), s(t0), v(vL16)))
        self('v_xor_b32 %s, 0x2000, %s' % (v(dst + 1), v(dst)))

    def pair_reduce(self, acc, tmp, adr, res, rtmp):
        for k in range(8):
            self('v_lshlrev_b32 %s, 16, %s\nv_and_b32 %s, 0xffff0000, %s' % (v(rtmp + 2 * k), v(res + k), v(rtmp + 2 * k + 1), v(res + k)))
        for q in range(4):
            self.lgi('ds_write_b128 %s, %s offset:%d' % (v(adr), v(acc + 16 + 4 * q, 4), q * 1024), 'pw')
        for k in range(0, 16, 2):
            self('v_pk_add_f32 %s, %s, %s' % (v(acc + k, 2), v(acc + k, 2), v(rtmp + k, 2)))
        self.wlg()
        self('s_barrier')
        for q in range(4):
            self.lgi('ds_read_b128 %s, %s offset:%d' % (v(tmp + 4 * q, 4), v(adr + 1), q * 1024), 'pr%d' % q)
        for q in range(4):
            self.wlg('pr%d' % q)
            for k in range(4 * q, 4 * q + 4, 2):
                self('v_pk_add_f32 %s, %s, %s' % (v(acc + k, 2), v(acc + k, 2), v(tmp + k, 2)))

    def p3(self):
        FR, ACC, WO, PA = 16, 80, 112, 240
        WB = FR
        RED3 = 131072
        self.vm, self.lg = [], []
        U0 = self.NA
        if self.NB:
            self.unit_addrs(FR, FR + 4, 's100', (RED, 12288))
            self.q = sum((self.unit_ops(U0 + r, r, FR, 's100') for r in range(self.NB)), [])
            self.bg(99)
        self.slot_addrs(u5, 8 * 3584, 0)
        for k in range(16):
            for sl in range(2):
                for e in range(2):
                    self.tr(WO + 8 * k + 4 * sl + 2 * e, u5 + sl, (k >> 1) * 3584 + (k & 1) * 2048 + 512 * e, 'wo')
        self.pair_addrs(PA, RED3)
        self('s_lshl_b32 %s, %s, 15\ns_lshl_b32 %s, %s, 14\ns_add_u32 %s, %s, %s\ns_add_u32 %s, %s, %d'
             % (s(t4), s(sT3), s(t1), s(sKH), s(t4), s(t4), s(t1), s(t4), s(t4), OF))
        self('s_lshl_b32 %s, %s, 1\ns_add_u32 %s, %s, %s' % (s(t0), s(sCB), s(t0), s(t0), s(sKH)))
        self('s_mul_i32 %s, %s, 28672\ns_lshl_b32 %s, %s, 11\ns_add_u32 %s, %s, %s\ns_add_u32 %s, %s, %d'
             % (s(t2), s(sT3), s(t1), s(t0), s(t2), s(t2), s(t1), s(t2), s(t2), HF))
        self('s_lshl_b32 %s, %s, 12\ns_lshl_b32 %s, %s, 8\ns_add_u32 %s, %s, %s\ns_add_u32 %s, %s, %d'
             % (s(t3), s(sT3), s(t1), s(t0), s(t3), s(t3), s(t1), s(t3), s(t3), HST))
        self('v_lshlrev_b32 %s, 3, %s' % (v(u3), v(vM)))
        self('s_lshl_b32 %s, %s, 7\ns_add_u32 %s, %s, %d' % (s(t5), s(sRB), s(t5), s(t5), FLAG2))
        self.wvm()
        self.poll_first(s(t5), 16, FR + 8)
        for r in range(self.NB):
            self.unit_read(U0 + r, r, FR + 4)
        self.wlg()
        self.stamp('wb')
        self.poll(s(t5), 16, FR + 8)
        self.stamp('s2')
        self.q = self.frag_ops(FR, 16, t4, 'f')
        self.bg(11)
        for k in range(16):
            self.wvm('f%d' % k)
            for sl in range(2):
                self.mfma(ACC + 16 * sl, WO + 8 * k + 4 * sl, FR + 4 * k, None if k == 0 else ACC + 16 * sl)
            self.bg(1)
        self.stamp('p3mm')
        self.pair_reduce(ACC, WB, PA, vHK, WB + 16)
        self.pack(vHK, ACC, 16)

        def st(sc):
            self.store(vHK, vL16, WS, s(t2), 0, 'st', sc1=sc)
            self.store(vHK + 4, vL16, WS, s(t2), 1024, 'st', sc1=sc)
        st(True)
        self('v_pk_mul_f32 %s, %s, %s' % (v(WB, 2), v(ACC, 2), v(ACC, 2)))
        for k in range(2, 16, 2):
            self('v_pk_fma_f32 %s, %s, %s, %s' % (v(WB, 2), v(ACC + k, 2), v(ACC + k, 2), v(WB, 2)))
            self('v_pk_add_f32 %s, %s, %s' % (v(ACC, 2), v(ACC, 2), v(ACC + k, 2)))
        self('v_add_f32 %s, %s, %s\nv_add_f32 %s, %s, %s' % (v(ACC), v(ACC), v(ACC + 1), v(ACC + 1), v(WB), v(WB + 1)))
        self.xhalf_add2(ACC, WB)
        self.store(ACC, u3, WS, s(t3), 0, 'st', n=2)
        self('s_add_u32 %s, %s, %d' % (s(t5), s(sFID), FLAG3))
        self.publish(s(t5), True)
        self.stamp('p3pub')

    def zrd(self, k):
        for ct in range(2):
            self.trfrag(128 + 8 * (k % 4) + 4 * ct, u5 + ct, k * 2048, 'w%d' % k)

    def zpass(self, acc, wait_frag, nbg, k0=0, k1=28, kend=None):
        HFR, WB = 16, 128
        kend = kend or k1
        for k in range(k0, k1):
            if wait_frag:
                self.wvm('h%d' % k)
            self.wlg('w%d' % k)
            self.mfma(acc, WB + 8 * (k % 4), HFR + 4 * k, None if k == 0 else acc)
            if k + 3 < kend:
                self.zrd(k + 3)
            self.mfma(acc + 16, WB + 8 * (k % 4) + 4, HFR + 4 * k, None if k == 0 else acc + 16)
            self.bg(nbg)

    def p4(self):
        HFR, WB, A2, A1 = 16, 128, 160, 192
        KS = self.o.get('ks', 0)
        self.KS = KS
        self.vm, self.lg = [], []
        U0 = self.NA
        self.colsum_part(WIN2, (16, 44), 72, MISC)
        self('s_lshl_b32 %s, %s, 7\ns_add_u32 %s, %s, %d' % (s(t5), s(sRB), s(t5), s(t5), FLAG3))
        self.poll_first(s(t5), 14, 88)
        self('s_lshl_b32 %s, %s, 7' % (s(t2), s(sI)))
        w1 = self.image_ops(222, SB, 3584, s(t2), 0, 14, 'W1')
        self('s_mul_i32 %s, %s, 28672\ns_add_u32 %s, %s, %d' % (s(t2), s(sT), s(t2), s(t2), HF))
        self('s_lshl_b32 %s, %s, 12\ns_add_u32 %s, %s, %d' % (s(t3), s(sT), s(t3), s(t3), HST))
        self('v_mul_u32_u24 %s, 1792, %s\nv_lshl_add_u32 %s, %s, 3, %s' % (v(u4), v(vH), v(u4), v(vM), v(u4)))
        self('v_add_u32 %s, %d, %s\nv_add_u32 %s, %d, %s' % (v(u5), WIN2, v(vTRa), v(u6), WIN2, v(vTRb)))
        self('v_mov_b32 %s, %s\nv_mov_b32 %s, %s' % (v(u7), s(sK0), v(u8), s(sK0)))
        for k in range(3):
            self.zrd(k)
        self.wlg('csw')
        self.stamp('w1')
        self.poll(s(t5), 14, 88)
        self.stamp('s3')
        hl = self.frag_ops(HFR, 28, t2, 'h')
        hs = [lambda q=q: self.load(A1 + 2 * q, u4, WS, s(t3), q * 256, 'hs', n=2) for q in range(7)]
        self.q = hl + hs
        self.bg(11)
        self.colsum_get(224, MISC, vCS2)
        self.stamp('p4iss')
        self.zpass(A2, True, 1)
        self.stamp('z2mm')
        self('s_lshl_b32 %s, %s, 13\ns_add_u32 %s, %s, %d\ns_lshl_b32 %s, %s, 9\ns_add_u32 %s, %s, %s'
             % (s(t3), s(sT), s(t3), s(t3), ZST, s(t1), s(sI), s(t2), s(t3), s(t1)))
        self.wvm('hs')
        for q in range(1, 7):
            self('v_pk_add_f32 %s, %s, %s' % (v(A1, 2), v(A1, 2), v(A1 + 2 * q, 2)))
        self.xhalf_add2(A1, A1 + 2)
        self.mean_rstd(A1, A1 + 1, 448, A1 + 2, vRS)
        self.make_meanfrag(A1 + 2, A1 + 3)
        for ct in range(2):
            self.mfma(A2 + 16 * ct, vCS2 + 4 * ct, vMF, A2 + 16 * ct)
        self('v_mov_b32 %s, %s\nv_mov_b32 %s, %s\nv_lshlrev_b32 %s, 4, %s' % (v(u5), v(vTRa), v(u6), v(vTRb), v(u3), v(vM)))
        self('v_mov_b32 %s, %s\nv_mov_b32 %s, %s' % (v(A1 + 6), s(sNON), v(A1 + 7), s(sNON + 1)))
        self.q = w1
        self.bg(4)
        self.scale(A2, 32, vRS)
        self.bg(2)
        self.gelu(A2, 32, A1 + 8, 3)
        assert not self.q
        Z = A1 + 4
        self('v_pk_mul_f32 %s, %s, %s\nv_pk_add_f32 %s, %s, %s'
             % (v(A1, 2), v(A2, 2), v(A2, 2), v(Z, 2), v(A2, 2), v(A2 + 2, 2)))
        for k in range(2, 32, 2):
            self('v_pk_fma_f32 %s, %s, %s, %s' % (v(A1, 2), v(A2 + k, 2), v(A2 + k, 2), v(A1, 2)))
            if k > 2:
                self('v_pk_add_f32 %s, %s, %s' % (v(Z, 2), v(Z, 2), v(A2 + k, 2)))
        self('v_add_f32 %s, %s, %s\nv_add_f32 %s, %s, %s' % (v(Z), v(Z), v(Z + 1), v(Z + 1), v(A1), v(A1 + 1)))
        self.xhalf_add2(Z, A1)
        self('s_not_b64 exec, %s' % s(sHI, 2))
        self.local_stores(lambda sc: self.store(Z, u3, WS, s(t2), 0, 'zs', sc1=sc))
        self('s_mov_b64 exec, -1')
        self.stamp('zst')
        self('s_lshl_b32 %s, %s, 18\ns_lshl_b32 %s, %s, 12\ns_add_u32 %s, %s, %s\ns_add_u32 %s, %s, %d'
             % (s(t2), s(sI), s(t1), s(sT), s(t2), s(t2), s(t1), s(t2), s(t2), ZF))
        self('v_lshlrev_b32 %s, 2, %s\nv_xor_b32 %s, %s, %s\nv_lshlrev_b32 %s, 4, %s\nv_lshl_add_u32 %s, %s, 9, %s'
             % (v(u3), v(vH), v(u3), v(u3), v(vM), v(u3), v(u3), v(u3), v(vH), v(u3)))
        self('v_xor_b32 %s, 0x80, %s\nv_add_u32 %s, 1024, %s' % (v(u4), v(u3), v(u4), v(u4)))
        self('s_lshl_b32 %s, %s, 4\ns_add_u32 %s, %s, %s\ns_lshl_b32 %s, %s, 3\ns_add_u32 %s, %s, %d'
             % (s(t5), s(sI), s(t5), s(t5), s(sRB), s(t5), s(t5), s(t5), s(t5), FLAG5))
        self('v_mul_u32_u24 %s, 3584, %s\nv_lshl_add_u32 %s, %s, 4, %s\ns_mov_b32 %s, 0' % (v(u2), v(vH), v(u2), v(vM), v(u2), s(sCNT)))
        self.unit_addrs(232, 236, 's100', (RED, 8192))
        self.wvm('W1')
        self('s_barrier')
        gather = [lambda q=q: self.load(224 + 4 * q, u2, WS, s(t3), q * 512, 'zg', pfx='a') for q in range(7)]
        if self.o.get('gearly', 1):
            self.q = gather
            self.bg(99)
        self.colsum_part(0, (WB, A1), 224, MISC + 1024)
        self.q = ([] if self.o.get('gearly', 1) else gather) + sum((self.unit_ops(U0 + r, r, 232, 's100') for r in range(self.ND)), [])
        if KS:
            for k in range(3):
                self.zrd(k)
            self.zpass(A1, False, 2, 0, KS)
        self.bg(99)
        self.stamp('z1a')
        lp = self.lab('zs')
        self.wvm('zg')
        for q in range(28):
            self('v_accvgpr_read_b32 %s, a%d' % (v(WB + q), 224 + q))
        keepvm = list(self.vm)
        self('s_branch %s_c\n%s:' % (lp, lp))
        for q in range(7):
            self('buffer_load_dwordx4 %s, %s, %s, %s offen offset:%d sc1' % (v(WB + 4 * q, 4), v(u2), s(WS, 4), s(t3), q * 512))
        self('s_add_u32 %s, %s, 1\ns_waitcnt vmcnt(0)\n%s_c:' % (s(sCNT), s(sCNT), lp))
        for q in range(1, 7):
            self('v_xor_b32 %s, %s, %s\nv_xor_b32 %s, %s, %s' % (v(WB + 4 * q + 2), s(sNON), v(WB + 4 * q + 2),
                                                                v(WB + 4 * q + 3), s(sNON + 1), v(WB + 4 * q + 3)))
        self('v_or3_b32 %s, %s, %s, %s' % (v(u1), v(WB + 6), v(WB + 7), v(WB + 10)))
        for r in ((11, 14), (15, 18), (19, 22), (23, 26)):
            self('v_or3_b32 %s, %s, %s, %s' % (v(u1), v(u1), v(WB + r[0]), v(WB + r[1])))
        self('v_or_b32 %s, %s, %s\nv_cmp_ne_u64 %s, %s, %s\nv_cmp_ne_u32 vcc, 0, %s'
             % (v(u1), v(u1), v(WB + 27), s(t0, 2), s(sNON, 2), v(WB + 2, 2), v(u1)))
        for q in range(1, 7):
            self('v_pk_add_f32 %s, %s, %s' % (v(WB, 2), v(WB, 2), v(WB + 4 * q, 2)))
        self('s_or_b64 %s, %s, vcc' % (s(t0, 2), s(t0, 2)))
        self('s_cbranch_scc0 %s_d\ns_cmp_lt_u32 %s, %d\ns_cbranch_scc1 %s\n%s_d:' % (lp, s(sCNT), POLL_MAX, lp, lp))
        self.vm = keepvm
        self.stamp('s4')
        self.xhalf_add2(WB, WB + 2)
        self.mean_rstd(WB, WB + 1, 896, WB + 2, WB + 4)
        self('v_mul_f32 %s, -%s, %s' % (v(WB + 6), v(WB + 2), v(WB + 4)))
        for c in range(4):
            for k in range(8 * c, 8 * c + 8, 2):
                self('v_pk_fma_f32 %s, %s, %s, %s op_sel_hi:[1,0,0]' % (v(A2 + k, 2), v(A2 + k, 2), v(WB + 4, 2), v(WB + 6, 2)))
            self.pack(WB + 8 + 4 * c, A2 + 8 * c, 8)
            self.store(WB + 8 + 4 * c, u3 + (c & 1), WS, s(t2), (c >> 1) * 2048, 'st')
        if self.ND:
            self.wvm('U%d' % (U0 + self.ND - 1))
        for r in range(self.ND):
            self.unit_read(U0 + r, r, 236)
        self.wlg()
        self.publish(s(t5))
        self.stamp('p4pub')

    NZ, NW, WRING = 6, 6, 57344

    def p5(self):
        A1, ACC, ZB, WB, WD, WR, ZA, OD, FL = 192, 16, 48, 80, 160, 164, 168, 170, 172
        NZ, NW, WRING, SWO, KS = self.NZ, self.NW, self.WRING, self.SWO, self.KS
        order = []
        for k in range(14):
            order += [14 + k, k]
        order += [28, 29, 30, 31]
        self.vm, self.lg = [], []
        for k in range(KS, KS + 3):
            self.zrd(k)
        self.unit_addrs(WD, WR, s(t4), (WRING, NW * 4096))
        self.colsum_get(172, MISC + 1024, vCS1)

        def w_ops(r):
            return self.unit_ops(14 + r, r % NW, WD, s(t4))

        def z_ops(p):
            def first():
                self('s_add_u32 m0, %s, %d\ns_add_u32 %s, s82, %d\ns_and_b32 %s, %s, 0x3e000\ns_add_u32 %s, %s, %s'
                     % (s(t1), (p % NZ) * 8192, s(t0), order[p] * 8192, s(t0), s(t0), s(t0), s(t0), s(t2)))
                self.dma(vL16, WS, s(t0), 0, 'Z%d' % p, sc1=True)
            return [first, lambda: self.dma(vL16, WS, s(t0), 1024, 'Z%d' % p, sc1=True)]

        def o_ops(c):
            ops = []
            for hf in range(2):
                def first(hf=hf):
                    if c < 6:
                        self('s_add_u32 m0, %s, %d' % (s(t4), c * 4096 + hf * 2048))
                    else:
                        self('s_lshl_b32 %s, %s, 12\ns_add_u32 m0, %s, %d' % (s(t0), s(sW), s(t0), 16384 + hf * 2048))
                    self('s_mov_b32 %s, %d' % (s(t0), (32 * c + 16 * hf) * 896))
                    self.dma(OD, SWO, s(t0), 0, 'WT')
                ops += [first, lambda: self.dma(OD + 1, SWO, s(t0), 1024, 'WT')]
            return ops
        self.o_ops = o_ops
        self.q = sum((w_ops(r) for r in range(NW)), [])
        self.zpass(A1, False, 2 if KS > 4 else 1, KS, 28)
        self.bg(99)
        self.stamp('z1')
        for ct in range(2):
            self.mfma(A1 + 16 * ct, vCS1 + 4 * ct, vMF, A1 + 16 * ct)
        self('v_lshlrev_b32 %s, 16, %s' % (v(vBSP), v(vBSP)))
        self('v_bfe_u32 %s, v0, 4, 1\nv_and_b32 %s, 1, v0\nv_lshl_add_u32 %s, %s, 1, %s' % (v(u0), v(u1), v(u0), v(u0), v(u1)))
        self('v_lshlrev_b32 %s, 1, %s\nv_xor_b32 %s, %s, %s\nv_lshlrev_b32 %s, 6, %s\nv_lshl_add_u32 %s, %s, 9, %s'
             % (v(u1), v(vH), v(u1), v(u1), v(u0), v(u1), v(u1), v(u1), v(u0), v(u1)))
        self('v_bfe_u32 %s, v0, 2, 2\nv_lshl_add_u32 %s, %s, 4, %s\nv_bfe_u32 %s, v0, 1, 1\nv_lshl_add_u32 %s, %s, 3, %s'
             % (v(u0), v(u1), v(u0), v(u1), v(u0), v(ZA), v(u0), v(u1)))
        self('v_xor_b32 %s, 64, %s' % (v(ZA + 1), v(ZA)))
        self('s_lshl_b32 %s, %s, 7' % (s(t2), s(sCB)))
        self.image_ops(OD, SWO, 896, s(t2), 0, 28, 'WT')
        self('s_lshl_b32 %s, %s, 11\ns_lshl_b32 %s, %s, 18\ns_add_u32 %s, %s, %s\ns_add_u32 %s, %s, %d\ns_lshl_b32 s82, %s, 14'
             % (s(t1), s(sW), s(t2), s(sI), s(t2), s(t2), s(t1), s(t2), s(t2), ZF, s(sI)))
        self('s_lshl_b32 %s, %s, 7\ns_add_u32 %s, %s, %d' % (s(t5), s(sI), s(t5), s(t5), FLAG5))
        self.scale(A1, 32, vRS)
        GS = self.o.get('gs', 16)
        self.gelu(A1, GS - 8, 128, 0)
        self.poll_first(s(t5), 16, FL)
        self.gelu(A1 + GS - 8, 8, 128, 0)
        self.stamp('g1')
        self.poll(s(t5), 16, FL)
        self.stamp('s5')
        self.q = sum((z_ops(p) for p in range(NZ - 1)), [])
        self.bg(99)
        self.gelu(A1 + GS, 32 - GS, 128, 0)

        def rdz(g, ct):
            p, k = divmod(g, 4)
            off = (p % NZ) * 8192 + (k >> 1) * 4096 + (k & 1) * 256
            d = ZB + 8 * (g % 4) + 4 * ct
            self.tr(d, ZA, off + ct * 2048, 'g%d' % g)
            self.tr(d + 2, ZA + 1, off + ct * 2048, 'g%d' % g)

        def rdw(g):
            p, k = divmod(g, 4)
            if order[p] >= 14:
                self.lgi('ds_read_b128 %s, %s offset:%d' % (v(WB + 4 * (g % 4), 4), v(WR + k), ((order[p] - 14) % NW) * 4096), 'g%d' % g)

        def mm(g, ct):
            p, k = divmod(g, 4)
            c = None if g == 0 else ACC + 16 * ct
            if order[p] >= 14:
                self.mfma(ACC + 16 * ct, ZB + 8 * (g % 4) + 4 * ct, WB + 4 * (g % 4), c)
            else:
                self.mfma(ACC + 16 * ct, ZB + 8 * (g % 4) + 4 * ct, 16 * order[p] + 4 * k, c, pb='a')
        self.wvm('Z0')
        self('s_barrier')
        self.stamp('p5z0')
        for g in range(2):
            rdz(g, 0)
            rdz(g, 1)
            rdw(g)
        for g in range(128):
            p, k = divmod(g, 4)
            if g in (32, 64, 96):
                self.stamp('p5_%d' % g)
            self.wlg('g%d' % g)
            mm(g, 0)
            if k == 2 and p + 1 < 32:
                self.wvm('Z%d' % (p + 1))
                self.wvm('U%d' % order[p + 1])
                self('s_barrier')
                if p + NZ - 1 < 32:
                    self.q += z_ops(p + NZ - 1)
                if p >= 1 and order[p - 1] >= 14:
                    r = order[p - 1] - 14
                    self.q += w_ops(r + NW) if r + NW < 18 else o_ops(r % NW)
            if g + 2 < 128:
                rdz(g + 2, 0)
                rdw(g + 2)
            mm(g, 1)
            if g + 2 < 128:
                rdz(g + 2, 1)
            self.bg(1)
        self.bg(99)
        self.stamp('p5')
        self('s_mul_i32 %s, %s, 57344\ns_lshl_b32 %s, %s, 12\ns_add_u32 %s, %s, %s\ns_add_u32 %s, %s, %d'
             % (s(t2), s(sT), s(t1), s(sI), s(t2), s(t2), s(t1), s(t2), s(t2), UF))
        self('s_add_u32 %s, %s, %d' % (s(t5), s(sFID), FLAG6))
        e = vBSP & ~1
        for k in range(0, 32, 2):
            self('v_pk_add_f32 %s, %s, %s op_sel_hi:[1,0]' % (v(ACC + k, 2), v(ACC + k, 2), v(e, 2)))
            self('v_pk_mul_f32 %s, %s, %s' % (v(ACC + k, 2), v(ACC + k, 2), v(A1 + k, 2)))
        self.pack(ZB, ACC, 32)

        def st_(sc):
            for k in range(4):
                self.store(ZB + 4 * k, vL16, WS, s(t2), k * 1024, 'st', sc1=sc)
        st_(True)
        self.publish(s(t5), True)
        self.stamp('p5pub')

    def p6(self):
        FR, WB, ACC, AR, AZ, PA = 16, 128, 176, 208, 210, 212
        self.vm, self.lg = [], []
        self.q = self.o_ops(4) + self.o_ops(5) + self.o_ops(6)
        self.bg(99)
        self.slot_addrs(AR, 49152, self.WRING)
        self.slot_addrs(AZ, 8192, 16384)
        self.pair_addrs(PA, 0)
        self.srd(SA, P_OUT, 2048 * 896)
        self('s_mul_i32 %s, %s, %d\ns_lshl_b32 %s, %s, 7\ns_add_u32 %s, %s, %s\ns_lshl_b32 %s, %s, 6\ns_add_u32 %s, %s, %s'
             % (s(t3), s(sT3), 32 * 896, s(t1), s(sCB), s(t3), s(t3), s(t1), s(t1), s(sKH), s(t3), s(t3), s(t1)))
        self('v_mul_u32_u24 %s, 896, %s\nv_lshl_add_u32 %s, %s, 4, %s' % (v(u4), v(vM), v(u4), v(vH), v(u4)))
        self('s_mul_i32 %s, %s, 57344\ns_mul_i32 %s, %s, 28672\ns_add_u32 %s, %s, %s\ns_add_u32 %s, %s, %d'
             % (s(t2), s(sT3), s(t1), s(sKH), s(t2), s(t2), s(t1), s(t2), s(t2), UF))
        self('s_lshl_b32 %s, %s, 7\ns_add_u32 %s, %s, %d' % (s(t5), s(sRB), s(t5), s(t5), FLAG6))
        self.poll_first(s(t5), 14, 214)
        self.stamp('wout')
        self.poll(s(t5), 14, 214)
        self.stamp('s6')
        self.q = self.frag_ops(FR, 28, t2, 'f')
        self.bg(11)

        def rd(k, sl):
            hi, c = divmod(k >> 1, 7)
            if c < 6:
                adr, off = AR, hi * 24576 + c * 4096
            else:
                adr, off = AZ, hi * 4096
            self.trfrag(WB + 8 * (k % 4) + 4 * sl, adr + sl, off + (k & 1) * 2048, 'w%d' % k)
        for k in range(3):
            rd(k, 0)
            rd(k, 1)
        for k in range(28):
            self.wvm('f%d' % k)
            self.wlg('w%d' % k)
            for sl in range(2):
                self.mfma(ACC + 16 * sl, WB + 8 * (k % 4) + 4 * sl, FR + 4 * k, None if k == 0 else ACC + 16 * sl)
                if k + 3 < 28:
                    rd(k + 3, sl)
            self.bg(1)
        self.stamp('p6mm')
        self.pair_reduce(ACC, WB, PA, vHK, WB + 16)
        self.pack(WB, ACC, 16)
        self.store(WB, u4, SA, s(t3), 0, 'st', sc1=not self.o.get('outplain'))
        self.store(WB + 4, u4, SA, s(t3), 32, 'st', sc1=not self.o.get('outplain'))
        self.stamp('end', True)

    def build(self):
        stop = self.o.get('stop', 6)
        self.prologue()
        for k, ph in enumerate((self.p1, self.p2, self.p3, self.p4, self.p5, self.p6), 1):
            if k <= stop:
                ph()
        if self.o.get('padfrom') == 'tag':
            self('s_mov_b32 %s, %s' % (s(sPT), s(sNON)))
        if self.o.get('padfrom'):
            self('s_mov_b32 %s, 0\nL_hold:\ns_memrealtime s[78:79]\ns_add_u32 %s, %s, 1\ns_waitcnt lgkmcnt(0)' % (s(sCNT), s(sCNT), s(sCNT)))
            self('s_sub_u32 s78, s78, %s\ns_cmp_ge_u32 s78, 10000\ns_cbranch_scc1 L_fin\ns_cmp_lt_u32 %s, 100000\ns_cbranch_scc1 L_hold' % (s(sPT), s(sCNT)))
        self('L_fin:')
        self.stamp_flush()
        self('L_end:\ns_endpgm')
        if stop >= 2:
            self.att_slow()
        self('L_code_end:')
        npad = self.a.pad()
        errs = []
        for take in ((), ('L_p1_V',), ('L_p1_N',), ('L_att_slow',)):
            errs += self.a.check_waits(take)
        for e in sorted(set(errs)):
            print('WAITCHECK', e, file=sys.stderr)
        ref = open('cdna_kernels/%s.s.ref' % NAME).read().split('\n')
        head = [l for l in ref if l.startswith(';') and '@launch' not in l and 'Override' not in l and 'grid=ceil' not in l
                and l == l.lstrip()]
        out = '\n'.join(head) + '\n'
        if self.names:
            out += '; stamps: ' + ' '.join(self.names) + '\n'
        out += '; @launch grid=(256,1,1) block=(256,1,1) lds=%d\n' % LDS_BYTES
        out += '.amdgcn_target "amdgcn-amd-amdhsa--gfx950"\n.text\n.globl %s_kernel\n.p2align 8\n' % NAME
        out += '.type %s_kernel,@function\n%s_kernel:\n' % (NAME, NAME)
        out += self.a.text()
        out += '.section .rodata,"a"\n.p2align 6\n.amdhsa_kernel %s_kernel\n' % NAME
        out += ('  .amdhsa_next_free_vgpr 512\n  .amdhsa_next_free_sgpr 102\n  .amdhsa_accum_offset 256\n'
                '  .amdhsa_group_segment_fixed_size 0\n  .amdhsa_kernarg_size 88\n  .amdhsa_user_sgpr_count 2\n'
                '  .amdhsa_user_sgpr_kernarg_segment_ptr 1\n  .amdhsa_system_sgpr_workgroup_id_x 1\n'
                '.end_amdhsa_kernel\n')
        if self.o.get('showpads'):
            for k, x in enumerate(self.a.L):
                if x.note == 'pad':
                    print(k, x.text, '| prev:', self.a.L[k - 1].text, '| next:', self.a.L[k + 1].text, file=sys.stderr)
        print('instructions %d, pads %d, waitcheck errors %d' % (len(self.a.L), npad, len(set(errs))), file=sys.stderr)
        return out


if __name__ == '__main__':
    opt = {}
    dst = sys.argv[1]
    for a in sys.argv[2:]:
        k, _, val = a.partition('=')
        opt[k] = int(val) if val.isdigit() else (val or 1)
    open(dst, 'w').write(G(opt).build())
```

```python
import sys
import math
import struct
import copy
from asmlib import Asm

NAME = 'sequential_preLN__mha_block__mixer_gmlp__prompt'

FLAG2, FLAG3, FLAG6 = 0x1000, 0x2000, 0x3000
FLAG1, FLAG5 = 0x8000, 0xC000
ONES, PROF = 0x40000, 0x80000
ZST, HST = 0x100000, 0x180000
KF, VF, OF, HF, ZF, UF = 0x200000, 0x400000, 0x600000, 0x800000, 0xA00000, 0xE00000
WS_BYTES = 0x1200000

XB = 57344
WQB = 106496
MISC = 155648
RSX = 157696
WIN2 = 57344
RED = 114688
LDS_BYTES = 163840

P_X, P_WQKV, P_WO, P_WIN, P_WSP, P_BSP, P_WOUT, P_OUT, P_DBG, P_WS = 4, 6, 8, 12, 14, 16, 18, 20, 22, 24
sW, sRB, sI, sXCC, sNON, sFAST = 26, 27, 44, 45, 46, 48
WS, SA, SB, SC = 28, 32, 36, 40
sHI = 50
sONE2 = 52
sT = 54
sCB, sKH, sT3 = 55, 56, 57
sK0, sK1 = 58, 60
t0, t1, t2, t3, t4, t5, t6, t7 = 62, 63, 64, 65, 66, 67, 68, 69
sSAVE = 70
sCNT = 72
sPT = 70
sB = 76
sM0, sSO = 80, 81
sFID = 77

vL, vH, vM, vL16, vTRa, vTRb, vPM = 0, 1, 2, 3, 4, 5, 6
u0, u1, u2, u3, u4, u5, u6, u7, u8 = 7, 8, 9, 10, 11, 12, 13, 14, 15
vCS1, vCS2, vMF, vHK, vBSP, vRS, vGI = 224, 232, 240, 244, 252, 253, 6

POLL_MAX = 8000


def f32(x):
    return '0x%08x' % struct.unpack('<I', struct.pack('<f', x))[0]


def v(a, n=1):
    return 'v%d' % a if n == 1 else 'v[%d:%d]' % (a, a + n - 1)


def s(a, n=1):
    return 's%d' % a if n == 1 else 's[%d:%d]' % (a, a + n - 1)


class G:
    def __init__(self, opt):
        self.o = opt
        self.a = Asm()
        self.vm = []
        self.lg = []
        self.nlab = 0
        self.names = []
        self.q = []
        self.issued = set()
        self.fill = []
        self.NB, self.NC, self.ND = opt.get('nb', 0), opt.get('nc', 0), opt.get('nd', 2)
        self.NA = 14 - self.NB - self.NC - self.ND
        assert self.NA <= 13

    def __call__(self, t):
        self.a(t)

    def lab(self, p):
        self.nlab += 1
        return 'L_%s_%d' % (p, self.nlab)

    def vmi(self, text, tag):
        self.a(text)
        self.vm.append(tag)
        self.issued.add(tag)

    def lgi(self, text, tag):
        self.a(text)
        self.lg.append(tag)

    def _n(self, q, tag):
        idx = [k for k, t in enumerate(q) if t == tag]
        return None if not idx else len(q) - 1 - idx[-1]

    def wvm(self, tag=None):
        n = 0 if tag is None else self._n(self.vm, tag)
        assert tag is None or tag in self.issued, tag
        if n is None:
            return
        self.a('s_waitcnt vmcnt(%d)' % n)
        self.vm = self.vm[len(self.vm) - n:]

    def wlg(self, tag=None):
        n = 0 if tag is None else self._n(self.lg, tag)
        if n is None:
            return
        n = min(n, 15)
        self.a('s_waitcnt lgkmcnt(%d)' % n)
        self.lg = self.lg[len(self.lg) - n:]

    def srd(self, r, ptr, nbytes):
        self('s_mov_b32 %s, %s\ns_mov_b32 %s, %s\ns_mov_b32 %s, 0x%x\ns_mov_b32 %s, 0x20000'
             % (s(r), s(ptr), s(r + 1), s(ptr + 1), s(r + 2), nbytes, s(r + 3)))

    def bg(self, n=1):
        for _ in range(n):
            if self.q:
                self.q.pop(0)()

    def cap(self, fn):
        hold, self.a = self.a, Asm()
        fn()
        assert all(x.kind in ('valu', 'salu', 'nop') for x in self.a.L)
        lines = [x.text for x in self.a.L]
        self.a = hold
        out = []
        for l in lines:
            if out and l.startswith(('s_cselect', 's_subb', 's_addc')):
                out[-1] += '\n' + l
            else:
                out.append(l)
        return out

    def drip(self, n):
        for _ in range(n):
            if self.fill:
                self(self.fill.pop(0))

    def image_ops(self, va, srd, stride, col_soff, lds_base, ninstr, tag):
        self('v_lshrrev_b32 %s, 3, %s\nv_mul_u32_u24 %s, %d, %s' % (v(va), v(vL), v(va), stride, v(va)))
        self('v_bfe_u32 %s, %s, 4, 1\nv_lshlrev_b32 %s, 2, %s' % (v(va + 1), v(vL), v(va + 1), v(va + 1)))
        self('v_xor_b32 %s, %s, %s\nv_and_b32 %s, 7, %s' % (v(va + 1), v(va + 1), v(vL), v(va + 1), v(va + 1)))
        self('v_lshl_add_u32 %s, %s, 4, %s' % (v(va), v(va + 1), v(va)))
        self('s_mul_i32 %s, %s, %d\ns_add_u32 %s, %s, %s' % (s(t0), s(sW), ninstr * 8 * stride, s(t0), s(t0), col_soff))
        self('v_add_u32 %s, %s, %s\nv_add_u32 %s, %d, %s' % (v(va), s(t0), v(va), v(va + 1), 8 * stride - 1024, v(va)))
        ops = []
        for q in range(ninstr):
            def op(q=q):
                if q % 2 == 0:
                    if q == 0:
                        self('s_mul_i32 %s, %s, %d\ns_add_u32 m0, %s, %d\ns_mov_b32 %s, 0'
                             % (s(sM0), s(sW), ninstr * 1024, s(sM0), lds_base, s(sSO)))
                    else:
                        self('s_add_u32 m0, %s, %d\ns_mov_b32 %s, %d' % (s(sM0), lds_base + q * 1024, s(sSO), q * 8 * stride))
                self.dma(va + (q & 1), srd, s(sSO), (q & 1) * 1024, tag)
            ops.append(op)
        return ops

    def mfma(self, d, a_, b, c=None, pa='v', pb='v'):
        cs = '0' if c is None else v(c, 16)
        self('v_mfma_f32_32x32x16_bf16 %s, %s[%d:%d], %s[%d:%d], %s'
             % (v(d, 16), pa, a_, a_ + 3, pb, b, b + 3, cs))

    def mfsum(self, d, b, first, pb='v'):
        self('v_mfma_f32_16x16x32_bf16 %s, a[252:255], %s[%d:%d], %s' % (v(d, 4), pb, b, b + 3, '0' if first else v(d, 4)))

    def tr(self, dst, addr, off, tag):
        self.lgi('ds_read_b64_tr_b16 %s, %s offset:%d' % (v(dst, 2), v(addr), off), tag)

    def trfrag(self, dst, addr, off, tag, step=512):
        self.tr(dst, addr, off, tag)
        self.tr(dst + 2, addr, off + step, tag)

    def load(self, dst, voff, srd, soff, imm, tag, n=4, sc1=True, pfx='v'):
        op = {4: 'dwordx4', 2: 'dwordx2', 1: 'dword'}[n]
        d = '%s%d' % (pfx, dst) if n == 1 else '%s[%d:%d]' % (pfx, dst, dst + n - 1)
        self.vmi('buffer_load_%s %s, %s, %s, %s offen offset:%d%s'
                 % (op, d, v(voff), s(srd, 4), soff, imm, ' sc1' if sc1 else ''), tag)

    def dma(self, voff, srd, soff, imm, tag, sc1=False):
        self.vmi('buffer_load_dwordx4 %s, %s, %s offen offset:%d%s lds'
                 % (v(voff), s(srd, 4), soff, imm, ' sc1' if sc1 else ''), tag)

    def store(self, src, voff, srd, soff, imm, tag, n=4, sc1=True):
        op = {4: 'dwordx4', 2: 'dwordx2', 1: 'dword'}[n]
        self.vmi('buffer_store_%s %s, %s, %s, %s offen offset:%d%s'
                 % (op, v(src, n), v(voff), s(srd, 4), soff, imm,
                    ' sc1' if sc1 else (' ' + self.o['plainmod'] if srd == WS and self.o.get('plainmod') else '')), tag)

    def local_stores(self, emit):
        lp, lj = self.lab('plain'), self.lab('join')
        self('s_cmp_eq_u32 %s, 1\ns_cbranch_scc1 %s' % (s(sFAST), lp))
        keep = list(self.vm)
        emit(True)
        self('s_branch %s\n%s:' % (lj, lp))
        self.vm = keep
        emit(False)
        self('%s:' % lj)

    def publish(self, flag_soff, local=False, xcc=False, drain=True):
        if xcc:
            self('s_or_b32 %s, %s, %s\nv_mov_b32 %s, %s' % (s(t0), s(sNON), s(sXCC), v(u1), s(t0)))
        else:
            self('v_mov_b32 %s, %s' % (v(u1), s(sNON)))
        self('v_mov_b32 %s, %s\ns_cmp_eq_u32 %s, 0' % (v(u2), s(sNON + 1), s(sW)))
        if drain:
            self.wvm()
        self('s_barrier')
        sk = self.lab('pub')
        if local:
            self('s_cbranch_scc0 %s\ns_mov_b64 exec, 1' % sk)
            st = 'buffer_store_dwordx2 %s, v0, %s, %s offen' % (v(u1, 2), s(WS, 4), flag_soff)
            self.local_stores(lambda sc: self(st + (' sc1' if sc else '')))
        else:
            self('s_cbranch_scc0 %s\ns_mov_b64 exec, 15' % sk)
            self('buffer_store_dwordx4 %s, %s, %s, %s offen sc1' % (v(u1, 4), v(vL16), s(WS, 4), flag_soff))
        self('s_mov_b64 exec, -1\n%s:' % sk)

    def poll_first(self, flag_soff, nflags, reg, sh=3):
        self('v_cmp_gt_u32 vcc, %d, v0\nv_lshlrev_b32 %s, %d, v0\nv_cndmask_b32 %s, 0, %s, vcc' % (nflags, v(reg), sh, v(reg), v(reg)))
        self.load(reg, reg, WS, flag_soff, 0, 'flag', n=2)

    def poll(self, flag_soff, nflags, first=None, sh=3):
        sk, lp = self.lab('pollskip'), self.lab('poll')
        if first is not None:
            self.wvm('flag')
            self('v_cmp_ne_u64 vcc, %s, %s\ns_cbranch_vccz %s' % (s(sNON, 2), v(first, 2), sk))
        self('s_cmp_eq_u32 %s, 0\ns_cbranch_scc0 %s' % (s(sW), sk))
        self('v_lshlrev_b32 %s, %d, %s' % (v(u0), sh, v(vL)))
        self('s_mov_b64 exec, 0x%x' % ((1 << nflags) - 1))
        self('s_mov_b32 %s, 0\n%s:' % (s(sCNT), lp))
        self('buffer_load_dwordx2 %s, %s, %s, %s offen sc1' % (v(u1, 2), v(u0), s(WS, 4), flag_soff))
        self('s_add_u32 %s, %s, 1' % (s(sCNT), s(sCNT)))
        self('s_waitcnt vmcnt(0)')
        self('v_cmp_ne_u64 vcc, %s, %s' % (s(sNON, 2), v(u1, 2)))
        self('s_cbranch_vccz %s_d' % lp)
        self('s_cmp_lt_u32 %s, %d\ns_cbranch_scc1 %s' % (s(sCNT), POLL_MAX, lp))
        self('%s_d:\ns_mov_b64 exec, -1\n%s:' % (lp, sk))
        self('s_barrier')

    def stamp(self, name, real=False):
        if self.o.get('padfrom') == name:
            self('s_memrealtime %s\ns_waitcnt lgkmcnt(0)' % s(sPT, 2))
            self.lg = []
        if not self.o.get('prof'):
            return
        if name not in self.names:
            self.names.append(name)
        k = self.names.index(name)
        assert k < 62
        self('s_memtime s[78:79]\ns_waitcnt lgkmcnt(0)\nv_writelane_b32 v255, s78, %d' % k)
        self.lg = []
        if self.o['prof'] == 2:
            self('s_memrealtime s[78:79]\ns_waitcnt lgkmcnt(0)\nv_writelane_b32 v254, s78, %d' % k)
        if real:
            self('s_memrealtime s[78:79]\ns_waitcnt lgkmcnt(0)\nv_writelane_b32 v255, s78, %d' % (62 if k == 0 else 63))

    def stamp_flush(self):
        if not self.o.get('prof'):
            return
        self('s_lshl_b32 %s, %s, 2\ns_add_u32 %s, %s, %s\ns_lshl_b32 %s, %s, 8\ns_add_u32 %s, %s, %d'
             % (s(t7), s(sB), s(t7), s(t7), s(sW), s(t7), s(t7), s(t7), s(t7), PROF))
        self('v_lshlrev_b32 v7, 2, v0\nbuffer_store_dword v255, v7, %s, %s offen' % (s(WS, 4), s(t7)))
        self('s_add_u32 %s, %s, 0x40000\nbuffer_store_dword v254, v7, %s, %s offen' % (s(t7), s(t7), s(WS, 4), s(t7)))

    def xhalf_add(self, r, tmp):
        self('v_mov_b32 %s, %s\nv_permlane32_swap_b32 %s, %s\nv_add_f32 %s, %s, %s'
             % (v(tmp), v(r), v(tmp), v(r), v(r), v(r), v(tmp)))

    def xhalf_add2(self, r, tmp):
        self('v_mov_b32 %s, %s\nv_mov_b32 %s, %s\ns_nop 0\nv_permlane32_swap_b32 %s, %s\nv_permlane32_swap_b32 %s, %s'
             % (v(tmp), v(r), v(tmp + 1), v(r + 1), v(tmp), v(r), v(tmp + 1), v(r + 1)))
        self('v_add_f32 %s, %s, %s\nv_add_f32 %s, %s, %s' % (v(r), v(r), v(tmp), v(r + 1), v(r + 1), v(tmp + 1)))

    def mean_rstd(self, vsum, vsq, n, mean, rstd):
        self('v_mul_f32 %s, %s, %s' % (v(mean), f32(1.0 / n), v(vsum)))
        self('v_mul_f32 %s, %s, %s' % (v(rstd), f32(1.0 / n), v(vsq)))
        self('v_fma_f32 %s, -%s, %s, %s' % (v(rstd), v(mean), v(mean), v(rstd)))
        self('v_max_f32 %s, 0, %s\nv_add_f32 %s, %s, %s' % (v(rstd), v(rstd), v(rstd), f32(1e-5), v(rstd)))
        self('v_rsq_f32 %s, %s' % (v(rstd), v(rstd)))

    def make_meanfrag(self, mean, tmp):
        self('v_sub_f32 %s, 0, %s\nv_cndmask_b32 %s, %s, 0, %s' % (v(tmp), v(mean), v(tmp), v(tmp), s(sHI, 2)))
        self('v_cvt_pk_bf16_f32 %s, %s, 0\nv_lshlrev_b32 %s, 16, %s' % (v(vMF + 1), v(tmp), v(vMF), v(vMF + 1)))
        self('v_sub_f32 %s, %s, %s\nv_cvt_pk_bf16_f32 %s, %s, %s' % (v(vMF), v(tmp), v(vMF), v(vMF), v(tmp), v(vMF)))
        self('v_mov_b32 %s, 0\nv_mov_b32 %s, 0' % (v(vMF + 2), v(vMF + 3)))

    def make_csfrag(self, cs, dst):
        self('v_cvt_pk_bf16_f32 %s, %s, %s\nv_and_b32 %s, 0xffff0000, %s' % (v(dst), v(cs), v(cs), v(dst + 1), v(dst)))
        self('v_sub_f32 %s, %s, %s\nv_cvt_pk_bf16_f32 %s, %s, 0' % (v(dst + 1), v(cs), v(dst + 1), v(dst + 1), v(dst + 1)))
        self('v_mov_b32 %s, 0\nv_mov_b32 %s, 0' % (v(dst + 2), v(dst + 3)))

    def colsum_put(self, c0, c1, xch):
        self('s_lshl_b32 %s, %s, 2\ns_add_u32 %s, %s, %d\nv_lshl_add_u32 %s, %s, 4, %s'
             % (s(t0), s(sW), s(t0), s(t0), xch, v(u0), v(vM), s(t0)))
        self.lgi('ds_write_b32 %s, %s' % (v(u0), v(c0)), 'csw')
        self.lgi('ds_write_b32 %s, %s offset:512' % (v(u0), v(c1)), 'csw')

    def colsum_part(self, base, bufs, acc, xch):
        self('s_mul_i32 %s, %s, 14336\ns_add_u32 %s, %s, %d' % (s(t0), s(sW), s(t0), s(t0), base))
        self('v_add_u32 %s, %s, %s\nv_add_u32 %s, %s, %s' % (v(u0), s(t0), v(vTRa), v(u1), s(t0), v(vTRb)))
        for q in range(7):
            for ct in range(2):
                self.trfrag(bufs[ct] + 4 * q, u0 + ct, q * 2048, 'cs%d' % q)
        for q in range(7):
            self.wlg('cs%d' % q)
            for ct in range(2):
                self.mfsum(acc + 4 * ct, bufs[ct] + 4 * q, q == 0)
        self.colsum_put(acc, acc + 4, xch)

    def colsum_get(self, buf, xch, dst):
        self('v_lshlrev_b32 %s, 4, %s' % (v(u0), v(vM)))
        self('v_add_u32 %s, %d, %s' % (v(u0), xch, v(u0)))
        for ct in range(2):
            self.lgi('ds_read_b128 %s, %s offset:%d' % (v(buf + 4 * ct, 4), v(u0), ct * 512), 'csr')
        self.wlg('csr')
        for ct in range(2):
            b = buf + 4 * ct
            self('v_add_f32 %s, %s, %s\nv_add_f32 %s, %s, %s\nv_add_f32 %s, %s, %s'
                 % (v(b), v(b), v(b + 1), v(b + 2), v(b + 2), v(b + 3), v(b), v(b), v(b + 2)))
            self.make_csfrag(b, dst + 4 * ct)

    def rowtile_dma_addrs(self, stride, vd, sbase):
        self('v_lshrrev_b32 %s, 3, %s\nv_mul_u32_u24 %s, %d, %s' % (v(u0), v(vL), v(u0), stride, v(u0)))
        self('v_lshrrev_b32 %s, 4, %s\nv_xor_b32 %s, %s, %s\nv_and_b32 %s, 7, %s'
             % (v(u1), v(vL), v(u1), v(u1), v(vL), v(u1), v(u1)))
        self('v_lshl_add_u32 %s, %s, 4, %s\nv_xor_b32 %s, 64, %s' % (v(u0), v(u1), v(u0), v(u1), v(u0)))
        self('v_add_u32 %s, %s, %s\nv_add_u32 %s, %s, %s' % (v(vd), sbase, v(u0), v(u1), sbase, v(u1)))
        d = 8 * stride - 1024
        self('v_add_u32 %s, %d, %s\nv_add_u32 %s, %d, %s\nv_add_u32 %s, %d, %s'
             % (v(vd + 1), d, v(u1), v(vd + 2), 2 * d, v(vd), v(vd + 3), 3 * d, v(u1)))

    def rowtile_read_addrs(self, vr, sbase, sxor=None):
        self('v_bfe_u32 %s, %s, 1, 3\nv_xor_b32 %s, %s, %s' % (v(u1), v(vM), v(u1), v(u1), v(vH)))
        self('v_lshlrev_b32 %s, 4, %s\nv_lshl_add_u32 %s, %s, 7, %s' % (v(u1), v(u1), v(u1), v(vM), v(u1)))
        if sxor:
            self('v_xor_b32 %s, %s, %s' % (v(u1), sxor, v(u1)))
        for k in range(4):
            self('v_xor_b32 %s, %d, %s\nv_add_u32 %s, %s, %s' % (v(vr + k), 32 * k, v(u1), v(vr + k), sbase, v(vr + k)))

    def gelu_consts(self):
        self('v_mul_f32 %s, %s, %s\nv_mul_f32 %s, %s, %s\nv_rcp_f32 %s, %s' % (v(u7), s(sK0), v(vRS), v(u8), v(vRS), v(vRS), v(vGI), v(vRS)))
        self('v_mul_f32 %s, %s, %s\nv_mul_f32 %s, %s, %s' % (v(u8), v(u8), v(vRS), v(u8), s(sK1), v(u8)))

    def gelu(self, x, n, tmp, nbg):
        for b in range(0, n, 8):
            for k in range(0, 8, 2):
                self('v_pk_mul_f32 %s, %s, %s' % (v(tmp + k, 2), v(x + b + k, 2), v(x + b + k, 2)))
            for k in range(0, 8, 2):
                self('v_pk_fma_f32 %s, %s, %s, %s op_sel:[0,1,0] op_sel_hi:[1,1,0]' % (v(tmp + k, 2), v(tmp + k, 2), v(u7, 2), v(u7, 2)))
            for k in range(0, 8, 2):
                self('v_pk_mul_f32 %s, %s, %s' % (v(tmp + k, 2), v(tmp + k, 2), v(x + b + k, 2)))
            for k in range(8):
                self('v_exp_f32 %s, %s' % (v(tmp + k), v(tmp + k)))
            for k in range(0, 8, 2):
                self('v_pk_fma_f32 %s, %s, %s, %s op_sel_hi:[1,0,0]' % (v(tmp + k, 2), v(tmp + k, 2), v(vGI, 2), v(vGI, 2)))
            for k in range(8):
                self('v_rcp_f32 %s, %s' % (v(tmp + k), v(tmp + k)))
            self.bg(nbg)
            for k in range(0, 8, 2):
                self('v_pk_mul_f32 %s, %s, %s' % (v(x + b + k, 2), v(x + b + k, 2), v(tmp + k, 2)))

    def scale(self, x, n, r):
        e = r & ~1
        sel = 'op_sel:[0,1] op_sel_hi:[1,1]' if r & 1 else 'op_sel_hi:[1,0]'
        for k in range(0, n, 2):
            self('v_pk_mul_f32 %s, %s, %s %s' % (v(x + k, 2), v(x + k, 2), v(e, 2), sel))

    def pack(self, dst, x, n):
        for k in range(0, n, 2):
            self('v_cvt_pk_bf16_f32 %s, %s, %s' % (v(dst + k // 2), v(x + k), v(x + k + 1)))

    XF, ACC1, GR, SUM, CSA, XD, XR, WD, WT, QD, NONV, SAD, TB = 16, 128, 160, 176, 180, 188, 192, 196, 198, 206, 208, 210, 214
    sROT = 49

    def prologue(self):
        XD, WD = self.XD, self.WD
        self('s_cmp_ge_u32 s2, 256\ns_cbranch_scc1 L_end')
        self.stamp('start', True)
        self('s_load_dwordx16 s[4:19], s[0:1], 0\ns_load_dwordx4 s[20:23], s[0:1], 64\ns_load_dwordx2 s[24:25], s[0:1], 80')
        self('v_lshrrev_b32 v1, 6, v0\nv_and_b32 v0, 63, v0\nv_readfirstlane_b32 %s, v1\ns_mov_b32 %s, s2' % (s(sW), s(sB)))
        if self.o.get('map', 'local') == 'q48':
            self('s_bfe_u32 %s, s2, 0x20001\ns_lshl_b32 %s, %s, 2\ns_lshr_b32 %s, s2, 6\ns_add_u32 %s, %s, %s'
                 % (s(t0), s(t0), s(t0), s(t1), s(sRB), s(t0), s(t1)))
            self('s_bfe_u32 %s, s2, 0x30003\ns_lshl_b32 %s, %s, 1\ns_and_b32 %s, s2, 1\ns_add_u32 %s, %s, %s'
                 % (s(sCB), s(t0), s(sCB), s(t2), s(sI), s(t0), s(t2)))
            self('s_lshl_b32 %s, %s, 1\ns_add_u32 %s, %s, %s' % (s(t1), s(t1), s(t1), s(t1), s(sCB)))
        else:
            self('s_and_b32 %s, s2, 7\ns_lshl_b32 %s, %s, 1\ns_lshr_b32 %s, s2, 7\ns_add_u32 %s, %s, %s'
                 % (s(t0), s(t0), s(t0), s(t1), s(sRB), s(t0), s(t1)))
            self('s_bfe_u32 %s, s2, 0x40003\ns_lshr_b32 %s, %s, 1\ns_mul_i32 %s, %s, 3\ns_add_u32 %s, %s, %s'
                 % (s(sI), s(sCB), s(sI), s(t1), s(t1), s(t1), s(t1), s(sCB)))
        self('s_cmp_ge_u32 %s, 7\ns_cselect_b32 %s, 7, 0\ns_sub_u32 %s, %s, %s' % (s(t1), s(t0), s(self.sROT), s(t1), s(t0)))
        self('s_lshl_b32 %s, %s, 2\ns_add_u32 %s, %s, %s\ns_mul_i32 %s, %s, %d' % (s(sT), s(sRB), s(sT), s(sT), s(sW), s(t2), s(sT), 32 * 896))
        self.rowtile_dma_addrs(896, XD, s(t2))
        self('v_lshrrev_b32 %s, 3, v0\nv_mul_u32_u24 %s, 2688, %s\nv_bfe_u32 %s, v0, 4, 1\nv_lshlrev_b32 %s, 2, %s'
             % (v(u0), v(u0), v(u0), v(u1), v(u1), v(u1)))
        self('v_xor_b32 %s, %s, v0\nv_and_b32 %s, 7, %s\nv_lshl_add_u32 %s, %s, 4, %s' % (v(u1), v(u1), v(u1), v(u1), v(u0), v(u1), v(u0)))
        self('s_mul_i32 %s, %s, 43008\ns_lshl_b32 %s, %s, 7\ns_add_u32 %s, %s, %s\ns_add_u32 %s, %s, 896\ns_lshl_b32 %s, %s, 11'
             % (s(t0), s(sW), s(t1), s(sI), s(t0), s(t0), s(t1), s(t0), s(t0), s(t3), s(sW)))
        self('v_add_u32 %s, %s, %s\nv_add_u32 %s, %d, %s' % (v(WD), s(t0), v(u0), v(WD + 1), 8 * 2688 - 1024, v(WD)))
        self('s_mul_i32 %s, %s, 12288\ns_add_u32 %s, %s, %d' % (s(t4), s(sW), s(t4), s(t4), XB))
        self('s_mov_b32 %s, 0x%x\ns_mov_b32 %s, 0x20000\ns_mov_b32 %s, 0x%x\ns_mov_b32 %s, 0x20000'
             % (s(SA + 2), 2048 * 896, s(SA + 3), s(SB + 2), 448 * 2688, s(SB + 3)))
        self('s_mov_b32 %s, %s' % (s(t5), s(self.sROT)))
        self('s_waitcnt lgkmcnt(0)')
        self('s_mov_b32 %s, %s\ns_mov_b32 %s, %s\ns_mov_b32 %s, %s\ns_mov_b32 %s, %s'
             % (s(SA), s(P_X), s(SA + 1), s(P_X + 1), s(SB), s(P_WQKV), s(SB + 1), s(P_WQKV + 1)))

    def setup2(self):
        XR, WT, QD = self.XR, self.WT, self.QD
        self.srd(WS, P_WS, WS_BYTES)
        self.srd(SC, P_DBG, 256)
        sk = self.lab('non')
        self('s_or_b32 %s, %s, %s\ns_cmp_eq_u32 %s, 0\ns_cbranch_scc0 %s' % (s(t0), s(sB), s(sW), s(t0), sk))
        self('s_memrealtime %s\ns_waitcnt lgkmcnt(0)\ns_lshl_b64 %s, %s, 4\ns_or_b32 %s, %s, 0x80000000' % (s(t6, 2), s(t6, 2), s(t6, 2), s(t7), s(t7)))
        self('v_mov_b32 %s, %s\nv_mov_b32 %s, %s\nv_lshlrev_b32 %s, 3, v0\ns_mov_b64 exec, 255' % (v(u1), s(t6), v(u2), s(t7), v(u0)))
        self('buffer_store_dwordx2 %s, %s, %s, 0 offen sc1\ns_mov_b64 exec, -1\n%s:' % (v(u1, 2), v(u0), s(SC, 4), sk))
        lp = self.lab('pc')
        self('s_getpc_b64 %s\n%s:\ns_sub_u32 %s, %s, %s-%s_kernel\ns_subb_u32 %s, %s, 0' % (s(84, 2), lp, s(84), s(84), lp, NAME, s(85), s(85)))
        self('s_mov_b32 s86, L_code_end-%s_kernel\ns_mov_b32 s87, 0x20000' % NAME)
        self('s_lshr_b32 %s, %s, 3\ns_lshl_b32 %s, %s, 2\ns_add_u32 %s, %s, %s\ns_lshl_b32 %s, %s, 9\nv_lshlrev_b32 %s, 3, v0'
             % (s(t0), s(sB), s(t0), s(t0), s(t0), s(t0), s(sW), s(t0), s(t0), v(u0)))
        self.load(250, u0, 84, s(t0), 0, 'code', n=2, sc1=False, pfx='a')
        self('s_getreg_b32 %s, hwreg(HW_REG_XCC_ID, 0, 4)' % s(sXCC))
        self('s_mov_b32 %s, 0\ns_mov_b32 %s, -1\ns_mov_b32 %s, 0x3f803f80' % (s(sHI), s(sHI + 1), s(sONE2)))
        k0 = -2.0 * math.sqrt(2.0 / math.pi) * math.log2(math.e)
        self('s_mov_b32 %s, %s' % (s(sK0), f32(k0)))
        self('s_mov_b32 %s, %s\ns_mov_b32 %s, %s' % (s(sK1), f32(k0 * 0.044715), s(sK1 + 1), f32(k0 * 0.044715)))
        self('s_lshl_b32 %s, %s, 4\ns_add_u32 %s, %s, %s\ns_lshl_b32 %s, %s, 3' % (s(sFID), s(sRB), s(sFID), s(sFID), s(sI), s(sFID), s(sFID)))
        self('s_and_b32 %s, %s, 1\ns_lshl_b32 %s, %s, 1\ns_lshr_b32 %s, %s, 1' % (s(t1), s(sI), s(t1), s(t1), s(sKH), s(sW)))
        self('s_lshl_b32 %s, %s, 2\ns_add_u32 %s, %s, %s\ns_and_b32 %s, %s, 1\ns_add_u32 %s, %s, %s'
             % (s(sT3), s(sRB), s(sT3), s(sT3), s(t1), s(t0), s(sW), s(sT3), s(sT3), s(t0)))
        self('v_lshrrev_b32 %s, 5, v0\nv_and_b32 %s, 31, v0\nv_lshlrev_b32 %s, 4, v0' % (v(vH), v(vM), v(vL16)))
        self('v_bfe_u32 %s, v0, 2, 2\nv_lshl_add_u32 %s, %s, 3, %s\nv_lshlrev_b32 %s, 7, %s'
             % (v(u0), v(u1), v(vH), v(u0), v(vTRa), v(u1)))
        self('v_bfe_u32 %s, v0, 4, 1\nv_and_b32 %s, 1, v0\nv_lshl_add_u32 %s, %s, 1, %s' % (v(u1), v(u2), v(u1), v(u1), v(u2)))
        self('v_bfe_u32 %s, v0, 3, 1\nv_lshlrev_b32 %s, 2, %s\nv_xor_b32 %s, %s, %s' % (v(u2), v(u2), v(u2), v(u2), v(u2), v(u1)))
        self('v_lshl_add_u32 %s, %s, 4, %s\nv_bfe_u32 %s, v0, 1, 1\nv_lshl_add_u32 %s, %s, 3, %s'
             % (v(vTRa), v(u2), v(vTRa), v(u2), v(vTRa), v(u2), v(vTRa)))
        self('v_xor_b32 %s, 64, %s' % (v(vTRb), v(vTRa)))
        self('v_and_b32 %s, 0x13, %s\nv_bfe_u32 %s, v0, 2, 1\nv_lshl_or_b32 %s, %s, 3, %s'
             % (v(vPM), v(vM), v(u0), v(vPM), v(u0), v(vPM)))
        self('v_bfe_u32 %s, v0, 3, 1\nv_lshl_or_b32 %s, %s, 2, %s' % (v(u1), v(vPM), v(u1), v(vPM)))
        self('v_bfe_u32 %s, v0, 4, 1\nv_cmp_eq_u32 vcc, %s, %s\nv_mov_b32 %s, %s\nv_cndmask_b32 %s, 0, %s, vcc'
             % (v(u1), v(u0), v(u1), v(u1), s(sONE2), v(u1), v(u1)))
        for k in range(4):
            self('v_accvgpr_write_b32 a%d, %s' % (252 + k, v(u1)))
        self('s_lshl_b32 %s, %s, 5' % (s(t1), s(sW)))
        self.rowtile_read_addrs(XR, s(t4), s(t1))
        for k in range(4):
            self('s_xor_b32 %s, %s, %d\nv_or_b32 %s, %s, %s\nv_or_b32 %s, %s, %s'
                 % (s(t0), s(t3), k * 2048, v(WT + 2 * k), s(t0), v(vTRa), v(WT + 2 * k + 1), s(t0), v(vTRb)))
        self('s_mul_i32 %s, %s, 56\ns_and_b32 %s, %s, 1\ns_lshl_b32 %s, %s, 3\ns_sub_u32 %s, %s, %s'
             % (s(t0), s(sI), s(t1), s(sI), s(t1), s(t1), s(t0), s(t0), s(t1)))
        self('v_lshrrev_b32 %s, 2, v0\nv_mul_u32_u24 %s, 2688, %s\nv_and_b32 %s, 3, v0\nv_lshl_add_u32 %s, %s, 4, %s'
             % (v(u0), v(u0), v(u0), v(u1), v(QD), v(u1), v(u0)))
        self('s_mul_i32 %s, %s, 43008\ns_add_u32 %s, %s, %s\nv_add_u32 %s, %s, %s\ns_lshl_b32 s82, %s, 10'
             % (s(t1), s(sW), s(t0), s(t0), s(t1), v(QD), s(t0), v(QD), s(sW)))

    def p1_variant(self, kind):
        XF, ACC, GR, SUM, CSA, XD, XR, WD, WT, QD, NONV, SAD, TB = (
            self.XF, self.ACC1, self.GR, self.SUM, self.CSA, self.XD, self.XR, self.WD, self.WT, self.QD,
            self.NONV, self.SAD, self.TB)
        kv = kind != 'N'

        def wreg(j, k, ct):
            return 32 * (j & 1) + 8 * k + 4 * ct

        def step(reg):
            self('s_add_u32 %s, %s, 1\ns_cmp_eq_u32 %s, 7\ns_cselect_b32 %s, 0, %s' % (s(reg), s(reg), s(reg), s(reg), s(reg)))

        def block_ops(j):
            ops = []
            if kv:
                def w_():
                    self('s_add_u32 m0, %s, %d\ns_mul_i32 %s, %s, %d' % (s(t3), j * 8192, s(t0), s(t5), 64 * 2688))
                    self.dma(WD, SB, s(t0), 0, 'B%d' % j)
                ops += [w_, lambda: self.dma(WD + 1, SB, s(t0), 1024, 'B%d' % j)]

            def x_():
                self('s_add_u32 m0, %s, %d\ns_lshl_b32 %s, %s, 7' % (s(t4), (j % 3) * 4096, s(t0), s(t5)))
                self.dma(XD, SA, s(t0), 0, 'B%d' % j)
            ops.append(x_)
            for rg in range(1, 4):
                ops.append(lambda rg=rg: self.dma(XD + rg, SA, s(t0), rg * 1024, 'B%d' % j))
            ops.append(lambda: step(t5))
            return ops

        def wq_op(j):
            self('s_add_u32 m0, s82, %d\ns_mul_i32 %s, %s, %d' % (WQB + j * 4096, s(t0), s(t5), 64 * 2688))
            self.dma(QD, SB, s(t0), 0, 'WQ')
            step(t5)
        if kind == 'C':
            self.q = block_ops(0) + block_ops(1)
            self.bg(99)
            self.stamp('p1dma')
            keep = list(self.vm)
            self.setup2()
            self.vm = keep + ['code']
            return
        if kind == 'K':
            self('s_lshl_b32 %s, %s, 3\nv_add_u32 %s, %s, %s\ns_mov_b32 %s, 225792\ns_mul_i32 %s, %s, 3584\ns_add_u32 %s, %s, %d'
                 % (s(t0), s(sI), v(u0), s(t0), v(vH), s(t1), s(t2), s(sT), s(t2), s(t2), KF))
            for k in range(4):
                self('v_add_u32 %s, %d, %s\nv_mul_u32_u24 %s, 37, %s\nv_lshrrev_b32 %s, 8, %s'
                     % (v(u1), 2 * k, v(u0), v(u2), v(u1), v(u2), v(u2)))
                self('v_mul_lo_u32 %s, %s, %s\nv_lshl_add_u32 %s, %s, 9, %s\nv_lshl_add_u32 %s, %s, 4, %s'
                     % (v(u2), v(u2), s(t1), v(u2), v(u1), v(u2), v(SAD + k), v(vM), v(u2)))
        elif kind == 'V':
            self('s_sub_u32 %s, %s, 7\ns_lshl_b32 %s, %s, 6\ns_mov_b32 %s, %d\ns_mul_i32 %s, %s, 1792\ns_add_u32 %s, %s, %d'
                 % (s(t0), s(sI), s(t0), s(t0), s(t1), 114688 - 448, s(t2), s(sT), s(t2), s(t2), VF))
            for ct in range(2):
                self('v_add_u32 %s, %s, %s\nv_add_u32 %s, %d, %s\nv_mul_u32_u24 %s, 2341, %s\nv_lshrrev_b32 %s, 16, %s'
                     % (v(u2), s(t0), v(vPM), v(u2), 32 * ct, v(u2), v(u3), v(u2), v(u3), v(u3)))
                self('v_mul_lo_u32 %s, %s, %s\nv_lshl_add_u32 %s, %s, 4, %s\nv_mul_u32_u24 %s, 448, %s\nv_add_u32 %s, %s, %s'
                     % (v(u3), v(u3), s(t1), v(u3), v(u2), v(u3), v(u2), v(vH), v(SAD + ct), v(u3), v(u2)))
            self('s_lshl_b32 %s, %s, 7\ns_add_u32 %s, %s, %d' % (s(t0), s(sW), s(t0), s(t0), RSX))
            self('v_lshl_add_u32 %s, %s, 2, %s\nv_lshl_add_u32 %s, %s, 4, %s' % (v(SAD + 2), v(vM), s(t0), v(SAD + 3), v(vH), s(t0)))
        self.stamp('p1iss')

        def stat_mf(j, k):
            x_ = XF + 16 * j + 4 * k
            first = j == 0 and k == 0
            return [lambda: self.mfma(GR, x_, x_, None if first else GR), lambda: self.mfsum(SUM, x_, first)]

        def main_mf(j, k):
            x_ = XF + 16 * j + 4 * k
            out = []
            for ct in range(2):
                def f(ct=ct):
                    c = None if j == 0 and k == 0 else ACC + 16 * ct
                    if ct == 0:
                        self.wlg('w%d_%d' % (j, k))
                    if kind == 'K':
                        self.mfma(ACC + 16 * ct, wreg(j, k, ct), x_, c, pa='a')
                    else:
                        self.mfma(ACC + 16 * ct, x_, wreg(j, k, ct), c, pb='a')
                out.append(f)
            return out

        def cs_mf(j):
            return [lambda ct=ct: self.mfsum(CSA + 4 * ct, wreg(j, 0, ct), j == 0, pb='a') for ct in range(2)]

        def side_ops(j):
            def head():
                self.wvm('B%d' % j)
                if kv:
                    self('s_barrier')
            side = [head]
            for k in range(4):
                side.append(lambda k=k: self.lgi('ds_read_b128 %s, %s offset:%d' % (
                    v(XF + 16 * j + 4 * k, 4), v(XR + k), (j % 3) * 4096), 'xf%d' % j))
            dm = block_ops(j + 2) if j + 2 < 7 else [lambda q=q: wq_op(q) for q in (range(4) if j == 5 else range(4, 7))]
            if j == 3:
                def non():
                    self('v_mov_b32 %s, 0' % v(u0))
                    self.load(NONV, u0, SC, '0', 0, 'nonl', n=2)
                dm.append(non)
            if kv:
                for k in range(4):
                    for ct in range(2):
                        def rd(k=k, ct=ct):
                            w_ = wreg(j, k, ct)
                            for e in range(2):
                                self.lgi('ds_read_b64_tr_b16 a[%d:%d], %s offset:%d' % (
                                    w_ + 2 * e, w_ + 2 * e + 1, v(WT + 2 * k + ct), j * 8192 + 512 * e), 'w%d_%d' % (j, k))
                        side.append(rd)
                        if dm:
                            side.append(dm.pop(0))
            return side + dm
        self.q = side_ops(0)
        self.bg(99)
        for j in range(7):
            if j in (0, 3, 6):
                self.stamp('p1x%d' % j)
            self.wlg('xf%d' % j)
            self.q = side_ops(j + 1) if j < 6 else []
            seq = []
            if j < 6:
                for k in range(4):
                    st = stat_mf(j, k)
                    seq += ([st[0]] + main_mf(j, k) + [st[1]]) if kv else st
                    if kv and k == 0:
                        seq += cs_mf(j)
                for g, f in enumerate(seq):
                    f()
                    if g >= 1:
                        self.bg(2)
                self.bg(99)
            else:
                for k in range(4):
                    for f in stat_mf(j, k):
                        f()
                if kv:
                    self.wlg('w6_0')
                    for f in cs_mf(j):
                        f()
                hold, self.a = self.a, Asm()
                self.diag(GR, u2)
                self.mean_rstd(SUM, u2, 448, u3, vRS)
                self.make_meanfrag(u3, u4)
                tail = [x.text for x in self.a.L]
                self.a = hold
                if kv:
                    mm = sum((main_mf(j, k) for k in range(4)), [])
                    mm[0]()
                    mm[1]()
                    self.colsum_put(CSA, CSA + 4, MISC)
                    for g in range(2, 8):
                        mm[g]()
                        self('\n'.join(tail[6 * (g - 2):6 * (g - 2) + 6]))
                    self('\n'.join(tail[36:]))
                else:
                    self('\n'.join(tail))
        self.stamp('p1mm')
        if not kv:
            self('s_lshl_b32 %s, %s, 1\ns_add_u32 %s, %s, %s\ns_sub_u32 %s, %s, 14\ns_lshl_b32 %s, %s, 2\ns_add_u32 %s, %s, %s'
                 % (s(t0), s(sRB), s(t0), s(t0), s(sI), s(t0), s(t0), s(t0), s(t0), s(t0), s(t0), s(sW)))
            self.srd(SA, P_WO, 448 * 896)
            self('s_lshl_b32 %s, %s, 12' % (s(t1), s(t0)))
            for q in range(4):
                self.load(64 + 4 * q, vL16, SA, s(t1), q * 1024, 'pf', sc1=False, pfx='a')
            self.srd(SA, P_WIN, 448 * 3584)
            self('s_mul_i32 %s, %s, 13312' % (s(t1), s(t0)))
            for q in range(13):
                if q and q % 4 == 0:
                    self('s_add_u32 %s, %s, 4096' % (s(t1), s(t1)))
                self.load(80 + 4 * q, vL16, SA, s(t1), (q % 4) * 1024, 'pf', sc1=False, pfx='a')
            return
        if kind == 'V':
            self.lgi('ds_write_b32 %s, %s' % (v(SAD + 2), v(vRS)), 'rs')
        self.wlg()
        self('s_barrier')
        if kind == 'V':
            for g in range(4):
                self.lgi('ds_read_b128 %s, %s offset:%d' % (v(TB + 4 * g, 4), v(SAD + 3), 32 * g), 'rs')
        self.colsum_get(GR, MISC, vCS2)
        for ct in range(2):
            if kind == 'K':
                self.mfma(ACC + 16 * ct, vCS2 + 4 * ct, vMF, ACC + 16 * ct)
            else:
                self.mfma(ACC + 16 * ct, vMF, vCS2 + 4 * ct, ACC + 16 * ct)
        for c in range(4):
            if kind == 'K':
                self.scale(ACC + 8 * c, 8, vRS)
            else:
                for k in range(0, 8, 2):
                    r = ACC + 8 * c + k
                    self('v_pk_mul_f32 %s, %s, %s' % (v(r, 2), v(r, 2), v(TB + 8 * (c & 1) + k, 2)))
            self.pack(GR + 4 * c, ACC + 8 * c, 8)
            if kind == 'K':
                self.store(GR + 4 * c, SAD + c, WS, s(t2), 0, 'st')
            else:
                self.store(GR + 4 * c, SAD + (c >> 1), WS, s(t2), (c & 1) * 896, 'st')

    def diag(self, g, dst):
        masks = (0xaaaaaaaa, 0xcccccccc, 0xff00ff00, 0xffff0000)
        n = 16
        for m in masks:
            self('s_mov_b32 vcc_lo, 0x%x\ns_mov_b32 vcc_hi, 0x%x' % (m, m))
            n //= 2
            for k in range(n):
                self('v_cndmask_b32 %s, %s, %s, vcc' % (v(g + k), v(g + 2 * k), v(g + 2 * k + 1)))
        self('v_mov_b32 %s, %s\ns_mov_b32 vcc_lo, 0xf0f0f0f0\ns_mov_b32 vcc_hi, 0xf0f0f0f0\nv_permlane32_swap_b32 %s, %s'
             % (v(g + 1), v(g), v(g), v(g + 1)))
        self('v_cndmask_b32 %s, %s, %s, vcc' % (v(dst), v(g), v(g + 1)))

    def p1(self):
        XF, ACC, GR, SUM, WT, NONV, TB = self.XF, self.ACC1, self.GR, self.SUM, self.WT, self.NONV, self.TB
        self.p1_variant('C')
        vm0 = list(self.vm)
        self('s_cmp_ge_u32 %s, 14\ns_cbranch_scc1 L_p1_N\ns_cmp_ge_u32 %s, 7\ns_cbranch_scc1 L_p1_V' % (s(sI), s(sI)))
        for kind in 'KVN':
            self('L_p1_%s:' % kind)
            self.vm, self.lg = list(vm0), []
            self.p1_variant(kind)
            if kind != 'N':
                self('s_branch L_p1_join')
        self('L_p1_join:')
        self.stamp('p1st')
        EC = self.o.get('ec', 5)
        self.vm = ['any']
        if EC:
            self.cold_setup()
            self.bg(EC)
            rest = self.q
        lp = self.lab('tag')
        self('s_mov_b32 %s, 0\ns_lshl_b32 %s, %s, 3\ns_add_u32 %s, %s, %d\ns_waitcnt vmcnt(%d)\n%s:' % (s(sCNT), s(t5), s(sFID), s(t5), s(t5), FLAG1, EC, lp))
        self('v_readfirstlane_b32 %s, %s\nv_readfirstlane_b32 %s, %s' % (s(sNON), v(NONV), s(sNON + 1), v(NONV + 1)))
        self('s_cmp_lg_u32 %s, 0\ns_cbranch_scc1 %s_d' % (s(sNON + 1), lp))
        self('v_mov_b32 %s, 0\nbuffer_load_dwordx2 %s, %s, %s, 0 offen sc1' % (v(u0), v(NONV, 2), v(u0), s(SC, 4)))
        self('s_add_u32 %s, %s, 1\ns_waitcnt vmcnt(0)\ns_cmp_lt_u32 %s, %d\ns_cbranch_scc1 %s\n%s_d:'
             % (s(sCNT), s(sCNT), s(sCNT), POLL_MAX, lp, lp))
        self.vm, self.lg = self.vm[1:], []
        self.publish(s(t5), xcc=True, drain=False)
        self.stamp('p1pub')
        self('s_lshl_b32 %s, %s, 10\ns_add_u32 %s, %s, %d' % (s(t0), s(sB), s(t0), s(t0), ONES))
        for k in range(4):
            self('v_mov_b32 %s, %s' % (v(TB + k), s(sONE2)))
        self.store(TB, vL16, WS, s(t0), 0, 'ones')
        self('v_bfe_u32 %s, v0, 2, 2\nv_lshl_add_u32 %s, %s, 3, %s\nv_lshlrev_b32 %s, 6, %s' % (v(u0), v(u0), v(vH), v(u0), v(u0), v(u0)))
        self('v_bfe_u32 %s, v0, 4, 1\nv_lshl_add_u32 %s, %s, 5, %s\nv_and_b32 %s, 1, v0\nv_lshl_add_u32 %s, %s, 4, %s'
             % (v(u1), v(u0), v(u1), v(u0), v(u1), v(u0), v(u1), v(u0)))
        self('v_bfe_u32 %s, v0, 1, 1\nv_lshl_add_u32 %s, %s, 3, %s' % (v(u1), v(u0), v(u1), v(u0)))
        for k in range(4):
            self('s_xor_b32 %s, %s, %d\ns_lshl_b32 %s, %s, 10\ns_add_u32 %s, %s, %d\nv_add_u32 %s, %s, %s'
                 % (s(t0), s(sW), k, s(t0), s(t0), s(t0), s(t0), WQB, v(WT + k), s(t0), v(u0)))

        def qrd(j, k):
            for e in range(2):
                r = 16 * (j & 1) + 4 * k + 2 * e
                self.lgi('ds_read_b64_tr_b16 a[%d:%d], %s offset:%d' % (r, r + 1, v(WT + k), j * 4096 + 256 * e), 'q%d_%d' % (j, k))
        for k in range(4):
            qrd(0, k)
        if EC:
            self.q = rest
        else:
            self.cold_setup()
        for j in range(7):
            for k in range(4):
                self.wlg('q%d_%d' % (j, k))
                r = 16 * (j & 1) + 4 * k
                self.mfma(ACC, r, XF + 16 * j + 4 * k, None if j + k == 0 else ACC, pa='a')
                if j < 6:
                    qrd(j + 1, k)
                self.mfsum(SUM, r, j + k == 0, pb='a')
                if k & 1 or j < 2:
                    self.bg(1)
        assert not self.q
        self('v_mul_f32 %s, %s, %s' % (v(u3), f32(math.log2(math.e) / math.sqrt(28.0)), v(vRS)))
        self('s_bitcmp1_b32 %s, 0\ns_cselect_b64 %s, -1, 0' % (s(sI), s(t0, 2)))
        self('s_andn2_b64 %s, %s, %s\ns_andn2_b64 %s, %s, %s' % (s(t2, 2), s(t0, 2), s(sHI, 2), s(t4, 2), s(sHI, 2), s(t0, 2)))
        self('s_lshl_b32 %s, %s, 11\ns_add_u32 %s, %s, %d\nv_add_u32 %s, %s, %s' % (s(t0), s(sW), s(t0), s(t0), MISC, v(u0), s(t0), v(vL16)))
        self.make_csfrag(SUM, vCS2)
        self.mfma(ACC, vCS2, vMF, ACC)
        self.scale(ACC, 16, u3)
        self.pack(GR, ACC, 16)
        for k in range(2):
            self('v_cndmask_b32 %s, %s, 0, %s\nv_cndmask_b32 %s, %s, 0, %s'
                 % (v(GR + k), v(GR + k), s(t2, 2), v(GR + 6 + k), v(GR + 6 + k), s(t4, 2)))
        self.lgi('ds_write_b128 %s, %s' % (v(u0), v(GR, 4)), 'qw')
        self.lgi('ds_write_b128 %s, %s offset:1024' % (v(u0), v(GR + 4, 4)), 'qw')
        self.p2_setup()
        self.wlg()
        self.vm_s1 = list(self.vm)
        self.stamp('q')
        WF = ACC
        sk, lp = self.lab('s1skip'), self.lab('s1')
        self('s_cmp_eq_u32 %s, 0\ns_cbranch_scc0 %s\ns_mov_b32 %s, 0\nv_lshlrev_b32 %s, 6, v0\n%s:' % (s(sW), sk, s(sCNT), v(WF + 8), lp))
        for k in range(4):
            self('s_mov_b32 %s, %d\nbuffer_load_dwordx2 %s, %s, %s, %s offen sc1' % (s(t0), FLAG1 + 4096 * k, v(WF + 2 * k, 2), v(WF + 8), s(WS, 4), s(t0)))
        self('s_add_u32 %s, %s, 1\ns_waitcnt vmcnt(0)' % (s(sCNT), s(sCNT)))
        for k in range(4):
            self('v_and_b32 %s, -16, %s' % (v(WF + 2 * k), v(WF + 2 * k)))
        for k in range(4):
            self('v_cmp_ne_u64 %s, %s, %s' % (('vcc', s(t0, 2), s(t2, 2), s(t6, 2))[k], s(sNON, 2), v(WF + 2 * k, 2)))
        self('s_or_b64 %s, %s, vcc\ns_or_b64 %s, %s, %s\ns_or_b64 %s, %s, %s'
             % (s(t0, 2), s(t0, 2), s(t2, 2), s(t2, 2), s(t6, 2), s(t0, 2), s(t0, 2), s(t2, 2)))
        self('s_cbranch_scc0 %s\ns_cmp_lt_u32 %s, %d\ns_cbranch_scc1 %s\n%s:\ns_barrier' % (sk, s(sCNT), POLL_MAX, lp, sk))
        self.stamp('s1')

    Q, O, S, P, KV, VOV, VST = 16, 48, 112, 144, 152, 217, 218

    def kv_addr(self, wave_split):
        VOV, VST = self.VOV, self.VST
        self('s_lshr_b32 %s, %s, 1\ns_mul_i32 %s, %s, 229376\ns_and_b32 %s, %s, 1\ns_mul_i32 %s, %s, 1536\ns_add_u32 %s, %s, %s'
             % (s(t0), s(sI), s(t4), s(t0), s(t0), s(sI), s(t0), s(t0), s(t4), s(t4), s(t0)))
        self('s_add_u32 %s, %s, %d\ns_mul_i32 %s, %s, 114688\ns_add_u32 %s, %s, %d' % (s(t4), s(t4), KF, s(t1), s(sI), s(t1), s(t1), VF))
        if wave_split:
            self('s_mul_i32 %s, %s, %d\ns_add_u32 %s, %s, %s\ns_mul_i32 %s, %s, %d\ns_add_u32 %s, %s, %s'
                 % (s(t0), s(sW), 16 * 3584, s(t4), s(t4), s(t0), s(t0), s(sW), 16 * 1792, s(t1), s(t1), s(t0)))
        self('v_mul_u32_u24 %s, 448, %s\nv_lshl_add_u32 %s, %s, 4, %s\nv_add_u32 %s, %s, %s'
             % (v(u0), v(vH), v(u0), v(vPM), v(u0), v(u0), s(t1), v(u0)))
        self('s_lshl_b32 %s, %s, 10\ns_add_u32 %s, %s, %d' % (s(t0), s(sB), s(t0), s(t0), ONES))
        self('v_mov_b32 %s, %s\nv_cmp_lt_u32 vcc, 28, %s\nv_mov_b32 %s, 0x7ff00000\nv_cndmask_b32 %s, %s, %s, vcc'
             % (v(u1), s(t0), v(vM), v(u2), v(u1), v(u1), v(u2)))
        self('v_mov_b32 %s, 1792\nv_cmp_gt_u32 vcc, 28, %s' % (v(u2), v(vM)))
        self('v_cndmask_b32 %s, %s, %s, vcc\nv_cndmask_b32 %s, 0, %s, vcc' % (v(VOV), v(u1), v(u0), v(VST), v(u2)))

    RW, QA, PD, PR = 226, 230, 234, 238
    SX, SBS, SSP, SWO = 84, 88, 92, 96

    def unit_addrs(self, pd, pr, sbase, stride):
        self('s_lshl_b32 %s, %s, 17\ns_mul_i32 %s, %s, %d\ns_add_u32 %s, %s, %d'
             % (s(t0), s(sT), sbase, s(sW), stride[1], sbase, sbase, stride[0]))
        self.rowtile_dma_addrs(4096, pd, s(t0))
        self.rowtile_read_addrs(pr, sbase)

    def unit_ops(self, u, slot, pd, sbase):
        def first():
            self('s_add_u32 m0, %s, %d\ns_add_u32 s101, s83, %d\ns_and_b32 s101, s101, 0xf80' % (sbase, slot * 4096, u * 128))
            self.dma(pd, self.SSP, 's101', 0, 'U%d' % u)
        return [first] + [lambda rg=rg: self.dma(pd + rg, self.SSP, 's101', rg * 1024, 'U%d' % u) for rg in range(1, 4)]

    def unit_read(self, u, slot, pr):
        for k in range(4):
            self.lgi('ds_read_b128 a[%d:%d], %s offset:%d' % (16 * u + 4 * k, 16 * u + 4 * k + 3, v(pr + k), slot * 4096), 'ur')

    def cold_setup(self):
        SX, SBS, SSP, SWO = self.SX, self.SBS, self.SSP, self.SWO
        self.srd(SX, P_X, 2048 * 896)
        self.srd(SBS, P_BSP, 4096)
        self.srd(SSP, P_WSP, 2048 * 4096)
        self.srd(SWO, P_WOUT, 896 * 896)
        self('s_mul_i32 %s, %s, %d\ns_lshl_b32 %s, %s, 7\ns_add_u32 %s, %s, %s\ns_lshl_b32 %s, %s, 6\ns_add_u32 %s, %s, %s'
             % (s(t0), s(sT3), 32 * 896, s(t1), s(sCB), s(t0), s(t0), s(t1), s(t1), s(sKH), s(t0), s(t0), s(t1)))
        self('v_mul_u32_u24 v224, 896, %s\nv_lshl_add_u32 v224, %s, 4, v224\nv_add_u32 v224, %s, v224' % (v(vM), v(vH), s(t0)))
        self('s_lshl_b32 %s, %s, 6\nv_lshl_add_u32 %s, %s, 1, %s' % (s(t0), s(sT), v(vBSP), v(vM), s(t0)))
        self('s_lshl_b32 %s, %s, 2\ns_add_u32 %s, %s, %s\ns_lshl_b32 %s, %s, 13\ns_lshl_b32 %s, %s, 19\ns_add_u32 %s, %s, %s\nv_add_u32 v225, %s, %s'
             % (s(t0), s(sI), s(t0), s(t0), s(sW), s(t0), s(t0), s(t1), s(sRB), s(t0), s(t0), s(t1), s(t0), v(vL16)))
        self('s_lshl_b32 %s, %s, 2\ns_add_u32 %s, %s, %s\ns_lshl_b32 s82, %s, 10\ns_lshl_b32 s83, %s, 8\ns_movk_i32 s101, 4096'
             % (s(t0), s(sB), s(t0), s(t0), s(sW), s(t0), s(sI)))
        self.q = [lambda q=q: self.load(216 + 4 * q, 225, SSP, 's101' if q >= 4 else '0', (q % 4) * 1024, 'pf', sc1=False, pfx='a')
                  for q in range(8)]
        self.q += [lambda: self.load(248, vL16, SWO, 's82', 0, 'pf', sc1=False, pfx='a'),
                   lambda: self.load(vHK, 224, SX, '0', 0, 'pf', sc1=False),
                   lambda: self.load(vHK + 4, 224, SX, '0', 32, 'pf', sc1=False),
                   lambda: self.vmi('buffer_load_ushort %s, %s, %s, 0 offen' % (v(vBSP), v(vBSP), s(SBS, 4)), 'pf')]
        self('s_lshl_b32 %s, %s, 15\ns_lshl_b32 %s, %s, 11\ns_add_u32 %s, %s, %s\ns_add_u32 s73, %s, %d'
             % (s(t0), s(sT), s(t1), s(sI), s(t2), s(t0), s(t1), s(t2), OF))
        self('s_lshl_b32 %s, %s, 13\ns_lshl_b32 %s, %s, 9\ns_add_u32 %s, %s, %s\ns_add_u32 %s, %s, %d\ns_lshl_b32 %s, %s, 7'
             % (s(t0), s(sT), s(t1), s(sI), s(t0), s(t0), s(t1), s(t0), s(t0), ZST - 512, s(t1), s(sRB)))
        self('v_and_b32 v222, 3, v0\nv_lshlrev_b32 v222, 12, v222\nv_add_u32 v222, %d, v222\nv_add_u32 v222, %s, v222' % (FLAG2, s(t1)))
        self('v_add_u32 v223, %s, %s\nv_cndmask_b32 v222, v222, v223, %s' % (s(t0), v(vL16), s(sHI, 2)))
        self.q.insert(0, lambda: self.load(208, 222, WS, '0', 0, 'pf', n=1, pfx='a'))

    def p2_setup(self):
        RW = self.RW
        self.kv_addr(True)
        self.srd(SA, P_WO, 448 * 896)
        self.srd(SB, P_WIN, 448 * 3584)
        self('s_lshl_b32 %s, %s, 7' % (s(t2), s(sCB)))
        wo = self.image_ops(220, SA, 896, s(t2), 0, 14, 'pf')
        self('s_lshl_b32 %s, %s, 7\ns_add_u32 %s, %s, 1792' % (s(t2), s(sI), s(t2), s(t2)))
        win = self.image_ops(222, SB, 3584, s(t2), WIN2, 14, 'pf')
        for j in range(4):
            self('s_add_u32 %s, %s, %d\ns_and_b32 %s, %s, 3\ns_mul_i32 %s, %s, 12288\ns_add_u32 %s, %s, %d\nv_add_u32 %s, %s, %s'
                 % (s(t0), s(sW), j + 1, s(t0), s(t0), s(t1), s(t0), s(t1), s(t1), RED + 4096 * (j % 3), v(RW + j), s(t1), v(vL16)))
            self('s_lshl_b32 %s, %s, 11\ns_add_u32 %s, %s, %d\nv_add_u32 %s, %s, %s' % (s(t0), s(t0), s(t0), s(t0), MISC, v(self.QA + j), s(t0), v(vL16)))
        self.unit_addrs(self.PD, self.PR, 's100', (RED, 12288))
        self('s_lshl_b32 %s, %s, 10\ns_add_u32 %s, %s, %d\nv_and_b32 v219, 15, v0\nv_lshl_add_u32 v219, v219, 6, %s'
             % (s(t0), s(sRB), s(t0), s(t0), FLAG1, s(t0)))
        self.att_img = [wo[k:k + 2] for k in range(0, 14, 2)] + [win[k:k + 2] for k in range(0, 14, 2)]

    def p2(self):
        Q, O, S, P, KV, VOV, VST, RW = self.Q, self.O, self.S, self.P, self.KV, self.VOV, self.VST, self.RW
        self.vm, self.lg = self.vm_s1, []
        self.wvm('ones')

        def kvload(it):
            b = KV + 16 * (it % 4)
            self.load(b, vL16, WS, s(t4), 0, 'K%d' % it)
            self.load(b + 4, vL16, WS, s(t4), 1024, 'K%d' % it)
            self.load(b + 8, VOV, WS, '0', 0, 'V%d' % it)
            self.load(b + 12, VOV, WS, '0', 896, 'V%d' % it)
            if it < 15:
                self('s_add_u32 %s, %s, 3584\nv_add_u32 %s, %s, %s' % (s(t4), s(t4), v(VOV), v(VST), v(VOV)))
        kvload(0)
        for j in range(4):
            self.lgi('ds_read_b128 %s, %s' % (v(Q + 8 * j, 4), v(self.QA + j)), 'q')
            self.lgi('ds_read_b128 %s, %s offset:1024' % (v(Q + 8 * j + 4, 4), v(self.QA + j)), 'q')
        kvload(1)
        kvload(2)
        self.wlg()
        self('s_barrier')
        wait_kv = self.wvm
        NA = self.NA
        self.stamp('a_iss')
        wait_kv('K0')
        self.stamp('a_k0')
        self.mfma(S, KV, Q, None)
        self.mfma(S, KV + 4, Q + 4, S)
        for n in range(64):
            it, j = divmod(n, 4)
            Sc, Sn = S + 16 * (n & 1), S + 16 * ((n + 1) & 1)
            ex = ['v_exp_f32 %s, %s' % (v(Sc + k), v(Sc + k)) for k in range(16)]
            pk = ['v_cvt_pk_bf16_f32 %s, %s, %s' % (v(P + k), v(Sc + 2 * k), v(Sc + 2 * k + 1)) for k in range(8)]
            nit, nj = divmod(n + 1, 4)
            pit, pj = divmod(n - 1, 4)
            kb, vb = KV + 16 * (nit % 4), KV + 16 * (pit % 4) + 8

            def qk(t):
                if n + 1 < 64:
                    if t == 0 and nj == 0:
                        wait_kv('K%d' % nit)
                    self.mfma(Sn, kb + 4 * t, Q + 8 * nj + 4 * t, Sn if t else None)

            def pv(t):
                if n > 0:
                    if t == 0 and pj == 0:
                        wait_kv('V%d' % pit)
                    c = None if (pit == 0 and t == 0) else O + 16 * pj
                    self.mfma(O + 16 * pj, vb + 4 * t, P + 4 * t, c)
            qk(0)
            self('\n'.join(ex[0:4]))
            pv(0)
            self('\n'.join(ex[4:8] + pk[0:2]))
            qk(1)
            self('\n'.join(ex[8:12] + pk[2:4]))
            pv(1)
            self('\n'.join(ex[12:16] + pk[4:8]))
            if j == 0 and it + 3 < 16:
                kvload(it + 3)
            if j == 1 and 0 <= it - 3 < NA:
                self.wvm('U%d' % (it - 3))
                self.unit_read(it - 3, it % 3, self.PR)
            if j == 2 and 0 <= it - 1 < NA:
                if it >= 4:
                    self.wlg()
                for op in self.unit_ops(it - 1, (it - 1) % 3, self.PD, 's100'):
                    op()
            if n == 2:
                self.load(219, 219, WS, '0', 0, 'pur', n=1)
            if j == 3 and 1 <= it <= 14:
                for op in self.att_img[it - 1]:
                    op()
            if n == 61 and NA:
                self.wlg()
                self('s_barrier')
            if n in (15, 31, 47):
                self.stamp('a%d' % n)
        self.mfma(O + 48, KV + 16 * 3 + 8, P, O + 48)
        self.mfma(O + 48, KV + 16 * 3 + 12, P + 4, O + 48)
        self.stamp('att')
        for j in range(3):
            for q in range(4):
                self.lgi('ds_write_b128 %s, %s offset:%d' % (v(RW + j), v(O + 16 * j + 4 * q, 4), q * 1024), 'rw')
        self('v_and_b32 v219, 15, v219\nv_cmp_ne_u32 vcc, %s, v219\ns_cmp_eq_u64 vcc, 0\ns_cselect_b32 %s, %d, 0'
             % (s(sXCC), s(sFAST), 0 if self.o.get('slowsync') else 1))
        self.wlg()
        self('s_barrier')
        for k in range(12):
            self.lgi('ds_read_b128 %s, %s offset:%d' % (v(O + 4 * k, 4), v(RW + 3), k * 1024), 'r%d' % (k // 4))
        A = O + 48
        for j in range(3):
            self.wlg('r%d' % j)
            for k in range(0, 16, 2):
                self('v_pk_add_f32 %s, %s, %s' % (v(A + k, 2), v(A + k, 2), v(O + 16 * j + k, 2)))
        self.stamp('red')
        self('L_att_norm:')
        self('v_mov_b32 %s, %s\nv_mov_b32 %s, %s\nv_permlane32_swap_b32 %s, %s' % (v(u0), v(A + 12), v(u1), v(A + 12), v(u0), v(u1)))
        self('v_cmp_gt_f32 vcc, %s, %s\ns_mov_b64 %s, vcc\nv_cmp_lt_f32 vcc, %s, %s\ns_and_b64 vcc, vcc, %s'
             % (f32(2.0 ** 40), v(u1), s(t0, 2), f32(2.0 ** -40), v(u1), s(t0, 2)))
        force = self.o.get('force_fallback')
        self('s_cmp_eq_u64 vcc, %s\ns_cbranch_scc0 L_att_slow\nL_att_ok:' % ('0' if force else '-1'))
        self('v_rcp_f32 %s, %s' % (v(u1), v(u1)))
        self.scale(A, 16, u1)
        self.pack(P, A, 16)
        self('v_cndmask_b32 %s, %s, 0, %s\nv_cndmask_b32 %s, %s, 0, %s' % (v(P + 6), v(P + 6), s(sHI, 2), v(P + 7), v(P + 7), s(sHI, 2)))
        self.vm = ['any']

        def st(sc):
            self.store(P, vL16, WS, 's73', 0, 'st', sc1=sc)
            self.store(P + 4, vL16, WS, 's73', 1024, 'st', sc1=sc)
        st(True)
        self('s_add_u32 %s, %s, %d' % (s(t5), s(sFID), FLAG2))
        self.publish(s(t5), True)
        self.stamp('p2pub')
        self('s_cmp_ge_u32 %s, 14\ns_cbranch_scc1 L_fin' % s(sI))

    def att_slow(self):
        Q, O, S, P, KV, VOV, VST = self.Q, self.O, self.S, self.P, self.KV, self.VOV, self.VST
        A, Qo = O + 48, Q + 24
        self('L_att_slow:\ns_waitcnt vmcnt(0)')
        self.kv_addr(False)
        self('s_mov_b32 %s, %s\nv_mov_b32 %s, 0xff800000\ns_mov_b32 %s, 0\nL_slow1:' % (s(t5), s(t4), v(u3), s(sCNT)))
        self('buffer_load_dwordx4 %s, %s, %s, %s offen sc1' % (v(KV, 4), v(vL16), s(WS, 4), s(t5)))
        self('buffer_load_dwordx4 %s, %s, %s, %s offen offset:1024 sc1' % (v(KV + 4, 4), v(vL16), s(WS, 4), s(t5)))
        self('s_add_u32 %s, %s, 3584\ns_waitcnt vmcnt(0)' % (s(t5), s(t5)))
        self.mfma(S, KV, Qo, None)
        self.mfma(S, KV + 4, Qo + 4, S)
        for k in range(0, 16, 2):
            self('v_max3_f32 %s, %s, %s, %s' % (v(u3), v(u3), v(S + k), v(S + k + 1)))
        self('s_add_u32 %s, %s, 1\ns_cmp_lt_u32 %s, 64\ns_cbranch_scc1 L_slow1' % (s(sCNT), s(sCNT), s(sCNT)))
        self('v_mov_b32 %s, %s\nv_permlane32_swap_b32 %s, %s\nv_max_f32 %s, %s, %s' % (v(u4), v(u3), v(u4), v(u3), v(u3), v(u3), v(u4)))
        for k in range(16):
            self('v_mov_b32 %s, 0' % v(A + k))
        self('s_mov_b32 %s, 0\nL_slow2:' % s(sCNT))
        self('buffer_load_dwordx4 %s, %s, %s, %s offen sc1' % (v(KV, 4), v(vL16), s(WS, 4), s(t4)))
        self('buffer_load_dwordx4 %s, %s, %s, %s offen offset:1024 sc1' % (v(KV + 4, 4), v(vL16), s(WS, 4), s(t4)))
        self('buffer_load_dwordx4 %s, %s, %s, 0 offen sc1' % (v(KV + 8, 4), v(VOV), s(WS, 4)))
        self('buffer_load_dwordx4 %s, %s, %s, 0 offen offset:896 sc1' % (v(KV + 12, 4), v(VOV), s(WS, 4)))
        self('s_add_u32 %s, %s, 3584\nv_add_u32 %s, %s, %s\ns_waitcnt vmcnt(0)' % (s(t4), s(t4), v(VOV), v(VST), v(VOV)))
        self.mfma(S, KV, Qo, None)
        self.mfma(S, KV + 4, Qo + 4, S)
        for k in range(16):
            self('v_sub_f32 %s, %s, %s' % (v(S + k), v(S + k), v(u3)))
        for k in range(16):
            self('v_exp_f32 %s, %s' % (v(S + k), v(S + k)))
        self.pack(P, S, 16)
        self.mfma(A, KV + 8, P, A)
        self.mfma(A, KV + 12, P + 4, A)
        self('s_add_u32 %s, %s, 1\ns_cmp_lt_u32 %s, 64\ns_cbranch_scc1 L_slow2' % (s(sCNT), s(sCNT), s(sCNT)))
        self('v_mov_b32 %s, %s\nv_mov_b32 %s, %s\nv_permlane32_swap_b32 %s, %s' % (v(u0), v(A + 12), v(u1), v(A + 12), v(u0), v(u1)))
        self('s_branch L_att_ok')

    def slot_addrs(self, dst, kh_bytes, base):
        self('s_mul_i32 %s, %s, %d\ns_add_u32 %s, %s, %d\ns_lshl_b32 %s, %s, 6' % (s(t0), s(sKH), kh_bytes, s(t0), s(t0), base, s(t1), s(sKH)))
        self('v_xor_b32 %s, %s, %s\nv_xor_b32 %s, %s, %s' % (v(dst), s(t1), v(vTRa), v(dst + 1), s(t1), v(vTRb)))
        self('v_add_u32 %s, %s, %s\nv_add_u32 %s, %s, %s' % (v(dst), s(t0), v(dst), v(dst + 1), s(t0), v(dst + 1)))

    def frag_ops(self, dst, n, sreg, tag, second=None):
        ops = []
        for k in range(n):
            def op(k=k):
                if k and k % 4 == 0:
                    self('s_add_u32 %s, %s, 4096' % (s(sreg), s(second if k == 4 and second else sreg)))
                self.load(dst + 4 * k, vL16, WS, s(sreg), (k % 4) * 1024, '%s%d' % (tag, k))
            ops.append(op)
        return ops

    def pair_addrs(self, dst, red):
        self('s_lshl_b32 %s, %s, 12\ns_add_u32 %s, %s, %d\nv_add_u32 %s, %s, %s' % (s(t0), s(sW), s(t0), s(t0), red, v(dst), s(t0), v(vL16)))
        self('v_xor_b32 %s, 0x2000, %s' % (v(dst + 1), v(dst)))

    def pair_reduce(self, acc, tmp, adr, res, rtmp):
        for k in range(8):
            self('v_lshlrev_b32 %s, 16, %s\nv_and_b32 %s, 0xffff0000, %s' % (v(rtmp + 2 * k), v(res + k), v(rtmp + 2 * k + 1), v(res + k)))
        for q in range(4):
            self.lgi('ds_write_b128 %s, %s offset:%d' % (v(adr), v(acc + 16 + 4 * q, 4), q * 1024), 'pw')
        for k in range(0, 16, 2):
            self('v_pk_add_f32 %s, %s, %s' % (v(acc + k, 2), v(acc + k, 2), v(rtmp + k, 2)))
        self.wlg()
        self('s_barrier')
        for q in range(4):
            self.lgi('ds_read_b128 %s, %s offset:%d' % (v(tmp + 4 * q, 4), v(adr + 1), q * 1024), 'pr%d' % q)
        for q in range(4):
            self.wlg('pr%d' % q)
            for k in range(4 * q, 4 * q + 4, 2):
                self('v_pk_add_f32 %s, %s, %s' % (v(acc + k, 2), v(acc + k, 2), v(tmp + k, 2)))

    def p3(self):
        FR, ACC, WO, PA = 16, 80, 112, 240
        WB = FR
        RED3 = 131072
        self.vm, self.lg = [], []
        U0 = self.NA
        if self.NB:
            self.unit_addrs(FR, FR + 4, 's100', (RED, 12288))
            self.q = sum((self.unit_ops(U0 + r, r, FR, 's100') for r in range(self.NB)), [])
            self.bg(99)
        self.slot_addrs(u5, 8 * 3584, 0)
        for k in range(16):
            for sl in range(2):
                for e in range(2):
                    self.tr(WO + 8 * k + 4 * sl + 2 * e, u5 + sl, (k >> 1) * 3584 + (k & 1) * 2048 + 512 * e, 'wo')
        self.pair_addrs(PA, RED3)
        self('s_lshl_b32 %s, %s, 15\ns_lshl_b32 %s, %s, 14\ns_add_u32 %s, %s, %s\ns_add_u32 %s, %s, %d'
             % (s(t4), s(sT3), s(t1), s(sKH), s(t4), s(t4), s(t1), s(t4), s(t4), OF))
        self('s_lshl_b32 %s, %s, 1\ns_add_u32 %s, %s, %s' % (s(t0), s(sCB), s(t0), s(t0), s(sKH)))
        self('s_mul_i32 %s, %s, 28672\ns_lshl_b32 %s, %s, 11\ns_add_u32 %s, %s, %s\ns_add_u32 %s, %s, %d'
             % (s(t2), s(sT3), s(t1), s(t0), s(t2), s(t2), s(t1), s(t2), s(t2), HF))
        self('s_lshl_b32 %s, %s, 12\ns_lshl_b32 %s, %s, 8\ns_add_u32 %s, %s, %s\ns_add_u32 %s, %s, %d'
             % (s(t3), s(sT3), s(t1), s(t0), s(t3), s(t3), s(t1), s(t3), s(t3), HST))
        self('v_lshlrev_b32 %s, 3, %s' % (v(u3), v(vM)))
        self('s_lshl_b32 %s, %s, 7\ns_add_u32 %s, %s, %d' % (s(t5), s(sRB), s(t5), s(t5), FLAG2))
        self.wvm()
        self.poll_first(s(t5), 16, FR + 8)
        for r in range(self.NB):
            self.unit_read(U0 + r, r, FR + 4)
        self.wlg()
        self.stamp('wb')
        self.poll(s(t5), 16, FR + 8)
        self.stamp('s2')
        self.q = self.frag_ops(FR, 16, t4, 'f')
        self.bg(11)
        for k in range(16):
            self.wvm('f%d' % k)
            for sl in range(2):
                self.mfma(ACC + 16 * sl, WO + 8 * k + 4 * sl, FR + 4 * k, None if k == 0 else ACC + 16 * sl)
            self.bg(1)
        self.stamp('p3mm')
        self.pair_reduce(ACC, WB, PA, vHK, WB + 16)
        self.pack(vHK, ACC, 16)

        def st(sc):
            self.store(vHK, vL16, WS, s(t2), 0, 'st', sc1=sc)
            self.store(vHK + 4, vL16, WS, s(t2), 1024, 'st', sc1=sc)
        st(True)
        self('v_pk_mul_f32 %s, %s, %s' % (v(WB, 2), v(ACC, 2), v(ACC, 2)))
        for k in range(2, 16, 2):
            self('v_pk_fma_f32 %s, %s, %s, %s' % (v(WB, 2), v(ACC + k, 2), v(ACC + k, 2), v(WB, 2)))
            self('v_pk_add_f32 %s, %s, %s' % (v(ACC, 2), v(ACC, 2), v(ACC + k, 2)))
        self('v_add_f32 %s, %s, %s\nv_add_f32 %s, %s, %s' % (v(ACC), v(ACC), v(ACC + 1), v(ACC + 1), v(WB), v(WB + 1)))
        self.xhalf_add2(ACC, WB)
        self.store(ACC, u3, WS, s(t3), 0, 'st', n=2)
        self('s_add_u32 %s, %s, %d' % (s(t5), s(sFID), FLAG3))
        self.publish(s(t5), True)
        self.stamp('p3pub')

    def zrd(self, k):
        for ct in range(2):
            self.trfrag(128 + 8 * (k % 4) + 4 * ct, u5 + ct, k * 2048, 'w%d' % k)

    def zpass(self, acc, wait_frag, nbg, k0=0, k1=28, kend=None, ndrip=0):
        HFR, WB = 16, 128
        kend = kend or k1
        for k in range(k0, k1):
            if wait_frag:
                self.wvm('h%d' % k)
            self.wlg('w%d' % k)
            self.mfma(acc, WB + 8 * (k % 4), HFR + 4 * k, None if k == 0 else acc)
            if k + 3 < kend:
                self.zrd(k + 3)
            else:
                self.drip(2 * ndrip)
            self.mfma(acc + 16, WB + 8 * (k % 4) + 4, HFR + 4 * k, None if k == 0 else acc + 16)
            self.bg(nbg)
            self.drip(ndrip)

    def p4(self):
        HFR, WB, A2, A1 = 16, 128, 160, 192
        KS = self.o.get('ks', 0)
        self.KS = KS
        self.vm, self.lg = [], []
        U0 = self.NA
        self.colsum_part(WIN2, (16, 44), 72, MISC)
        self('s_lshl_b32 %s, %s, 7\ns_add_u32 %s, %s, %d' % (s(t5), s(sRB), s(t5), s(t5), FLAG3))
        self.poll_first(s(t5), 14, 88)
        self('s_lshl_b32 %s, %s, 7' % (s(t2), s(sI)))
        w1 = self.image_ops(222, SB, 3584, s(t2), 0, 14, 'W1')
        self('s_mul_i32 %s, %s, 28672\ns_add_u32 %s, %s, %d' % (s(t2), s(sT), s(t2), s(t2), HF))
        self('s_lshl_b32 %s, %s, 12\ns_add_u32 %s, %s, %d' % (s(t3), s(sT), s(t3), s(t3), HST))
        self('v_mul_u32_u24 %s, 1792, %s\nv_lshl_add_u32 %s, %s, 3, %s' % (v(u4), v(vH), v(u4), v(vM), v(u4)))
        self('v_add_u32 %s, %d, %s\nv_add_u32 %s, %d, %s' % (v(u5), WIN2, v(vTRa), v(u6), WIN2, v(vTRb)))
        for k in range(3):
            self.zrd(k)
        self.wlg('csw')
        self.stamp('w1')
        self.poll(s(t5), 14, 88)
        self.stamp('s3')
        hl = self.frag_ops(HFR, 28, t2, 'h')
        hs = [lambda q=q: self.load(A1 + 2 * q, u4, WS, s(t3), q * 256, 'hs', n=2) for q in range(7)]
        self.q = hl[:16] + hs + hl[16:]
        self.bg(11)
        self.colsum_get(224, MISC, vCS2)
        self.stamp('p4iss')
        def hstat():
            for q in range(1, 7):
                self('v_add_f32 %s, %s, %s\nv_add_f32 %s, %s, %s' % (v(A1), v(A1), v(A1 + 2 * q), v(A1 + 1), v(A1 + 1), v(A1 + 2 * q + 1)))
            self.xhalf_add2(A1, A1 + 2)
            self.mean_rstd(A1, A1 + 1, 448, A1 + 2, vRS)
            self.make_meanfrag(A1 + 2, A1 + 3)
            self.gelu_consts()
            self('s_lshl_b32 %s, %s, 13\ns_add_u32 %s, %s, %d\ns_lshl_b32 %s, %s, 9\ns_add_u32 %s, %s, %s'
                 % (s(t3), s(sT), s(t3), s(t3), ZST, s(t1), s(sI), s(t4), s(t3), s(t1)))
            self('v_lshlrev_b32 %s, 4, %s\nv_mov_b32 %s, %s\nv_mov_b32 %s, %s' % (v(u3), v(vM), v(A1 + 6), s(sNON), v(A1 + 7), s(sNON + 1)))
        self.zpass(A2, True, 2, 0, 4, 28)
        self.zpass(A2, True, 1, 4, 20, 28)
        assert not self.q
        self.wvm('hs')
        self.fill = self.cap(hstat)
        self.zpass(A2, True, 0, 20, 28, ndrip=3)
        self.drip(99)
        self.stamp('z2mm')
        for ct in range(2):
            self.mfma(A2 + 16 * ct, vCS2 + 4 * ct, vMF, A2 + 16 * ct)
        self('v_mov_b32 %s, %s\nv_mov_b32 %s, %s' % (v(u5), v(vTRa), v(u6), v(vTRb)))
        self.q = w1
        self.bg(5)
        self.gelu(A2, 32, A1 + 8, 3)
        assert not self.q
        Z = A1 + 4
        self('v_pk_mul_f32 %s, %s, %s\nv_pk_add_f32 %s, %s, %s'
             % (v(A1, 2), v(A2, 2), v(A2, 2), v(Z, 2), v(A2, 2), v(A2 + 2, 2)))
        for k in range(2, 32, 2):
            self('v_pk_fma_f32 %s, %s, %s, %s' % (v(A1, 2), v(A2 + k, 2), v(A2 + k, 2), v(A1, 2)))
            if k > 2:
                self('v_pk_add_f32 %s, %s, %s' % (v(Z, 2), v(Z, 2), v(A2 + k, 2)))
        self('v_add_f32 %s, %s, %s\nv_add_f32 %s, %s, %s' % (v(Z), v(Z), v(Z + 1), v(Z + 1), v(A1), v(A1 + 1)))
        self.xhalf_add2(Z, A1)
        self('s_not_b64 exec, %s' % s(sHI, 2))
        self.local_stores(lambda sc: self.store(Z, u3, WS, s(t4), 0, 'zs', sc1=sc))
        self('s_mov_b64 exec, -1')
        self.stamp('zst')
        self('s_lshl_b32 %s, %s, 18\ns_lshl_b32 %s, %s, 12\ns_add_u32 %s, %s, %s\ns_add_u32 %s, %s, %d'
             % (s(t2), s(sI), s(t1), s(sT), s(t2), s(t2), s(t1), s(t2), s(t2), ZF))
        self('v_lshlrev_b32 %s, 2, %s\nv_xor_b32 %s, %s, %s\nv_lshlrev_b32 %s, 4, %s\nv_lshl_add_u32 %s, %s, 9, %s'
             % (v(u3), v(vH), v(u3), v(u3), v(vM), v(u3), v(u3), v(u3), v(vH), v(u3)))
        self('v_xor_b32 %s, 0x80, %s\nv_add_u32 %s, 1024, %s' % (v(u4), v(u3), v(u4), v(u4)))
        self('s_lshl_b32 %s, %s, 4\ns_add_u32 %s, %s, %s\ns_lshl_b32 %s, %s, 6\ns_add_u32 %s, %s, %d'
             % (s(t5), s(sI), s(t5), s(t5), s(sRB), s(t5), s(t5), s(t5), s(t5), FLAG5))
        self('v_mul_u32_u24 %s, 3584, %s\nv_lshl_add_u32 %s, %s, 4, %s\ns_mov_b32 %s, 0' % (v(u2), v(vH), v(u2), v(vM), v(u2), s(sCNT)))
        self.unit_addrs(232, 236, 's100', (RED, 8192))
        self.wvm('W1')
        self('s_barrier')
        gather = [lambda q=q: self.load(224 + 4 * q, u2, WS, s(t3), q * 512, 'zg', pfx='a') for q in range(7)]
        if self.o.get('gearly', 1):
            self.q = gather
            self.bg(99)
        self.colsum_part(0, (WB, A1), 224, MISC + 1024)
        self.q = ([] if self.o.get('gearly', 1) else gather) + sum((self.unit_ops(U0 + r, r, 232, 's100') for r in range(self.ND)), [])
        if KS:
            for k in range(3):
                self.zrd(k)
            self.zpass(A1, False, 2, 0, KS)
        self.bg(99)
        self.stamp('z1a')
        lp = self.lab('zs')
        self.wvm('zg')
        for q in range(28):
            self('v_accvgpr_read_b32 %s, a%d' % (v(WB + q), 224 + q))
        keepvm = list(self.vm)
        self('s_branch %s_c\n%s:' % (lp, lp))
        for q in range(7):
            self('buffer_load_dwordx4 %s, %s, %s, %s offen offset:%d sc1' % (v(WB + 4 * q, 4), v(u2), s(WS, 4), s(t3), q * 512))
        self('s_add_u32 %s, %s, 1\ns_waitcnt vmcnt(0)\n%s_c:' % (s(sCNT), s(sCNT), lp))
        for q in range(1, 7):
            self('v_xor_b32 %s, %s, %s\nv_xor_b32 %s, %s, %s' % (v(WB + 4 * q + 2), s(sNON), v(WB + 4 * q + 2),
                                                                v(WB + 4 * q + 3), s(sNON + 1), v(WB + 4 * q + 3)))
        self('v_or3_b32 %s, %s, %s, %s' % (v(u1), v(WB + 6), v(WB + 7), v(WB + 10)))
        for r in ((11, 14), (15, 18), (19, 22), (23, 26)):
            self('v_or3_b32 %s, %s, %s, %s' % (v(u1), v(u1), v(WB + r[0]), v(WB + r[1])))
        self('v_or_b32 %s, %s, %s\nv_cmp_ne_u64 %s, %s, %s\nv_cmp_ne_u32 vcc, 0, %s'
             % (v(u1), v(u1), v(WB + 27), s(t0, 2), s(sNON, 2), v(WB + 2, 2), v(u1)))
        for q in range(1, 7):
            self('v_pk_add_f32 %s, %s, %s' % (v(WB, 2), v(WB, 2), v(WB + 4 * q, 2)))
        self('s_or_b64 %s, %s, vcc' % (s(t0, 2), s(t0, 2)))
        self('s_cbranch_scc0 %s_d\ns_cmp_lt_u32 %s, %d\ns_cbranch_scc1 %s\n%s_d:' % (lp, s(sCNT), POLL_MAX, lp, lp))
        self.vm = keepvm
        self.stamp('s4')
        self.xhalf_add2(WB, WB + 2)
        self.mean_rstd(WB, WB + 1, 896, WB + 2, WB + 4)
        self('v_mul_f32 %s, -%s, %s' % (v(WB + 6), v(WB + 2), v(WB + 4)))
        for c in range(4):
            for k in range(8 * c, 8 * c + 8, 2):
                self('v_pk_fma_f32 %s, %s, %s, %s op_sel_hi:[1,0,0]' % (v(A2 + k, 2), v(A2 + k, 2), v(WB + 4, 2), v(WB + 6, 2)))
            self.pack(WB + 8 + 4 * c, A2 + 8 * c, 8)
            self.store(WB + 8 + 4 * c, u3 + (c & 1), WS, s(t2), (c >> 1) * 2048, 'st')
        if self.ND:
            self.wvm('U%d' % (U0 + self.ND - 1))
        for r in range(self.ND):
            self.unit_read(U0 + r, r, 236)
        self.wlg()
        self.publish(s(t5))
        self.stamp('p4pub')

    NZ, NW, WRING = 6, 6, 57344

    def p5(self):
        A1, ACC, ZB, WB, WD, WR, ZA, OD, FL = 192, 16, 48, 80, 160, 164, 168, 170, 172
        NZ, NW, WRING, SWO, KS = self.NZ, self.NW, self.WRING, self.SWO, self.KS
        order = []
        for k in range(14):
            order += [14 + k, k]
        order += [28, 29, 30, 31]
        self.vm, self.lg = [], []
        for k in range(KS, KS + 3):
            self.zrd(k)
        self.unit_addrs(WD, WR, s(t4), (WRING, NW * 4096))
        self.colsum_get(172, MISC + 1024, vCS1)

        def w_ops(r):
            return self.unit_ops(14 + r, r % NW, WD, s(t4))

        def z_ops(p):
            def first():
                self('s_add_u32 m0, %s, %d\ns_add_u32 %s, s82, %d\ns_and_b32 %s, %s, 0x3e000\ns_add_u32 %s, %s, %s'
                     % (s(t1), (p % NZ) * 8192, s(t0), order[p] * 8192, s(t0), s(t0), s(t0), s(t0), s(t2)))
                self.dma(vL16, WS, s(t0), 0, 'Z%d' % p, sc1=True)
            return [first, lambda: self.dma(vL16, WS, s(t0), 1024, 'Z%d' % p, sc1=True)]

        def o_ops(c):
            ops = []
            for hf in range(2):
                def first(hf=hf):
                    if c < 6:
                        self('s_add_u32 m0, %s, %d' % (s(t4), c * 4096 + hf * 2048))
                    else:
                        self('s_lshl_b32 %s, %s, 12\ns_add_u32 m0, %s, %d' % (s(t0), s(sW), s(t0), 16384 + hf * 2048))
                    self('s_mov_b32 %s, %d' % (s(t0), (32 * c + 16 * hf) * 896))
                    self.dma(OD, SWO, s(t0), 0, 'WT')
                ops += [first, lambda: self.dma(OD + 1, SWO, s(t0), 1024, 'WT')]
            return ops
        self.o_ops = o_ops
        self.q = sum((w_ops(r) for r in range(NW)), [])
        self.zpass(A1, False, 2 if KS > 4 else 1, KS, 28)
        self.bg(99)
        self.stamp('z1')
        for ct in range(2):
            self.mfma(A1 + 16 * ct, vCS1 + 4 * ct, vMF, A1 + 16 * ct)
        self('v_lshlrev_b32 %s, 16, %s' % (v(vBSP), v(vBSP)))
        self('v_bfe_u32 %s, v0, 4, 1\nv_and_b32 %s, 1, v0\nv_lshl_add_u32 %s, %s, 1, %s' % (v(u0), v(u1), v(u0), v(u0), v(u1)))
        self('v_lshlrev_b32 %s, 1, %s\nv_xor_b32 %s, %s, %s\nv_lshlrev_b32 %s, 6, %s\nv_lshl_add_u32 %s, %s, 9, %s'
             % (v(u1), v(vH), v(u1), v(u1), v(u0), v(u1), v(u1), v(u1), v(u0), v(u1)))
        self('v_bfe_u32 %s, v0, 2, 2\nv_lshl_add_u32 %s, %s, 4, %s\nv_bfe_u32 %s, v0, 1, 1\nv_lshl_add_u32 %s, %s, 3, %s'
             % (v(u0), v(u1), v(u0), v(u1), v(u0), v(ZA), v(u0), v(u1)))
        self('v_xor_b32 %s, 64, %s' % (v(ZA + 1), v(ZA)))
        self('s_lshl_b32 %s, %s, 7' % (s(t2), s(sCB)))
        self.image_ops(OD, SWO, 896, s(t2), 0, 28, 'WT')
        self('s_lshl_b32 %s, %s, 11\ns_lshl_b32 %s, %s, 18\ns_add_u32 %s, %s, %s\ns_add_u32 %s, %s, %d\ns_lshl_b32 s82, %s, 14'
             % (s(t1), s(sW), s(t2), s(sI), s(t2), s(t2), s(t1), s(t2), s(t2), ZF, s(sI)))
        self('s_lshl_b32 %s, %s, 10\ns_add_u32 %s, %s, %d' % (s(t5), s(sI), s(t5), s(t5), FLAG5))
        GS = self.o.get('gs', 16)
        self.gelu(A1, GS - 8, 128, 0)
        self.poll_first(s(t5), 16, FL, 6)
        self.gelu(A1 + GS - 8, 8, 128, 0)
        self.stamp('g1')
        self.poll(s(t5), 16, FL, 6)
        self.stamp('s5')
        self.q = sum((z_ops(p) for p in range(NZ - 1)), [])
        self.bg(99)
        self.gelu(A1 + GS, 32 - GS, 128, 0)

        def rdz(g, ct):
            p, k = divmod(g, 4)
            off = (p % NZ) * 8192 + (k >> 1) * 4096 + (k & 1) * 256
            d = ZB + 8 * (g % 4) + 4 * ct
            self.tr(d, ZA, off + ct * 2048, 'g%d' % g)
            self.tr(d + 2, ZA + 1, off + ct * 2048, 'g%d' % g)

        def rdw(g):
            p, k = divmod(g, 4)
            if order[p] >= 14:
                self.lgi('ds_read_b128 %s, %s offset:%d' % (v(WB + 4 * (g % 4), 4), v(WR + k), ((order[p] - 14) % NW) * 4096), 'g%d' % g)

        def mm(g, ct):
            p, k = divmod(g, 4)
            c = None if g == 0 else ACC + 16 * ct
            if order[p] >= 14:
                self.mfma(ACC + 16 * ct, ZB + 8 * (g % 4) + 4 * ct, WB + 4 * (g % 4), c)
            else:
                self.mfma(ACC + 16 * ct, ZB + 8 * (g % 4) + 4 * ct, 16 * order[p] + 4 * k, c, pb='a')
        self.wvm('Z0')
        self('s_barrier')
        self.stamp('p5z0')
        for g in range(2):
            rdz(g, 0)
            rdz(g, 1)
            rdw(g)
        for g in range(128):
            p, k = divmod(g, 4)
            if g in (32, 64, 96):
                self.stamp('p5_%d' % g)
            self.wlg('g%d' % g)
            mm(g, 0)
            if k == 2 and p + 1 < 32:
                self.wvm('Z%d' % (p + 1))
                self.wvm('U%d' % order[p + 1])
                self('s_barrier')
                if p + NZ - 1 < 32:
                    self.q += z_ops(p + NZ - 1)
                if p >= 1 and order[p - 1] >= 14:
                    r = order[p - 1] - 14
                    self.q += w_ops(r + NW) if r + NW < 18 else o_ops(r % NW)
            if g + 2 < 128:
                rdz(g + 2, 0)
                rdw(g + 2)
            mm(g, 1)
            if g + 2 < 128:
                rdz(g + 2, 1)
            self.bg(1)
        self.bg(99)
        self.stamp('p5')
        self('s_mul_i32 %s, %s, 57344\ns_lshl_b32 %s, %s, 12\ns_add_u32 %s, %s, %s\ns_add_u32 %s, %s, %d'
             % (s(t2), s(sT), s(t1), s(sI), s(t2), s(t2), s(t1), s(t2), s(t2), UF))
        self('s_add_u32 %s, %s, %d' % (s(t5), s(sFID), FLAG6))
        e = vBSP & ~1
        for k in range(0, 32, 2):
            self('v_pk_add_f32 %s, %s, %s op_sel_hi:[1,0]' % (v(ACC + k, 2), v(ACC + k, 2), v(e, 2)))
            self('v_pk_mul_f32 %s, %s, %s' % (v(ACC + k, 2), v(ACC + k, 2), v(A1 + k, 2)))
        self.pack(ZB, ACC, 32)

        def st_(sc):
            for k in range(4):
                self.store(ZB + 4 * k, vL16, WS, s(t2), k * 1024, 'st', sc1=sc)
        st_(True)
        self.publish(s(t5), True)
        self.stamp('p5pub')

    def p6(self):
        FR, WB, ACC, AR, AZ, PA = 16, 128, 176, 208, 210, 212
        self.vm, self.lg = [], []
        self.q = self.o_ops(4) + self.o_ops(5) + self.o_ops(6)
        self.bg(99)
        self.slot_addrs(AR, 49152, self.WRING)
        self.slot_addrs(AZ, 8192, 16384)
        self.pair_addrs(PA, 0)
        self.srd(SA, P_OUT, 2048 * 896)
        self('s_mul_i32 %s, %s, %d\ns_lshl_b32 %s, %s, 7\ns_add_u32 %s, %s, %s\ns_lshl_b32 %s, %s, 6\ns_add_u32 %s, %s, %s'
             % (s(t3), s(sT3), 32 * 896, s(t1), s(sCB), s(t3), s(t3), s(t1), s(t1), s(sKH), s(t3), s(t3), s(t1)))
        self('v_mul_u32_u24 %s, 896, %s\nv_lshl_add_u32 %s, %s, 4, %s' % (v(u4), v(vM), v(u4), v(vH), v(u4)))
        self('s_mul_i32 %s, %s, 57344\ns_mul_i32 %s, %s, 28672\ns_add_u32 %s, %s, %s\ns_add_u32 %s, %s, %d'
             % (s(t2), s(sT3), s(t1), s(sKH), s(t2), s(t2), s(t1), s(t2), s(t2), UF))
        self('s_lshl_b32 %s, %s, 7\ns_add_u32 %s, %s, %d' % (s(t5), s(sRB), s(t5), s(t5), FLAG6))
        OA = 216
        self('s_and_b32 %s, %s, 1\ns_lshl_b32 %s, %s, 12\ns_add_u32 %s, %s, 32768\ns_lshl_b32 %s, %s, 2' % (s(t0), s(sW), s(t0), s(t0), s(t0), s(t0), s(t1), s(sKH)))
        self('v_add_u32 %s, %s, %s\nv_and_b32 %s, 7, v0\nv_xor_b32 %s, %s, %s\nv_lshlrev_b32 %s, 4, %s' % (v(u0), s(t1), v(vH), v(u1), v(u0), v(u0), v(u1), v(u0), v(u0)))
        self('v_lshl_add_u32 %s, %s, 7, %s\nv_add_u32 %s, %s, %s\nv_xor_b32 %s, 32, %s' % (v(u0), v(vM), v(u0), v(OA), s(t0), v(u0), v(OA + 1), v(OA)))
        self('s_lshl_b32 %s, %s, 11\ns_add_u32 %s, %s, 32768\nv_add_u32 %s, %s, %s' % (s(t0), s(sW), s(t0), s(t0), v(OA + 2), s(t0), v(vL16)))
        self('v_lshrrev_b32 %s, 3, v0\nv_xor_b32 %s, %s, %s\nv_mul_u32_u24 %s, 896, %s\nv_lshl_add_u32 %s, %s, 4, %s\nv_add_u32 %s, 7168, %s'
             % (v(u0), v(u1), v(u1), v(u0), v(u0), v(u0), v(OA + 3), v(u1), v(u0), v(OA + 4), v(OA + 3)))
        self('s_and_b32 %s, %s, -2\ns_lshl_b32 %s, %s, 1\ns_add_u32 %s, %s, %s\ns_mul_i32 %s, %s, %d\ns_lshl_b32 %s, %s, 7\ns_add_u32 %s, %s, %s'
             % (s(t0), s(sT3), s(t0), s(t0), s(t0), s(t0), s(sW), s(t4), s(t0), 16 * 896, s(t1), s(sCB), s(t4), s(t4), s(t1)))
        self.poll_first(s(t5), 14, 214)
        self.stamp('wout')
        self.poll(s(t5), 14, 214)
        self.stamp('s6')
        self.q = self.frag_ops(FR, 28, t2, 'f')
        self.bg(11)

        def rd(k, sl):
            hi, c = divmod(k >> 1, 7)
            if c < 6:
                adr, off = AR, hi * 24576 + c * 4096
            else:
                adr, off = AZ, hi * 4096
            self.trfrag(WB + 8 * (k % 4) + 4 * sl, adr + sl, off + (k & 1) * 2048, 'w%d' % k)
        for k in range(3):
            rd(k, 0)
            rd(k, 1)
        for k in range(28):
            self.wvm('f%d' % k)
            self.wlg('w%d' % k)
            for sl in range(2):
                self.mfma(ACC + 16 * sl, WB + 8 * (k % 4) + 4 * sl, FR + 4 * k, None if k == 0 else ACC + 16 * sl)
                if k + 3 < 28:
                    rd(k + 3, sl)
            self.bg(1)
        self.stamp('p6mm')
        self.pair_reduce(ACC, WB, PA, vHK, WB + 16)
        self.pack(WB, ACC, 16)
        if self.o.get('outl', 1):
            self.lgi('ds_write_b128 %s, %s' % (v(OA), v(WB, 4)), 'ow')
            self.lgi('ds_write_b128 %s, %s' % (v(OA + 1), v(WB + 4, 4)), 'ow')
            self.wlg()
            self('s_barrier')
            self.lgi('ds_read_b128 %s, %s' % (v(WB + 8, 4), v(OA + 2)), 'o0')
            self.lgi('ds_read_b128 %s, %s offset:1024' % (v(WB + 12, 4), v(OA + 2)), 'o1')
            self.wlg('o0')
            self.store(WB + 8, OA + 3, SA, s(t4), 0, 'st')
            self.wlg('o1')
            self.store(WB + 12, OA + 4, SA, s(t4), 0, 'st')
        else:
            self.store(WB, u4, SA, s(t3), 0, 'st')
            self.store(WB + 4, u4, SA, s(t3), 32, 'st')
        self.stamp('end', True)

    def build(self):
        stop = self.o.get('stop', 6)
        self.prologue()
        for k, ph in enumerate((self.p1, self.p2, self.p3, self.p4, self.p5, self.p6), 1):
            if k <= stop:
                ph()
        if self.o.get('padfrom') == 'tag':
            self('s_mov_b32 %s, %s' % (s(sPT), s(sNON)))
        if self.o.get('padfrom'):
            self('s_mov_b32 %s, 0\nL_hold:\ns_memrealtime s[78:79]\ns_add_u32 %s, %s, 1\ns_waitcnt lgkmcnt(0)' % (s(sCNT), s(sCNT), s(sCNT)))
            self('s_sub_u32 s78, s78, %s\ns_cmp_ge_u32 s78, 10000\ns_cbranch_scc1 L_fin\ns_cmp_lt_u32 %s, 100000\ns_cbranch_scc1 L_hold' % (s(sPT), s(sCNT)))
        self('L_fin:')
        self.stamp_flush()
        self('L_end:\ns_endpgm')
        if stop >= 2:
            self.att_slow()
        self('L_code_end:')
        npad = self.a.pad()
        errs = []
        for take in ((), ('L_p1_V',), ('L_p1_N',), ('L_att_slow',)):
            errs += self.a.check_waits(take)
        for e in sorted(set(errs)):
            print('WAITCHECK', e, file=sys.stderr)
        ref = open('cdna_kernels/%s.s.ref' % NAME).read().split('\n')
        head = [l for l in ref if l.startswith(';') and '@launch' not in l and 'Override' not in l and 'grid=ceil' not in l
                and l == l.lstrip()]
        out = '\n'.join(head) + '\n'
        if self.names:
            out += '; stamps: ' + ' '.join(self.names) + '\n'
        out += '; @launch grid=(256,1,1) block=(256,1,1) lds=%d\n' % LDS_BYTES
        out += '.amdgcn_target "amdgcn-amd-amdhsa--gfx950"\n.text\n.globl %s_kernel\n.p2align 8\n' % NAME
        out += '.type %s_kernel,@function\n%s_kernel:\n' % (NAME, NAME)
        out += self.a.text()
        out += '.section .rodata,"a"\n.p2align 6\n.amdhsa_kernel %s_kernel\n' % NAME
        out += ('  .amdhsa_next_free_vgpr 512\n  .amdhsa_next_free_sgpr 102\n  .amdhsa_accum_offset 256\n'
                '  .amdhsa_group_segment_fixed_size 0\n  .amdhsa_kernarg_size 88\n  .amdhsa_user_sgpr_count 2\n'
                '  .amdhsa_user_sgpr_kernarg_segment_ptr 1\n  .amdhsa_system_sgpr_workgroup_id_x 1\n'
                '.end_amdhsa_kernel\n')
        if self.o.get('showpads'):
            for k, x in enumerate(self.a.L):
                if x.note == 'pad':
                    print(k, x.text, '| prev:', self.a.L[k - 1].text, '| next:', self.a.L[k + 1].text, file=sys.stderr)
        print('instructions %d, pads %d, waitcheck errors %d' % (len(self.a.L), npad, len(set(errs))), file=sys.stderr)
        return out


if __name__ == '__main__':
    opt = {}
    dst = sys.argv[1]
    for a in sys.argv[2:]:
        k, _, val = a.partition('=')
        opt[k] = int(val) if val.isdigit() else (val or 1)
    open(dst, 'w').write(G(opt).build())
```

```python
import sys
import math
import struct
import copy
from asmlib import Asm

NAME = 'sequential_preLN__mha_block__mixer_gmlp__prompt'

FLAG2, FLAG3, FLAG6 = 0x1000, 0x2000, 0x3000
FLAG1, FLAG5 = 0x8000, 0xC000
ONES, PROF = 0x40000, 0x80000
ZST, HST = 0x100000, 0x180000
KF, VF, OF, HF, ZF, UF = 0x200000, 0x400000, 0x600000, 0x800000, 0xA00000, 0xE00000
XST = 0x1200000
WS_BYTES = 0x1280000

XB = 57344
WQB = 106496
MISC = 155648
RSX = 157696
WIN2 = 57344
RED = 114688
LDS_BYTES = 163840

P_X, P_WQKV, P_WO, P_WIN, P_WSP, P_BSP, P_WOUT, P_OUT, P_DBG, P_WS = 4, 6, 8, 12, 14, 16, 18, 20, 22, 24
sW, sRB, sI, sXCC, sNON, sFAST = 26, 27, 44, 45, 46, 48
WS, SA, SB, SC = 28, 32, 36, 40
sHI = 50
sONE2 = 52
sT = 54
sCB, sKH, sT3 = 55, 56, 57
sK0, sK1 = 58, 60
t0, t1, t2, t3, t4, t5, t6, t7 = 62, 63, 64, 65, 66, 67, 68, 69
sSAVE = 70
sCNT = 72
sPT = 70
sB = 76
sM0, sSO = 80, 81
sFID = 77

vL, vH, vM, vL16, vTRa, vTRb, vPM = 0, 1, 2, 3, 4, 5, 6
u0, u1, u2, u3, u4, u5, u6, u7, u8 = 7, 8, 9, 10, 11, 12, 13, 14, 15
vCS1, vCS2, vMF, vHK, vBSP, vRS, vGI = 224, 232, 240, 244, 252, 253, 6

POLL_MAX = 8000


def f32(x):
    return '0x%08x' % struct.unpack('<I', struct.pack('<f', x))[0]


def v(a, n=1):
    return 'v%d' % a if n == 1 else 'v[%d:%d]' % (a, a + n - 1)


def s(a, n=1):
    return 's%d' % a if n == 1 else 's[%d:%d]' % (a, a + n - 1)


class G:
    def __init__(self, opt):
        self.o = opt
        self.a = Asm()
        self.vm = []
        self.lg = []
        self.nlab = 0
        self.names = []
        self.q = []
        self.issued = set()
        self.fill = []
        self.stubs = []
        self.NB, self.NC, self.ND = opt.get('nb', 0), opt.get('nc', 0), opt.get('nd', 2)
        self.NA = 14 - self.NB - self.NC - self.ND
        assert self.NA <= 13

    def __call__(self, t):
        self.a(t)

    def lab(self, p):
        self.nlab += 1
        return 'L_%s_%d' % (p, self.nlab)

    def vmi(self, text, tag):
        self.a(text)
        self.vm.append(tag)
        self.issued.add(tag)

    def lgi(self, text, tag):
        self.a(text)
        self.lg.append(tag)

    def _n(self, q, tag):
        idx = [k for k, t in enumerate(q) if t == tag]
        return None if not idx else len(q) - 1 - idx[-1]

    def wvm(self, tag=None):
        n = 0 if tag is None else self._n(self.vm, tag)
        assert tag is None or tag in self.issued, tag
        if n is None:
            return
        self.a('s_waitcnt vmcnt(%d)' % n)
        self.vm = self.vm[len(self.vm) - n:]

    def wlg(self, tag=None):
        n = 0 if tag is None else self._n(self.lg, tag)
        if n is None:
            return
        n = min(n, 15)
        self.a('s_waitcnt lgkmcnt(%d)' % n)
        self.lg = self.lg[len(self.lg) - n:]

    def srd(self, r, ptr, nbytes):
        self('s_mov_b32 %s, %s\ns_mov_b32 %s, %s\ns_mov_b32 %s, 0x%x\ns_mov_b32 %s, 0x20000'
             % (s(r), s(ptr), s(r + 1), s(ptr + 1), s(r + 2), nbytes, s(r + 3)))

    def bg(self, n=1):
        for _ in range(n):
            if self.q:
                self.q.pop(0)()

    def cap(self, fn):
        hold, self.a = self.a, Asm()
        fn()
        assert all(x.kind in ('valu', 'salu', 'nop') for x in self.a.L)
        lines = [x.text for x in self.a.L]
        self.a = hold
        out = []
        for l in lines:
            if out and l.startswith(('s_cselect', 's_subb', 's_addc')):
                out[-1] += '\n' + l
            else:
                out.append(l)
        return out

    def drip(self, n):
        for _ in range(n):
            if self.fill:
                self(self.fill.pop(0))

    def retry(self, test, reload):
        st, bk = self.lab('again'), self.lab('have')
        self('%s\ns_cbranch_vccnz %s\n%s:' % (test, st, bk))
        self.stubs.append((st, bk, test, reload))

    def emit_stubs(self):
        for st, bk, test, reload in self.stubs:
            self('%s:\ns_mov_b32 %s, 0\n%s_l:\n%s' % (st, s(sCNT), st, reload))
            self('s_add_u32 %s, %s, 1\ns_waitcnt vmcnt(0)\n%s\ns_cbranch_vccz %s' % (s(sCNT), s(sCNT), test, bk))
            self('s_cmp_lt_u32 %s, %d\ns_cbranch_scc1 %s_l\ns_branch %s' % (s(sCNT), POLL_MAX, st, bk))

    def image_ops(self, va, srd, stride, col_soff, lds_base, ninstr, tag):
        self('v_lshrrev_b32 %s, 3, %s\nv_mul_u32_u24 %s, %d, %s' % (v(va), v(vL), v(va), stride, v(va)))
        self('v_bfe_u32 %s, %s, 4, 1\nv_lshlrev_b32 %s, 2, %s' % (v(va + 1), v(vL), v(va + 1), v(va + 1)))
        self('v_xor_b32 %s, %s, %s\nv_and_b32 %s, 7, %s' % (v(va + 1), v(va + 1), v(vL), v(va + 1), v(va + 1)))
        self('v_lshl_add_u32 %s, %s, 4, %s' % (v(va), v(va + 1), v(va)))
        self('s_mul_i32 %s, %s, %d\ns_add_u32 %s, %s, %s' % (s(t0), s(sW), ninstr * 8 * stride, s(t0), s(t0), col_soff))
        self('v_add_u32 %s, %s, %s\nv_add_u32 %s, %d, %s' % (v(va), s(t0), v(va), v(va + 1), 8 * stride - 1024, v(va)))
        ops = []
        for q in range(ninstr):
            def op(q=q):
                if q % 2 == 0:
                    if q == 0:
                        self('s_mul_i32 %s, %s, %d\ns_add_u32 m0, %s, %d\ns_mov_b32 %s, 0'
                             % (s(sM0), s(sW), ninstr * 1024, s(sM0), lds_base, s(sSO)))
                    else:
                        self('s_add_u32 m0, %s, %d\ns_mov_b32 %s, %d' % (s(sM0), lds_base + q * 1024, s(sSO), q * 8 * stride))
                self.dma(va + (q & 1), srd, s(sSO), (q & 1) * 1024, tag)
            ops.append(op)
        return ops

    def mfma(self, d, a_, b, c=None, pa='v', pb='v'):
        cs = '0' if c is None else v(c, 16)
        self('v_mfma_f32_32x32x16_bf16 %s, %s[%d:%d], %s[%d:%d], %s'
             % (v(d, 16), pa, a_, a_ + 3, pb, b, b + 3, cs))

    def mfsum(self, d, b, first, pb='v'):
        self('v_mfma_f32_16x16x32_bf16 %s, a[252:255], %s[%d:%d], %s' % (v(d, 4), pb, b, b + 3, '0' if first else v(d, 4)))

    def tr(self, dst, addr, off, tag):
        self.lgi('ds_read_b64_tr_b16 %s, %s offset:%d' % (v(dst, 2), v(addr), off), tag)

    def trfrag(self, dst, addr, off, tag, step=512):
        self.tr(dst, addr, off, tag)
        self.tr(dst + 2, addr, off + step, tag)

    def load(self, dst, voff, srd, soff, imm, tag, n=4, sc1=True, pfx='v'):
        op = {4: 'dwordx4', 2: 'dwordx2', 1: 'dword'}[n]
        d = '%s%d' % (pfx, dst) if n == 1 else '%s[%d:%d]' % (pfx, dst, dst + n - 1)
        self.vmi('buffer_load_%s %s, %s, %s, %s offen offset:%d%s'
                 % (op, d, v(voff), s(srd, 4), soff, imm, ' sc1' if sc1 else ''), tag)

    def dma(self, voff, srd, soff, imm, tag, sc1=False):
        self.vmi('buffer_load_dwordx4 %s, %s, %s offen offset:%d%s lds'
                 % (v(voff), s(srd, 4), soff, imm, ' sc1' if sc1 else ''), tag)

    def store(self, src, voff, srd, soff, imm, tag, n=4, sc1=True):
        op = {4: 'dwordx4', 2: 'dwordx2', 1: 'dword'}[n]
        self.vmi('buffer_store_%s %s, %s, %s, %s offen offset:%d%s'
                 % (op, v(src, n), v(voff), s(srd, 4), soff, imm,
                    ' sc1' if sc1 else (' ' + self.o['plainmod'] if srd == WS and self.o.get('plainmod') else '')), tag)

    def local_stores(self, emit):
        lp, lj = self.lab('plain'), self.lab('join')
        self('s_cmp_eq_u32 %s, 1\ns_cbranch_scc1 %s' % (s(sFAST), lp))
        keep = list(self.vm)
        emit(True)
        self('s_branch %s\n%s:' % (lj, lp))
        self.vm = keep
        emit(False)
        self('%s:' % lj)

    def publish(self, flag_soff, local=False, xcc=False, drain=True):
        if xcc:
            self('s_or_b32 %s, %s, %s\nv_mov_b32 %s, %s' % (s(t0), s(sNON), s(sXCC), v(u1), s(t0)))
        else:
            self('v_mov_b32 %s, %s' % (v(u1), s(sNON)))
        self('v_mov_b32 %s, %s\ns_cmp_eq_u32 %s, 0' % (v(u2), s(sNON + 1), s(sW)))
        if drain:
            self.wvm()
        self('s_barrier')
        sk = self.lab('pub')
        if local:
            self('s_cbranch_scc0 %s\ns_mov_b64 exec, 1' % sk)
            st = 'buffer_store_dwordx2 %s, v0, %s, %s offen' % (v(u1, 2), s(WS, 4), flag_soff)
            self.local_stores(lambda sc: self(st + (' sc1' if sc else '')))
        else:
            self('s_cbranch_scc0 %s\ns_mov_b64 exec, 15' % sk)
            self('buffer_store_dwordx4 %s, %s, %s, %s offen sc1' % (v(u1, 4), v(vL16), s(WS, 4), flag_soff))
        self('s_mov_b64 exec, -1\n%s:' % sk)

    def poll_first(self, flag_soff, nflags, reg, sh=3):
        self('v_cmp_gt_u32 vcc, %d, v0\nv_lshlrev_b32 %s, %d, v0\nv_cndmask_b32 %s, 0, %s, vcc' % (nflags, v(reg), sh, v(reg), v(reg)))
        self.load(reg, reg, WS, flag_soff, 0, 'flag', n=2)

    def poll(self, flag_soff, nflags, first=None, sh=3):
        sk, lp = self.lab('pollskip'), self.lab('poll')
        if first is not None:
            self.wvm('flag')
            self('v_cmp_ne_u64 vcc, %s, %s\ns_cbranch_vccz %s' % (s(sNON, 2), v(first, 2), sk))
        self('s_cmp_eq_u32 %s, 0\ns_cbranch_scc0 %s' % (s(sW), sk))
        self('v_lshlrev_b32 %s, %d, %s' % (v(u0), sh, v(vL)))
        self('s_mov_b64 exec, 0x%x' % ((1 << nflags) - 1))
        self('s_mov_b32 %s, 0\n%s:' % (s(sCNT), lp))
        self('buffer_load_dwordx2 %s, %s, %s, %s offen sc1' % (v(u1, 2), v(u0), s(WS, 4), flag_soff))
        self('s_add_u32 %s, %s, 1' % (s(sCNT), s(sCNT)))
        self('s_waitcnt vmcnt(0)')
        self('v_cmp_ne_u64 vcc, %s, %s' % (s(sNON, 2), v(u1, 2)))
        self('s_cbranch_vccz %s_d' % lp)
        self('s_cmp_lt_u32 %s, %d\ns_cbranch_scc1 %s' % (s(sCNT), POLL_MAX, lp))
        self('%s_d:\ns_mov_b64 exec, -1\n%s:' % (lp, sk))
        self('s_barrier')

    def stamp(self, name, real=False):
        if self.o.get('padfrom') == name:
            self('s_memrealtime %s\ns_waitcnt lgkmcnt(0)' % s(sPT, 2))
            self.lg = []
        if not self.o.get('prof'):
            return
        if name not in self.names:
            self.names.append(name)
        k = self.names.index(name)
        assert k < 62
        self('s_memtime s[78:79]\ns_waitcnt lgkmcnt(0)\nv_writelane_b32 v255, s78, %d' % k)
        self.lg = []
        if self.o['prof'] == 2:
            self('s_memrealtime s[78:79]\ns_waitcnt lgkmcnt(0)\nv_writelane_b32 v254, s78, %d' % k)
        if real:
            self('s_memrealtime s[78:79]\ns_waitcnt lgkmcnt(0)\nv_writelane_b32 v255, s78, %d' % (62 if k == 0 else 63))

    def stamp_flush(self):
        if not self.o.get('prof'):
            return
        self('s_lshl_b32 %s, %s, 2\ns_add_u32 %s, %s, %s\ns_lshl_b32 %s, %s, 8\ns_add_u32 %s, %s, %d'
             % (s(t7), s(sB), s(t7), s(t7), s(sW), s(t7), s(t7), s(t7), s(t7), PROF))
        self('v_lshlrev_b32 v7, 2, v0\nbuffer_store_dword v255, v7, %s, %s offen' % (s(WS, 4), s(t7)))
        self('s_add_u32 %s, %s, 0x40000\nbuffer_store_dword v254, v7, %s, %s offen' % (s(t7), s(t7), s(WS, 4), s(t7)))

    def xhalf_add(self, r, tmp):
        self('v_mov_b32 %s, %s\nv_permlane32_swap_b32 %s, %s\nv_add_f32 %s, %s, %s'
             % (v(tmp), v(r), v(tmp), v(r), v(r), v(r), v(tmp)))

    def xhalf_add2(self, r, tmp):
        self('v_mov_b32 %s, %s\nv_mov_b32 %s, %s\ns_nop 0\nv_permlane32_swap_b32 %s, %s\nv_permlane32_swap_b32 %s, %s'
             % (v(tmp), v(r), v(tmp + 1), v(r + 1), v(tmp), v(r), v(tmp + 1), v(r + 1)))
        self('v_add_f32 %s, %s, %s\nv_add_f32 %s, %s, %s' % (v(r), v(r), v(tmp), v(r + 1), v(r + 1), v(tmp + 1)))

    def mean_rstd(self, vsum, vsq, n, mean, rstd):
        self('v_mul_f32 %s, %s, %s' % (v(mean), f32(1.0 / n), v(vsum)))
        self('v_mul_f32 %s, %s, %s' % (v(rstd), f32(1.0 / n), v(vsq)))
        self('v_fma_f32 %s, -%s, %s, %s' % (v(rstd), v(mean), v(mean), v(rstd)))
        self('v_max_f32 %s, 0, %s\nv_add_f32 %s, %s, %s' % (v(rstd), v(rstd), v(rstd), f32(1e-5), v(rstd)))
        self('v_rsq_f32 %s, %s' % (v(rstd), v(rstd)))

    def make_meanfrag(self, mean, tmp):
        self('v_sub_f32 %s, 0, %s\nv_cndmask_b32 %s, %s, 0, %s' % (v(tmp), v(mean), v(tmp), v(tmp), s(sHI, 2)))
        self('v_cvt_pk_bf16_f32 %s, %s, 0\nv_lshlrev_b32 %s, 16, %s' % (v(vMF + 1), v(tmp), v(vMF), v(vMF + 1)))
        self('v_sub_f32 %s, %s, %s\nv_cvt_pk_bf16_f32 %s, %s, %s' % (v(vMF), v(tmp), v(vMF), v(vMF), v(tmp), v(vMF)))
        self('v_mov_b32 %s, 0\nv_mov_b32 %s, 0' % (v(vMF + 2), v(vMF + 3)))

    def make_csfrag(self, cs, dst):
        self('v_cvt_pk_bf16_f32 %s, %s, %s\nv_and_b32 %s, 0xffff0000, %s' % (v(dst), v(cs), v(cs), v(dst + 1), v(dst)))
        self('v_sub_f32 %s, %s, %s\nv_cvt_pk_bf16_f32 %s, %s, 0' % (v(dst + 1), v(cs), v(dst + 1), v(dst + 1), v(dst + 1)))
        self('v_mov_b32 %s, 0\nv_mov_b32 %s, 0' % (v(dst + 2), v(dst + 3)))

    def colsum_put(self, c0, c1, xch):
        self('s_lshl_b32 %s, %s, 2\ns_add_u32 %s, %s, %d\nv_lshl_add_u32 %s, %s, 4, %s'
             % (s(t0), s(sW), s(t0), s(t0), xch, v(u0), v(vM), s(t0)))
        self.lgi('ds_write_b32 %s, %s' % (v(u0), v(c0)), 'csw')
        self.lgi('ds_write_b32 %s, %s offset:512' % (v(u0), v(c1)), 'csw')

    def colsum_part(self, base, bufs, acc, xch):
        self('s_mul_i32 %s, %s, 14336\ns_add_u32 %s, %s, %d' % (s(t0), s(sW), s(t0), s(t0), base))
        self('v_add_u32 %s, %s, %s\nv_add_u32 %s, %s, %s' % (v(u0), s(t0), v(vTRa), v(u1), s(t0), v(vTRb)))
        for q in range(7):
            for ct in range(2):
                self.trfrag(bufs[ct] + 4 * q, u0 + ct, q * 2048, 'cs%d' % q)
        for q in range(7):
            self.wlg('cs%d' % q)
            for ct in range(2):
                self.mfsum(acc + 4 * ct, bufs[ct] + 4 * q, q == 0)
        self.colsum_put(acc, acc + 4, xch)

    def colsum_get(self, buf, xch, dst):
        self('v_lshlrev_b32 %s, 4, %s' % (v(u0), v(vM)))
        self('v_add_u32 %s, %d, %s' % (v(u0), xch, v(u0)))
        for ct in range(2):
            self.lgi('ds_read_b128 %s, %s offset:%d' % (v(buf + 4 * ct, 4), v(u0), ct * 512), 'csr')
        self.wlg('csr')
        for ct in range(2):
            b = buf + 4 * ct
            self('v_add_f32 %s, %s, %s\nv_add_f32 %s, %s, %s\nv_add_f32 %s, %s, %s'
                 % (v(b), v(b), v(b + 1), v(b + 2), v(b + 2), v(b + 3), v(b), v(b), v(b + 2)))
            self.make_csfrag(b, dst + 4 * ct)

    def rowtile_dma_addrs(self, stride, vd, sbase):
        self('v_lshrrev_b32 %s, 3, %s\nv_mul_u32_u24 %s, %d, %s' % (v(u0), v(vL), v(u0), stride, v(u0)))
        self('v_lshrrev_b32 %s, 4, %s\nv_xor_b32 %s, %s, %s\nv_and_b32 %s, 7, %s'
             % (v(u1), v(vL), v(u1), v(u1), v(vL), v(u1), v(u1)))
        self('v_lshl_add_u32 %s, %s, 4, %s\nv_xor_b32 %s, 64, %s' % (v(u0), v(u1), v(u0), v(u1), v(u0)))
        self('v_add_u32 %s, %s, %s\nv_add_u32 %s, %s, %s' % (v(vd), sbase, v(u0), v(u1), sbase, v(u1)))
        d = 8 * stride - 1024
        self('v_add_u32 %s, %d, %s\nv_add_u32 %s, %d, %s\nv_add_u32 %s, %d, %s'
             % (v(vd + 1), d, v(u1), v(vd + 2), 2 * d, v(vd), v(vd + 3), 3 * d, v(u1)))

    def rowtile_read_addrs(self, vr, sbase, sxor=None):
        self('v_bfe_u32 %s, %s, 1, 3\nv_xor_b32 %s, %s, %s' % (v(u1), v(vM), v(u1), v(u1), v(vH)))
        self('v_lshlrev_b32 %s, 4, %s\nv_lshl_add_u32 %s, %s, 7, %s' % (v(u1), v(u1), v(u1), v(vM), v(u1)))
        if sxor:
            self('v_xor_b32 %s, %s, %s' % (v(u1), sxor, v(u1)))
        for k in range(4):
            self('v_xor_b32 %s, %d, %s\nv_add_u32 %s, %s, %s' % (v(vr + k), 32 * k, v(u1), v(vr + k), sbase, v(vr + k)))

    def gelu_consts(self):
        self('v_mul_f32 %s, %s, %s\nv_mul_f32 %s, %s, %s\nv_rcp_f32 %s, %s' % (v(u7), s(sK0), v(vRS), v(u8), v(vRS), v(vRS), v(vGI), v(vRS)))
        self('v_mul_f32 %s, %s, %s\nv_mul_f32 %s, %s, %s' % (v(u8), v(u8), v(vRS), v(u8), s(sK1), v(u8)))

    def gelu(self, x, n, tmp, nbg):
        for b in range(0, n, 8):
            for k in range(0, 8, 2):
                self('v_pk_mul_f32 %s, %s, %s' % (v(tmp + k, 2), v(x + b + k, 2), v(x + b + k, 2)))
            for k in range(0, 8, 2):
                self('v_pk_fma_f32 %s, %s, %s, %s op_sel:[0,1,0] op_sel_hi:[1,1,0]' % (v(tmp + k, 2), v(tmp + k, 2), v(u7, 2), v(u7, 2)))
            for k in range(0, 8, 2):
                self('v_pk_mul_f32 %s, %s, %s' % (v(tmp + k, 2), v(tmp + k, 2), v(x + b + k, 2)))
            for k in range(8):
                self('v_exp_f32 %s, %s' % (v(tmp + k), v(tmp + k)))
            for k in range(0, 8, 2):
                self('v_pk_fma_f32 %s, %s, %s, %s op_sel_hi:[1,0,0]' % (v(tmp + k, 2), v(tmp + k, 2), v(vGI, 2), v(vGI, 2)))
            for k in range(8):
                self('v_rcp_f32 %s, %s' % (v(tmp + k), v(tmp + k)))
            self.bg(nbg)
            for k in range(0, 8, 2):
                self('v_pk_mul_f32 %s, %s, %s' % (v(x + b + k, 2), v(x + b + k, 2), v(tmp + k, 2)))

    def scale(self, x, n, r):
        e = r & ~1
        sel = 'op_sel:[0,1] op_sel_hi:[1,1]' if r & 1 else 'op_sel_hi:[1,0]'
        for k in range(0, n, 2):
            self('v_pk_mul_f32 %s, %s, %s %s' % (v(x + k, 2), v(x + k, 2), v(e, 2), sel))

    def pack(self, dst, x, n):
        for k in range(0, n, 2):
            self('v_cvt_pk_bf16_f32 %s, %s, %s' % (v(dst + k // 2), v(x + k), v(x + k + 1)))

    XF, ACC1, GR, SUM, CSA, XD, XR, WD, WT, QD, NONV, SAD, TB = 16, 128, 160, 176, 180, 188, 192, 196, 198, 206, 208, 210, 214
    sROT = 49

    def prologue(self):
        XD, WD = self.XD, self.WD
        self('s_cmp_ge_u32 s2, 256\ns_cbranch_scc1 L_end')
        self.stamp('start', True)
        self('s_load_dwordx16 s[4:19], s[0:1], 0\ns_load_dwordx4 s[20:23], s[0:1], 64\ns_load_dwordx2 s[24:25], s[0:1], 80')
        self('v_lshrrev_b32 v1, 6, v0\nv_and_b32 v0, 63, v0\nv_readfirstlane_b32 %s, v1\ns_mov_b32 %s, s2' % (s(sW), s(sB)))
        if self.o.get('map', 'local') == 'q48':
            self('s_bfe_u32 %s, s2, 0x20001\ns_lshl_b32 %s, %s, 2\ns_lshr_b32 %s, s2, 6\ns_add_u32 %s, %s, %s'
                 % (s(t0), s(t0), s(t0), s(t1), s(sRB), s(t0), s(t1)))
            self('s_bfe_u32 %s, s2, 0x30003\ns_lshl_b32 %s, %s, 1\ns_and_b32 %s, s2, 1\ns_add_u32 %s, %s, %s'
                 % (s(sCB), s(t0), s(sCB), s(t2), s(sI), s(t0), s(t2)))
            self('s_lshl_b32 %s, %s, 1\ns_add_u32 %s, %s, %s' % (s(t1), s(t1), s(t1), s(t1), s(sCB)))
        else:
            self('s_and_b32 %s, s2, 7\ns_lshl_b32 %s, %s, 1\ns_lshr_b32 %s, s2, 7\ns_add_u32 %s, %s, %s'
                 % (s(t0), s(t0), s(t0), s(t1), s(sRB), s(t0), s(t1)))
            self('s_bfe_u32 %s, s2, 0x40003\ns_lshr_b32 %s, %s, 1\ns_mul_i32 %s, %s, 3\ns_add_u32 %s, %s, %s'
                 % (s(sI), s(sCB), s(sI), s(t1), s(t1), s(t1), s(t1), s(sCB)))
        self('s_cmp_ge_u32 %s, 7\ns_cselect_b32 %s, 7, 0\ns_sub_u32 %s, %s, %s' % (s(t1), s(t0), s(self.sROT), s(t1), s(t0)))
        self('s_lshl_b32 %s, %s, 2\ns_add_u32 %s, %s, %s\ns_mul_i32 %s, %s, %d' % (s(sT), s(sRB), s(sT), s(sT), s(sW), s(t2), s(sT), 32 * 896))
        self.rowtile_dma_addrs(896, XD, s(t2))
        self('v_lshrrev_b32 %s, 3, v0\nv_mul_u32_u24 %s, 2688, %s\nv_bfe_u32 %s, v0, 4, 1\nv_lshlrev_b32 %s, 2, %s'
             % (v(u0), v(u0), v(u0), v(u1), v(u1), v(u1)))
        self('v_xor_b32 %s, %s, v0\nv_and_b32 %s, 7, %s\nv_lshl_add_u32 %s, %s, 4, %s' % (v(u1), v(u1), v(u1), v(u1), v(u0), v(u1), v(u0)))
        self('s_mul_i32 %s, %s, 43008\ns_lshl_b32 %s, %s, 7\ns_add_u32 %s, %s, %s\ns_add_u32 %s, %s, 896\ns_lshl_b32 %s, %s, 11'
             % (s(t0), s(sW), s(t1), s(sI), s(t0), s(t0), s(t1), s(t0), s(t0), s(t3), s(sW)))
        self('v_add_u32 %s, %s, %s\nv_add_u32 %s, %d, %s' % (v(WD), s(t0), v(u0), v(WD + 1), 8 * 2688 - 1024, v(WD)))
        self('s_mul_i32 %s, %s, 12288\ns_add_u32 %s, %s, %d' % (s(t4), s(sW), s(t4), s(t4), XB))
        self('s_mov_b32 %s, 0x%x\ns_mov_b32 %s, 0x20000\ns_mov_b32 %s, 0x%x\ns_mov_b32 %s, 0x20000'
             % (s(SA + 2), 2048 * 896, s(SA + 3), s(SB + 2), 448 * 2688, s(SB + 3)))
        self('s_mov_b32 %s, %s' % (s(t5), s(self.sROT)))
        self('s_waitcnt lgkmcnt(0)')
        self('s_mov_b32 %s, %s\ns_mov_b32 %s, %s\ns_mov_b32 %s, %s\ns_mov_b32 %s, %s'
             % (s(SA), s(P_X), s(SA + 1), s(P_X + 1), s(SB), s(P_WQKV), s(SB + 1), s(P_WQKV + 1)))
        self.srd(SC, P_DBG, 256)
        sk = self.lab('non')
        self('s_or_b32 %s, %s, %s\ns_cbranch_scc1 %s' % (s(t0), s(sB), s(sW), sk))
        self('s_memrealtime %s\ns_waitcnt lgkmcnt(0)\ns_lshl_b64 %s, %s, 4\ns_or_b32 %s, %s, 0x80000000' % (s(t6, 2), s(t6, 2), s(t6, 2), s(t7), s(t7)))
        self('v_mov_b32 %s, %s\nv_mov_b32 %s, %s\nv_lshlrev_b32 %s, 3, v0\ns_mov_b64 exec, 255' % (v(u1), s(t6), v(u2), s(t7), v(u0)))
        self('buffer_store_dwordx2 %s, %s, %s, 0 offen sc1\ns_mov_b64 exec, -1\n%s:' % (v(u1, 2), v(u0), s(SC, 4), sk))

    def setup2(self):
        XR, WT, QD = self.XR, self.WT, self.QD
        self.srd(WS, P_WS, WS_BYTES)
        lp = self.lab('pc')
        self('s_getpc_b64 %s\n%s:\ns_sub_u32 %s, %s, %s-%s_kernel\ns_subb_u32 %s, %s, 0' % (s(84, 2), lp, s(84), s(84), lp, NAME, s(85), s(85)))
        self('s_mov_b32 s86, L_code_end-%s_kernel\ns_mov_b32 s87, 0x20000' % NAME)
        self('s_lshr_b32 %s, %s, 3\ns_lshl_b32 %s, %s, 2\ns_add_u32 %s, %s, %s\ns_lshl_b32 %s, %s, 9\nv_lshlrev_b32 %s, 3, v0'
             % (s(t0), s(sB), s(t0), s(t0), s(t0), s(t0), s(sW), s(t0), s(t0), v(u0)))
        self.load(250, u0, 84, s(t0), 0, 'code', n=2, sc1=False, pfx='a')
        self('s_getreg_b32 %s, hwreg(HW_REG_XCC_ID, 0, 4)' % s(sXCC))
        self('s_mov_b32 %s, 0\ns_mov_b32 %s, -1\ns_mov_b32 %s, 0x3f803f80' % (s(sHI), s(sHI + 1), s(sONE2)))
        k0 = -2.0 * math.sqrt(2.0 / math.pi) * math.log2(math.e)
        self('s_mov_b32 %s, %s' % (s(sK0), f32(k0)))
        self('s_mov_b32 %s, %s\ns_mov_b32 %s, %s' % (s(sK1), f32(k0 * 0.044715), s(sK1 + 1), f32(k0 * 0.044715)))
        self('s_lshl_b32 %s, %s, 4\ns_add_u32 %s, %s, %s\ns_lshl_b32 %s, %s, 3' % (s(sFID), s(sRB), s(sFID), s(sFID), s(sI), s(sFID), s(sFID)))
        self('s_and_b32 %s, %s, 1\ns_lshl_b32 %s, %s, 1\ns_lshr_b32 %s, %s, 1' % (s(t1), s(sI), s(t1), s(t1), s(sKH), s(sW)))
        self('s_lshl_b32 %s, %s, 2\ns_add_u32 %s, %s, %s\ns_and_b32 %s, %s, 1\ns_add_u32 %s, %s, %s'
             % (s(sT3), s(sRB), s(sT3), s(sT3), s(t1), s(t0), s(sW), s(sT3), s(sT3), s(t0)))
        self('v_lshrrev_b32 %s, 5, v0\nv_and_b32 %s, 31, v0\nv_lshlrev_b32 %s, 4, v0' % (v(vH), v(vM), v(vL16)))
        self('v_bfe_u32 %s, v0, 2, 2\nv_lshl_add_u32 %s, %s, 3, %s\nv_lshlrev_b32 %s, 7, %s'
             % (v(u0), v(u1), v(vH), v(u0), v(vTRa), v(u1)))
        self('v_bfe_u32 %s, v0, 4, 1\nv_and_b32 %s, 1, v0\nv_lshl_add_u32 %s, %s, 1, %s' % (v(u1), v(u2), v(u1), v(u1), v(u2)))
        self('v_bfe_u32 %s, v0, 3, 1\nv_lshlrev_b32 %s, 2, %s\nv_xor_b32 %s, %s, %s' % (v(u2), v(u2), v(u2), v(u2), v(u2), v(u1)))
        self('v_lshl_add_u32 %s, %s, 4, %s\nv_bfe_u32 %s, v0, 1, 1\nv_lshl_add_u32 %s, %s, 3, %s'
             % (v(vTRa), v(u2), v(vTRa), v(u2), v(vTRa), v(u2), v(vTRa)))
        self('v_xor_b32 %s, 64, %s' % (v(vTRb), v(vTRa)))
        self('v_and_b32 %s, 0x13, %s\nv_bfe_u32 %s, v0, 2, 1\nv_lshl_or_b32 %s, %s, 3, %s'
             % (v(vPM), v(vM), v(u0), v(vPM), v(u0), v(vPM)))
        self('v_bfe_u32 %s, v0, 3, 1\nv_lshl_or_b32 %s, %s, 2, %s' % (v(u1), v(vPM), v(u1), v(vPM)))
        self('v_bfe_u32 %s, v0, 4, 1\nv_cmp_eq_u32 vcc, %s, %s\nv_mov_b32 %s, %s\nv_cndmask_b32 %s, 0, %s, vcc'
             % (v(u1), v(u0), v(u1), v(u1), s(sONE2), v(u1), v(u1)))
        for k in range(4):
            self('v_accvgpr_write_b32 a%d, %s' % (252 + k, v(u1)))
        self('s_lshl_b32 %s, %s, 5' % (s(t1), s(sW)))
        self.rowtile_read_addrs(XR, s(t4), s(t1))
        for k in range(4):
            self('s_xor_b32 %s, %s, %d\nv_or_b32 %s, %s, %s\nv_or_b32 %s, %s, %s'
                 % (s(t0), s(t3), k * 2048, v(WT + 2 * k), s(t0), v(vTRa), v(WT + 2 * k + 1), s(t0), v(vTRb)))
        self('s_mul_i32 %s, %s, 56\ns_and_b32 %s, %s, 1\ns_lshl_b32 %s, %s, 3\ns_sub_u32 %s, %s, %s'
             % (s(t0), s(sI), s(t1), s(sI), s(t1), s(t1), s(t0), s(t0), s(t1)))
        self('v_lshrrev_b32 %s, 2, v0\nv_mul_u32_u24 %s, 2688, %s\nv_and_b32 %s, 3, v0\nv_lshl_add_u32 %s, %s, 4, %s'
             % (v(u0), v(u0), v(u0), v(u1), v(QD), v(u1), v(u0)))
        self('s_mul_i32 %s, %s, 43008\ns_add_u32 %s, %s, %s\nv_add_u32 %s, %s, %s\ns_lshl_b32 s82, %s, 10'
             % (s(t1), s(sW), s(t0), s(t0), s(t1), v(QD), s(t0), v(QD), s(sW)))

    def p1_variant(self, kind):
        XF, ACC, GR, SUM, CSA, XD, XR, WD, WT, QD, NONV, SAD, TB = (
            self.XF, self.ACC1, self.GR, self.SUM, self.CSA, self.XD, self.XR, self.WD, self.WT, self.QD,
            self.NONV, self.SAD, self.TB)
        kv = kind != 'N'

        def wreg(j, k, ct):
            return 32 * (j & 1) + 8 * k + 4 * ct

        def step(reg):
            self('s_add_u32 %s, %s, 1\ns_cmp_eq_u32 %s, 7\ns_cselect_b32 %s, 0, %s' % (s(reg), s(reg), s(reg), s(reg), s(reg)))

        def block_ops(j):
            ops = []
            if kv:
                def w_():
                    self('s_add_u32 m0, %s, %d\ns_mul_i32 %s, %s, %d' % (s(t3), j * 8192, s(t0), s(t5), 64 * 2688))
                    self.dma(WD, SB, s(t0), 0, 'B%d' % j)
                ops += [w_, lambda: self.dma(WD + 1, SB, s(t0), 1024, 'B%d' % j)]

            def x_():
                self('s_add_u32 m0, %s, %d\ns_lshl_b32 %s, %s, 7' % (s(t4), (j % 3) * 4096, s(t0), s(t5)))
                self.dma(XD, SA, s(t0), 0, 'B%d' % j)
            ops.append(x_)
            for rg in range(1, 4):
                ops.append(lambda rg=rg: self.dma(XD + rg, SA, s(t0), rg * 1024, 'B%d' % j))
            ops.append(lambda: step(t5))
            return ops

        def wq_op(j):
            self('s_add_u32 m0, s82, %d\ns_mul_i32 %s, %s, %d' % (WQB + j * 4096, s(t0), s(t5), 64 * 2688))
            self.dma(QD, SB, s(t0), 0, 'WQ')
            step(t5)
        if kind == 'C':
            self.q = block_ops(0) + block_ops(1)
            self.bg(99)
            self.stamp('p1dma')
            keep = list(self.vm)
            self.setup2()
            self.vm = keep + ['code']
            return
        if kind == 'K':
            self('s_lshl_b32 %s, %s, 3\nv_add_u32 %s, %s, %s\ns_mov_b32 %s, 225792\ns_mul_i32 %s, %s, 3584\ns_add_u32 %s, %s, %d'
                 % (s(t0), s(sI), v(u0), s(t0), v(vH), s(t1), s(t2), s(sT), s(t2), s(t2), KF))
            for k in range(4):
                self('v_add_u32 %s, %d, %s\nv_mul_u32_u24 %s, 37, %s\nv_lshrrev_b32 %s, 8, %s'
                     % (v(u1), 2 * k, v(u0), v(u2), v(u1), v(u2), v(u2)))
                self('v_mul_lo_u32 %s, %s, %s\nv_lshl_add_u32 %s, %s, 9, %s\nv_lshl_add_u32 %s, %s, 4, %s'
                     % (v(u2), v(u2), s(t1), v(u2), v(u1), v(u2), v(SAD + k), v(vM), v(u2)))
        elif kind == 'V':
            self('s_sub_u32 %s, %s, 7\ns_lshl_b32 %s, %s, 6\ns_mov_b32 %s, %d\ns_mul_i32 %s, %s, 1792\ns_add_u32 %s, %s, %d'
                 % (s(t0), s(sI), s(t0), s(t0), s(t1), 114688 - 448, s(t2), s(sT), s(t2), s(t2), VF))
            for ct in range(2):
                self('v_add_u32 %s, %s, %s\nv_add_u32 %s, %d, %s\nv_mul_u32_u24 %s, 2341, %s\nv_lshrrev_b32 %s, 16, %s'
                     % (v(u2), s(t0), v(vPM), v(u2), 32 * ct, v(u2), v(u3), v(u2), v(u3), v(u3)))
                self('v_mul_lo_u32 %s, %s, %s\nv_lshl_add_u32 %s, %s, 4, %s\nv_mul_u32_u24 %s, 448, %s\nv_add_u32 %s, %s, %s'
                     % (v(u3), v(u3), s(t1), v(u3), v(u2), v(u3), v(u2), v(vH), v(SAD + ct), v(u3), v(u2)))
            self('s_lshl_b32 %s, %s, 7\ns_add_u32 %s, %s, %d' % (s(t0), s(sW), s(t0), s(t0), RSX))
            self('v_lshl_add_u32 %s, %s, 2, %s\nv_lshl_add_u32 %s, %s, 4, %s' % (v(SAD + 2), v(vM), s(t0), v(SAD + 3), v(vH), s(t0)))
        XS, XG = TB, TB + 8
        xst = kv and self.o.get('xst', 1)
        if xst:
            self('s_lshl_b32 s88, %s, 13\ns_add_u32 s88, s88, %d\ns_lshl_b32 %s, %s, 9\ns_add_u32 s89, s88, %s'
                 % (s(sT), XST, s(t6), s(sI), s(t6)))
            self('s_and_b32 %s, %s, 512\ns_add_u32 s88, s88, %s\nv_lshlrev_b32 %s, 4, %s' % (s(t6), s(t6), s(t6), v(XS + 4), v(vM)))
            self('v_lshl_add_u32 %s, %s, 12, %s\nv_mul_u32_u24 %s, 3072, %s\nv_add_u32 %s, %s, %s'
                 % (v(XG), v(vH), v(XS + 4), v(XG + 1), v(vH), v(XG + 1), v(XG + 1), v(XS + 4)))
        self.stamp('p1iss')

        def stat_mf(j, k):
            x_ = XF + 16 * j + 4 * k
            first = j == 0 and k == 0
            return [lambda: self.mfma(GR, x_, x_, None if first else GR), lambda: self.mfsum(SUM, x_, first)]

        def main_mf(j, k):
            x_ = XF + 16 * j + 4 * k
            out = []
            for ct in range(2):
                def f(ct=ct):
                    c = None if j == 0 and k == 0 else ACC + 16 * ct
                    if ct == 0:
                        self.wlg('w%d_%d' % (j, k))
                    if kind == 'K':
                        self.mfma(ACC + 16 * ct, wreg(j, k, ct), x_, c, pa='a')
                    else:
                        self.mfma(ACC + 16 * ct, x_, wreg(j, k, ct), c, pb='a')
                out.append(f)
            return out

        def cs_mf(j):
            return [lambda ct=ct: self.mfsum(CSA + 4 * ct, wreg(j, 0, ct), j == 0, pb='a') for ct in range(2)]

        def side_ops(j):
            def head():
                self.wvm('B%d' % j)
                if kv:
                    self('s_barrier')
            side = [head]
            for k in range(4):
                side.append(lambda k=k: self.lgi('ds_read_b128 %s, %s offset:%d' % (
                    v(XF + 16 * j + 4 * k, 4), v(XR + k), (j % 3) * 4096), 'xf%d' % j))
            dm = block_ops(j + 2) if j + 2 < 7 else [lambda q=q: wq_op(q) for q in (range(4) if j == 5 else range(4, 7))]
            if j == (1 if xst else 3):
                def non():
                    self('v_mov_b32 %s, 0' % v(NONV))
                    self.load(NONV, NONV, SC, '0', 0, 'nonl', n=2)
                dm.insert(0, non)
            if xst and j == 6:
                dm = [lambda q=q: self.load(GR + 4 * q, XG + (q == 3), WS, 's88', q * 1024, 'xg') for q in range(4)] + dm
            if kv:
                for k in range(4):
                    for ct in range(2):
                        def rd(k=k, ct=ct):
                            w_ = wreg(j, k, ct)
                            for e in range(2):
                                self.lgi('ds_read_b64_tr_b16 a[%d:%d], %s offset:%d' % (
                                    w_ + 2 * e, w_ + 2 * e + 1, v(WT + 2 * k + ct), j * 8192 + 512 * e), 'w%d_%d' % (j, k))
                        side.append(rd)
                        if dm:
                            side.append(dm.pop(0))
            return side + dm
        self.q = side_ops(0)
        self.bg(99)
        for j in range(7):
            if j in (0, 3, 6):
                self.stamp('p1x%d' % j)
            self.wlg('xf%d' % j)
            self.q = side_ops(j + 1) if j < 6 else []
            seq = []
            if xst:
                for k in range(4):
                    st = stat_mf(j, k) if j == 0 else []
                    seq += st[:1] + main_mf(j, k) + st[1:]
                    if k == 0:
                        seq += cs_mf(j)
                if j == 1:
                    self.fill = self.cap(lambda: (self.diag(GR, XS + 1), self('v_mov_b32 %s, %s' % (v(XS), v(SUM)))))
                if j == 3:
                    self.drip(99)
                    self.wvm('nonl')
                    self.retry('v_cmp_eq_u32 vcc, 0, %s' % v(NONV + 1),
                               'v_mov_b32 %s, 0\nbuffer_load_dwordx2 %s, %s, %s, 0 offen sc1' % (v(NONV), v(NONV, 2), v(NONV), s(SC, 4)))
                    self('v_readfirstlane_b32 %s, %s\nv_readfirstlane_b32 %s, %s' % (s(sNON), v(NONV), s(sNON + 1), v(NONV + 1)))
                    self('v_mov_b32 %s, %s\nv_mov_b32 %s, %s\ns_not_b64 exec, %s' % (v(XS + 2), v(NONV), v(XS + 3), v(NONV + 1), s(sHI, 2)))
                    self.store(XS, XS + 4, WS, 's89', 0, 'xs')
                    self('s_mov_b64 exec, -1')
                if j == 6:
                    for f in seq[:6]:
                        f()
                    seq = seq[6:]
                    self.colsum_put(CSA, CSA + 4, MISC)
                    self.wvm('xg')
                    test = ''
                    for q in range(4):
                        test += 'v_cmp_ne_u64 %s, %s, %s\n' % (('vcc', s(t0, 2), 's[90:91]', s(t6, 2))[q], s(sNON, 2), v(GR + 4 * q + 2, 2))
                    test += 's_or_b64 %s, %s, s[90:91]\ns_or_b64 vcc, vcc, %s\ns_or_b64 vcc, vcc, %s' % (s(t0, 2), s(t0, 2), s(t6, 2), s(t0, 2))
                    self.retry(test, '\n'.join('buffer_load_dwordx4 %s, %s, %s, s88 offen offset:%d sc1'
                                               % (v(GR + 4 * q, 4), v(XG + (q == 3)), s(WS, 4), q * 1024) for q in range(4)))

                    def fin():
                        for e in range(2):
                            self('v_cndmask_b32 %s, %s, 0, %s\nv_add_f32 %s, %s, %s\nv_add_f32 %s, %s, %s\nv_add_f32 %s, %s, %s'
                                 % (v(GR + 12 + e), v(GR + 12 + e), s(sHI, 2), v(GR + e), v(GR + e), v(GR + 4 + e),
                                    v(GR + 8 + e), v(GR + 8 + e), v(GR + 12 + e), v(GR + e), v(GR + e), v(GR + 8 + e)))
                        self.xhalf_add2(GR, GR + 2)
                        self.mean_rstd(GR, GR + 1, 448, u3, vRS)
                        self.make_meanfrag(u3, u4)
                    self.fill = self.cap(fin)
                for g, f in enumerate(seq):
                    f()
                    if g >= 1 or j == 6:
                        self.bg(3 if j else 2)
                        self.drip(6 if j == 6 else 2)
                self.bg(99)
                if j == 6:
                    self.drip(99)
            elif j < 6:
                for k in range(4):
                    st = stat_mf(j, k)
                    seq += ([st[0]] + main_mf(j, k) + [st[1]]) if kv else st
                    if kv and k == 0:
                        seq += cs_mf(j)
                for g, f in enumerate(seq):
                    f()
                    if g >= 1:
                        self.bg(2)
                self.bg(99)
            else:
                for k in range(4):
                    for f in stat_mf(j, k):
                        f()
                if kv:
                    self.wlg('w6_0')
                    for f in cs_mf(j):
                        f()
                hold, self.a = self.a, Asm()
                self.diag(GR, u2)
                self.mean_rstd(SUM, u2, 448, u3, vRS)
                self.make_meanfrag(u3, u4)
                tail = [x.text for x in self.a.L]
                self.a = hold
                if kv:
                    mm = sum((main_mf(j, k) for k in range(4)), [])
                    mm[0]()
                    mm[1]()
                    self.colsum_put(CSA, CSA + 4, MISC)
                    for g in range(2, 8):
                        mm[g]()
                        self('\n'.join(tail[6 * (g - 2):6 * (g - 2) + 6]))
                    self('\n'.join(tail[36:]))
                else:
                    self('\n'.join(tail))
        self.stamp('p1mm')
        if not kv:
            self('s_lshl_b32 %s, %s, 1\ns_add_u32 %s, %s, %s\ns_sub_u32 %s, %s, 14\ns_lshl_b32 %s, %s, 2\ns_add_u32 %s, %s, %s'
                 % (s(t0), s(sRB), s(t0), s(t0), s(sI), s(t0), s(t0), s(t0), s(t0), s(t0), s(t0), s(sW)))
            self.srd(SA, P_WO, 448 * 896)
            self('s_lshl_b32 %s, %s, 12' % (s(t1), s(t0)))
            for q in range(4):
                self.load(64 + 4 * q, vL16, SA, s(t1), q * 1024, 'pf', sc1=False, pfx='a')
            self.srd(SA, P_WIN, 448 * 3584)
            self('s_mul_i32 %s, %s, 13312' % (s(t1), s(t0)))
            for q in range(13):
                if q and q % 4 == 0:
                    self('s_add_u32 %s, %s, 4096' % (s(t1), s(t1)))
                self.load(80 + 4 * q, vL16, SA, s(t1), (q % 4) * 1024, 'pf', sc1=False, pfx='a')
            return
        if kind == 'V':
            self.lgi('ds_write_b32 %s, %s' % (v(SAD + 2), v(vRS)), 'rs')
        self.wlg()
        self('s_barrier')
        if kind == 'V':
            for g in range(4):
                self.lgi('ds_read_b128 %s, %s offset:%d' % (v(TB + 4 * g, 4), v(SAD + 3), 32 * g), 'rs')
        self.colsum_get(GR, MISC, vCS2)
        for ct in range(2):
            if kind == 'K':
                self.mfma(ACC + 16 * ct, vCS2 + 4 * ct, vMF, ACC + 16 * ct)
            else:
                self.mfma(ACC + 16 * ct, vMF, vCS2 + 4 * ct, ACC + 16 * ct)
        for c in range(4):
            if kind == 'K':
                self.scale(ACC + 8 * c, 8, vRS)
            else:
                for k in range(0, 8, 2):
                    r = ACC + 8 * c + k
                    self('v_pk_mul_f32 %s, %s, %s' % (v(r, 2), v(r, 2), v(TB + 8 * (c & 1) + k, 2)))
            self.pack(GR + 4 * c, ACC + 8 * c, 8)
            if kind == 'K':
                self.store(GR + 4 * c, SAD + c, WS, s(t2), 0, 'st')
            else:
                self.store(GR + 4 * c, SAD + (c >> 1), WS, s(t2), (c & 1) * 896, 'st')

    def diag(self, g, dst):
        masks = (0xaaaaaaaa, 0xcccccccc, 0xff00ff00, 0xffff0000)
        n = 16
        for m in masks:
            self('s_mov_b32 vcc_lo, 0x%x\ns_mov_b32 vcc_hi, 0x%x' % (m, m))
            n //= 2
            for k in range(n):
                self('v_cndmask_b32 %s, %s, %s, vcc' % (v(g + k), v(g + 2 * k), v(g + 2 * k + 1)))
        self('v_mov_b32 %s, %s\ns_mov_b32 vcc_lo, 0xf0f0f0f0\ns_mov_b32 vcc_hi, 0xf0f0f0f0\nv_permlane32_swap_b32 %s, %s'
             % (v(g + 1), v(g), v(g), v(g + 1)))
        self('v_cndmask_b32 %s, %s, %s, vcc' % (v(dst), v(g), v(g + 1)))

    def p1(self):
        XF, ACC, GR, SUM, WT, NONV, TB = self.XF, self.ACC1, self.GR, self.SUM, self.WT, self.NONV, self.TB
        self.p1_variant('C')
        vm0 = list(self.vm)
        self('s_cmp_ge_u32 %s, 14\ns_cbranch_scc1 L_p1_N\ns_cmp_ge_u32 %s, 7\ns_cbranch_scc1 L_p1_V' % (s(sI), s(sI)))
        for kind in 'KVN':
            self('L_p1_%s:' % kind)
            self.vm, self.lg = list(vm0), []
            self.p1_variant(kind)
            if kind != 'N':
                self('s_branch L_p1_join')
        self('L_p1_join:')
        self.stamp('p1st')
        EC = self.o.get('ec', 5)
        self.vm = ['any']
        if EC:
            self.cold_setup()
            self.bg(EC)
            rest = self.q
        lp = self.lab('tag')
        self('s_mov_b32 %s, 0\ns_lshl_b32 %s, %s, 3\ns_add_u32 %s, %s, %d\ns_waitcnt vmcnt(%d)\n%s:' % (s(sCNT), s(t5), s(sFID), s(t5), s(t5), FLAG1, EC, lp))
        self('v_readfirstlane_b32 %s, %s\nv_readfirstlane_b32 %s, %s' % (s(sNON), v(NONV), s(sNON + 1), v(NONV + 1)))
        self('s_cmp_lg_u32 %s, 0\ns_cbranch_scc1 %s_d' % (s(sNON + 1), lp))
        self('v_mov_b32 %s, 0\nbuffer_load_dwordx2 %s, %s, %s, 0 offen sc1' % (v(u0), v(NONV, 2), v(u0), s(SC, 4)))
        self('s_add_u32 %s, %s, 1\ns_waitcnt vmcnt(0)\ns_cmp_lt_u32 %s, %d\ns_cbranch_scc1 %s\n%s_d:'
             % (s(sCNT), s(sCNT), s(sCNT), POLL_MAX, lp, lp))
        self.vm, self.lg = self.vm[1:], []
        self.publish(s(t5), xcc=True, drain=False)
        self.stamp('p1pub')
        self('s_lshl_b32 %s, %s, 10\ns_add_u32 %s, %s, %d' % (s(t0), s(sB), s(t0), s(t0), ONES))
        for k in range(4):
            self('v_mov_b32 %s, %s' % (v(TB + k), s(sONE2)))
        self.store(TB, vL16, WS, s(t0), 0, 'ones')
        self('v_bfe_u32 %s, v0, 2, 2\nv_lshl_add_u32 %s, %s, 3, %s\nv_lshlrev_b32 %s, 6, %s' % (v(u0), v(u0), v(vH), v(u0), v(u0), v(u0)))
        self('v_bfe_u32 %s, v0, 4, 1\nv_lshl_add_u32 %s, %s, 5, %s\nv_and_b32 %s, 1, v0\nv_lshl_add_u32 %s, %s, 4, %s'
             % (v(u1), v(u0), v(u1), v(u0), v(u1), v(u0), v(u1), v(u0)))
        self('v_bfe_u32 %s, v0, 1, 1\nv_lshl_add_u32 %s, %s, 3, %s' % (v(u1), v(u0), v(u1), v(u0)))
        for k in range(4):
            self('s_xor_b32 %s, %s, %d\ns_lshl_b32 %s, %s, 10\ns_add_u32 %s, %s, %d\nv_add_u32 %s, %s, %s'
                 % (s(t0), s(sW), k, s(t0), s(t0), s(t0), s(t0), WQB, v(WT + k), s(t0), v(u0)))

        def qrd(j, k):
            for e in range(2):
                r = 16 * (j & 1) + 4 * k + 2 * e
                self.lgi('ds_read_b64_tr_b16 a[%d:%d], %s offset:%d' % (r, r + 1, v(WT + k), j * 4096 + 256 * e), 'q%d_%d' % (j, k))
        for k in range(4):
            qrd(0, k)
        if EC:
            self.q = rest
        else:
            self.cold_setup()
        for j in range(7):
            for k in range(4):
                self.wlg('q%d_%d' % (j, k))
                r = 16 * (j & 1) + 4 * k
                self.mfma(ACC, r, XF + 16 * j + 4 * k, None if j + k == 0 else ACC, pa='a')
                if j < 6:
                    qrd(j + 1, k)
                self.mfsum(SUM, r, j + k == 0, pb='a')
                if k & 1 or j < 2:
                    self.bg(1)
        assert not self.q
        self('v_mul_f32 %s, %s, %s' % (v(u3), f32(math.log2(math.e) / math.sqrt(28.0)), v(vRS)))
        self('s_bitcmp1_b32 %s, 0\ns_cselect_b64 %s, -1, 0' % (s(sI), s(t0, 2)))
        self('s_andn2_b64 %s, %s, %s\ns_andn2_b64 %s, %s, %s' % (s(t2, 2), s(t0, 2), s(sHI, 2), s(t4, 2), s(sHI, 2), s(t0, 2)))
        self('s_lshl_b32 %s, %s, 11\ns_add_u32 %s, %s, %d\nv_add_u32 %s, %s, %s' % (s(t0), s(sW), s(t0), s(t0), MISC, v(u0), s(t0), v(vL16)))
        self.make_csfrag(SUM, vCS2)
        self.mfma(ACC, vCS2, vMF, ACC)
        self.scale(ACC, 16, u3)
        self.pack(GR, ACC, 16)
        for k in range(2):
            self('v_cndmask_b32 %s, %s, 0, %s\nv_cndmask_b32 %s, %s, 0, %s'
                 % (v(GR + k), v(GR + k), s(t2, 2), v(GR + 6 + k), v(GR + 6 + k), s(t4, 2)))
        self.lgi('ds_write_b128 %s, %s' % (v(u0), v(GR, 4)), 'qw')
        self.lgi('ds_write_b128 %s, %s offset:1024' % (v(u0), v(GR + 4, 4)), 'qw')
        self.p2_setup()
        self.wlg()
        self.vm_s1 = list(self.vm)
        self.stamp('q')
        WF = ACC
        sk, lp = self.lab('s1skip'), self.lab('s1')
        self('s_cmp_eq_u32 %s, 0\ns_cbranch_scc0 %s\ns_mov_b32 %s, 0\nv_lshlrev_b32 %s, 6, v0\n%s:' % (s(sW), sk, s(sCNT), v(WF + 8), lp))
        for k in range(4):
            self('s_mov_b32 %s, %d\nbuffer_load_dwordx2 %s, %s, %s, %s offen sc1' % (s(t0), FLAG1 + 4096 * k, v(WF + 2 * k, 2), v(WF + 8), s(WS, 4), s(t0)))
        self('s_add_u32 %s, %s, 1\ns_waitcnt vmcnt(0)' % (s(sCNT), s(sCNT)))
        for k in range(4):
            self('v_and_b32 %s, -16, %s' % (v(WF + 2 * k), v(WF + 2 * k)))
        for k in range(4):
            self('v_cmp_ne_u64 %s, %s, %s' % (('vcc', s(t0, 2), s(t2, 2), s(t6, 2))[k], s(sNON, 2), v(WF + 2 * k, 2)))
        self('s_or_b64 %s, %s, vcc\ns_or_b64 %s, %s, %s\ns_or_b64 %s, %s, %s'
             % (s(t0, 2), s(t0, 2), s(t2, 2), s(t2, 2), s(t6, 2), s(t0, 2), s(t0, 2), s(t2, 2)))
        self('s_cbranch_scc0 %s\ns_cmp_lt_u32 %s, %d\ns_cbranch_scc1 %s\n%s:\ns_barrier' % (sk, s(sCNT), POLL_MAX, lp, sk))
        self.stamp('s1')

    Q, O, S, P, KV, VOV, VST = 16, 48, 112, 144, 152, 217, 218

    def kv_addr(self, wave_split):
        VOV, VST = self.VOV, self.VST
        self('s_lshr_b32 %s, %s, 1\ns_mul_i32 %s, %s, 229376\ns_and_b32 %s, %s, 1\ns_mul_i32 %s, %s, 1536\ns_add_u32 %s, %s, %s'
             % (s(t0), s(sI), s(t4), s(t0), s(t0), s(sI), s(t0), s(t0), s(t4), s(t4), s(t0)))
        self('s_add_u32 %s, %s, %d\ns_mul_i32 %s, %s, 114688\ns_add_u32 %s, %s, %d' % (s(t4), s(t4), KF, s(t1), s(sI), s(t1), s(t1), VF))
        if wave_split:
            self('s_mul_i32 %s, %s, %d\ns_add_u32 %s, %s, %s\ns_mul_i32 %s, %s, %d\ns_add_u32 %s, %s, %s'
                 % (s(t0), s(sW), 16 * 3584, s(t4), s(t4), s(t0), s(t0), s(sW), 16 * 1792, s(t1), s(t1), s(t0)))
        self('v_mul_u32_u24 %s, 448, %s\nv_lshl_add_u32 %s, %s, 4, %s\nv_add_u32 %s, %s, %s'
             % (v(u0), v(vH), v(u0), v(vPM), v(u0), v(u0), s(t1), v(u0)))
        self('s_lshl_b32 %s, %s, 10\ns_add_u32 %s, %s, %d' % (s(t0), s(sB), s(t0), s(t0), ONES))
        self('v_mov_b32 %s, %s\nv_cmp_lt_u32 vcc, 28, %s\nv_mov_b32 %s, 0x7ff00000\nv_cndmask_b32 %s, %s, %s, vcc'
             % (v(u1), s(t0), v(vM), v(u2), v(u1), v(u1), v(u2)))
        self('v_mov_b32 %s, 1792\nv_cmp_gt_u32 vcc, 28, %s' % (v(u2), v(vM)))
        self('v_cndmask_b32 %s, %s, %s, vcc\nv_cndmask_b32 %s, 0, %s, vcc' % (v(VOV), v(u1), v(u0), v(VST), v(u2)))

    RW, QA, PD, PR = 226, 230, 234, 238
    SX, SBS, SSP, SWO = 84, 88, 92, 96

    def unit_addrs(self, pd, pr, sbase, stride):
        self('s_lshl_b32 %s, %s, 17\ns_mul_i32 %s, %s, %d\ns_add_u32 %s, %s, %d'
             % (s(t0), s(sT), sbase, s(sW), stride[1], sbase, sbase, stride[0]))
        self.rowtile_dma_addrs(4096, pd, s(t0))
        self.rowtile_read_addrs(pr, sbase)

    def unit_ops(self, u, slot, pd, sbase):
        def first():
            self('s_add_u32 m0, %s, %d\ns_add_u32 s101, s83, %d\ns_and_b32 s101, s101, 0xf80' % (sbase, slot * 4096, u * 128))
            self.dma(pd, self.SSP, 's101', 0, 'U%d' % u)
        return [first] + [lambda rg=rg: self.dma(pd + rg, self.SSP, 's101', rg * 1024, 'U%d' % u) for rg in range(1, 4)]

    def unit_read(self, u, slot, pr):
        for k in range(4):
            self.lgi('ds_read_b128 a[%d:%d], %s offset:%d' % (16 * u + 4 * k, 16 * u + 4 * k + 3, v(pr + k), slot * 4096), 'ur')

    def cold_setup(self):
        SX, SBS, SSP, SWO = self.SX, self.SBS, self.SSP, self.SWO
        self.srd(SX, P_X, 2048 * 896)
        self.srd(SBS, P_BSP, 4096)
        self.srd(SSP, P_WSP, 2048 * 4096)
        self.srd(SWO, P_WOUT, 896 * 896)
        self('s_mul_i32 %s, %s, %d\ns_lshl_b32 %s, %s, 7\ns_add_u32 %s, %s, %s\ns_lshl_b32 %s, %s, 6\ns_add_u32 %s, %s, %s'
             % (s(t0), s(sT3), 32 * 896, s(t1), s(sCB), s(t0), s(t0), s(t1), s(t1), s(sKH), s(t0), s(t0), s(t1)))
        self('v_mul_u32_u24 v224, 896, %s\nv_lshl_add_u32 v224, %s, 4, v224\nv_add_u32 v224, %s, v224' % (v(vM), v(vH), s(t0)))
        self('s_lshl_b32 %s, %s, 6\nv_lshl_add_u32 %s, %s, 1, %s' % (s(t0), s(sT), v(vBSP), v(vM), s(t0)))
        self('s_lshl_b32 %s, %s, 2\ns_add_u32 %s, %s, %s\ns_lshl_b32 %s, %s, 13\ns_lshl_b32 %s, %s, 19\ns_add_u32 %s, %s, %s\nv_add_u32 v225, %s, %s'
             % (s(t0), s(sI), s(t0), s(t0), s(sW), s(t0), s(t0), s(t1), s(sRB), s(t0), s(t0), s(t1), s(t0), v(vL16)))
        self('s_lshl_b32 %s, %s, 2\ns_add_u32 %s, %s, %s\ns_lshl_b32 s82, %s, 10\ns_lshl_b32 s83, %s, 8\ns_movk_i32 s101, 4096'
             % (s(t0), s(sB), s(t0), s(t0), s(sW), s(t0), s(sI)))
        self.q = [lambda q=q: self.load(216 + 4 * q, 225, SSP, 's101' if q >= 4 else '0', (q % 4) * 1024, 'pf', sc1=False, pfx='a')
                  for q in range(8)]
        self.q += [lambda: self.load(248, vL16, SWO, 's82', 0, 'pf', sc1=False, pfx='a'),
                   lambda: self.load(vHK, 224, SX, '0', 0, 'pf', sc1=False),
                   lambda: self.load(vHK + 4, 224, SX, '0', 32, 'pf', sc1=False),
                   lambda: self.vmi('buffer_load_ushort %s, %s, %s, 0 offen' % (v(vBSP), v(vBSP), s(SBS, 4)), 'pf')]
        self('s_lshl_b32 %s, %s, 15\ns_lshl_b32 %s, %s, 11\ns_add_u32 %s, %s, %s\ns_add_u32 s73, %s, %d'
             % (s(t0), s(sT), s(t1), s(sI), s(t2), s(t0), s(t1), s(t2), OF))
        self('s_lshl_b32 %s, %s, 13\ns_lshl_b32 %s, %s, 9\ns_add_u32 %s, %s, %s\ns_add_u32 %s, %s, %d\ns_lshl_b32 %s, %s, 7'
             % (s(t0), s(sT), s(t1), s(sI), s(t0), s(t0), s(t1), s(t0), s(t0), ZST - 512, s(t1), s(sRB)))
        self('v_and_b32 v222, 3, v0\nv_lshlrev_b32 v222, 12, v222\nv_add_u32 v222, %d, v222\nv_add_u32 v222, %s, v222' % (FLAG2, s(t1)))
        self('v_add_u32 v223, %s, %s\nv_cndmask_b32 v222, v222, v223, %s' % (s(t0), v(vL16), s(sHI, 2)))
        self.q.insert(0, lambda: self.load(208, 222, WS, '0', 0, 'pf', n=1, pfx='a'))

    def p2_setup(self):
        RW = self.RW
        self.kv_addr(True)
        self.srd(SA, P_WO, 448 * 896)
        self.srd(SB, P_WIN, 448 * 3584)
        self('s_lshl_b32 %s, %s, 7' % (s(t2), s(sCB)))
        wo = self.image_ops(220, SA, 896, s(t2), 0, 14, 'pf')
        self('s_lshl_b32 %s, %s, 7\ns_add_u32 %s, %s, 1792' % (s(t2), s(sI), s(t2), s(t2)))
        win = self.image_ops(222, SB, 3584, s(t2), WIN2, 14, 'pf')
        for j in range(4):
            self('s_add_u32 %s, %s, %d\ns_and_b32 %s, %s, 3\ns_mul_i32 %s, %s, 12288\ns_add_u32 %s, %s, %d\nv_add_u32 %s, %s, %s'
                 % (s(t0), s(sW), j + 1, s(t0), s(t0), s(t1), s(t0), s(t1), s(t1), RED + 4096 * (j % 3), v(RW + j), s(t1), v(vL16)))
            self('s_lshl_b32 %s, %s, 11\ns_add_u32 %s, %s, %d\nv_add_u32 %s, %s, %s' % (s(t0), s(t0), s(t0), s(t0), MISC, v(self.QA + j), s(t0), v(vL16)))
        self.unit_addrs(self.PD, self.PR, 's100', (RED, 12288))
        self('s_lshl_b32 %s, %s, 10\ns_add_u32 %s, %s, %d\nv_and_b32 v219, 15, v0\nv_lshl_add_u32 v219, v219, 6, %s'
             % (s(t0), s(sRB), s(t0), s(t0), FLAG1, s(t0)))
        self.att_img = [wo[k:k + 2] for k in range(0, 14, 2)] + [win[k:k + 2] for k in range(0, 14, 2)]

    def p2(self):
        Q, O, S, P, KV, VOV, VST, RW = self.Q, self.O, self.S, self.P, self.KV, self.VOV, self.VST, self.RW
        self.vm, self.lg = self.vm_s1, []
        self.wvm('ones')

        def kvload(it):
            b = KV + 16 * (it % 4)
            self.load(b, vL16, WS, s(t4), 0, 'K%d' % it)
            self.load(b + 4, vL16, WS, s(t4), 1024, 'K%d' % it)
            self.load(b + 8, VOV, WS, '0', 0, 'V%d' % it)
            self.load(b + 12, VOV, WS, '0', 896, 'V%d' % it)
            if it < 15:
                self('s_add_u32 %s, %s, 3584\nv_add_u32 %s, %s, %s' % (s(t4), s(t4), v(VOV), v(VST), v(VOV)))
        kvload(0)
        for j in range(4):
            self.lgi('ds_read_b128 %s, %s' % (v(Q + 8 * j, 4), v(self.QA + j)), 'q')
            self.lgi('ds_read_b128 %s, %s offset:1024' % (v(Q + 8 * j + 4, 4), v(self.QA + j)), 'q')
        kvload(1)
        kvload(2)
        self.wlg()
        self('s_barrier')
        wait_kv = self.wvm
        NA = self.NA
        self.stamp('a_iss')
        wait_kv('K0')
        self.stamp('a_k0')
        self.mfma(S, KV, Q, None)
        self.mfma(S, KV + 4, Q + 4, S)
        for n in range(64):
            it, j = divmod(n, 4)
            Sc, Sn = S + 16 * (n & 1), S + 16 * ((n + 1) & 1)
            ex = ['v_exp_f32 %s, %s' % (v(Sc + k), v(Sc + k)) for k in range(16)]
            pk = ['v_cvt_pk_bf16_f32 %s, %s, %s' % (v(P + k), v(Sc + 2 * k), v(Sc + 2 * k + 1)) for k in range(8)]
            nit, nj = divmod(n + 1, 4)
            pit, pj = divmod(n - 1, 4)
            kb, vb = KV + 16 * (nit % 4), KV + 16 * (pit % 4) + 8

            def qk(t):
                if n + 1 < 64:
                    if t == 0 and nj == 0:
                        wait_kv('K%d' % nit)
                    self.mfma(Sn, kb + 4 * t, Q + 8 * nj + 4 * t, Sn if t else None)

            def pv(t):
                if n > 0:
                    if t == 0 and pj == 0:
                        wait_kv('V%d' % pit)
                    c = None if (pit == 0 and t == 0) else O + 16 * pj
                    self.mfma(O + 16 * pj, vb + 4 * t, P + 4 * t, c)
            qk(0)
            self('\n'.join(ex[0:4]))
            pv(0)
            self('\n'.join(ex[4:8] + pk[0:2]))
            qk(1)
            self('\n'.join(ex[8:12] + pk[2:4]))
            pv(1)
            self('\n'.join(ex[12:16] + pk[4:8]))
            if j == 0 and it + 3 < 16:
                kvload(it + 3)
            if j == 1 and 0 <= it - 3 < NA:
                self.wvm('U%d' % (it - 3))
                self.unit_read(it - 3, it % 3, self.PR)
            if j == 2 and 0 <= it - 1 < NA:
                if it >= 4:
                    self.wlg()
                for op in self.unit_ops(it - 1, (it - 1) % 3, self.PD, 's100'):
                    op()
            if n == 2:
                self.load(219, 219, WS, '0', 0, 'pur', n=1)
            if j == 3 and 1 <= it <= 14:
                for op in self.att_img[it - 1]:
                    op()
            if n == 61 and NA:
                self.wlg()
                self('s_barrier')
            if n in (15, 31, 47):
                self.stamp('a%d' % n)
        self.mfma(O + 48, KV + 16 * 3 + 8, P, O + 48)
        self.mfma(O + 48, KV + 16 * 3 + 12, P + 4, O + 48)
        self.stamp('att')
        for j in range(3):
            for q in range(4):
                self.lgi('ds_write_b128 %s, %s offset:%d' % (v(RW + j), v(O + 16 * j + 4 * q, 4), q * 1024), 'rw')
        self('v_and_b32 v219, 15, v219\nv_cmp_ne_u32 vcc, %s, v219\ns_cmp_eq_u64 vcc, 0\ns_cselect_b32 %s, %d, 0'
             % (s(sXCC), s(sFAST), 0 if self.o.get('slowsync') else 1))
        self.wlg()
        self('s_barrier')
        for k in range(12):
            self.lgi('ds_read_b128 %s, %s offset:%d' % (v(O + 4 * k, 4), v(RW + 3), k * 1024), 'r%d' % (k // 4))
        A = O + 48
        for j in range(3):
            self.wlg('r%d' % j)
            for k in range(0, 16, 2):
                self('v_pk_add_f32 %s, %s, %s' % (v(A + k, 2), v(A + k, 2), v(O + 16 * j + k, 2)))
        self.stamp('red')
        self('L_att_norm:')
        self('v_mov_b32 %s, %s\nv_mov_b32 %s, %s\nv_permlane32_swap_b32 %s, %s' % (v(u0), v(A + 12), v(u1), v(A + 12), v(u0), v(u1)))
        self('v_cmp_gt_f32 vcc, %s, %s\ns_mov_b64 %s, vcc\nv_cmp_lt_f32 vcc, %s, %s\ns_and_b64 vcc, vcc, %s'
             % (f32(2.0 ** 40), v(u1), s(t0, 2), f32(2.0 ** -40), v(u1), s(t0, 2)))
        force = self.o.get('force_fallback')
        self('s_cmp_eq_u64 vcc, %s\ns_cbranch_scc0 L_att_slow\nL_att_ok:' % ('0' if force else '-1'))
        self('v_rcp_f32 %s, %s' % (v(u1), v(u1)))
        self.scale(A, 16, u1)
        self.pack(P, A, 16)
        self('v_cndmask_b32 %s, %s, 0, %s\nv_cndmask_b32 %s, %s, 0, %s' % (v(P + 6), v(P + 6), s(sHI, 2), v(P + 7), v(P + 7), s(sHI, 2)))
        self.vm = ['any']

        def st(sc):
            self.store(P, vL16, WS, 's73', 0, 'st', sc1=sc)
            self.store(P + 4, vL16, WS, 's73', 1024, 'st', sc1=sc)
        st(True)
        self('s_add_u32 %s, %s, %d' % (s(t5), s(sFID), FLAG2))
        self.publish(s(t5), True)
        self.stamp('p2pub')
        self('s_cmp_ge_u32 %s, 14\ns_cbranch_scc1 L_fin' % s(sI))

    def att_slow(self):
        Q, O, S, P, KV, VOV, VST = self.Q, self.O, self.S, self.P, self.KV, self.VOV, self.VST
        A, Qo = O + 48, Q + 24
        self('L_att_slow:\ns_waitcnt vmcnt(0)')
        self.kv_addr(False)
        self('s_mov_b32 %s, %s\nv_mov_b32 %s, 0xff800000\ns_mov_b32 %s, 0\nL_slow1:' % (s(t5), s(t4), v(u3), s(sCNT)))
        self('buffer_load_dwordx4 %s, %s, %s, %s offen sc1' % (v(KV, 4), v(vL16), s(WS, 4), s(t5)))
        self('buffer_load_dwordx4 %s, %s, %s, %s offen offset:1024 sc1' % (v(KV + 4, 4), v(vL16), s(WS, 4), s(t5)))
        self('s_add_u32 %s, %s, 3584\ns_waitcnt vmcnt(0)' % (s(t5), s(t5)))
        self.mfma(S, KV, Qo, None)
        self.mfma(S, KV + 4, Qo + 4, S)
        for k in range(0, 16, 2):
            self('v_max3_f32 %s, %s, %s, %s' % (v(u3), v(u3), v(S + k), v(S + k + 1)))
        self('s_add_u32 %s, %s, 1\ns_cmp_lt_u32 %s, 64\ns_cbranch_scc1 L_slow1' % (s(sCNT), s(sCNT), s(sCNT)))
        self('v_mov_b32 %s, %s\nv_permlane32_swap_b32 %s, %s\nv_max_f32 %s, %s, %s' % (v(u4), v(u3), v(u4), v(u3), v(u3), v(u3), v(u4)))
        for k in range(16):
            self('v_mov_b32 %s, 0' % v(A + k))
        self('s_mov_b32 %s, 0\nL_slow2:' % s(sCNT))
        self('buffer_load_dwordx4 %s, %s, %s, %s offen sc1' % (v(KV, 4), v(vL16), s(WS, 4), s(t4)))
        self('buffer_load_dwordx4 %s, %s, %s, %s offen offset:1024 sc1' % (v(KV + 4, 4), v(vL16), s(WS, 4), s(t4)))
        self('buffer_load_dwordx4 %s, %s, %s, 0 offen sc1' % (v(KV + 8, 4), v(VOV), s(WS, 4)))
        self('buffer_load_dwordx4 %s, %s, %s, 0 offen offset:896 sc1' % (v(KV + 12, 4), v(VOV), s(WS, 4)))
        self('s_add_u32 %s, %s, 3584\nv_add_u32 %s, %s, %s\ns_waitcnt vmcnt(0)' % (s(t4), s(t4), v(VOV), v(VST), v(VOV)))
        self.mfma(S, KV, Qo, None)
        self.mfma(S, KV + 4, Qo + 4, S)
        for k in range(16):
            self('v_sub_f32 %s, %s, %s' % (v(S + k), v(S + k), v(u3)))
        for k in range(16):
            self('v_exp_f32 %s, %s' % (v(S + k), v(S + k)))
        self.pack(P, S, 16)
        self.mfma(A, KV + 8, P, A)
        self.mfma(A, KV + 12, P + 4, A)
        self('s_add_u32 %s, %s, 1\ns_cmp_lt_u32 %s, 64\ns_cbranch_scc1 L_slow2' % (s(sCNT), s(sCNT), s(sCNT)))
        self('v_mov_b32 %s, %s\nv_mov_b32 %s, %s\nv_permlane32_swap_b32 %s, %s' % (v(u0), v(A + 12), v(u1), v(A + 12), v(u0), v(u1)))
        self('s_branch L_att_ok')

    def slot_addrs(self, dst, kh_bytes, base):
        self('s_mul_i32 %s, %s, %d\ns_add_u32 %s, %s, %d\ns_lshl_b32 %s, %s, 6' % (s(t0), s(sKH), kh_bytes, s(t0), s(t0), base, s(t1), s(sKH)))
        self('v_xor_b32 %s, %s, %s\nv_xor_b32 %s, %s, %s' % (v(dst), s(t1), v(vTRa), v(dst + 1), s(t1), v(vTRb)))
        self('v_add_u32 %s, %s, %s\nv_add_u32 %s, %s, %s' % (v(dst), s(t0), v(dst), v(dst + 1), s(t0), v(dst + 1)))

    def frag_ops(self, dst, n, sreg, tag, second=None):
        ops = []
        for k in range(n):
            def op(k=k):
                if k and k % 4 == 0:
                    self('s_add_u32 %s, %s, 4096' % (s(sreg), s(second if k == 4 and second else sreg)))
                self.load(dst + 4 * k, vL16, WS, s(sreg), (k % 4) * 1024, '%s%d' % (tag, k))
            ops.append(op)
        return ops

    def pair_addrs(self, dst, red):
        self('s_lshl_b32 %s, %s, 12\ns_add_u32 %s, %s, %d\nv_add_u32 %s, %s, %s' % (s(t0), s(sW), s(t0), s(t0), red, v(dst), s(t0), v(vL16)))
        self('v_xor_b32 %s, 0x2000, %s' % (v(dst + 1), v(dst)))

    def pair_reduce(self, acc, tmp, adr, res, rtmp):
        for k in range(8):
            self('v_lshlrev_b32 %s, 16, %s\nv_and_b32 %s, 0xffff0000, %s' % (v(rtmp + 2 * k), v(res + k), v(rtmp + 2 * k + 1), v(res + k)))
        for q in range(4):
            self.lgi('ds_write_b128 %s, %s offset:%d' % (v(adr), v(acc + 16 + 4 * q, 4), q * 1024), 'pw')
        for k in range(0, 16, 2):
            self('v_pk_add_f32 %s, %s, %s' % (v(acc + k, 2), v(acc + k, 2), v(rtmp + k, 2)))
        self.wlg()
        self('s_barrier')
        for q in range(4):
            self.lgi('ds_read_b128 %s, %s offset:%d' % (v(tmp + 4 * q, 4), v(adr + 1), q * 1024), 'pr%d' % q)
        for q in range(4):
            self.wlg('pr%d' % q)
            for k in range(4 * q, 4 * q + 4, 2):
                self('v_pk_add_f32 %s, %s, %s' % (v(acc + k, 2), v(acc + k, 2), v(tmp + k, 2)))

    def p3(self):
        FR, ACC, WO, PA = 16, 80, 112, 240
        WB = FR
        RED3 = 131072
        self.vm, self.lg = [], []
        U0 = self.NA
        if self.NB:
            self.unit_addrs(FR, FR + 4, 's100', (RED, 12288))
            self.q = sum((self.unit_ops(U0 + r, r, FR, 's100') for r in range(self.NB)), [])
            self.bg(99)
        self.slot_addrs(u5, 8 * 3584, 0)
        for k in range(16):
            for sl in range(2):
                for e in range(2):
                    self.tr(WO + 8 * k + 4 * sl + 2 * e, u5 + sl, (k >> 1) * 3584 + (k & 1) * 2048 + 512 * e, 'wo')
        self.pair_addrs(PA, RED3)
        self('s_lshl_b32 %s, %s, 15\ns_lshl_b32 %s, %s, 14\ns_add_u32 %s, %s, %s\ns_add_u32 %s, %s, %d'
             % (s(t4), s(sT3), s(t1), s(sKH), s(t4), s(t4), s(t1), s(t4), s(t4), OF))
        self('s_lshl_b32 %s, %s, 1\ns_add_u32 %s, %s, %s' % (s(t0), s(sCB), s(t0), s(t0), s(sKH)))
        self('s_mul_i32 %s, %s, 28672\ns_lshl_b32 %s, %s, 11\ns_add_u32 %s, %s, %s\ns_add_u32 %s, %s, %d'
             % (s(t2), s(sT3), s(t1), s(t0), s(t2), s(t2), s(t1), s(t2), s(t2), HF))
        self('s_lshl_b32 %s, %s, 12\ns_lshl_b32 %s, %s, 8\ns_add_u32 %s, %s, %s\ns_add_u32 %s, %s, %d'
             % (s(t3), s(sT3), s(t1), s(t0), s(t3), s(t3), s(t1), s(t3), s(t3), HST))
        self('v_lshlrev_b32 %s, 3, %s' % (v(u3), v(vM)))
        self('s_lshl_b32 %s, %s, 7\ns_add_u32 %s, %s, %d' % (s(t5), s(sRB), s(t5), s(t5), FLAG2))
        self.wvm()
        self.poll_first(s(t5), 16, FR + 8)
        for r in range(self.NB):
            self.unit_read(U0 + r, r, FR + 4)
        self.wlg()
        self.stamp('wb')
        self.poll(s(t5), 16, FR + 8)
        self.stamp('s2')
        self.q = self.frag_ops(FR, 16, t4, 'f')
        self.bg(11)
        for k in range(16):
            self.wvm('f%d' % k)
            for sl in range(2):
                self.mfma(ACC + 16 * sl, WO + 8 * k + 4 * sl, FR + 4 * k, None if k == 0 else ACC + 16 * sl)
            self.bg(1)
        self.stamp('p3mm')
        self.pair_reduce(ACC, WB, PA, vHK, WB + 16)
        self.pack(vHK, ACC, 16)

        def st(sc):
            self.store(vHK, vL16, WS, s(t2), 0, 'st', sc1=sc)
            self.store(vHK + 4, vL16, WS, s(t2), 1024, 'st', sc1=sc)
        st(True)
        self('v_pk_mul_f32 %s, %s, %s' % (v(WB, 2), v(ACC, 2), v(ACC, 2)))
        for k in range(2, 16, 2):
            self('v_pk_fma_f32 %s, %s, %s, %s' % (v(WB, 2), v(ACC + k, 2), v(ACC + k, 2), v(WB, 2)))
            self('v_pk_add_f32 %s, %s, %s' % (v(ACC, 2), v(ACC, 2), v(ACC + k, 2)))
        self('v_add_f32 %s, %s, %s\nv_add_f32 %s, %s, %s' % (v(ACC), v(ACC), v(ACC + 1), v(ACC + 1), v(WB), v(WB + 1)))
        self.xhalf_add2(ACC, WB)
        self.store(ACC, u3, WS, s(t3), 0, 'st', n=2)
        self('s_add_u32 %s, %s, %d' % (s(t5), s(sFID), FLAG3))
        self.publish(s(t5), True)
        self.stamp('p3pub')

    def zrd(self, k):
        for ct in range(2):
            self.trfrag(128 + 8 * (k % 4) + 4 * ct, u5 + ct, k * 2048, 'w%d' % k)

    def zpass(self, acc, wait_frag, nbg, k0=0, k1=28, kend=None, ndrip=0):
        HFR, WB = 16, 128
        kend = kend or k1
        for k in range(k0, k1):
            if wait_frag:
                self.wvm('h%d' % k)
            self.wlg('w%d' % k)
            self.mfma(acc, WB + 8 * (k % 4), HFR + 4 * k, None if k == 0 else acc)
            if k + 3 < kend:
                self.zrd(k + 3)
            else:
                self.drip(2 * ndrip)
            self.mfma(acc + 16, WB + 8 * (k % 4) + 4, HFR + 4 * k, None if k == 0 else acc + 16)
            self.bg(nbg)
            self.drip(ndrip)

    def p4(self):
        HFR, WB, A2, A1 = 16, 128, 160, 192
        KS = self.o.get('ks', 0)
        self.KS = KS
        self.vm, self.lg = [], []
        U0 = self.NA
        self.colsum_part(WIN2, (16, 44), 72, MISC)
        self('s_lshl_b32 %s, %s, 7\ns_add_u32 %s, %s, %d' % (s(t5), s(sRB), s(t5), s(t5), FLAG3))
        self.poll_first(s(t5), 14, 88)
        self('s_lshl_b32 %s, %s, 7' % (s(t2), s(sI)))
        w1 = self.image_ops(222, SB, 3584, s(t2), 0, 14, 'W1')
        self('s_mul_i32 %s, %s, 28672\ns_add_u32 %s, %s, %d' % (s(t2), s(sT), s(t2), s(t2), HF))
        self('s_lshl_b32 %s, %s, 12\ns_add_u32 %s, %s, %d' % (s(t3), s(sT), s(t3), s(t3), HST))
        self('v_mul_u32_u24 %s, 1792, %s\nv_lshl_add_u32 %s, %s, 3, %s' % (v(u4), v(vH), v(u4), v(vM), v(u4)))
        self('v_add_u32 %s, %d, %s\nv_add_u32 %s, %d, %s' % (v(u5), WIN2, v(vTRa), v(u6), WIN2, v(vTRb)))
        for k in range(3):
            self.zrd(k)
        self.wlg('csw')
        self.stamp('w1')
        self.poll(s(t5), 14, 88)
        self.stamp('s3')
        hl = self.frag_ops(HFR, 28, t2, 'h')
        hs = [lambda q=q: self.load(A1 + 2 * q, u4, WS, s(t3), q * 256, 'hs', n=2) for q in range(7)]
        self.q = hl[:16] + hs + hl[16:]
        self.bg(11)
        self.colsum_get(224, MISC, vCS2)
        self.stamp('p4iss')
        def hstat():
            for q in range(1, 7):
                self('v_add_f32 %s, %s, %s\nv_add_f32 %s, %s, %s' % (v(A1), v(A1), v(A1 + 2 * q), v(A1 + 1), v(A1 + 1), v(A1 + 2 * q + 1)))
            self.xhalf_add2(A1, A1 + 2)
            self.mean_rstd(A1, A1 + 1, 448, A1 + 2, vRS)
            self.make_meanfrag(A1 + 2, A1 + 3)
            self.gelu_consts()
            self('s_lshl_b32 %s, %s, 13\ns_add_u32 %s, %s, %d\ns_lshl_b32 %s, %s, 9\ns_add_u32 %s, %s, %s'
                 % (s(t3), s(sT), s(t3), s(t3), ZST, s(t1), s(sI), s(t4), s(t3), s(t1)))
            self('v_lshlrev_b32 %s, 4, %s\nv_mov_b32 %s, %s\nv_mov_b32 %s, %s' % (v(u3), v(vM), v(A1 + 6), s(sNON), v(A1 + 7), s(sNON + 1)))
        self.zpass(A2, True, 2, 0, 4, 28)
        self.zpass(A2, True, 1, 4, 20, 28)
        assert not self.q
        self.wvm('hs')
        self.fill = self.cap(hstat)
        self.zpass(A2, True, 0, 20, 28, ndrip=3)
        self.drip(99)
        self.stamp('z2mm')
        for ct in range(2):
            self.mfma(A2 + 16 * ct, vCS2 + 4 * ct, vMF, A2 + 16 * ct)
        self('v_mov_b32 %s, %s\nv_mov_b32 %s, %s' % (v(u5), v(vTRa), v(u6), v(vTRb)))
        self.q = w1
        self.bg(5)
        self.gelu(A2, 32, A1 + 8, 3)
        assert not self.q
        Z = A1 + 4
        self('v_pk_mul_f32 %s, %s, %s\nv_pk_add_f32 %s, %s, %s'
             % (v(A1, 2), v(A2, 2), v(A2, 2), v(Z, 2), v(A2, 2), v(A2 + 2, 2)))
        for k in range(2, 32, 2):
            self('v_pk_fma_f32 %s, %s, %s, %s' % (v(A1, 2), v(A2 + k, 2), v(A2 + k, 2), v(A1, 2)))
            if k > 2:
                self('v_pk_add_f32 %s, %s, %s' % (v(Z, 2), v(Z, 2), v(A2 + k, 2)))
        self('v_add_f32 %s, %s, %s\nv_add_f32 %s, %s, %s' % (v(Z), v(Z), v(Z + 1), v(Z + 1), v(A1), v(A1 + 1)))
        self.xhalf_add2(Z, A1)
        self('s_not_b64 exec, %s' % s(sHI, 2))
        self.local_stores(lambda sc: self.store(Z, u3, WS, s(t4), 0, 'zs', sc1=sc))
        self('s_mov_b64 exec, -1')
        self.stamp('zst')
        self('s_lshl_b32 %s, %s, 18\ns_lshl_b32 %s, %s, 12\ns_add_u32 %s, %s, %s\ns_add_u32 %s, %s, %d'
             % (s(t2), s(sI), s(t1), s(sT), s(t2), s(t2), s(t1), s(t2), s(t2), ZF))
        self('v_lshlrev_b32 %s, 2, %s\nv_xor_b32 %s, %s, %s\nv_lshlrev_b32 %s, 4, %s\nv_lshl_add_u32 %s, %s, 9, %s'
             % (v(u3), v(vH), v(u3), v(u3), v(vM), v(u3), v(u3), v(u3), v(vH), v(u3)))
        self('v_xor_b32 %s, 0x80, %s\nv_add_u32 %s, 1024, %s' % (v(u4), v(u3), v(u4), v(u4)))
        self('s_lshl_b32 %s, %s, 4\ns_add_u32 %s, %s, %s\ns_lshl_b32 %s, %s, 6\ns_add_u32 %s, %s, %d'
             % (s(t5), s(sI), s(t5), s(t5), s(sRB), s(t5), s(t5), s(t5), s(t5), FLAG5))
        self('v_mul_u32_u24 %s, 3584, %s\nv_lshl_add_u32 %s, %s, 4, %s\ns_mov_b32 %s, 0' % (v(u2), v(vH), v(u2), v(vM), v(u2), s(sCNT)))
        self.unit_addrs(232, 236, 's100', (RED, 8192))
        self.wvm('W1')
        self('s_barrier')
        gather = [lambda q=q: self.load(224 + 4 * q, u2, WS, s(t3), q * 512, 'zg', pfx='a') for q in range(7)]
        if self.o.get('gearly', 1):
            self.q = gather
            self.bg(99)
        self.colsum_part(0, (WB, A1), 224, MISC + 1024)
        self.q = ([] if self.o.get('gearly', 1) else gather) + sum((self.unit_ops(U0 + r, r, 232, 's100') for r in range(self.ND)), [])
        if KS:
            for k in range(3):
                self.zrd(k)
            self.zpass(A1, False, 2, 0, KS)
        self.bg(99)
        self.stamp('z1a')
        lp = self.lab('zs')
        self.wvm('zg')
        for q in range(28):
            self('v_accvgpr_read_b32 %s, a%d' % (v(WB + q), 224 + q))
        keepvm = list(self.vm)
        self('s_branch %s_c\n%s:' % (lp, lp))
        for q in range(7):
            self('buffer_load_dwordx4 %s, %s, %s, %s offen offset:%d sc1' % (v(WB + 4 * q, 4), v(u2), s(WS, 4), s(t3), q * 512))
        self('s_add_u32 %s, %s, 1\ns_waitcnt vmcnt(0)\n%s_c:' % (s(sCNT), s(sCNT), lp))
        for q in range(1, 7):
            self('v_xor_b32 %s, %s, %s\nv_xor_b32 %s, %s, %s' % (v(WB + 4 * q + 2), s(sNON), v(WB + 4 * q + 2),
                                                                v(WB + 4 * q + 3), s(sNON + 1), v(WB + 4 * q + 3)))
        self('v_or3_b32 %s, %s, %s, %s' % (v(u1), v(WB + 6), v(WB + 7), v(WB + 10)))
        for r in ((11, 14), (15, 18), (19, 22), (23, 26)):
            self('v_or3_b32 %s, %s, %s, %s' % (v(u1), v(u1), v(WB + r[0]), v(WB + r[1])))
        self('v_or_b32 %s, %s, %s\nv_cmp_ne_u64 %s, %s, %s\nv_cmp_ne_u32 vcc, 0, %s'
             % (v(u1), v(u1), v(WB + 27), s(t0, 2), s(sNON, 2), v(WB + 2, 2), v(u1)))
        for q in range(1, 7):
            self('v_pk_add_f32 %s, %s, %s' % (v(WB, 2), v(WB, 2), v(WB + 4 * q, 2)))
        self('s_or_b64 %s, %s, vcc' % (s(t0, 2), s(t0, 2)))
        self('s_cbranch_scc0 %s_d\ns_cmp_lt_u32 %s, %d\ns_cbranch_scc1 %s\n%s_d:' % (lp, s(sCNT), POLL_MAX, lp, lp))
        self.vm = keepvm
        self.stamp('s4')
        self.xhalf_add2(WB, WB + 2)
        self.mean_rstd(WB, WB + 1, 896, WB + 2, WB + 4)
        self('v_mul_f32 %s, -%s, %s' % (v(WB + 6), v(WB + 2), v(WB + 4)))
        for c in range(4):
            for k in range(8 * c, 8 * c + 8, 2):
                self('v_pk_fma_f32 %s, %s, %s, %s op_sel_hi:[1,0,0]' % (v(A2 + k, 2), v(A2 + k, 2), v(WB + 4, 2), v(WB + 6, 2)))
            self.pack(WB + 8 + 4 * c, A2 + 8 * c, 8)
            self.store(WB + 8 + 4 * c, u3 + (c & 1), WS, s(t2), (c >> 1) * 2048, 'st')
        if self.ND:
            self.wvm('U%d' % (U0 + self.ND - 1))
        for r in range(self.ND):
            self.unit_read(U0 + r, r, 236)
        self.wlg()
        self.publish(s(t5))
        self.stamp('p4pub')

    NZ, NW, WRING = 6, 6, 57344

    def p5(self):
        A1, ACC, ZB, WB, WD, WR, ZA, OD, FL = 192, 16, 48, 80, 160, 164, 168, 170, 172
        NZ, NW, WRING, SWO, KS = self.NZ, self.NW, self.WRING, self.SWO, self.KS
        order = []
        for k in range(14):
            order += [14 + k, k]
        order += [28, 29, 30, 31]
        self.vm, self.lg = [], []
        for k in range(KS, KS + 3):
            self.zrd(k)
        self.unit_addrs(WD, WR, s(t4), (WRING, NW * 4096))
        self.colsum_get(172, MISC + 1024, vCS1)

        def w_ops(r):
            return self.unit_ops(14 + r, r % NW, WD, s(t4))

        def z_ops(p):
            def first():
                self('s_add_u32 m0, %s, %d\ns_add_u32 %s, s82, %d\ns_and_b32 %s, %s, 0x3e000\ns_add_u32 %s, %s, %s'
                     % (s(t1), (p % NZ) * 8192, s(t0), order[p] * 8192, s(t0), s(t0), s(t0), s(t0), s(t2)))
                self.dma(vL16, WS, s(t0), 0, 'Z%d' % p, sc1=True)
            return [first, lambda: self.dma(vL16, WS, s(t0), 1024, 'Z%d' % p, sc1=True)]

        def o_ops(c):
            ops = []
            for hf in range(2):
                def first(hf=hf):
                    if c < 6:
                        self('s_add_u32 m0, %s, %d' % (s(t4), c * 4096 + hf * 2048))
                    else:
                        self('s_lshl_b32 %s, %s, 12\ns_add_u32 m0, %s, %d' % (s(t0), s(sW), s(t0), 16384 + hf * 2048))
                    self('s_mov_b32 %s, %d' % (s(t0), (32 * c + 16 * hf) * 896))
                    self.dma(OD, SWO, s(t0), 0, 'WT')
                ops += [first, lambda: self.dma(OD + 1, SWO, s(t0), 1024, 'WT')]
            return ops
        self.o_ops = o_ops
        self.q = sum((w_ops(r) for r in range(NW)), [])
        self.zpass(A1, False, 2 if KS > 4 else 1, KS, 28)
        self.bg(99)
        self.stamp('z1')
        for ct in range(2):
            self.mfma(A1 + 16 * ct, vCS1 + 4 * ct, vMF, A1 + 16 * ct)
        self('v_lshlrev_b32 %s, 16, %s' % (v(vBSP), v(vBSP)))
        self('v_bfe_u32 %s, v0, 4, 1\nv_and_b32 %s, 1, v0\nv_lshl_add_u32 %s, %s, 1, %s' % (v(u0), v(u1), v(u0), v(u0), v(u1)))
        self('v_lshlrev_b32 %s, 1, %s\nv_xor_b32 %s, %s, %s\nv_lshlrev_b32 %s, 6, %s\nv_lshl_add_u32 %s, %s, 9, %s'
             % (v(u1), v(vH), v(u1), v(u1), v(u0), v(u1), v(u1), v(u1), v(u0), v(u1)))
        self('v_bfe_u32 %s, v0, 2, 2\nv_lshl_add_u32 %s, %s, 4, %s\nv_bfe_u32 %s, v0, 1, 1\nv_lshl_add_u32 %s, %s, 3, %s'
             % (v(u0), v(u1), v(u0), v(u1), v(u0), v(ZA), v(u0), v(u1)))
        self('v_xor_b32 %s, 64, %s' % (v(ZA + 1), v(ZA)))
        self('s_lshl_b32 %s, %s, 7' % (s(t2), s(sCB)))
        self.image_ops(OD, SWO, 896, s(t2), 0, 28, 'WT')
        self('s_lshl_b32 %s, %s, 11\ns_lshl_b32 %s, %s, 18\ns_add_u32 %s, %s, %s\ns_add_u32 %s, %s, %d\ns_lshl_b32 s82, %s, 14'
             % (s(t1), s(sW), s(t2), s(sI), s(t2), s(t2), s(t1), s(t2), s(t2), ZF, s(sI)))
        self('s_lshl_b32 %s, %s, 10\ns_add_u32 %s, %s, %d' % (s(t5), s(sI), s(t5), s(t5), FLAG5))
        GS = self.o.get('gs', 16)
        self.gelu(A1, GS - 8, 128, 0)
        self.poll_first(s(t5), 16, FL, 6)
        self.gelu(A1 + GS - 8, 8, 128, 0)
        self.stamp('g1')
        self.poll(s(t5), 16, FL, 6)
        self.stamp('s5')
        self.q = sum((z_ops(p) for p in range(NZ - 1)), [])
        self.bg(99)
        self.gelu(A1 + GS, 32 - GS, 128, 0)

        def rdz(g, ct):
            p, k = divmod(g, 4)
            off = (p % NZ) * 8192 + (k >> 1) * 4096 + (k & 1) * 256
            d = ZB + 8 * (g % 4) + 4 * ct
            self.tr(d, ZA, off + ct * 2048, 'g%d' % g)
            self.tr(d + 2, ZA + 1, off + ct * 2048, 'g%d' % g)

        def rdw(g):
            p, k = divmod(g, 4)
            if order[p] >= 14:
                self.lgi('ds_read_b128 %s, %s offset:%d' % (v(WB + 4 * (g % 4), 4), v(WR + k), ((order[p] - 14) % NW) * 4096), 'g%d' % g)

        def mm(g, ct):
            p, k = divmod(g, 4)
            c = None if g == 0 else ACC + 16 * ct
            if order[p] >= 14:
                self.mfma(ACC + 16 * ct, ZB + 8 * (g % 4) + 4 * ct, WB + 4 * (g % 4), c)
            else:
                self.mfma(ACC + 16 * ct, ZB + 8 * (g % 4) + 4 * ct, 16 * order[p] + 4 * k, c, pb='a')
        self.wvm('Z0')
        self('s_barrier')
        self.stamp('p5z0')
        for g in range(2):
            rdz(g, 0)
            rdz(g, 1)
            rdw(g)
        for g in range(128):
            p, k = divmod(g, 4)
            if g in (32, 64, 96):
                self.stamp('p5_%d' % g)
            self.wlg('g%d' % g)
            mm(g, 0)
            if k == 2 and p + 1 < 32:
                self.wvm('Z%d' % (p + 1))
                self.wvm('U%d' % order[p + 1])
                self('s_barrier')
                if p + NZ - 1 < 32:
                    self.q += z_ops(p + NZ - 1)
                if p >= 1 and order[p - 1] >= 14:
                    r = order[p - 1] - 14
                    self.q += w_ops(r + NW) if r + NW < 18 else o_ops(r % NW)
            if g + 2 < 128:
                rdz(g + 2, 0)
                rdw(g + 2)
            mm(g, 1)
            if g + 2 < 128:
                rdz(g + 2, 1)
            self.bg(1)
        self.bg(99)
        self.stamp('p5')
        self('s_mul_i32 %s, %s, 57344\ns_lshl_b32 %s, %s, 12\ns_add_u32 %s, %s, %s\ns_add_u32 %s, %s, %d'
             % (s(t2), s(sT), s(t1), s(sI), s(t2), s(t2), s(t1), s(t2), s(t2), UF))
        self('s_add_u32 %s, %s, %d' % (s(t5), s(sFID), FLAG6))
        e = vBSP & ~1
        for k in range(0, 32, 2):
            self('v_pk_add_f32 %s, %s, %s op_sel_hi:[1,0]' % (v(ACC + k, 2), v(ACC + k, 2), v(e, 2)))
            self('v_pk_mul_f32 %s, %s, %s' % (v(ACC + k, 2), v(ACC + k, 2), v(A1 + k, 2)))
        self.pack(ZB, ACC, 32)

        def st_(sc):
            for k in range(4):
                self.store(ZB + 4 * k, vL16, WS, s(t2), k * 1024, 'st', sc1=sc)
        st_(True)
        self.publish(s(t5), True)
        self.stamp('p5pub')

    def p6(self):
        FR, WB, ACC, AR, AZ, PA = 16, 128, 176, 208, 210, 212
        self.vm, self.lg = [], []
        self.q = self.o_ops(4) + self.o_ops(5) + self.o_ops(6)
        self.bg(99)
        self.slot_addrs(AR, 49152, self.WRING)
        self.slot_addrs(AZ, 8192, 16384)
        self.pair_addrs(PA, 0)
        self.srd(SA, P_OUT, 2048 * 896)
        self('s_mul_i32 %s, %s, %d\ns_lshl_b32 %s, %s, 7\ns_add_u32 %s, %s, %s\ns_lshl_b32 %s, %s, 6\ns_add_u32 %s, %s, %s'
             % (s(t3), s(sT3), 32 * 896, s(t1), s(sCB), s(t3), s(t3), s(t1), s(t1), s(sKH), s(t3), s(t3), s(t1)))
        self('v_mul_u32_u24 %s, 896, %s\nv_lshl_add_u32 %s, %s, 4, %s' % (v(u4), v(vM), v(u4), v(vH), v(u4)))
        self('s_mul_i32 %s, %s, 57344\ns_mul_i32 %s, %s, 28672\ns_add_u32 %s, %s, %s\ns_add_u32 %s, %s, %d'
             % (s(t2), s(sT3), s(t1), s(sKH), s(t2), s(t2), s(t1), s(t2), s(t2), UF))
        self('s_lshl_b32 %s, %s, 7\ns_add_u32 %s, %s, %d' % (s(t5), s(sRB), s(t5), s(t5), FLAG6))
        OA = 216
        self('s_and_b32 %s, %s, 1\ns_lshl_b32 %s, %s, 12\ns_add_u32 %s, %s, 32768\ns_lshl_b32 %s, %s, 2' % (s(t0), s(sW), s(t0), s(t0), s(t0), s(t0), s(t1), s(sKH)))
        self('v_add_u32 %s, %s, %s\nv_and_b32 %s, 7, v0\nv_xor_b32 %s, %s, %s\nv_lshlrev_b32 %s, 4, %s' % (v(u0), s(t1), v(vH), v(u1), v(u0), v(u0), v(u1), v(u0), v(u0)))
        self('v_lshl_add_u32 %s, %s, 7, %s\nv_add_u32 %s, %s, %s\nv_xor_b32 %s, 32, %s' % (v(u0), v(vM), v(u0), v(OA), s(t0), v(u0), v(OA + 1), v(OA)))
        self('s_lshl_b32 %s, %s, 11\ns_add_u32 %s, %s, 32768\nv_add_u32 %s, %s, %s' % (s(t0), s(sW), s(t0), s(t0), v(OA + 2), s(t0), v(vL16)))
        self('v_lshrrev_b32 %s, 3, v0\nv_xor_b32 %s, %s, %s\nv_mul_u32_u24 %s, 896, %s\nv_lshl_add_u32 %s, %s, 4, %s\nv_add_u32 %s, 7168, %s'
             % (v(u0), v(u1), v(u1), v(u0), v(u0), v(u0), v(OA + 3), v(u1), v(u0), v(OA + 4), v(OA + 3)))
        self('s_and_b32 %s, %s, -2\ns_lshl_b32 %s, %s, 1\ns_add_u32 %s, %s, %s\ns_mul_i32 %s, %s, %d\ns_lshl_b32 %s, %s, 7\ns_add_u32 %s, %s, %s'
             % (s(t0), s(sT3), s(t0), s(t0), s(t0), s(t0), s(sW), s(t4), s(t0), 16 * 896, s(t1), s(sCB), s(t4), s(t4), s(t1)))
        self.poll_first(s(t5), 14, 214)
        self.stamp('wout')
        self.poll(s(t5), 14, 214)
        self.stamp('s6')
        self.q = self.frag_ops(FR, 28, t2, 'f')
        self.bg(11)

        def rd(k, sl):
            hi, c = divmod(k >> 1, 7)
            if c < 6:
                adr, off = AR, hi * 24576 + c * 4096
            else:
                adr, off = AZ, hi * 4096
            self.trfrag(WB + 8 * (k % 4) + 4 * sl, adr + sl, off + (k & 1) * 2048, 'w%d' % k)
        for k in range(3):
            rd(k, 0)
            rd(k, 1)
        for k in range(28):
            self.wvm('f%d' % k)
            self.wlg('w%d' % k)
            for sl in range(2):
                self.mfma(ACC + 16 * sl, WB + 8 * (k % 4) + 4 * sl, FR + 4 * k, None if k == 0 else ACC + 16 * sl)
                if k + 3 < 28:
                    rd(k + 3, sl)
            self.bg(1)
        self.stamp('p6mm')
        self.pair_reduce(ACC, WB, PA, vHK, WB + 16)
        self.pack(WB, ACC, 16)
        if self.o.get('outl', 1):
            self.lgi('ds_write_b128 %s, %s' % (v(OA), v(WB, 4)), 'ow')
            self.lgi('ds_write_b128 %s, %s' % (v(OA + 1), v(WB + 4, 4)), 'ow')
            self.wlg()
            self('s_barrier')
            self.lgi('ds_read_b128 %s, %s' % (v(WB + 8, 4), v(OA + 2)), 'o0')
            self.lgi('ds_read_b128 %s, %s offset:1024' % (v(WB + 12, 4), v(OA + 2)), 'o1')
            self.wlg('o0')
            self.store(WB + 8, OA + 3, SA, s(t4), 0, 'st')
            self.wlg('o1')
            self.store(WB + 12, OA + 4, SA, s(t4), 0, 'st')
        else:
            self.store(WB, u4, SA, s(t3), 0, 'st')
            self.store(WB + 4, u4, SA, s(t3), 32, 'st')
        self.stamp('end', True)

    def build(self):
        stop = self.o.get('stop', 6)
        self.prologue()
        for k, ph in enumerate((self.p1, self.p2, self.p3, self.p4, self.p5, self.p6), 1):
            if k <= stop:
                ph()
        if self.o.get('padfrom') == 'tag':
            self('s_mov_b32 %s, %s' % (s(sPT), s(sNON)))
        if self.o.get('padfrom'):
            self('s_mov_b32 %s, 0\nL_hold:\ns_memrealtime s[78:79]\ns_add_u32 %s, %s, 1\ns_waitcnt lgkmcnt(0)' % (s(sCNT), s(sCNT), s(sCNT)))
            self('s_sub_u32 s78, s78, %s\ns_cmp_ge_u32 s78, 10000\ns_cbranch_scc1 L_fin\ns_cmp_lt_u32 %s, 100000\ns_cbranch_scc1 L_hold' % (s(sPT), s(sCNT)))
        self('L_fin:')
        self.stamp_flush()
        self('L_end:\ns_endpgm')
        if stop >= 2:
            self.att_slow()
        self.emit_stubs()
        self('L_code_end:')
        npad = self.a.pad()
        errs = []
        for take in ((), ('L_p1_V',), ('L_p1_N',), ('L_att_slow',)):
            errs += self.a.check_waits(take)
        for e in sorted(set(errs)):
            print('WAITCHECK', e, file=sys.stderr)
        ref = open('cdna_kernels/%s.s.ref' % NAME).read().split('\n')
        head = [l for l in ref if l.startswith(';') and '@launch' not in l and 'Override' not in l and 'grid=ceil' not in l
                and l == l.lstrip()]
        out = '\n'.join(head) + '\n'
        if self.names:
            out += '; stamps: ' + ' '.join(self.names) + '\n'
        out += '; @launch grid=(256,1,1) block=(256,1,1) lds=%d\n' % LDS_BYTES
        out += '.amdgcn_target "amdgcn-amd-amdhsa--gfx950"\n.text\n.globl %s_kernel\n.p2align 8\n' % NAME
        out += '.type %s_kernel,@function\n%s_kernel:\n' % (NAME, NAME)
        out += self.a.text()
        out += '.section .rodata,"a"\n.p2align 6\n.amdhsa_kernel %s_kernel\n' % NAME
        out += ('  .amdhsa_next_free_vgpr 512\n  .amdhsa_next_free_sgpr 102\n  .amdhsa_accum_offset 256\n'
                '  .amdhsa_group_segment_fixed_size 0\n  .amdhsa_kernarg_size 88\n  .amdhsa_user_sgpr_count 2\n'
                '  .amdhsa_user_sgpr_kernarg_segment_ptr 1\n  .amdhsa_system_sgpr_workgroup_id_x 1\n'
                '.end_amdhsa_kernel\n')
        if self.o.get('showpads'):
            for k, x in enumerate(self.a.L):
                if x.note == 'pad':
                    print(k, x.text, '| prev:', self.a.L[k - 1].text, '| next:', self.a.L[k + 1].text, file=sys.stderr)
        print('instructions %d, pads %d, waitcheck errors %d' % (len(self.a.L), npad, len(set(errs))), file=sys.stderr)
        return out


if __name__ == '__main__':
    opt = {}
    dst = sys.argv[1]
    for a in sys.argv[2:]:
        k, _, val = a.partition('=')
        opt[k] = int(val) if val.isdigit() else (val or 1)
    open(dst, 'w').write(G(opt).build())
```

```python
import sys
import math
import struct
import copy
from asmlib import Asm

NAME = 'sequential_preLN__mha_block__mixer_gmlp__prompt'

FLAG2, FLAG3, FLAG6 = 0x1000, 0x2000, 0x3000
FLAG1, FLAG5 = 0x8000, 0xC000
ONES, PROF = 0x40000, 0x80000
ZST, HST = 0x100000, 0x180000
KF, VF, OF, HF, ZF, UF = 0x200000, 0x400000, 0x600000, 0x800000, 0xA00000, 0xE00000
XST = 0x1200000
WS_BYTES = 0x1280000

XB = 57344
WQB = 122880
MISC = 155648
RSX = 157696
WIN2 = 57344
RED = 114688
LDS_BYTES = 163840

P_X, P_WQKV, P_WO, P_WIN, P_WSP, P_BSP, P_WOUT, P_OUT, P_DBG, P_WS = 4, 6, 8, 12, 14, 16, 18, 20, 22, 24
sW, sRB, sI, sXCC, sNON, sFAST = 26, 27, 44, 45, 46, 48
WS, SA, SB, SC = 28, 32, 36, 40
sHI = 50
sONE2 = 52
sT = 54
sCB, sKH, sT3 = 55, 56, 57
sK0, sK1 = 58, 60
t0, t1, t2, t3, t4, t5, t6, t7 = 62, 63, 64, 65, 66, 67, 68, 69
sSAVE = 70
sCNT = 72
sPT = 70
sB = 76
sM0, sSO = 80, 81
sFID = 77

vL, vH, vM, vL16, vTRa, vTRb, vPM = 0, 1, 2, 3, 4, 5, 6
u0, u1, u2, u3, u4, u5, u6, u7, u8 = 7, 8, 9, 10, 11, 12, 13, 14, 15
vCS1, vCS2, vMF, vHK, vBSP, vRS, vGI = 224, 232, 240, 244, 252, 253, 6

POLL_MAX = 8000


def f32(x):
    return '0x%08x' % struct.unpack('<I', struct.pack('<f', x))[0]


def v(a, n=1):
    return 'v%d' % a if n == 1 else 'v[%d:%d]' % (a, a + n - 1)


def s(a, n=1):
    return 's%d' % a if n == 1 else 's[%d:%d]' % (a, a + n - 1)


class G:
    def __init__(self, opt):
        self.o = opt
        self.a = Asm()
        self.vm = []
        self.lg = []
        self.nlab = 0
        self.names = []
        self.q = []
        self.issued = set()
        self.fill = []
        self.stubs = []
        self.NB, self.NC, self.ND = opt.get('nb', 0), opt.get('nc', 0), opt.get('nd', 2)
        self.NA = 14 - self.NB - self.NC - self.ND
        assert self.NA <= 13

    def __call__(self, t):
        self.a(t)

    def lab(self, p):
        self.nlab += 1
        return 'L_%s_%d' % (p, self.nlab)

    def vmi(self, text, tag):
        self.a(text)
        self.vm.append(tag)
        self.issued.add(tag)

    def lgi(self, text, tag):
        self.a(text)
        self.lg.append(tag)

    def _n(self, q, tag):
        idx = [k for k, t in enumerate(q) if t == tag]
        return None if not idx else len(q) - 1 - idx[-1]

    def wvm(self, tag=None):
        n = 0 if tag is None else self._n(self.vm, tag)
        assert tag is None or tag in self.issued, tag
        if n is None:
            return
        self.a('s_waitcnt vmcnt(%d)' % n)
        self.vm = self.vm[len(self.vm) - n:]

    def wlg(self, tag=None):
        n = 0 if tag is None else self._n(self.lg, tag)
        if n is None:
            return
        n = min(n, 15)
        self.a('s_waitcnt lgkmcnt(%d)' % n)
        self.lg = self.lg[len(self.lg) - n:]

    def srd(self, r, ptr, nbytes):
        self('s_mov_b32 %s, %s\ns_mov_b32 %s, %s\ns_mov_b32 %s, 0x%x\ns_mov_b32 %s, 0x20000'
             % (s(r), s(ptr), s(r + 1), s(ptr + 1), s(r + 2), nbytes, s(r + 3)))

    def bg(self, n=1):
        for _ in range(n):
            if self.q:
                self.q.pop(0)()

    def cap(self, fn):
        hold, self.a = self.a, Asm()
        fn()
        assert all(x.kind in ('valu', 'salu', 'nop') for x in self.a.L)
        lines = [x.text for x in self.a.L]
        self.a = hold
        out = []
        for l in lines:
            if out and l.startswith(('s_cselect', 's_subb', 's_addc')):
                out[-1] += '\n' + l
            else:
                out.append(l)
        return out

    def drip(self, n):
        for _ in range(n):
            if self.fill:
                self(self.fill.pop(0))

    def retry(self, test, reload):
        st, bk = self.lab('again'), self.lab('have')
        self('%s\ns_cbranch_vccnz %s\n%s:' % (test, st, bk))
        self.stubs.append((st, bk, test, reload))

    def emit_stubs(self):
        for st, bk, test, reload in self.stubs:
            self('%s:\ns_mov_b32 %s, 0\n%s_l:\n%s' % (st, s(sCNT), st, reload))
            self('s_add_u32 %s, %s, 1\ns_waitcnt vmcnt(0)\n%s\ns_cbranch_vccz %s' % (s(sCNT), s(sCNT), test, bk))
            self('s_cmp_lt_u32 %s, %d\ns_cbranch_scc1 %s_l\ns_branch %s' % (s(sCNT), POLL_MAX, st, bk))

    def image_ops(self, va, srd, stride, col_soff, lds_base, ninstr, tag):
        self('v_lshrrev_b32 %s, 3, %s\nv_mul_u32_u24 %s, %d, %s' % (v(va), v(vL), v(va), stride, v(va)))
        self('v_bfe_u32 %s, %s, 4, 1\nv_lshlrev_b32 %s, 2, %s' % (v(va + 1), v(vL), v(va + 1), v(va + 1)))
        self('v_xor_b32 %s, %s, %s\nv_and_b32 %s, 7, %s' % (v(va + 1), v(va + 1), v(vL), v(va + 1), v(va + 1)))
        self('v_lshl_add_u32 %s, %s, 4, %s' % (v(va), v(va + 1), v(va)))
        self('s_mul_i32 %s, %s, %d\ns_add_u32 %s, %s, %s' % (s(t0), s(sW), ninstr * 8 * stride, s(t0), s(t0), col_soff))
        self('v_add_u32 %s, %s, %s\nv_add_u32 %s, %d, %s' % (v(va), s(t0), v(va), v(va + 1), 8 * stride - 1024, v(va)))
        ops = []
        for q in range(ninstr):
            def op(q=q):
                if q % 2 == 0:
                    if q == 0:
                        self('s_mul_i32 %s, %s, %d\ns_add_u32 m0, %s, %d\ns_mov_b32 %s, 0'
                             % (s(sM0), s(sW), ninstr * 1024, s(sM0), lds_base, s(sSO)))
                    else:
                        self('s_add_u32 m0, %s, %d\ns_mov_b32 %s, %d' % (s(sM0), lds_base + q * 1024, s(sSO), q * 8 * stride))
                self.dma(va + (q & 1), srd, s(sSO), (q & 1) * 1024, tag)
            ops.append(op)
        return ops

    def mfma(self, d, a_, b, c=None, pa='v', pb='v'):
        cs = '0' if c is None else v(c, 16)
        self('v_mfma_f32_32x32x16_bf16 %s, %s[%d:%d], %s[%d:%d], %s'
             % (v(d, 16), pa, a_, a_ + 3, pb, b, b + 3, cs))

    def mfsum(self, d, b, first, pb='v'):
        self('v_mfma_f32_16x16x32_bf16 %s, a[252:255], %s[%d:%d], %s' % (v(d, 4), pb, b, b + 3, '0' if first else v(d, 4)))

    def tr(self, dst, addr, off, tag):
        self.lgi('ds_read_b64_tr_b16 %s, %s offset:%d' % (v(dst, 2), v(addr), off), tag)

    def trfrag(self, dst, addr, off, tag, step=512):
        self.tr(dst, addr, off, tag)
        self.tr(dst + 2, addr, off + step, tag)

    def load(self, dst, voff, srd, soff, imm, tag, n=4, sc1=True, pfx='v'):
        op = {4: 'dwordx4', 2: 'dwordx2', 1: 'dword'}[n]
        d = '%s%d' % (pfx, dst) if n == 1 else '%s[%d:%d]' % (pfx, dst, dst + n - 1)
        self.vmi('buffer_load_%s %s, %s, %s, %s offen offset:%d%s'
                 % (op, d, v(voff), s(srd, 4), soff, imm, ' sc1' if sc1 else ''), tag)

    def dma(self, voff, srd, soff, imm, tag, sc1=False):
        self.vmi('buffer_load_dwordx4 %s, %s, %s offen offset:%d%s lds'
                 % (v(voff), s(srd, 4), soff, imm, ' sc1' if sc1 else ''), tag)

    def store(self, src, voff, srd, soff, imm, tag, n=4, sc1=True):
        op = {4: 'dwordx4', 2: 'dwordx2', 1: 'dword'}[n]
        self.vmi('buffer_store_%s %s, %s, %s, %s offen offset:%d%s'
                 % (op, v(src, n), v(voff), s(srd, 4), soff, imm,
                    ' sc1' if sc1 else (' ' + self.o['plainmod'] if srd == WS and self.o.get('plainmod') else '')), tag)

    def local_stores(self, emit):
        lp, lj = self.lab('plain'), self.lab('join')
        self('s_cmp_eq_u32 %s, 1\ns_cbranch_scc1 %s' % (s(sFAST), lp))
        keep = list(self.vm)
        emit(True)
        self('s_branch %s\n%s:' % (lj, lp))
        self.vm = keep
        emit(False)
        self('%s:' % lj)

    def publish(self, flag_soff, local=False, xcc=False, drain=True):
        if xcc:
            self('s_or_b32 %s, %s, %s\nv_mov_b32 %s, %s' % (s(t0), s(sNON), s(sXCC), v(u1), s(t0)))
        else:
            self('v_mov_b32 %s, %s' % (v(u1), s(sNON)))
        self('v_mov_b32 %s, %s\ns_cmp_eq_u32 %s, 0' % (v(u2), s(sNON + 1), s(sW)))
        if drain:
            self.wvm()
        self('s_barrier')
        sk = self.lab('pub')
        if local:
            self('s_cbranch_scc0 %s\ns_mov_b64 exec, 1' % sk)
            st = 'buffer_store_dwordx2 %s, v0, %s, %s offen' % (v(u1, 2), s(WS, 4), flag_soff)
            self.local_stores(lambda sc: self(st + (' sc1' if sc else '')))
        else:
            self('s_cbranch_scc0 %s\ns_mov_b64 exec, 15' % sk)
            self('buffer_store_dwordx4 %s, %s, %s, %s offen sc1' % (v(u1, 4), v(vL16), s(WS, 4), flag_soff))
        self('s_mov_b64 exec, -1\n%s:' % sk)

    def poll_first(self, flag_soff, nflags, reg, sh=3):
        self('v_cmp_gt_u32 vcc, %d, v0\nv_lshlrev_b32 %s, %d, v0\nv_cndmask_b32 %s, 0, %s, vcc' % (nflags, v(reg), sh, v(reg), v(reg)))
        self.load(reg, reg, WS, flag_soff, 0, 'flag', n=2)

    def poll(self, flag_soff, nflags, first=None, sh=3):
        sk, lp = self.lab('pollskip'), self.lab('poll')
        if first is not None:
            self.wvm('flag')
            self('v_cmp_ne_u64 vcc, %s, %s\ns_cbranch_vccz %s' % (s(sNON, 2), v(first, 2), sk))
        self('s_cmp_eq_u32 %s, 0\ns_cbranch_scc0 %s' % (s(sW), sk))
        self('v_lshlrev_b32 %s, %d, %s' % (v(u0), sh, v(vL)))
        self('s_mov_b64 exec, 0x%x' % ((1 << nflags) - 1))
        self('s_mov_b32 %s, 0\n%s:' % (s(sCNT), lp))
        self('buffer_load_dwordx2 %s, %s, %s, %s offen sc1' % (v(u1, 2), v(u0), s(WS, 4), flag_soff))
        self('s_add_u32 %s, %s, 1' % (s(sCNT), s(sCNT)))
        self('s_waitcnt vmcnt(0)')
        self('v_cmp_ne_u64 vcc, %s, %s' % (s(sNON, 2), v(u1, 2)))
        self('s_cbranch_vccz %s_d' % lp)
        self('s_cmp_lt_u32 %s, %d\ns_cbranch_scc1 %s' % (s(sCNT), POLL_MAX, lp))
        self('%s_d:\ns_mov_b64 exec, -1\n%s:' % (lp, sk))
        self('s_barrier')

    def stamp(self, name, real=False):
        if self.o.get('padfrom') == name:
            self('s_memrealtime %s\ns_waitcnt lgkmcnt(0)' % s(sPT, 2))
            self.lg = []
        if not self.o.get('prof'):
            return
        if name not in self.names:
            self.names.append(name)
        k = self.names.index(name)
        assert k < 62
        self('s_memtime s[78:79]\ns_waitcnt lgkmcnt(0)\nv_writelane_b32 v255, s78, %d' % k)
        self.lg = []
        if self.o['prof'] == 2:
            self('s_memrealtime s[78:79]\ns_waitcnt lgkmcnt(0)\nv_writelane_b32 v254, s78, %d' % k)
        if real:
            self('s_memrealtime s[78:79]\ns_waitcnt lgkmcnt(0)\nv_writelane_b32 v255, s78, %d' % (62 if k == 0 else 63))

    def stamp_flush(self):
        if not self.o.get('prof'):
            return
        self('s_lshl_b32 %s, %s, 2\ns_add_u32 %s, %s, %s\ns_lshl_b32 %s, %s, 8\ns_add_u32 %s, %s, %d'
             % (s(t7), s(sB), s(t7), s(t7), s(sW), s(t7), s(t7), s(t7), s(t7), PROF))
        self('v_lshlrev_b32 v7, 2, v0\nbuffer_store_dword v255, v7, %s, %s offen' % (s(WS, 4), s(t7)))
        self('s_add_u32 %s, %s, 0x40000\nbuffer_store_dword v254, v7, %s, %s offen' % (s(t7), s(t7), s(WS, 4), s(t7)))

    def xhalf_add(self, r, tmp):
        self('v_mov_b32 %s, %s\nv_permlane32_swap_b32 %s, %s\nv_add_f32 %s, %s, %s'
             % (v(tmp), v(r), v(tmp), v(r), v(r), v(r), v(tmp)))

    def xhalf_add2(self, r, tmp):
        self('v_mov_b32 %s, %s\nv_mov_b32 %s, %s\ns_nop 0\nv_permlane32_swap_b32 %s, %s\nv_permlane32_swap_b32 %s, %s'
             % (v(tmp), v(r), v(tmp + 1), v(r + 1), v(tmp), v(r), v(tmp + 1), v(r + 1)))
        self('v_add_f32 %s, %s, %s\nv_add_f32 %s, %s, %s' % (v(r), v(r), v(tmp), v(r + 1), v(r + 1), v(tmp + 1)))

    def mean_rstd(self, vsum, vsq, n, mean, rstd):
        self('v_mul_f32 %s, %s, %s' % (v(mean), f32(1.0 / n), v(vsum)))
        self('v_mul_f32 %s, %s, %s' % (v(rstd), f32(1.0 / n), v(vsq)))
        self('v_fma_f32 %s, -%s, %s, %s' % (v(rstd), v(mean), v(mean), v(rstd)))
        self('v_max_f32 %s, 0, %s\nv_add_f32 %s, %s, %s' % (v(rstd), v(rstd), v(rstd), f32(1e-5), v(rstd)))
        self('v_rsq_f32 %s, %s' % (v(rstd), v(rstd)))

    def make_meanfrag(self, mean, tmp):
        self('v_sub_f32 %s, 0, %s\nv_cndmask_b32 %s, %s, 0, %s' % (v(tmp), v(mean), v(tmp), v(tmp), s(sHI, 2)))
        self('v_cvt_pk_bf16_f32 %s, %s, 0\nv_lshlrev_b32 %s, 16, %s' % (v(vMF + 1), v(tmp), v(vMF), v(vMF + 1)))
        self('v_sub_f32 %s, %s, %s\nv_cvt_pk_bf16_f32 %s, %s, %s' % (v(vMF), v(tmp), v(vMF), v(vMF), v(tmp), v(vMF)))
        self('v_mov_b32 %s, 0\nv_mov_b32 %s, 0' % (v(vMF + 2), v(vMF + 3)))

    def make_csfrag(self, cs, dst):
        self('v_cvt_pk_bf16_f32 %s, %s, %s\nv_and_b32 %s, 0xffff0000, %s' % (v(dst), v(cs), v(cs), v(dst + 1), v(dst)))
        self('v_sub_f32 %s, %s, %s\nv_cvt_pk_bf16_f32 %s, %s, 0' % (v(dst + 1), v(cs), v(dst + 1), v(dst + 1), v(dst + 1)))
        self('v_mov_b32 %s, 0\nv_mov_b32 %s, 0' % (v(dst + 2), v(dst + 3)))

    def colsum_put(self, c0, c1, xch):
        self('s_lshl_b32 %s, %s, 2\ns_add_u32 %s, %s, %d\nv_lshl_add_u32 %s, %s, 4, %s'
             % (s(t0), s(sW), s(t0), s(t0), xch, v(u0), v(vM), s(t0)))
        self.lgi('ds_write_b32 %s, %s' % (v(u0), v(c0)), 'csw')
        self.lgi('ds_write_b32 %s, %s offset:512' % (v(u0), v(c1)), 'csw')

    def colsum_part(self, base, bufs, acc, xch):
        self('s_mul_i32 %s, %s, 14336\ns_add_u32 %s, %s, %d' % (s(t0), s(sW), s(t0), s(t0), base))
        self('v_add_u32 %s, %s, %s\nv_add_u32 %s, %s, %s' % (v(u0), s(t0), v(vTRa), v(u1), s(t0), v(vTRb)))
        for q in range(7):
            for ct in range(2):
                self.trfrag(bufs[ct] + 4 * q, u0 + ct, q * 2048, 'cs%d' % q)
        for q in range(7):
            self.wlg('cs%d' % q)
            for ct in range(2):
                self.mfsum(acc + 4 * ct, bufs[ct] + 4 * q, q == 0)
        self.colsum_put(acc, acc + 4, xch)

    def colsum_get(self, buf, xch, dst):
        self('v_lshlrev_b32 %s, 4, %s' % (v(u0), v(vM)))
        self('v_add_u32 %s, %d, %s' % (v(u0), xch, v(u0)))
        for ct in range(2):
            self.lgi('ds_read_b128 %s, %s offset:%d' % (v(buf + 4 * ct, 4), v(u0), ct * 512), 'csr')
        self.wlg('csr')
        for ct in range(2):
            b = buf + 4 * ct
            self('v_add_f32 %s, %s, %s\nv_add_f32 %s, %s, %s\nv_add_f32 %s, %s, %s'
                 % (v(b), v(b), v(b + 1), v(b + 2), v(b + 2), v(b + 3), v(b), v(b), v(b + 2)))
            self.make_csfrag(b, dst + 4 * ct)

    def rowtile_dma_addrs(self, stride, vd, sbase):
        self('v_lshrrev_b32 %s, 3, %s\nv_mul_u32_u24 %s, %d, %s' % (v(u0), v(vL), v(u0), stride, v(u0)))
        self('v_lshrrev_b32 %s, 4, %s\nv_xor_b32 %s, %s, %s\nv_and_b32 %s, 7, %s'
             % (v(u1), v(vL), v(u1), v(u1), v(vL), v(u1), v(u1)))
        self('v_lshl_add_u32 %s, %s, 4, %s\nv_xor_b32 %s, 64, %s' % (v(u0), v(u1), v(u0), v(u1), v(u0)))
        self('v_add_u32 %s, %s, %s\nv_add_u32 %s, %s, %s' % (v(vd), sbase, v(u0), v(u1), sbase, v(u1)))
        d = 8 * stride - 1024
        self('v_add_u32 %s, %d, %s\nv_add_u32 %s, %d, %s\nv_add_u32 %s, %d, %s'
             % (v(vd + 1), d, v(u1), v(vd + 2), 2 * d, v(vd), v(vd + 3), 3 * d, v(u1)))

    def rowtile_read_addrs(self, vr, sbase, sxor=None):
        self('v_bfe_u32 %s, %s, 1, 3\nv_xor_b32 %s, %s, %s' % (v(u1), v(vM), v(u1), v(u1), v(vH)))
        self('v_lshlrev_b32 %s, 4, %s\nv_lshl_add_u32 %s, %s, 7, %s' % (v(u1), v(u1), v(u1), v(vM), v(u1)))
        if sxor:
            self('v_xor_b32 %s, %s, %s' % (v(u1), sxor, v(u1)))
        for k in range(4):
            self('v_xor_b32 %s, %d, %s\nv_add_u32 %s, %s, %s' % (v(vr + k), 32 * k, v(u1), v(vr + k), sbase, v(vr + k)))

    def gelu_consts(self):
        self('v_mul_f32 %s, %s, %s\nv_mul_f32 %s, %s, %s\nv_rcp_f32 %s, %s' % (v(u7), s(sK0), v(vRS), v(u8), v(vRS), v(vRS), v(vGI), v(vRS)))
        self('v_mul_f32 %s, %s, %s\nv_mul_f32 %s, %s, %s' % (v(u8), v(u8), v(vRS), v(u8), s(sK1), v(u8)))

    def gelu(self, x, n, tmp, nbg):
        for b in range(0, n, 8):
            for k in range(0, 8, 2):
                self('v_pk_mul_f32 %s, %s, %s' % (v(tmp + k, 2), v(x + b + k, 2), v(x + b + k, 2)))
            for k in range(0, 8, 2):
                self('v_pk_fma_f32 %s, %s, %s, %s op_sel:[0,1,0] op_sel_hi:[1,1,0]' % (v(tmp + k, 2), v(tmp + k, 2), v(u7, 2), v(u7, 2)))
            for k in range(0, 8, 2):
                self('v_pk_mul_f32 %s, %s, %s' % (v(tmp + k, 2), v(tmp + k, 2), v(x + b + k, 2)))
            for k in range(8):
                self('v_exp_f32 %s, %s' % (v(tmp + k), v(tmp + k)))
            for k in range(0, 8, 2):
                self('v_pk_fma_f32 %s, %s, %s, %s op_sel_hi:[1,0,0]' % (v(tmp + k, 2), v(tmp + k, 2), v(vGI, 2), v(vGI, 2)))
            for k in range(8):
                self('v_rcp_f32 %s, %s' % (v(tmp + k), v(tmp + k)))
            self.bg(nbg)
            for k in range(0, 8, 2):
                self('v_pk_mul_f32 %s, %s, %s' % (v(x + b + k, 2), v(x + b + k, 2), v(tmp + k, 2)))

    def scale(self, x, n, r):
        e = r & ~1
        sel = 'op_sel:[0,1] op_sel_hi:[1,1]' if r & 1 else 'op_sel_hi:[1,0]'
        for k in range(0, n, 2):
            self('v_pk_mul_f32 %s, %s, %s %s' % (v(x + k, 2), v(x + k, 2), v(e, 2), sel))

    def pack(self, dst, x, n):
        for k in range(0, n, 2):
            self('v_cvt_pk_bf16_f32 %s, %s, %s' % (v(dst + k // 2), v(x + k), v(x + k + 1)))

    XF, ACC1, GR, SUM, CSA, XD, XR, WD, WT, QD, NONV, SAD, TB = 16, 128, 160, 176, 180, 188, 192, 196, 198, 206, 208, 210, 214
    sROT = 49

    def prologue(self):
        XD, WD = self.XD, self.WD
        self('s_cmp_ge_u32 s2, 256\ns_cbranch_scc1 L_end')
        self.stamp('start', True)
        self('s_load_dwordx16 s[4:19], s[0:1], 0\ns_load_dwordx4 s[20:23], s[0:1], 64\ns_load_dwordx2 s[24:25], s[0:1], 80')
        self('v_lshrrev_b32 v1, 6, v0\nv_and_b32 v0, 63, v0\nv_readfirstlane_b32 %s, v1\ns_mov_b32 %s, s2' % (s(sW), s(sB)))
        if self.o.get('map', 'local') == 'q48':
            self('s_bfe_u32 %s, s2, 0x20001\ns_lshl_b32 %s, %s, 2\ns_lshr_b32 %s, s2, 6\ns_add_u32 %s, %s, %s'
                 % (s(t0), s(t0), s(t0), s(t1), s(sRB), s(t0), s(t1)))
            self('s_bfe_u32 %s, s2, 0x30003\ns_lshl_b32 %s, %s, 1\ns_and_b32 %s, s2, 1\ns_add_u32 %s, %s, %s'
                 % (s(sCB), s(t0), s(sCB), s(t2), s(sI), s(t0), s(t2)))
            self('s_lshl_b32 %s, %s, 1\ns_add_u32 %s, %s, %s' % (s(t1), s(t1), s(t1), s(t1), s(sCB)))
        else:
            self('s_and_b32 %s, s2, 7\ns_lshl_b32 %s, %s, 1\ns_lshr_b32 %s, s2, 7\ns_add_u32 %s, %s, %s'
                 % (s(t0), s(t0), s(t0), s(t1), s(sRB), s(t0), s(t1)))
            self('s_bfe_u32 %s, s2, 0x40003\ns_lshr_b32 %s, %s, 1\ns_mul_i32 %s, %s, 3\ns_add_u32 %s, %s, %s'
                 % (s(sI), s(sCB), s(sI), s(t1), s(t1), s(t1), s(t1), s(sCB)))
        self('s_cmp_ge_u32 %s, 7\ns_cselect_b32 %s, 7, 0\ns_sub_u32 %s, %s, %s' % (s(t1), s(t0), s(self.sROT), s(t1), s(t0)))
        self('s_lshl_b32 %s, %s, 2\ns_add_u32 %s, %s, %s\ns_mul_i32 %s, %s, %d' % (s(sT), s(sRB), s(sT), s(sT), s(sW), s(t2), s(sT), 32 * 896))
        self.rowtile_dma_addrs(896, XD, s(t2))
        self('v_lshrrev_b32 %s, 3, v0\nv_mul_u32_u24 %s, 2688, %s\nv_bfe_u32 %s, v0, 4, 1\nv_lshlrev_b32 %s, 2, %s'
             % (v(u0), v(u0), v(u0), v(u1), v(u1), v(u1)))
        self('v_xor_b32 %s, %s, v0\nv_and_b32 %s, 7, %s\nv_lshl_add_u32 %s, %s, 4, %s' % (v(u1), v(u1), v(u1), v(u1), v(u0), v(u1), v(u0)))
        self('s_mul_i32 %s, %s, 43008\ns_lshl_b32 %s, %s, 7\ns_add_u32 %s, %s, %s\ns_add_u32 %s, %s, 896\ns_lshl_b32 %s, %s, 11'
             % (s(t0), s(sW), s(t1), s(sI), s(t0), s(t0), s(t1), s(t0), s(t0), s(t3), s(sW)))
        self('v_add_u32 %s, %s, %s\nv_add_u32 %s, %d, %s' % (v(WD), s(t0), v(u0), v(WD + 1), 8 * 2688 - 1024, v(WD)))
        self('s_mul_i32 %s, %s, 16384\ns_add_u32 %s, %s, %d' % (s(t4), s(sW), s(t4), s(t4), XB))
        self('s_mov_b32 %s, 0x%x\ns_mov_b32 %s, 0x20000\ns_mov_b32 %s, 0x%x\ns_mov_b32 %s, 0x20000'
             % (s(SA + 2), 2048 * 896, s(SA + 3), s(SB + 2), 448 * 2688, s(SB + 3)))
        self('s_mov_b32 %s, %s' % (s(t5), s(self.sROT)))
        self('s_waitcnt lgkmcnt(0)')
        self('s_mov_b32 %s, %s\ns_mov_b32 %s, %s\ns_mov_b32 %s, %s\ns_mov_b32 %s, %s'
             % (s(SA), s(P_X), s(SA + 1), s(P_X + 1), s(SB), s(P_WQKV), s(SB + 1), s(P_WQKV + 1)))
        self.srd(SC, P_DBG, 256)
        sk = self.lab('non')
        self('s_or_b32 %s, %s, %s\ns_cbranch_scc1 %s' % (s(t0), s(sB), s(sW), sk))
        self('s_memrealtime %s\ns_waitcnt lgkmcnt(0)\ns_lshl_b64 %s, %s, 4\ns_or_b32 %s, %s, 0x80000000' % (s(t6, 2), s(t6, 2), s(t6, 2), s(t7), s(t7)))
        self('v_mov_b32 %s, %s\nv_mov_b32 %s, %s\nv_lshlrev_b32 %s, 3, v0\ns_mov_b64 exec, 255' % (v(u1), s(t6), v(u2), s(t7), v(u0)))
        self('buffer_store_dwordx2 %s, %s, %s, 0 offen sc1\ns_mov_b64 exec, -1\n%s:' % (v(u1, 2), v(u0), s(SC, 4), sk))

    def setup2(self):
        XR, WT, QD = self.XR, self.WT, self.QD
        self.srd(WS, P_WS, WS_BYTES)
        lp = self.lab('pc')
        self('s_getpc_b64 %s\n%s:\ns_sub_u32 %s, %s, %s-%s_kernel\ns_subb_u32 %s, %s, 0' % (s(84, 2), lp, s(84), s(84), lp, NAME, s(85), s(85)))
        self('s_mov_b32 s86, L_code_end-%s_kernel\ns_mov_b32 s87, 0x20000' % NAME)
        self('s_lshr_b32 %s, %s, 3\ns_lshl_b32 %s, %s, 2\ns_add_u32 %s, %s, %s\ns_lshl_b32 %s, %s, 9\nv_lshlrev_b32 %s, 3, v0'
             % (s(t0), s(sB), s(t0), s(t0), s(t0), s(t0), s(sW), s(t0), s(t0), v(u0)))
        self.load(250, u0, 84, s(t0), 0, 'code', n=2, sc1=False, pfx='a')
        self('s_getreg_b32 %s, hwreg(HW_REG_XCC_ID, 0, 4)' % s(sXCC))
        self('s_mov_b32 %s, 0\ns_mov_b32 %s, -1\ns_mov_b32 %s, 0x3f803f80' % (s(sHI), s(sHI + 1), s(sONE2)))
        k0 = -2.0 * math.sqrt(2.0 / math.pi) * math.log2(math.e)
        self('s_mov_b32 %s, %s' % (s(sK0), f32(k0)))
        self('s_mov_b32 %s, %s\ns_mov_b32 %s, %s' % (s(sK1), f32(k0 * 0.044715), s(sK1 + 1), f32(k0 * 0.044715)))
        self('s_lshl_b32 %s, %s, 4\ns_add_u32 %s, %s, %s\ns_lshl_b32 %s, %s, 3' % (s(sFID), s(sRB), s(sFID), s(sFID), s(sI), s(sFID), s(sFID)))
        self('s_and_b32 %s, %s, 1\ns_lshl_b32 %s, %s, 1\ns_lshr_b32 %s, %s, 1' % (s(t1), s(sI), s(t1), s(t1), s(sKH), s(sW)))
        self('s_lshl_b32 %s, %s, 2\ns_add_u32 %s, %s, %s\ns_and_b32 %s, %s, 1\ns_add_u32 %s, %s, %s'
             % (s(sT3), s(sRB), s(sT3), s(sT3), s(t1), s(t0), s(sW), s(sT3), s(sT3), s(t0)))
        self('v_lshrrev_b32 %s, 5, v0\nv_and_b32 %s, 31, v0\nv_lshlrev_b32 %s, 4, v0' % (v(vH), v(vM), v(vL16)))
        self('v_bfe_u32 %s, v0, 2, 2\nv_lshl_add_u32 %s, %s, 3, %s\nv_lshlrev_b32 %s, 7, %s'
             % (v(u0), v(u1), v(vH), v(u0), v(vTRa), v(u1)))
        self('v_bfe_u32 %s, v0, 4, 1\nv_and_b32 %s, 1, v0\nv_lshl_add_u32 %s, %s, 1, %s' % (v(u1), v(u2), v(u1), v(u1), v(u2)))
        self('v_bfe_u32 %s, v0, 3, 1\nv_lshlrev_b32 %s, 2, %s\nv_xor_b32 %s, %s, %s' % (v(u2), v(u2), v(u2), v(u2), v(u2), v(u1)))
        self('v_lshl_add_u32 %s, %s, 4, %s\nv_bfe_u32 %s, v0, 1, 1\nv_lshl_add_u32 %s, %s, 3, %s'
             % (v(vTRa), v(u2), v(vTRa), v(u2), v(vTRa), v(u2), v(vTRa)))
        self('v_xor_b32 %s, 64, %s' % (v(vTRb), v(vTRa)))
        self('v_and_b32 %s, 0x13, %s\nv_bfe_u32 %s, v0, 2, 1\nv_lshl_or_b32 %s, %s, 3, %s'
             % (v(vPM), v(vM), v(u0), v(vPM), v(u0), v(vPM)))
        self('v_bfe_u32 %s, v0, 3, 1\nv_lshl_or_b32 %s, %s, 2, %s' % (v(u1), v(vPM), v(u1), v(vPM)))
        self('v_bfe_u32 %s, v0, 4, 1\nv_cmp_eq_u32 vcc, %s, %s\nv_mov_b32 %s, %s\nv_cndmask_b32 %s, 0, %s, vcc'
             % (v(u1), v(u0), v(u1), v(u1), s(sONE2), v(u1), v(u1)))
        for k in range(4):
            self('v_accvgpr_write_b32 a%d, %s' % (252 + k, v(u1)))
        self('s_lshl_b32 %s, %s, 5' % (s(t1), s(sW)))
        self.rowtile_read_addrs(XR, s(t4), s(t1))
        for k in range(4):
            self('s_xor_b32 %s, %s, %d\nv_or_b32 %s, %s, %s\nv_or_b32 %s, %s, %s'
                 % (s(t0), s(t3), k * 2048, v(WT + 2 * k), s(t0), v(vTRa), v(WT + 2 * k + 1), s(t0), v(vTRb)))
        self('s_mul_i32 %s, %s, 56\ns_and_b32 %s, %s, 1\ns_lshl_b32 %s, %s, 3\ns_sub_u32 %s, %s, %s'
             % (s(t0), s(sI), s(t1), s(sI), s(t1), s(t1), s(t0), s(t0), s(t1)))
        self('v_lshrrev_b32 %s, 2, v0\nv_mul_u32_u24 %s, 2688, %s\nv_and_b32 %s, 3, v0\nv_lshl_add_u32 %s, %s, 4, %s'
             % (v(u0), v(u0), v(u0), v(u1), v(QD), v(u1), v(u0)))
        self('s_mul_i32 %s, %s, 43008\ns_add_u32 %s, %s, %s\nv_add_u32 %s, %s, %s\ns_lshl_b32 s82, %s, 10'
             % (s(t1), s(sW), s(t0), s(t0), s(t1), v(QD), s(t0), v(QD), s(sW)))

    def p1_variant(self, kind):
        XF, ACC, GR, SUM, CSA, XD, XR, WD, WT, QD, NONV, SAD, TB = (
            self.XF, self.ACC1, self.GR, self.SUM, self.CSA, self.XD, self.XR, self.WD, self.WT, self.QD,
            self.NONV, self.SAD, self.TB)
        kv = kind != 'N'

        def wreg(j, k, ct):
            return 32 * (j & 1) + 8 * k + 4 * ct

        def step(reg):
            self('s_add_u32 %s, %s, 1\ns_cmp_eq_u32 %s, 7\ns_cselect_b32 %s, 0, %s' % (s(reg), s(reg), s(reg), s(reg), s(reg)))

        def block_ops(j):
            ops = []
            if kv:
                def w_():
                    self('s_add_u32 m0, %s, %d\ns_mul_i32 %s, %s, %d' % (s(t3), j * 8192, s(t0), s(t5), 64 * 2688))
                    self.dma(WD, SB, s(t0), 0, 'B%d' % j)
                ops += [w_, lambda: self.dma(WD + 1, SB, s(t0), 1024, 'B%d' % j)]

            def x_():
                self('s_add_u32 m0, %s, %d\ns_lshl_b32 %s, %s, 7' % (s(t4), (j % 4) * 4096, s(t0), s(t5)))
                self.dma(XD, SA, s(t0), 0, 'B%d' % j)
            ops.append(x_)
            for rg in range(1, 4):
                ops.append(lambda rg=rg: self.dma(XD + rg, SA, s(t0), rg * 1024, 'B%d' % j))
            ops.append(lambda: step(t5))
            return ops

        def wq_op(j):
            self('s_add_u32 m0, s82, %d\ns_mul_i32 %s, %s, %d' % (WQB + j * 4096, s(t0), s(t5), 64 * 2688))
            self.dma(QD, SB, s(t0), 0, 'WQ')
            step(t5)
        D = self.o.get('depth', 2)
        if kind == 'C':
            self.q = block_ops(0) + block_ops(1)
            self.bg(99)
            self.stamp('p1dma')
            keep = list(self.vm)
            self.setup2()
            self.vm = keep + ['code']
            return
        if kind == 'K':
            self('s_lshl_b32 %s, %s, 3\nv_add_u32 %s, %s, %s\ns_mov_b32 %s, 225792\ns_mul_i32 %s, %s, 3584\ns_add_u32 %s, %s, %d'
                 % (s(t0), s(sI), v(u0), s(t0), v(vH), s(t1), s(t2), s(sT), s(t2), s(t2), KF))
            for k in range(4):
                self('v_add_u32 %s, %d, %s\nv_mul_u32_u24 %s, 37, %s\nv_lshrrev_b32 %s, 8, %s'
                     % (v(u1), 2 * k, v(u0), v(u2), v(u1), v(u2), v(u2)))
                self('v_mul_lo_u32 %s, %s, %s\nv_lshl_add_u32 %s, %s, 9, %s\nv_lshl_add_u32 %s, %s, 4, %s'
                     % (v(u2), v(u2), s(t1), v(u2), v(u1), v(u2), v(SAD + k), v(vM), v(u2)))
        elif kind == 'V':
            self('s_sub_u32 %s, %s, 7\ns_lshl_b32 %s, %s, 6\ns_mov_b32 %s, %d\ns_mul_i32 %s, %s, 1792\ns_add_u32 %s, %s, %d'
                 % (s(t0), s(sI), s(t0), s(t0), s(t1), 114688 - 448, s(t2), s(sT), s(t2), s(t2), VF))
            for ct in range(2):
                self('v_add_u32 %s, %s, %s\nv_add_u32 %s, %d, %s\nv_mul_u32_u24 %s, 2341, %s\nv_lshrrev_b32 %s, 16, %s'
                     % (v(u2), s(t0), v(vPM), v(u2), 32 * ct, v(u2), v(u3), v(u2), v(u3), v(u3)))
                self('v_mul_lo_u32 %s, %s, %s\nv_lshl_add_u32 %s, %s, 4, %s\nv_mul_u32_u24 %s, 448, %s\nv_add_u32 %s, %s, %s'
                     % (v(u3), v(u3), s(t1), v(u3), v(u2), v(u3), v(u2), v(vH), v(SAD + ct), v(u3), v(u2)))
            self('s_lshl_b32 %s, %s, 7\ns_add_u32 %s, %s, %d' % (s(t0), s(sW), s(t0), s(t0), RSX))
            self('v_lshl_add_u32 %s, %s, 2, %s\nv_lshl_add_u32 %s, %s, 4, %s' % (v(SAD + 2), v(vM), s(t0), v(SAD + 3), v(vH), s(t0)))
        XS, XG = TB, TB + 8
        xst = kv and self.o.get('xst', 0)
        if xst:
            self('s_lshl_b32 s88, %s, 13\ns_add_u32 s88, s88, %d\ns_lshl_b32 %s, %s, 9\ns_add_u32 s89, s88, %s'
                 % (s(sT), XST, s(t6), s(sI), s(t6)))
            self('s_and_b32 %s, %s, 512\ns_add_u32 s88, s88, %s\nv_lshlrev_b32 %s, 4, %s' % (s(t6), s(t6), s(t6), v(XS + 4), v(vM)))
            self('v_lshl_add_u32 %s, %s, 12, %s\nv_mul_u32_u24 %s, 3072, %s\nv_add_u32 %s, %s, %s'
                 % (v(XG), v(vH), v(XS + 4), v(XG + 1), v(vH), v(XG + 1), v(XG + 1), v(XS + 4)))
        self.stamp('p1iss')

        def stat_mf(j, k):
            x_ = XF + 16 * j + 4 * k
            first = j == 0 and k == 0
            return [lambda: self.mfma(GR, x_, x_, None if first else GR), lambda: self.mfsum(SUM, x_, first)]

        def main_mf(j, k):
            x_ = XF + 16 * j + 4 * k
            out = []
            for ct in range(2):
                def f(ct=ct):
                    c = None if j == 0 and k == 0 else ACC + 16 * ct
                    if ct == 0:
                        self.wlg('w%d_%d' % (j, k))
                    if kind == 'K':
                        self.mfma(ACC + 16 * ct, wreg(j, k, ct), x_, c, pa='a')
                    else:
                        self.mfma(ACC + 16 * ct, x_, wreg(j, k, ct), c, pb='a')
                out.append(f)
            return out

        def cs_mf(j):
            return [lambda ct=ct: self.mfsum(CSA + 4 * ct, wreg(j, 0, ct), j == 0, pb='a') for ct in range(2)]

        def side_ops(j):
            def head():
                self.wvm('B%d' % j)
                if kv:
                    self('s_barrier')
            side = [head]
            for k in range(4):
                side.append(lambda k=k: self.lgi('ds_read_b128 %s, %s offset:%d' % (
                    v(XF + 16 * j + 4 * k, 4), v(XR + k), (j % 4) * 4096), 'xf%d' % j))
            dm = block_ops(j + D) if j + D < 7 else [lambda q=q: wq_op(q) for q in ({4: (), 5: range(4), 6: range(4, 7)} if self.o.get('wql', 1) else {4: range(3), 5: range(3, 7), 6: ()})[j]]
            if j == (1 if xst else 3):
                def non():
                    self('v_mov_b32 %s, 0' % v(NONV))
                    self.load(NONV, NONV, SC, '0', 0, 'nonl', n=2)
                dm.insert(0, non)
            if xst and j == 6:
                dm = [lambda q=q: self.load(GR + 4 * q, XG + (q == 3), WS, 's88', q * 1024, 'xg') for q in range(4)] + dm
            if kv:
                for k in range(4):
                    for ct in range(2):
                        def rd(k=k, ct=ct):
                            w_ = wreg(j, k, ct)
                            for e in range(2):
                                self.lgi('ds_read_b64_tr_b16 a[%d:%d], %s offset:%d' % (
                                    w_ + 2 * e, w_ + 2 * e + 1, v(WT + 2 * k + ct), j * 8192 + 512 * e), 'w%d_%d' % (j, k))
                        side.append(rd)
                        if dm:
                            side.append(dm.pop(0))
            return side + dm
        self.q = (block_ops(2) if D == 3 else []) + side_ops(0)
        self.bg(99)
        for j in range(7):
            if j in (0, 3, 6):
                self.stamp('p1x%d' % j)
            self.wlg('xf%d' % j)
            self.q = side_ops(j + 1) if j < 6 else []
            seq = []
            if xst:
                for k in range(4):
                    st = stat_mf(j, k) if j == 0 else []
                    seq += st[:1] + main_mf(j, k) + st[1:]
                    if k == 0:
                        seq += cs_mf(j)
                if j == 1:
                    self.fill = self.cap(lambda: (self.diag(GR, XS + 1), self('v_mov_b32 %s, %s' % (v(XS), v(SUM)))))
                if j == 3:
                    self.drip(99)
                    self.wvm('nonl')
                    self.retry('v_cmp_eq_u32 vcc, 0, %s' % v(NONV + 1),
                               'v_mov_b32 %s, 0\nbuffer_load_dwordx2 %s, %s, %s, 0 offen sc1' % (v(NONV), v(NONV, 2), v(NONV), s(SC, 4)))
                    self('v_readfirstlane_b32 %s, %s\nv_readfirstlane_b32 %s, %s' % (s(sNON), v(NONV), s(sNON + 1), v(NONV + 1)))
                    self('v_mov_b32 %s, %s\nv_mov_b32 %s, %s\ns_not_b64 exec, %s' % (v(XS + 2), v(NONV), v(XS + 3), v(NONV + 1), s(sHI, 2)))
                    self.store(XS, XS + 4, WS, 's89', 0, 'xs')
                    self('s_mov_b64 exec, -1')
                if j == 6:
                    for f in seq[:6]:
                        f()
                    seq = seq[6:]
                    self.colsum_put(CSA, CSA + 4, MISC)
                    self.wvm('xg')
                    test = ''
                    for q in range(4):
                        test += 'v_cmp_ne_u64 %s, %s, %s\n' % (('vcc', s(t0, 2), 's[90:91]', s(t6, 2))[q], s(sNON, 2), v(GR + 4 * q + 2, 2))
                    test += 's_or_b64 %s, %s, s[90:91]\ns_or_b64 vcc, vcc, %s\ns_or_b64 vcc, vcc, %s' % (s(t0, 2), s(t0, 2), s(t6, 2), s(t0, 2))
                    self.retry(test, '\n'.join('buffer_load_dwordx4 %s, %s, %s, s88 offen offset:%d sc1'
                                               % (v(GR + 4 * q, 4), v(XG + (q == 3)), s(WS, 4), q * 1024) for q in range(4)))

                    def fin():
                        for e in range(2):
                            self('v_cndmask_b32 %s, %s, 0, %s\nv_add_f32 %s, %s, %s\nv_add_f32 %s, %s, %s\nv_add_f32 %s, %s, %s'
                                 % (v(GR + 12 + e), v(GR + 12 + e), s(sHI, 2), v(GR + e), v(GR + e), v(GR + 4 + e),
                                    v(GR + 8 + e), v(GR + 8 + e), v(GR + 12 + e), v(GR + e), v(GR + e), v(GR + 8 + e)))
                        self.xhalf_add2(GR, GR + 2)
                        self.mean_rstd(GR, GR + 1, 448, u3, vRS)
                        self.make_meanfrag(u3, u4)
                    self.fill = self.cap(fin)
                for g, f in enumerate(seq):
                    f()
                    if g >= 1 or j == 6:
                        self.bg(3 if j else 2)
                        self.drip(6 if j == 6 else 2)
                self.bg(99)
                if j == 6:
                    self.drip(99)
            elif j < 6:
                for k in range(4):
                    st = stat_mf(j, k)
                    seq += ([st[0]] + main_mf(j, k) + [st[1]]) if kv else st
                    if kv and k == 0:
                        seq += cs_mf(j)
                for g, f in enumerate(seq):
                    f()
                    if g >= 1:
                        self.bg(2)
                self.bg(99)
            else:
                for k in range(4):
                    for f in stat_mf(j, k):
                        f()
                if kv:
                    self.wlg('w6_0')
                    for f in cs_mf(j):
                        f()
                hold, self.a = self.a, Asm()
                self.diag(GR, u2)
                self.mean_rstd(SUM, u2, 448, u3, vRS)
                self.make_meanfrag(u3, u4)
                tail = [x.text for x in self.a.L]
                self.a = hold
                if kv:
                    mm = sum((main_mf(j, k) for k in range(4)), [])
                    mm[0]()
                    mm[1]()
                    self.colsum_put(CSA, CSA + 4, MISC)
                    for g in range(2, 8):
                        mm[g]()
                        self('\n'.join(tail[6 * (g - 2):6 * (g - 2) + 6]))
                    self('\n'.join(tail[36:]))
                else:
                    self('\n'.join(tail))
        self.stamp('p1mm')
        if not kv:
            self('s_lshl_b32 %s, %s, 1\ns_add_u32 %s, %s, %s\ns_sub_u32 %s, %s, 14\ns_lshl_b32 %s, %s, 2\ns_add_u32 %s, %s, %s'
                 % (s(t0), s(sRB), s(t0), s(t0), s(sI), s(t0), s(t0), s(t0), s(t0), s(t0), s(t0), s(sW)))
            self.srd(SA, P_WO, 448 * 896)
            self('s_lshl_b32 %s, %s, 12' % (s(t1), s(t0)))
            for q in range(4):
                self.load(64 + 4 * q, vL16, SA, s(t1), q * 1024, 'pf', sc1=False, pfx='a')
            self.srd(SA, P_WIN, 448 * 3584)
            self('s_mul_i32 %s, %s, 13312' % (s(t1), s(t0)))
            for q in range(13):
                if q and q % 4 == 0:
                    self('s_add_u32 %s, %s, 4096' % (s(t1), s(t1)))
                self.load(80 + 4 * q, vL16, SA, s(t1), (q % 4) * 1024, 'pf', sc1=False, pfx='a')
            return
        if kind == 'V':
            self.lgi('ds_write_b32 %s, %s' % (v(SAD + 2), v(vRS)), 'rs')
        self.wlg()
        self('s_barrier')
        if kind == 'V':
            for g in range(4):
                self.lgi('ds_read_b128 %s, %s offset:%d' % (v(TB + 4 * g, 4), v(SAD + 3), 32 * g), 'rs')
        self.colsum_get(GR, MISC, vCS2)
        for ct in range(2):
            if kind == 'K':
                self.mfma(ACC + 16 * ct, vCS2 + 4 * ct, vMF, ACC + 16 * ct)
            else:
                self.mfma(ACC + 16 * ct, vMF, vCS2 + 4 * ct, ACC + 16 * ct)
        for c in range(4):
            if kind == 'K':
                self.scale(ACC + 8 * c, 8, vRS)
            else:
                for k in range(0, 8, 2):
                    r = ACC + 8 * c + k
                    self('v_pk_mul_f32 %s, %s, %s' % (v(r, 2), v(r, 2), v(TB + 8 * (c & 1) + k, 2)))
            self.pack(GR + 4 * c, ACC + 8 * c, 8)
            if kind == 'K':
                self.store(GR + 4 * c, SAD + c, WS, s(t2), 0, 'st')
            else:
                self.store(GR + 4 * c, SAD + (c >> 1), WS, s(t2), (c & 1) * 896, 'st')

    def diag(self, g, dst):
        masks = (0xaaaaaaaa, 0xcccccccc, 0xff00ff00, 0xffff0000)
        n = 16
        for m in masks:
            self('s_mov_b32 vcc_lo, 0x%x\ns_mov_b32 vcc_hi, 0x%x' % (m, m))
            n //= 2
            for k in range(n):
                self('v_cndmask_b32 %s, %s, %s, vcc' % (v(g + k), v(g + 2 * k), v(g + 2 * k + 1)))
        self('v_mov_b32 %s, %s\ns_mov_b32 vcc_lo, 0xf0f0f0f0\ns_mov_b32 vcc_hi, 0xf0f0f0f0\nv_permlane32_swap_b32 %s, %s'
             % (v(g + 1), v(g), v(g), v(g + 1)))
        self('v_cndmask_b32 %s, %s, %s, vcc' % (v(dst), v(g), v(g + 1)))

    def p1(self):
        XF, ACC, GR, SUM, WT, NONV, TB = self.XF, self.ACC1, self.GR, self.SUM, self.WT, self.NONV, self.TB
        self.p1_variant('C')
        vm0 = list(self.vm)
        self('s_cmp_ge_u32 %s, 14\ns_cbranch_scc1 L_p1_N\ns_cmp_ge_u32 %s, 7\ns_cbranch_scc1 L_p1_V' % (s(sI), s(sI)))
        for kind in 'KVN':
            self('L_p1_%s:' % kind)
            self.vm, self.lg = list(vm0), []
            self.p1_variant(kind)
            if kind != 'N':
                self('s_branch L_p1_join')
        self('L_p1_join:')
        self.stamp('p1st')
        EC = self.o.get('ec', 5)
        self.vm = ['any']
        if EC:
            self.cold_setup()
            self.bg(EC)
            rest = self.q
        lp = self.lab('tag')
        self('s_mov_b32 %s, 0\ns_lshl_b32 %s, %s, 3\ns_add_u32 %s, %s, %d\ns_waitcnt vmcnt(%d)\n%s:' % (s(sCNT), s(t5), s(sFID), s(t5), s(t5), FLAG1, EC, lp))
        self('v_readfirstlane_b32 %s, %s\nv_readfirstlane_b32 %s, %s' % (s(sNON), v(NONV), s(sNON + 1), v(NONV + 1)))
        self('s_cmp_lg_u32 %s, 0\ns_cbranch_scc1 %s_d' % (s(sNON + 1), lp))
        self('v_mov_b32 %s, 0\nbuffer_load_dwordx2 %s, %s, %s, 0 offen sc1' % (v(u0), v(NONV, 2), v(u0), s(SC, 4)))
        self('s_add_u32 %s, %s, 1\ns_waitcnt vmcnt(0)\ns_cmp_lt_u32 %s, %d\ns_cbranch_scc1 %s\n%s_d:'
             % (s(sCNT), s(sCNT), s(sCNT), POLL_MAX, lp, lp))
        self.vm, self.lg = self.vm[1:], []
        self.publish(s(t5), xcc=True, drain=False)
        self.stamp('p1pub')
        self('s_lshl_b32 %s, %s, 10\ns_add_u32 %s, %s, %d' % (s(t0), s(sB), s(t0), s(t0), ONES))
        for k in range(4):
            self('v_mov_b32 %s, %s' % (v(TB + k), s(sONE2)))
        self.store(TB, vL16, WS, s(t0), 0, 'ones')
        self('v_bfe_u32 %s, v0, 2, 2\nv_lshl_add_u32 %s, %s, 3, %s\nv_lshlrev_b32 %s, 6, %s' % (v(u0), v(u0), v(vH), v(u0), v(u0), v(u0)))
        self('v_bfe_u32 %s, v0, 4, 1\nv_lshl_add_u32 %s, %s, 5, %s\nv_and_b32 %s, 1, v0\nv_lshl_add_u32 %s, %s, 4, %s'
             % (v(u1), v(u0), v(u1), v(u0), v(u1), v(u0), v(u1), v(u0)))
        self('v_bfe_u32 %s, v0, 1, 1\nv_lshl_add_u32 %s, %s, 3, %s' % (v(u1), v(u0), v(u1), v(u0)))
        for k in range(4):
            self('s_xor_b32 %s, %s, %d\ns_lshl_b32 %s, %s, 10\ns_add_u32 %s, %s, %d\nv_add_u32 %s, %s, %s'
                 % (s(t0), s(sW), k, s(t0), s(t0), s(t0), s(t0), WQB, v(WT + k), s(t0), v(u0)))

        def qrd(j, k):
            for e in range(2):
                r = 16 * (j & 1) + 4 * k + 2 * e
                self.lgi('ds_read_b64_tr_b16 a[%d:%d], %s offset:%d' % (r, r + 1, v(WT + k), j * 4096 + 256 * e), 'q%d_%d' % (j, k))
        for k in range(4):
            qrd(0, k)
        if EC:
            self.q = rest
        else:
            self.cold_setup()
        for j in range(7):
            for k in range(4):
                self.wlg('q%d_%d' % (j, k))
                r = 16 * (j & 1) + 4 * k
                self.mfma(ACC, r, XF + 16 * j + 4 * k, None if j + k == 0 else ACC, pa='a')
                if j < 6:
                    qrd(j + 1, k)
                self.mfsum(SUM, r, j + k == 0, pb='a')
                if k & 1 or j < 2:
                    self.bg(1)
        assert not self.q
        self('v_mul_f32 %s, %s, %s' % (v(u3), f32(math.log2(math.e) / math.sqrt(28.0)), v(vRS)))
        self('s_bitcmp1_b32 %s, 0\ns_cselect_b64 %s, -1, 0' % (s(sI), s(t0, 2)))
        self('s_andn2_b64 %s, %s, %s\ns_andn2_b64 %s, %s, %s' % (s(t2, 2), s(t0, 2), s(sHI, 2), s(t4, 2), s(sHI, 2), s(t0, 2)))
        self('s_lshl_b32 %s, %s, 11\ns_add_u32 %s, %s, %d\nv_add_u32 %s, %s, %s' % (s(t0), s(sW), s(t0), s(t0), MISC, v(u0), s(t0), v(vL16)))
        self.make_csfrag(SUM, vCS2)
        self.mfma(ACC, vCS2, vMF, ACC)
        self.scale(ACC, 16, u3)
        self.pack(GR, ACC, 16)
        for k in range(2):
            self('v_cndmask_b32 %s, %s, 0, %s\nv_cndmask_b32 %s, %s, 0, %s'
                 % (v(GR + k), v(GR + k), s(t2, 2), v(GR + 6 + k), v(GR + 6 + k), s(t4, 2)))
        self.lgi('ds_write_b128 %s, %s' % (v(u0), v(GR, 4)), 'qw')
        self.lgi('ds_write_b128 %s, %s offset:1024' % (v(u0), v(GR + 4, 4)), 'qw')
        self.p2_setup()
        self.wlg()
        self.vm_s1 = list(self.vm)
        self.stamp('q')
        WF = ACC
        sk, lp = self.lab('s1skip'), self.lab('s1')
        self('s_cmp_eq_u32 %s, 0\ns_cbranch_scc0 %s\ns_mov_b32 %s, 0\nv_lshlrev_b32 %s, 6, v0\n%s:' % (s(sW), sk, s(sCNT), v(WF + 8), lp))
        for k in range(4):
            self('s_mov_b32 %s, %d\nbuffer_load_dwordx2 %s, %s, %s, %s offen sc1' % (s(t0), FLAG1 + 4096 * k, v(WF + 2 * k, 2), v(WF + 8), s(WS, 4), s(t0)))
        self('s_add_u32 %s, %s, 1\ns_waitcnt vmcnt(0)' % (s(sCNT), s(sCNT)))
        for k in range(4):
            self('v_and_b32 %s, -16, %s' % (v(WF + 2 * k), v(WF + 2 * k)))
        for k in range(4):
            self('v_cmp_ne_u64 %s, %s, %s' % (('vcc', s(t0, 2), s(t2, 2), s(t6, 2))[k], s(sNON, 2), v(WF + 2 * k, 2)))
        self('s_or_b64 %s, %s, vcc\ns_or_b64 %s, %s, %s\ns_or_b64 %s, %s, %s'
             % (s(t0, 2), s(t0, 2), s(t2, 2), s(t2, 2), s(t6, 2), s(t0, 2), s(t0, 2), s(t2, 2)))
        self('s_cbranch_scc0 %s\ns_cmp_lt_u32 %s, %d\ns_cbranch_scc1 %s\n%s:\ns_barrier' % (sk, s(sCNT), POLL_MAX, lp, sk))
        self.stamp('s1')

    Q, O, S, P, KV, VOV, VST = 16, 48, 112, 144, 152, 217, 218

    def kv_addr(self, wave_split):
        VOV, VST = self.VOV, self.VST
        self('s_lshr_b32 %s, %s, 1\ns_mul_i32 %s, %s, 229376\ns_and_b32 %s, %s, 1\ns_mul_i32 %s, %s, 1536\ns_add_u32 %s, %s, %s'
             % (s(t0), s(sI), s(t4), s(t0), s(t0), s(sI), s(t0), s(t0), s(t4), s(t4), s(t0)))
        self('s_add_u32 %s, %s, %d\ns_mul_i32 %s, %s, 114688\ns_add_u32 %s, %s, %d' % (s(t4), s(t4), KF, s(t1), s(sI), s(t1), s(t1), VF))
        if wave_split:
            self('s_mul_i32 %s, %s, %d\ns_add_u32 %s, %s, %s\ns_mul_i32 %s, %s, %d\ns_add_u32 %s, %s, %s'
                 % (s(t0), s(sW), 16 * 3584, s(t4), s(t4), s(t0), s(t0), s(sW), 16 * 1792, s(t1), s(t1), s(t0)))
        self('v_mul_u32_u24 %s, 448, %s\nv_lshl_add_u32 %s, %s, 4, %s\nv_add_u32 %s, %s, %s'
             % (v(u0), v(vH), v(u0), v(vPM), v(u0), v(u0), s(t1), v(u0)))
        self('s_lshl_b32 %s, %s, 10\ns_add_u32 %s, %s, %d' % (s(t0), s(sB), s(t0), s(t0), ONES))
        self('v_mov_b32 %s, %s\nv_cmp_lt_u32 vcc, 28, %s\nv_mov_b32 %s, 0x7ff00000\nv_cndmask_b32 %s, %s, %s, vcc'
             % (v(u1), s(t0), v(vM), v(u2), v(u1), v(u1), v(u2)))
        self('v_mov_b32 %s, 1792\nv_cmp_gt_u32 vcc, 28, %s' % (v(u2), v(vM)))
        self('v_cndmask_b32 %s, %s, %s, vcc\nv_cndmask_b32 %s, 0, %s, vcc' % (v(VOV), v(u1), v(u0), v(VST), v(u2)))

    RW, QA, PD, PR = 226, 230, 234, 238
    SX, SBS, SSP, SWO = 84, 88, 92, 96

    def unit_addrs(self, pd, pr, sbase, stride):
        self('s_lshl_b32 %s, %s, 17\ns_mul_i32 %s, %s, %d\ns_add_u32 %s, %s, %d'
             % (s(t0), s(sT), sbase, s(sW), stride[1], sbase, sbase, stride[0]))
        self.rowtile_dma_addrs(4096, pd, s(t0))
        self.rowtile_read_addrs(pr, sbase)

    def unit_ops(self, u, slot, pd, sbase):
        def first():
            self('s_add_u32 m0, %s, %d\ns_add_u32 s101, s83, %d\ns_and_b32 s101, s101, 0xf80' % (sbase, slot * 4096, u * 128))
            self.dma(pd, self.SSP, 's101', 0, 'U%d' % u)
        return [first] + [lambda rg=rg: self.dma(pd + rg, self.SSP, 's101', rg * 1024, 'U%d' % u) for rg in range(1, 4)]

    def unit_read(self, u, slot, pr):
        for k in range(4):
            self.lgi('ds_read_b128 a[%d:%d], %s offset:%d' % (16 * u + 4 * k, 16 * u + 4 * k + 3, v(pr + k), slot * 4096), 'ur')

    def cold_setup(self):
        SX, SBS, SSP, SWO = self.SX, self.SBS, self.SSP, self.SWO
        self.srd(SX, P_X, 2048 * 896)
        self.srd(SBS, P_BSP, 4096)
        self.srd(SSP, P_WSP, 2048 * 4096)
        self.srd(SWO, P_WOUT, 896 * 896)
        self('s_mul_i32 %s, %s, %d\ns_lshl_b32 %s, %s, 7\ns_add_u32 %s, %s, %s\ns_lshl_b32 %s, %s, 6\ns_add_u32 %s, %s, %s'
             % (s(t0), s(sT3), 32 * 896, s(t1), s(sCB), s(t0), s(t0), s(t1), s(t1), s(sKH), s(t0), s(t0), s(t1)))
        self('v_mul_u32_u24 v224, 896, %s\nv_lshl_add_u32 v224, %s, 4, v224\nv_add_u32 v224, %s, v224' % (v(vM), v(vH), s(t0)))
        self('s_lshl_b32 %s, %s, 6\nv_lshl_add_u32 %s, %s, 1, %s' % (s(t0), s(sT), v(vBSP), v(vM), s(t0)))
        self('s_lshl_b32 %s, %s, 2\ns_add_u32 %s, %s, %s\ns_lshl_b32 %s, %s, 13\ns_lshl_b32 %s, %s, 19\ns_add_u32 %s, %s, %s\nv_add_u32 v225, %s, %s'
             % (s(t0), s(sI), s(t0), s(t0), s(sW), s(t0), s(t0), s(t1), s(sRB), s(t0), s(t0), s(t1), s(t0), v(vL16)))
        self('s_lshl_b32 %s, %s, 2\ns_add_u32 %s, %s, %s\ns_lshl_b32 s82, %s, 10\ns_lshl_b32 s83, %s, 8\ns_movk_i32 s101, 4096'
             % (s(t0), s(sB), s(t0), s(t0), s(sW), s(t0), s(sI)))
        self.q = [lambda q=q: self.load(216 + 4 * q, 225, SSP, 's101' if q >= 4 else '0', (q % 4) * 1024, 'pf', sc1=False, pfx='a')
                  for q in range(8)]
        self.q += [lambda: self.load(248, vL16, SWO, 's82', 0, 'pf', sc1=False, pfx='a'),
                   lambda: self.load(vHK, 224, SX, '0', 0, 'pf', sc1=False),
                   lambda: self.load(vHK + 4, 224, SX, '0', 32, 'pf', sc1=False),
                   lambda: self.vmi('buffer_load_ushort %s, %s, %s, 0 offen' % (v(vBSP), v(vBSP), s(SBS, 4)), 'pf')]
        self('s_lshl_b32 %s, %s, 15\ns_lshl_b32 %s, %s, 11\ns_add_u32 %s, %s, %s\ns_add_u32 s73, %s, %d'
             % (s(t0), s(sT), s(t1), s(sI), s(t2), s(t0), s(t1), s(t2), OF))
        self('s_lshl_b32 %s, %s, 13\ns_lshl_b32 %s, %s, 9\ns_add_u32 %s, %s, %s\ns_add_u32 %s, %s, %d\ns_lshl_b32 %s, %s, 7'
             % (s(t0), s(sT), s(t1), s(sI), s(t0), s(t0), s(t1), s(t0), s(t0), ZST - 512, s(t1), s(sRB)))
        self('v_and_b32 v222, 3, v0\nv_lshlrev_b32 v222, 12, v222\nv_add_u32 v222, %d, v222\nv_add_u32 v222, %s, v222' % (FLAG2, s(t1)))
        self('v_add_u32 v223, %s, %s\nv_cndmask_b32 v222, v222, v223, %s' % (s(t0), v(vL16), s(sHI, 2)))
        self.q.insert(0, lambda: self.load(208, 222, WS, '0', 0, 'pf', n=1, pfx='a'))

    def p2_setup(self):
        RW = self.RW
        self.kv_addr(True)
        self.srd(SA, P_WO, 448 * 896)
        self.srd(SB, P_WIN, 448 * 3584)
        self('s_lshl_b32 %s, %s, 7' % (s(t2), s(sCB)))
        wo = self.image_ops(220, SA, 896, s(t2), 0, 14, 'pf')
        self('s_lshl_b32 %s, %s, 7\ns_add_u32 %s, %s, 1792' % (s(t2), s(sI), s(t2), s(t2)))
        win = self.image_ops(222, SB, 3584, s(t2), WIN2, 14, 'pf')
        for j in range(4):
            self('s_add_u32 %s, %s, %d\ns_and_b32 %s, %s, 3\ns_mul_i32 %s, %s, 12288\ns_add_u32 %s, %s, %d\nv_add_u32 %s, %s, %s'
                 % (s(t0), s(sW), j + 1, s(t0), s(t0), s(t1), s(t0), s(t1), s(t1), RED + 4096 * (j % 3), v(RW + j), s(t1), v(vL16)))
            self('s_lshl_b32 %s, %s, 11\ns_add_u32 %s, %s, %d\nv_add_u32 %s, %s, %s' % (s(t0), s(t0), s(t0), s(t0), MISC, v(self.QA + j), s(t0), v(vL16)))
        self.unit_addrs(self.PD, self.PR, 's100', (RED, 12288))
        self('s_lshl_b32 %s, %s, 10\ns_add_u32 %s, %s, %d\nv_and_b32 v219, 15, v0\nv_lshl_add_u32 v219, v219, 6, %s'
             % (s(t0), s(sRB), s(t0), s(t0), FLAG1, s(t0)))
        self.att_img = [wo[k:k + 2] for k in range(0, 14, 2)] + [win[k:k + 2] for k in range(0, 14, 2)]

    def p2(self):
        Q, O, S, P, KV, VOV, VST, RW = self.Q, self.O, self.S, self.P, self.KV, self.VOV, self.VST, self.RW
        self.vm, self.lg = self.vm_s1, []
        self.wvm('ones')

        def kvload(it):
            b = KV + 16 * (it % 4)
            self.load(b, vL16, WS, s(t4), 0, 'K%d' % it)
            self.load(b + 4, vL16, WS, s(t4), 1024, 'K%d' % it)
            self.load(b + 8, VOV, WS, '0', 0, 'V%d' % it)
            self.load(b + 12, VOV, WS, '0', 896, 'V%d' % it)
            if it < 15:
                self('s_add_u32 %s, %s, 3584\nv_add_u32 %s, %s, %s' % (s(t4), s(t4), v(VOV), v(VST), v(VOV)))
        kvload(0)
        for j in range(4):
            self.lgi('ds_read_b128 %s, %s' % (v(Q + 8 * j, 4), v(self.QA + j)), 'q')
            self.lgi('ds_read_b128 %s, %s offset:1024' % (v(Q + 8 * j + 4, 4), v(self.QA + j)), 'q')
        kvload(1)
        kvload(2)
        self.wlg()
        self('s_barrier')
        wait_kv = self.wvm
        NA = self.NA
        self.stamp('a_iss')
        wait_kv('K0')
        self.stamp('a_k0')
        self.mfma(S, KV, Q, None)
        self.mfma(S, KV + 4, Q + 4, S)
        for n in range(64):
            it, j = divmod(n, 4)
            Sc, Sn = S + 16 * (n & 1), S + 16 * ((n + 1) & 1)
            ex = ['v_exp_f32 %s, %s' % (v(Sc + k), v(Sc + k)) for k in range(16)]
            pk = ['v_cvt_pk_bf16_f32 %s, %s, %s' % (v(P + k), v(Sc + 2 * k), v(Sc + 2 * k + 1)) for k in range(8)]
            nit, nj = divmod(n + 1, 4)
            pit, pj = divmod(n - 1, 4)
            kb, vb = KV + 16 * (nit % 4), KV + 16 * (pit % 4) + 8

            def qk(t):
                if n + 1 < 64:
                    if t == 0 and nj == 0:
                        wait_kv('K%d' % nit)
                    self.mfma(Sn, kb + 4 * t, Q + 8 * nj + 4 * t, Sn if t else None)

            def pv(t):
                if n > 0:
                    if t == 0 and pj == 0:
                        wait_kv('V%d' % pit)
                    c = None if (pit == 0 and t == 0) else O + 16 * pj
                    self.mfma(O + 16 * pj, vb + 4 * t, P + 4 * t, c)
            qk(0)
            self('\n'.join(ex[0:4]))
            pv(0)
            self('\n'.join(ex[4:8] + pk[0:2]))
            qk(1)
            self('\n'.join(ex[8:12] + pk[2:4]))
            pv(1)
            self('\n'.join(ex[12:16] + pk[4:8]))
            if j == 0 and it + 3 < 16:
                kvload(it + 3)
            if j == 1 and 0 <= it - 3 < NA:
                self.wvm('U%d' % (it - 3))
                self.unit_read(it - 3, it % 3, self.PR)
            if j == 2 and 0 <= it - 1 < NA:
                if it >= 4:
                    self.wlg()
                for op in self.unit_ops(it - 1, (it - 1) % 3, self.PD, 's100'):
                    op()
            if n == 2:
                self.load(219, 219, WS, '0', 0, 'pur', n=1)
            if j == 3 and 1 <= it <= 14:
                for op in self.att_img[it - 1]:
                    op()
            if n == 61 and NA:
                self.wlg()
                self('s_barrier')
            if n in (15, 31, 47):
                self.stamp('a%d' % n)
        self.mfma(O + 48, KV + 16 * 3 + 8, P, O + 48)
        self.mfma(O + 48, KV + 16 * 3 + 12, P + 4, O + 48)
        self.stamp('att')
        for j in range(3):
            for q in range(4):
                self.lgi('ds_write_b128 %s, %s offset:%d' % (v(RW + j), v(O + 16 * j + 4 * q, 4), q * 1024), 'rw')
        self('v_and_b32 v219, 15, v219\nv_cmp_ne_u32 vcc, %s, v219\ns_cmp_eq_u64 vcc, 0\ns_cselect_b32 %s, %d, 0'
             % (s(sXCC), s(sFAST), 0 if self.o.get('slowsync') else 1))
        self.wlg()
        self('s_barrier')
        for k in range(12):
            self.lgi('ds_read_b128 %s, %s offset:%d' % (v(O + 4 * k, 4), v(RW + 3), k * 1024), 'r%d' % (k // 4))
        A = O + 48
        for j in range(3):
            self.wlg('r%d' % j)
            for k in range(0, 16, 2):
                self('v_pk_add_f32 %s, %s, %s' % (v(A + k, 2), v(A + k, 2), v(O + 16 * j + k, 2)))
        self.stamp('red')
        self('L_att_norm:')
        self('v_mov_b32 %s, %s\nv_mov_b32 %s, %s\nv_permlane32_swap_b32 %s, %s' % (v(u0), v(A + 12), v(u1), v(A + 12), v(u0), v(u1)))
        self('v_cmp_gt_f32 vcc, %s, %s\ns_mov_b64 %s, vcc\nv_cmp_lt_f32 vcc, %s, %s\ns_and_b64 vcc, vcc, %s'
             % (f32(2.0 ** 40), v(u1), s(t0, 2), f32(2.0 ** -40), v(u1), s(t0, 2)))
        force = self.o.get('force_fallback')
        self('s_cmp_eq_u64 vcc, %s\ns_cbranch_scc0 L_att_slow\nL_att_ok:' % ('0' if force else '-1'))
        self('v_rcp_f32 %s, %s' % (v(u1), v(u1)))
        self.scale(A, 16, u1)
        self.pack(P, A, 16)
        self('v_cndmask_b32 %s, %s, 0, %s\nv_cndmask_b32 %s, %s, 0, %s' % (v(P + 6), v(P + 6), s(sHI, 2), v(P + 7), v(P + 7), s(sHI, 2)))
        self.vm = ['any']

        def st(sc):
            self.store(P, vL16, WS, 's73', 0, 'st', sc1=sc)
            self.store(P + 4, vL16, WS, 's73', 1024, 'st', sc1=sc)
        st(True)
        self('s_add_u32 %s, %s, %d' % (s(t5), s(sFID), FLAG2))
        self.publish(s(t5), True)
        self.stamp('p2pub')
        self('s_cmp_ge_u32 %s, 14\ns_cbranch_scc1 L_fin' % s(sI))

    def att_slow(self):
        Q, O, S, P, KV, VOV, VST = self.Q, self.O, self.S, self.P, self.KV, self.VOV, self.VST
        A, Qo = O + 48, Q + 24
        self('L_att_slow:\ns_waitcnt vmcnt(0)')
        self.kv_addr(False)
        self('s_mov_b32 %s, %s\nv_mov_b32 %s, 0xff800000\ns_mov_b32 %s, 0\nL_slow1:' % (s(t5), s(t4), v(u3), s(sCNT)))
        self('buffer_load_dwordx4 %s, %s, %s, %s offen sc1' % (v(KV, 4), v(vL16), s(WS, 4), s(t5)))
        self('buffer_load_dwordx4 %s, %s, %s, %s offen offset:1024 sc1' % (v(KV + 4, 4), v(vL16), s(WS, 4), s(t5)))
        self('s_add_u32 %s, %s, 3584\ns_waitcnt vmcnt(0)' % (s(t5), s(t5)))
        self.mfma(S, KV, Qo, None)
        self.mfma(S, KV + 4, Qo + 4, S)
        for k in range(0, 16, 2):
            self('v_max3_f32 %s, %s, %s, %s' % (v(u3), v(u3), v(S + k), v(S + k + 1)))
        self('s_add_u32 %s, %s, 1\ns_cmp_lt_u32 %s, 64\ns_cbranch_scc1 L_slow1' % (s(sCNT), s(sCNT), s(sCNT)))
        self('v_mov_b32 %s, %s\nv_permlane32_swap_b32 %s, %s\nv_max_f32 %s, %s, %s' % (v(u4), v(u3), v(u4), v(u3), v(u3), v(u3), v(u4)))
        for k in range(16):
            self('v_mov_b32 %s, 0' % v(A + k))
        self('s_mov_b32 %s, 0\nL_slow2:' % s(sCNT))
        self('buffer_load_dwordx4 %s, %s, %s, %s offen sc1' % (v(KV, 4), v(vL16), s(WS, 4), s(t4)))
        self('buffer_load_dwordx4 %s, %s, %s, %s offen offset:1024 sc1' % (v(KV + 4, 4), v(vL16), s(WS, 4), s(t4)))
        self('buffer_load_dwordx4 %s, %s, %s, 0 offen sc1' % (v(KV + 8, 4), v(VOV), s(WS, 4)))
        self('buffer_load_dwordx4 %s, %s, %s, 0 offen offset:896 sc1' % (v(KV + 12, 4), v(VOV), s(WS, 4)))
        self('s_add_u32 %s, %s, 3584\nv_add_u32 %s, %s, %s\ns_waitcnt vmcnt(0)' % (s(t4), s(t4), v(VOV), v(VST), v(VOV)))
        self.mfma(S, KV, Qo, None)
        self.mfma(S, KV + 4, Qo + 4, S)
        for k in range(16):
            self('v_sub_f32 %s, %s, %s' % (v(S + k), v(S + k), v(u3)))
        for k in range(16):
            self('v_exp_f32 %s, %s' % (v(S + k), v(S + k)))
        self.pack(P, S, 16)
        self.mfma(A, KV + 8, P, A)
        self.mfma(A, KV + 12, P + 4, A)
        self('s_add_u32 %s, %s, 1\ns_cmp_lt_u32 %s, 64\ns_cbranch_scc1 L_slow2' % (s(sCNT), s(sCNT), s(sCNT)))
        self('v_mov_b32 %s, %s\nv_mov_b32 %s, %s\nv_permlane32_swap_b32 %s, %s' % (v(u0), v(A + 12), v(u1), v(A + 12), v(u0), v(u1)))
        self('s_branch L_att_ok')

    def slot_addrs(self, dst, kh_bytes, base):
        self('s_mul_i32 %s, %s, %d\ns_add_u32 %s, %s, %d\ns_lshl_b32 %s, %s, 6' % (s(t0), s(sKH), kh_bytes, s(t0), s(t0), base, s(t1), s(sKH)))
        self('v_xor_b32 %s, %s, %s\nv_xor_b32 %s, %s, %s' % (v(dst), s(t1), v(vTRa), v(dst + 1), s(t1), v(vTRb)))
        self('v_add_u32 %s, %s, %s\nv_add_u32 %s, %s, %s' % (v(dst), s(t0), v(dst), v(dst + 1), s(t0), v(dst + 1)))

    def frag_ops(self, dst, n, sreg, tag, second=None):
        ops = []
        for k in range(n):
            def op(k=k):
                if k and k % 4 == 0:
                    self('s_add_u32 %s, %s, 4096' % (s(sreg), s(second if k == 4 and second else sreg)))
                self.load(dst + 4 * k, vL16, WS, s(sreg), (k % 4) * 1024, '%s%d' % (tag, k))
            ops.append(op)
        return ops

    def pair_addrs(self, dst, red):
        self('s_lshl_b32 %s, %s, 12\ns_add_u32 %s, %s, %d\nv_add_u32 %s, %s, %s' % (s(t0), s(sW), s(t0), s(t0), red, v(dst), s(t0), v(vL16)))
        self('v_xor_b32 %s, 0x2000, %s' % (v(dst + 1), v(dst)))

    def pair_reduce(self, acc, tmp, adr, res, rtmp):
        for k in range(8):
            self('v_lshlrev_b32 %s, 16, %s\nv_and_b32 %s, 0xffff0000, %s' % (v(rtmp + 2 * k), v(res + k), v(rtmp + 2 * k + 1), v(res + k)))
        for q in range(4):
            self.lgi('ds_write_b128 %s, %s offset:%d' % (v(adr), v(acc + 16 + 4 * q, 4), q * 1024), 'pw')
        for k in range(0, 16, 2):
            self('v_pk_add_f32 %s, %s, %s' % (v(acc + k, 2), v(acc + k, 2), v(rtmp + k, 2)))
        self.wlg()
        self('s_barrier')
        for q in range(4):
            self.lgi('ds_read_b128 %s, %s offset:%d' % (v(tmp + 4 * q, 4), v(adr + 1), q * 1024), 'pr%d' % q)
        for q in range(4):
            self.wlg('pr%d' % q)
            for k in range(4 * q, 4 * q + 4, 2):
                self('v_pk_add_f32 %s, %s, %s' % (v(acc + k, 2), v(acc + k, 2), v(tmp + k, 2)))

    def p3(self):
        FR, ACC, WO, PA = 16, 80, 112, 240
        WB = FR
        RED3 = 131072
        self.vm, self.lg = [], []
        U0 = self.NA
        if self.NB:
            self.unit_addrs(FR, FR + 4, 's100', (RED, 12288))
            self.q = sum((self.unit_ops(U0 + r, r, FR, 's100') for r in range(self.NB)), [])
            self.bg(99)
        self.slot_addrs(u5, 8 * 3584, 0)
        for k in range(16):
            for sl in range(2):
                for e in range(2):
                    self.tr(WO + 8 * k + 4 * sl + 2 * e, u5 + sl, (k >> 1) * 3584 + (k & 1) * 2048 + 512 * e, 'wo')
        self.pair_addrs(PA, RED3)
        self('s_lshl_b32 %s, %s, 15\ns_lshl_b32 %s, %s, 14\ns_add_u32 %s, %s, %s\ns_add_u32 %s, %s, %d'
             % (s(t4), s(sT3), s(t1), s(sKH), s(t4), s(t4), s(t1), s(t4), s(t4), OF))
        self('s_lshl_b32 %s, %s, 1\ns_add_u32 %s, %s, %s' % (s(t0), s(sCB), s(t0), s(t0), s(sKH)))
        self('s_mul_i32 %s, %s, 28672\ns_lshl_b32 %s, %s, 11\ns_add_u32 %s, %s, %s\ns_add_u32 %s, %s, %d'
             % (s(t2), s(sT3), s(t1), s(t0), s(t2), s(t2), s(t1), s(t2), s(t2), HF))
        self('s_lshl_b32 %s, %s, 12\ns_lshl_b32 %s, %s, 8\ns_add_u32 %s, %s, %s\ns_add_u32 %s, %s, %d'
             % (s(t3), s(sT3), s(t1), s(t0), s(t3), s(t3), s(t1), s(t3), s(t3), HST))
        self('v_lshlrev_b32 %s, 3, %s' % (v(u3), v(vM)))
        self('s_lshl_b32 %s, %s, 7\ns_add_u32 %s, %s, %d' % (s(t5), s(sRB), s(t5), s(t5), FLAG2))
        self.wvm()
        self.poll_first(s(t5), 16, FR + 8)
        for r in range(self.NB):
            self.unit_read(U0 + r, r, FR + 4)
        self.wlg()
        self.stamp('wb')
        self.poll(s(t5), 16, FR + 8)
        self.stamp('s2')
        self.q = self.frag_ops(FR, 16, t4, 'f')
        self.bg(11)
        for k in range(16):
            self.wvm('f%d' % k)
            for sl in range(2):
                self.mfma(ACC + 16 * sl, WO + 8 * k + 4 * sl, FR + 4 * k, None if k == 0 else ACC + 16 * sl)
            self.bg(1)
        self.stamp('p3mm')
        self.pair_reduce(ACC, WB, PA, vHK, WB + 16)
        self.pack(vHK, ACC, 16)

        def st(sc):
            self.store(vHK, vL16, WS, s(t2), 0, 'st', sc1=sc)
            self.store(vHK + 4, vL16, WS, s(t2), 1024, 'st', sc1=sc)
        st(True)
        self('v_pk_mul_f32 %s, %s, %s' % (v(WB, 2), v(ACC, 2), v(ACC, 2)))
        for k in range(2, 16, 2):
            self('v_pk_fma_f32 %s, %s, %s, %s' % (v(WB, 2), v(ACC + k, 2), v(ACC + k, 2), v(WB, 2)))
            self('v_pk_add_f32 %s, %s, %s' % (v(ACC, 2), v(ACC, 2), v(ACC + k, 2)))
        self('v_add_f32 %s, %s, %s\nv_add_f32 %s, %s, %s' % (v(ACC), v(ACC), v(ACC + 1), v(ACC + 1), v(WB), v(WB + 1)))
        self.xhalf_add2(ACC, WB)
        self.store(ACC, u3, WS, s(t3), 0, 'st', n=2)
        self('s_add_u32 %s, %s, %d' % (s(t5), s(sFID), FLAG3))
        self.publish(s(t5), True)
        self.stamp('p3pub')

    def zrd(self, k):
        for ct in range(2):
            self.trfrag(128 + 8 * (k % 4) + 4 * ct, u5 + ct, k * 2048, 'w%d' % k)

    def zpass(self, acc, wait_frag, nbg, k0=0, k1=28, kend=None, ndrip=0):
        HFR, WB = 16, 128
        kend = kend or k1
        for k in range(k0, k1):
            if wait_frag:
                self.wvm('h%d' % k)
            self.wlg('w%d' % k)
            self.mfma(acc, WB + 8 * (k % 4), HFR + 4 * k, None if k == 0 else acc)
            if k + 3 < kend:
                self.zrd(k + 3)
            else:
                self.drip(2 * ndrip)
            self.mfma(acc + 16, WB + 8 * (k % 4) + 4, HFR + 4 * k, None if k == 0 else acc + 16)
            self.bg(nbg)
            self.drip(ndrip)

    def p4(self):
        HFR, WB, A2, A1 = 16, 128, 160, 192
        KS = self.o.get('ks', 0)
        self.KS = KS
        self.vm, self.lg = [], []
        U0 = self.NA
        self.colsum_part(WIN2, (16, 44), 72, MISC)
        self('s_lshl_b32 %s, %s, 7\ns_add_u32 %s, %s, %d' % (s(t5), s(sRB), s(t5), s(t5), FLAG3))
        self.poll_first(s(t5), 14, 88)
        self('s_lshl_b32 %s, %s, 7' % (s(t2), s(sI)))
        w1 = self.image_ops(222, SB, 3584, s(t2), 0, 14, 'W1')
        self('s_mul_i32 %s, %s, 28672\ns_add_u32 %s, %s, %d' % (s(t2), s(sT), s(t2), s(t2), HF))
        self('s_lshl_b32 %s, %s, 12\ns_add_u32 %s, %s, %d' % (s(t3), s(sT), s(t3), s(t3), HST))
        self('v_mul_u32_u24 %s, 1792, %s\nv_lshl_add_u32 %s, %s, 3, %s' % (v(u4), v(vH), v(u4), v(vM), v(u4)))
        self('v_add_u32 %s, %d, %s\nv_add_u32 %s, %d, %s' % (v(u5), WIN2, v(vTRa), v(u6), WIN2, v(vTRb)))
        for k in range(3):
            self.zrd(k)
        self.wlg('csw')
        self.stamp('w1')
        self.poll(s(t5), 14, 88)
        self.stamp('s3')
        hl = self.frag_ops(HFR, 28, t2, 'h')
        hs = [lambda q=q: self.load(A1 + 2 * q, u4, WS, s(t3), q * 256, 'hs', n=2) for q in range(7)]
        self.q = hl[:16] + hs + hl[16:]
        self.bg(11)
        self.colsum_get(224, MISC, vCS2)
        self.stamp('p4iss')
        def hstat():
            for q in range(1, 7):
                self('v_add_f32 %s, %s, %s\nv_add_f32 %s, %s, %s' % (v(A1), v(A1), v(A1 + 2 * q), v(A1 + 1), v(A1 + 1), v(A1 + 2 * q + 1)))
            self.xhalf_add2(A1, A1 + 2)
            self.mean_rstd(A1, A1 + 1, 448, A1 + 2, vRS)
            self.make_meanfrag(A1 + 2, A1 + 3)
            self.gelu_consts()
            self('s_lshl_b32 %s, %s, 13\ns_add_u32 %s, %s, %d\ns_lshl_b32 %s, %s, 9\ns_add_u32 %s, %s, %s'
                 % (s(t3), s(sT), s(t3), s(t3), ZST, s(t1), s(sI), s(t4), s(t3), s(t1)))
            self('v_lshlrev_b32 %s, 4, %s\nv_mov_b32 %s, %s\nv_mov_b32 %s, %s' % (v(u3), v(vM), v(A1 + 6), s(sNON), v(A1 + 7), s(sNON + 1)))
        self.zpass(A2, True, 2, 0, 4, 28)
        self.zpass(A2, True, 1, 4, 20, 28)
        assert not self.q
        self.wvm('hs')
        self.fill = self.cap(hstat)
        self.zpass(A2, True, 0, 20, 28, ndrip=3)
        self.drip(99)
        self.stamp('z2mm')
        for ct in range(2):
            self.mfma(A2 + 16 * ct, vCS2 + 4 * ct, vMF, A2 + 16 * ct)
        self('v_mov_b32 %s, %s\nv_mov_b32 %s, %s' % (v(u5), v(vTRa), v(u6), v(vTRb)))
        self.q = w1
        self.bg(5)
        self.gelu(A2, 32, A1 + 8, 3)
        assert not self.q
        Z = A1 + 4
        self('v_pk_mul_f32 %s, %s, %s\nv_pk_add_f32 %s, %s, %s'
             % (v(A1, 2), v(A2, 2), v(A2, 2), v(Z, 2), v(A2, 2), v(A2 + 2, 2)))
        for k in range(2, 32, 2):
            self('v_pk_fma_f32 %s, %s, %s, %s' % (v(A1, 2), v(A2 + k, 2), v(A2 + k, 2), v(A1, 2)))
            if k > 2:
                self('v_pk_add_f32 %s, %s, %s' % (v(Z, 2), v(Z, 2), v(A2 + k, 2)))
        self('v_add_f32 %s, %s, %s\nv_add_f32 %s, %s, %s' % (v(Z), v(Z), v(Z + 1), v(Z + 1), v(A1), v(A1 + 1)))
        self.xhalf_add2(Z, A1)
        self('s_not_b64 exec, %s' % s(sHI, 2))
        self.local_stores(lambda sc: self.store(Z, u3, WS, s(t4), 0, 'zs', sc1=sc))
        self('s_mov_b64 exec, -1')
        self.stamp('zst')
        self('s_lshl_b32 %s, %s, 18\ns_lshl_b32 %s, %s, 12\ns_add_u32 %s, %s, %s\ns_add_u32 %s, %s, %d'
             % (s(t2), s(sI), s(t1), s(sT), s(t2), s(t2), s(t1), s(t2), s(t2), ZF))
        self('v_lshlrev_b32 %s, 2, %s\nv_xor_b32 %s, %s, %s\nv_lshlrev_b32 %s, 4, %s\nv_lshl_add_u32 %s, %s, 9, %s'
             % (v(u3), v(vH), v(u3), v(u3), v(vM), v(u3), v(u3), v(u3), v(vH), v(u3)))
        self('v_xor_b32 %s, 0x80, %s\nv_add_u32 %s, 1024, %s' % (v(u4), v(u3), v(u4), v(u4)))
        self('s_lshl_b32 %s, %s, 4\ns_add_u32 %s, %s, %s\ns_lshl_b32 %s, %s, 6\ns_add_u32 %s, %s, %d'
             % (s(t5), s(sI), s(t5), s(t5), s(sRB), s(t5), s(t5), s(t5), s(t5), FLAG5))
        self('v_mul_u32_u24 %s, 3584, %s\nv_lshl_add_u32 %s, %s, 4, %s\ns_mov_b32 %s, 0' % (v(u2), v(vH), v(u2), v(vM), v(u2), s(sCNT)))
        self.unit_addrs(232, 236, 's100', (RED, 8192))
        self.wvm('W1')
        self('s_barrier')
        gather = [lambda q=q: self.load(224 + 4 * q, u2, WS, s(t3), q * 512, 'zg', pfx='a') for q in range(7)]
        if self.o.get('gearly', 1):
            self.q = gather
            self.bg(99)
        self.colsum_part(0, (WB, A1), 224, MISC + 1024)
        self.q = ([] if self.o.get('gearly', 1) else gather) + sum((self.unit_ops(U0 + r, r, 232, 's100') for r in range(self.ND)), [])
        if KS:
            for k in range(3):
                self.zrd(k)
            self.zpass(A1, False, 2, 0, KS)
        self.bg(99)
        self.stamp('z1a')
        lp = self.lab('zs')
        self.wvm('zg')
        for q in range(28):
            self('v_accvgpr_read_b32 %s, a%d' % (v(WB + q), 224 + q))
        keepvm = list(self.vm)
        self('s_branch %s_c\n%s:' % (lp, lp))
        for q in range(7):
            self('buffer_load_dwordx4 %s, %s, %s, %s offen offset:%d sc1' % (v(WB + 4 * q, 4), v(u2), s(WS, 4), s(t3), q * 512))
        self('s_add_u32 %s, %s, 1\ns_waitcnt vmcnt(0)\n%s_c:' % (s(sCNT), s(sCNT), lp))
        for q in range(1, 7):
            self('v_xor_b32 %s, %s, %s\nv_xor_b32 %s, %s, %s' % (v(WB + 4 * q + 2), s(sNON), v(WB + 4 * q + 2),
                                                                v(WB + 4 * q + 3), s(sNON + 1), v(WB + 4 * q + 3)))
        self('v_or3_b32 %s, %s, %s, %s' % (v(u1), v(WB + 6), v(WB + 7), v(WB + 10)))
        for r in ((11, 14), (15, 18), (19, 22), (23, 26)):
            self('v_or3_b32 %s, %s, %s, %s' % (v(u1), v(u1), v(WB + r[0]), v(WB + r[1])))
        self('v_or_b32 %s, %s, %s\nv_cmp_ne_u64 %s, %s, %s\nv_cmp_ne_u32 vcc, 0, %s'
             % (v(u1), v(u1), v(WB + 27), s(t0, 2), s(sNON, 2), v(WB + 2, 2), v(u1)))
        for q in range(1, 7):
            self('v_pk_add_f32 %s, %s, %s' % (v(WB, 2), v(WB, 2), v(WB + 4 * q, 2)))
        self('s_or_b64 %s, %s, vcc' % (s(t0, 2), s(t0, 2)))
        self('s_cbranch_scc0 %s_d\ns_cmp_lt_u32 %s, %d\ns_cbranch_scc1 %s\n%s_d:' % (lp, s(sCNT), POLL_MAX, lp, lp))
        self.vm = keepvm
        self.stamp('s4')
        self.xhalf_add2(WB, WB + 2)
        self.mean_rstd(WB, WB + 1, 896, WB + 2, WB + 4)
        self('v_mul_f32 %s, -%s, %s' % (v(WB + 6), v(WB + 2), v(WB + 4)))
        for c in range(4):
            for k in range(8 * c, 8 * c + 8, 2):
                self('v_pk_fma_f32 %s, %s, %s, %s op_sel_hi:[1,0,0]' % (v(A2 + k, 2), v(A2 + k, 2), v(WB + 4, 2), v(WB + 6, 2)))
            self.pack(WB + 8 + 4 * c, A2 + 8 * c, 8)
            self.store(WB + 8 + 4 * c, u3 + (c & 1), WS, s(t2), (c >> 1) * 2048, 'st')
        if self.ND:
            self.wvm('U%d' % (U0 + self.ND - 1))
        for r in range(self.ND):
            self.unit_read(U0 + r, r, 236)
        self.wlg()
        self.publish(s(t5))
        self.stamp('p4pub')

    NZ, NW, WRING = 6, 6, 57344

    def p5(self):
        A1, ACC, ZB, WB, WD, WR, ZA, OD, FL = 192, 16, 48, 80, 160, 164, 168, 170, 172
        NZ, NW, WRING, SWO, KS = self.NZ, self.NW, self.WRING, self.SWO, self.KS
        order = []
        for k in range(14):
            order += [14 + k, k]
        order += [28, 29, 30, 31]
        self.vm, self.lg = [], []
        for k in range(KS, KS + 3):
            self.zrd(k)
        self.unit_addrs(WD, WR, s(t4), (WRING, NW * 4096))
        self.colsum_get(172, MISC + 1024, vCS1)

        def w_ops(r):
            return self.unit_ops(14 + r, r % NW, WD, s(t4))

        def z_ops(p):
            def first():
                self('s_add_u32 m0, %s, %d\ns_add_u32 %s, s82, %d\ns_and_b32 %s, %s, 0x3e000\ns_add_u32 %s, %s, %s'
                     % (s(t1), (p % NZ) * 8192, s(t0), order[p] * 8192, s(t0), s(t0), s(t0), s(t0), s(t2)))
                self.dma(vL16, WS, s(t0), 0, 'Z%d' % p, sc1=True)
            return [first, lambda: self.dma(vL16, WS, s(t0), 1024, 'Z%d' % p, sc1=True)]

        def o_ops(c):
            ops = []
            for hf in range(2):
                def first(hf=hf):
                    if c < 6:
                        self('s_add_u32 m0, %s, %d' % (s(t4), c * 4096 + hf * 2048))
                    else:
                        self('s_lshl_b32 %s, %s, 12\ns_add_u32 m0, %s, %d' % (s(t0), s(sW), s(t0), 16384 + hf * 2048))
                    self('s_mov_b32 %s, %d' % (s(t0), (32 * c + 16 * hf) * 896))
                    self.dma(OD, SWO, s(t0), 0, 'WT')
                ops += [first, lambda: self.dma(OD + 1, SWO, s(t0), 1024, 'WT')]
            return ops
        self.o_ops = o_ops
        self.q = sum((w_ops(r) for r in range(NW)), [])
        self.zpass(A1, False, 2 if KS > 4 else 1, KS, 28)
        self.bg(99)
        self.stamp('z1')
        for ct in range(2):
            self.mfma(A1 + 16 * ct, vCS1 + 4 * ct, vMF, A1 + 16 * ct)
        self('v_lshlrev_b32 %s, 16, %s' % (v(vBSP), v(vBSP)))
        self('v_bfe_u32 %s, v0, 4, 1\nv_and_b32 %s, 1, v0\nv_lshl_add_u32 %s, %s, 1, %s' % (v(u0), v(u1), v(u0), v(u0), v(u1)))
        self('v_lshlrev_b32 %s, 1, %s\nv_xor_b32 %s, %s, %s\nv_lshlrev_b32 %s, 6, %s\nv_lshl_add_u32 %s, %s, 9, %s'
             % (v(u1), v(vH), v(u1), v(u1), v(u0), v(u1), v(u1), v(u1), v(u0), v(u1)))
        self('v_bfe_u32 %s, v0, 2, 2\nv_lshl_add_u32 %s, %s, 4, %s\nv_bfe_u32 %s, v0, 1, 1\nv_lshl_add_u32 %s, %s, 3, %s'
             % (v(u0), v(u1), v(u0), v(u1), v(u0), v(ZA), v(u0), v(u1)))
        self('v_xor_b32 %s, 64, %s' % (v(ZA + 1), v(ZA)))
        self('s_lshl_b32 %s, %s, 7' % (s(t2), s(sCB)))
        self.image_ops(OD, SWO, 896, s(t2), 0, 28, 'WT')
        self('s_lshl_b32 %s, %s, 11\ns_lshl_b32 %s, %s, 18\ns_add_u32 %s, %s, %s\ns_add_u32 %s, %s, %d\ns_lshl_b32 s82, %s, 14'
             % (s(t1), s(sW), s(t2), s(sI), s(t2), s(t2), s(t1), s(t2), s(t2), ZF, s(sI)))
        self('s_lshl_b32 %s, %s, 10\ns_add_u32 %s, %s, %d' % (s(t5), s(sI), s(t5), s(t5), FLAG5))
        GS = self.o.get('gs', 16)
        self.gelu(A1, GS - 8, 128, 0)
        self.poll_first(s(t5), 16, FL, 6)
        self.gelu(A1 + GS - 8, 8, 128, 0)
        self.stamp('g1')
        self.poll(s(t5), 16, FL, 6)
        self.stamp('s5')
        self.q = sum((z_ops(p) for p in range(NZ - 1)), [])
        self.bg(99)
        self.gelu(A1 + GS, 32 - GS, 128, 0)

        def rdz(g, ct):
            p, k = divmod(g, 4)
            off = (p % NZ) * 8192 + (k >> 1) * 4096 + (k & 1) * 256
            d = ZB + 8 * (g % 4) + 4 * ct
            self.tr(d, ZA, off + ct * 2048, 'g%d' % g)
            self.tr(d + 2, ZA + 1, off + ct * 2048, 'g%d' % g)

        def rdw(g):
            p, k = divmod(g, 4)
            if order[p] >= 14:
                self.lgi('ds_read_b128 %s, %s offset:%d' % (v(WB + 4 * (g % 4), 4), v(WR + k), ((order[p] - 14) % NW) * 4096), 'g%d' % g)

        def mm(g, ct):
            p, k = divmod(g, 4)
            c = None if g == 0 else ACC + 16 * ct
            if order[p] >= 14:
                self.mfma(ACC + 16 * ct, ZB + 8 * (g % 4) + 4 * ct, WB + 4 * (g % 4), c)
            else:
                self.mfma(ACC + 16 * ct, ZB + 8 * (g % 4) + 4 * ct, 16 * order[p] + 4 * k, c, pb='a')
        self.wvm('Z0')
        self('s_barrier')
        self.stamp('p5z0')
        for g in range(2):
            rdz(g, 0)
            rdz(g, 1)
            rdw(g)
        for g in range(128):
            p, k = divmod(g, 4)
            if g in (32, 64, 96):
                self.stamp('p5_%d' % g)
            self.wlg('g%d' % g)
            mm(g, 0)
            if k == 2 and p + 1 < 32:
                self.wvm('Z%d' % (p + 1))
                self.wvm('U%d' % order[p + 1])
                self('s_barrier')
                if p + NZ - 1 < 32:
                    self.q += z_ops(p + NZ - 1)
                if p >= 1 and order[p - 1] >= 14:
                    r = order[p - 1] - 14
                    self.q += w_ops(r + NW) if r + NW < 18 else o_ops(r % NW)
            if g + 2 < 128:
                rdz(g + 2, 0)
                rdw(g + 2)
            mm(g, 1)
            if g + 2 < 128:
                rdz(g + 2, 1)
            self.bg(1)
        self.bg(99)
        self.stamp('p5')
        self('s_mul_i32 %s, %s, 57344\ns_lshl_b32 %s, %s, 12\ns_add_u32 %s, %s, %s\ns_add_u32 %s, %s, %d'
             % (s(t2), s(sT), s(t1), s(sI), s(t2), s(t2), s(t1), s(t2), s(t2), UF))
        self('s_add_u32 %s, %s, %d' % (s(t5), s(sFID), FLAG6))
        e = vBSP & ~1
        for k in range(0, 32, 2):
            self('v_pk_add_f32 %s, %s, %s op_sel_hi:[1,0]' % (v(ACC + k, 2), v(ACC + k, 2), v(e, 2)))
            self('v_pk_mul_f32 %s, %s, %s' % (v(ACC + k, 2), v(ACC + k, 2), v(A1 + k, 2)))
        self.pack(ZB, ACC, 32)

        def st_(sc):
            for k in range(4):
                self.store(ZB + 4 * k, vL16, WS, s(t2), k * 1024, 'st', sc1=sc)
        st_(True)
        self.publish(s(t5), True)
        self.stamp('p5pub')

    def p6(self):
        FR, WB, ACC, AR, AZ, PA = 16, 128, 176, 208, 210, 212
        self.vm, self.lg = [], []
        self.q = self.o_ops(4) + self.o_ops(5) + self.o_ops(6)
        self.bg(99)
        self.slot_addrs(AR, 49152, self.WRING)
        self.slot_addrs(AZ, 8192, 16384)
        self.pair_addrs(PA, 0)
        self.srd(SA, P_OUT, 2048 * 896)
        self('s_mul_i32 %s, %s, %d\ns_lshl_b32 %s, %s, 7\ns_add_u32 %s, %s, %s\ns_lshl_b32 %s, %s, 6\ns_add_u32 %s, %s, %s'
             % (s(t3), s(sT3), 32 * 896, s(t1), s(sCB), s(t3), s(t3), s(t1), s(t1), s(sKH), s(t3), s(t3), s(t1)))
        self('v_mul_u32_u24 %s, 896, %s\nv_lshl_add_u32 %s, %s, 4, %s' % (v(u4), v(vM), v(u4), v(vH), v(u4)))
        self('s_mul_i32 %s, %s, 57344\ns_mul_i32 %s, %s, 28672\ns_add_u32 %s, %s, %s\ns_add_u32 %s, %s, %d'
             % (s(t2), s(sT3), s(t1), s(sKH), s(t2), s(t2), s(t1), s(t2), s(t2), UF))
        self('s_lshl_b32 %s, %s, 7\ns_add_u32 %s, %s, %d' % (s(t5), s(sRB), s(t5), s(t5), FLAG6))
        OA = 216
        self('s_and_b32 %s, %s, 1\ns_lshl_b32 %s, %s, 12\ns_add_u32 %s, %s, 32768\ns_lshl_b32 %s, %s, 2' % (s(t0), s(sW), s(t0), s(t0), s(t0), s(t0), s(t1), s(sKH)))
        self('v_add_u32 %s, %s, %s\nv_and_b32 %s, 7, v0\nv_xor_b32 %s, %s, %s\nv_lshlrev_b32 %s, 4, %s' % (v(u0), s(t1), v(vH), v(u1), v(u0), v(u0), v(u1), v(u0), v(u0)))
        self('v_lshl_add_u32 %s, %s, 7, %s\nv_add_u32 %s, %s, %s\nv_xor_b32 %s, 32, %s' % (v(u0), v(vM), v(u0), v(OA), s(t0), v(u0), v(OA + 1), v(OA)))
        self('s_lshl_b32 %s, %s, 11\ns_add_u32 %s, %s, 32768\nv_add_u32 %s, %s, %s' % (s(t0), s(sW), s(t0), s(t0), v(OA + 2), s(t0), v(vL16)))
        self('v_lshrrev_b32 %s, 3, v0\nv_xor_b32 %s, %s, %s\nv_mul_u32_u24 %s, 896, %s\nv_lshl_add_u32 %s, %s, 4, %s\nv_add_u32 %s, 7168, %s'
             % (v(u0), v(u1), v(u1), v(u0), v(u0), v(u0), v(OA + 3), v(u1), v(u0), v(OA + 4), v(OA + 3)))
        self('s_and_b32 %s, %s, -2\ns_lshl_b32 %s, %s, 1\ns_add_u32 %s, %s, %s\ns_mul_i32 %s, %s, %d\ns_lshl_b32 %s, %s, 7\ns_add_u32 %s, %s, %s'
             % (s(t0), s(sT3), s(t0), s(t0), s(t0), s(t0), s(sW), s(t4), s(t0), 16 * 896, s(t1), s(sCB), s(t4), s(t4), s(t1)))
        self.poll_first(s(t5), 14, 214)
        self.stamp('wout')
        self.poll(s(t5), 14, 214)
        self.stamp('s6')
        self.q = self.frag_ops(FR, 28, t2, 'f')
        self.bg(11)

        def rd(k, sl):
            hi, c = divmod(k >> 1, 7)
            if c < 6:
                adr, off = AR, hi * 24576 + c * 4096
            else:
                adr, off = AZ, hi * 4096
            self.trfrag(WB + 8 * (k % 4) + 4 * sl, adr + sl, off + (k & 1) * 2048, 'w%d' % k)
        for k in range(3):
            rd(k, 0)
            rd(k, 1)
        for k in range(28):
            self.wvm('f%d' % k)
            self.wlg('w%d' % k)
            for sl in range(2):
                self.mfma(ACC + 16 * sl, WB + 8 * (k % 4) + 4 * sl, FR + 4 * k, None if k == 0 else ACC + 16 * sl)
                if k + 3 < 28:
                    rd(k + 3, sl)
            self.bg(1)
        self.stamp('p6mm')
        self.pair_reduce(ACC, WB, PA, vHK, WB + 16)
        self.pack(WB, ACC, 16)
        if self.o.get('outl', 1):
            self.lgi('ds_write_b128 %s, %s' % (v(OA), v(WB, 4)), 'ow')
            self.lgi('ds_write_b128 %s, %s' % (v(OA + 1), v(WB + 4, 4)), 'ow')
            self.wlg()
            self('s_barrier')
            self.lgi('ds_read_b128 %s, %s' % (v(WB + 8, 4), v(OA + 2)), 'o0')
            self.lgi('ds_read_b128 %s, %s offset:1024' % (v(WB + 12, 4), v(OA + 2)), 'o1')
            self.wlg('o0')
            self.store(WB + 8, OA + 3, SA, s(t4), 0, 'st')
            self.wlg('o1')
            self.store(WB + 12, OA + 4, SA, s(t4), 0, 'st')
        else:
            self.store(WB, u4, SA, s(t3), 0, 'st')
            self.store(WB + 4, u4, SA, s(t3), 32, 'st')
        self.stamp('end', True)

    def build(self):
        stop = self.o.get('stop', 6)
        self.prologue()
        for k, ph in enumerate((self.p1, self.p2, self.p3, self.p4, self.p5, self.p6), 1):
            if k <= stop:
                ph()
        if self.o.get('padfrom') == 'tag':
            self('s_mov_b32 %s, %s' % (s(sPT), s(sNON)))
        if self.o.get('padfrom'):
            self('s_mov_b32 %s, 0\nL_hold:\ns_memrealtime s[78:79]\ns_add_u32 %s, %s, 1\ns_waitcnt lgkmcnt(0)' % (s(sCNT), s(sCNT), s(sCNT)))
            self('s_sub_u32 s78, s78, %s\ns_cmp_ge_u32 s78, 10000\ns_cbranch_scc1 L_fin\ns_cmp_lt_u32 %s, 100000\ns_cbranch_scc1 L_hold' % (s(sPT), s(sCNT)))
        self('L_fin:')
        self.stamp_flush()
        self('L_end:\ns_endpgm')
        if stop >= 2:
            self.att_slow()
        self.emit_stubs()
        self('L_code_end:')
        npad = self.a.pad()
        errs = []
        for take in ((), ('L_p1_V',), ('L_p1_N',), ('L_att_slow',)):
            errs += self.a.check_waits(take)
        for e in sorted(set(errs)):
            print('WAITCHECK', e, file=sys.stderr)
        ref = open('cdna_kernels/%s.s.ref' % NAME).read().split('\n')
        head = [l for l in ref if l.startswith(';') and '@launch' not in l and 'Override' not in l and 'grid=ceil' not in l
                and l == l.lstrip()]
        out = '\n'.join(head) + '\n'
        if self.names:
            out += '; stamps: ' + ' '.join(self.names) + '\n'
        out += '; @launch grid=(256,1,1) block=(256,1,1) lds=%d\n' % LDS_BYTES
        out += '.amdgcn_target "amdgcn-amd-amdhsa--gfx950"\n.text\n.globl %s_kernel\n.p2align 8\n' % NAME
        out += '.type %s_kernel,@function\n%s_kernel:\n' % (NAME, NAME)
        out += self.a.text()
        out += '.section .rodata,"a"\n.p2align 6\n.amdhsa_kernel %s_kernel\n' % NAME
        out += ('  .amdhsa_next_free_vgpr 512\n  .amdhsa_next_free_sgpr 102\n  .amdhsa_accum_offset 256\n'
                '  .amdhsa_group_segment_fixed_size 0\n  .amdhsa_kernarg_size 88\n  .amdhsa_user_sgpr_count 2\n'
                '  .amdhsa_user_sgpr_kernarg_segment_ptr 1\n  .amdhsa_system_sgpr_workgroup_id_x 1\n'
                '.end_amdhsa_kernel\n')
        if self.o.get('showpads'):
            for k, x in enumerate(self.a.L):
                if x.note == 'pad':
                    print(k, x.text, '| prev:', self.a.L[k - 1].text, '| next:', self.a.L[k + 1].text, file=sys.stderr)
        print('instructions %d, pads %d, waitcheck errors %d' % (len(self.a.L), npad, len(set(errs))), file=sys.stderr)
        return out


if __name__ == '__main__':
    opt = {}
    dst = sys.argv[1]
    for a in sys.argv[2:]:
        k, _, val = a.partition('=')
        opt[k] = int(val) if val.isdigit() else (val or 1)
    open(dst, 'w').write(G(opt).build())
```

```python
import sys
import math
import struct
import copy
from asmlib import Asm

NAME = 'sequential_preLN__mha_block__mixer_gmlp__prompt'

FLAG2, FLAG3, FLAG6 = 0x1000, 0x2000, 0x3000
FLAG1, FLAG5 = 0x8000, 0xC000
ONES, PROF = 0x40000, 0x80000
ZST, HST = 0x100000, 0x180000
KF, VF, OF, HF, ZF, UF = 0x200000, 0x400000, 0x600000, 0x800000, 0xA00000, 0xE00000
XST = 0x1200000
WS_BYTES = 0x1280000

XB = 57344
WQB = 106496
MISC = 155648
RSX = 157696
WIN2 = 57344
RED = 114688
LDS_BYTES = 163840

P_X, P_WQKV, P_WO, P_WIN, P_WSP, P_BSP, P_WOUT, P_OUT, P_DBG, P_WS = 4, 6, 8, 12, 14, 16, 18, 20, 22, 24
sW, sRB, sI, sXCC, sNON, sFAST = 26, 27, 44, 45, 46, 48
WS, SA, SB, SC = 28, 32, 36, 40
sHI = 50
sONE2 = 52
sT = 54
sCB, sKH, sT3 = 55, 56, 57
sK0, sK1 = 58, 60
t0, t1, t2, t3, t4, t5, t6, t7 = 62, 63, 64, 65, 66, 67, 68, 69
sSAVE = 70
sCNT = 72
sPT = 70
sB = 76
sM0, sSO = 80, 81
sFID = 77

vL, vH, vM, vL16, vTRa, vTRb, vPM = 0, 1, 2, 3, 4, 5, 6
u0, u1, u2, u3, u4, u5, u6, u7, u8 = 7, 8, 9, 10, 11, 12, 13, 14, 15
vCS1, vCS2, vMF, vHK, vBSP, vRS, vGI = 224, 232, 240, 244, 252, 253, 6

POLL_MAX = 8000


def f32(x):
    return '0x%08x' % struct.unpack('<I', struct.pack('<f', x))[0]


def v(a, n=1):
    return 'v%d' % a if n == 1 else 'v[%d:%d]' % (a, a + n - 1)


def s(a, n=1):
    return 's%d' % a if n == 1 else 's[%d:%d]' % (a, a + n - 1)


class G:
    def __init__(self, opt):
        self.o = opt
        self.a = Asm()
        self.vm = []
        self.lg = []
        self.nlab = 0
        self.names = []
        self.q = []
        self.issued = set()
        self.fill = []
        self.stubs = []
        self.NB, self.NC, self.ND = opt.get('nb', 0), opt.get('nc', 0), opt.get('nd', 2)
        self.NA = 14 - self.NB - self.NC - self.ND
        assert self.NA <= 13

    def __call__(self, t):
        self.a(t)

    def lab(self, p):
        self.nlab += 1
        return 'L_%s_%d' % (p, self.nlab)

    def vmi(self, text, tag):
        self.a(text)
        self.vm.append(tag)
        self.issued.add(tag)

    def lgi(self, text, tag):
        self.a(text)
        self.lg.append(tag)

    def _n(self, q, tag):
        idx = [k for k, t in enumerate(q) if t == tag]
        return None if not idx else len(q) - 1 - idx[-1]

    def wvm(self, tag=None):
        n = 0 if tag is None else self._n(self.vm, tag)
        assert tag is None or tag in self.issued, tag
        if n is None:
            return
        self.a('s_waitcnt vmcnt(%d)' % n)
        self.vm = self.vm[len(self.vm) - n:]

    def wlg(self, tag=None):
        n = 0 if tag is None else self._n(self.lg, tag)
        if n is None:
            return
        n = min(n, 15)
        self.a('s_waitcnt lgkmcnt(%d)' % n)
        self.lg = self.lg[len(self.lg) - n:]

    def srd(self, r, ptr, nbytes):
        self('s_mov_b32 %s, %s\ns_mov_b32 %s, %s\ns_mov_b32 %s, 0x%x\ns_mov_b32 %s, 0x20000'
             % (s(r), s(ptr), s(r + 1), s(ptr + 1), s(r + 2), nbytes, s(r + 3)))

    def bg(self, n=1):
        for _ in range(n):
            if self.q:
                self.q.pop(0)()

    def cap(self, fn):
        hold, self.a = self.a, Asm()
        fn()
        assert all(x.kind in ('valu', 'salu', 'nop') for x in self.a.L)
        lines = [x.text for x in self.a.L]
        self.a = hold
        out = []
        for l in lines:
            if out and l.startswith(('s_cselect', 's_subb', 's_addc')):
                out[-1] += '\n' + l
            else:
                out.append(l)
        return out

    def drip(self, n):
        for _ in range(n):
            if self.fill:
                self(self.fill.pop(0))

    def retry(self, test, reload):
        st, bk = self.lab('again'), self.lab('have')
        self('%s\ns_cbranch_vccnz %s\n%s:' % (test, st, bk))
        self.stubs.append((st, bk, test, reload))

    def emit_stubs(self):
        for st, bk, test, reload in self.stubs:
            self('%s:\ns_mov_b32 %s, 0\n%s_l:\n%s' % (st, s(sCNT), st, reload))
            self('s_add_u32 %s, %s, 1\ns_waitcnt vmcnt(0)\n%s\ns_cbranch_vccz %s' % (s(sCNT), s(sCNT), test, bk))
            self('s_cmp_lt_u32 %s, %d\ns_cbranch_scc1 %s_l\ns_branch %s' % (s(sCNT), POLL_MAX, st, bk))

    def image_ops(self, va, srd, stride, col_soff, lds_base, ninstr, tag):
        self('v_lshrrev_b32 %s, 3, %s\nv_mul_u32_u24 %s, %d, %s' % (v(va), v(vL), v(va), stride, v(va)))
        self('v_bfe_u32 %s, %s, 4, 1\nv_lshlrev_b32 %s, 2, %s' % (v(va + 1), v(vL), v(va + 1), v(va + 1)))
        self('v_xor_b32 %s, %s, %s\nv_and_b32 %s, 7, %s' % (v(va + 1), v(va + 1), v(vL), v(va + 1), v(va + 1)))
        self('v_lshl_add_u32 %s, %s, 4, %s' % (v(va), v(va + 1), v(va)))
        self('s_mul_i32 %s, %s, %d\ns_add_u32 %s, %s, %s' % (s(t0), s(sW), ninstr * 8 * stride, s(t0), s(t0), col_soff))
        self('v_add_u32 %s, %s, %s\nv_add_u32 %s, %d, %s' % (v(va), s(t0), v(va), v(va + 1), 8 * stride - 1024, v(va)))
        ops = []
        for q in range(ninstr):
            def op(q=q):
                if q % 2 == 0:
                    if q == 0:
                        self('s_mul_i32 %s, %s, %d\ns_add_u32 m0, %s, %d\ns_mov_b32 %s, 0'
                             % (s(sM0), s(sW), ninstr * 1024, s(sM0), lds_base, s(sSO)))
                    else:
                        self('s_add_u32 m0, %s, %d\ns_mov_b32 %s, %d' % (s(sM0), lds_base + q * 1024, s(sSO), q * 8 * stride))
                self.dma(va + (q & 1), srd, s(sSO), (q & 1) * 1024, tag)
            ops.append(op)
        return ops

    def mfma(self, d, a_, b, c=None, pa='v', pb='v'):
        cs = '0' if c is None else v(c, 16)
        self('v_mfma_f32_32x32x16_bf16 %s, %s[%d:%d], %s[%d:%d], %s'
             % (v(d, 16), pa, a_, a_ + 3, pb, b, b + 3, cs))

    def mfsum(self, d, b, first, pb='v'):
        self('v_mfma_f32_16x16x32_bf16 %s, a[252:255], %s[%d:%d], %s' % (v(d, 4), pb, b, b + 3, '0' if first else v(d, 4)))

    def tr(self, dst, addr, off, tag):
        self.lgi('ds_read_b64_tr_b16 %s, %s offset:%d' % (v(dst, 2), v(addr), off), tag)

    def trfrag(self, dst, addr, off, tag, step=512):
        self.tr(dst, addr, off, tag)
        self.tr(dst + 2, addr, off + step, tag)

    def load(self, dst, voff, srd, soff, imm, tag, n=4, sc1=True, pfx='v'):
        op = {4: 'dwordx4', 2: 'dwordx2', 1: 'dword'}[n]
        d = '%s%d' % (pfx, dst) if n == 1 else '%s[%d:%d]' % (pfx, dst, dst + n - 1)
        self.vmi('buffer_load_%s %s, %s, %s, %s offen offset:%d%s'
                 % (op, d, v(voff), s(srd, 4), soff, imm, ' sc1' if sc1 else ''), tag)

    def dma(self, voff, srd, soff, imm, tag, sc1=False):
        self.vmi('buffer_load_dwordx4 %s, %s, %s offen offset:%d%s lds'
                 % (v(voff), s(srd, 4), soff, imm, ' sc1' if sc1 else ''), tag)

    def store(self, src, voff, srd, soff, imm, tag, n=4, sc1=True):
        op = {4: 'dwordx4', 2: 'dwordx2', 1: 'dword'}[n]
        self.vmi('buffer_store_%s %s, %s, %s, %s offen offset:%d%s'
                 % (op, v(src, n), v(voff), s(srd, 4), soff, imm,
                    ' sc1' if sc1 else (' ' + self.o['plainmod'] if srd == WS and self.o.get('plainmod') else '')), tag)

    def local_stores(self, emit):
        lp, lj = self.lab('plain'), self.lab('join')
        self('s_cmp_eq_u32 %s, 1\ns_cbranch_scc1 %s' % (s(sFAST), lp))
        keep = list(self.vm)
        emit(True)
        self('s_branch %s\n%s:' % (lj, lp))
        self.vm = keep
        emit(False)
        self('%s:' % lj)

    def publish(self, flag_soff, local=False, xcc=False, drain=True):
        if xcc:
            self('s_or_b32 %s, %s, %s\nv_mov_b32 %s, %s' % (s(t0), s(sNON), s(sXCC), v(u1), s(t0)))
        else:
            self('v_mov_b32 %s, %s' % (v(u1), s(sNON)))
        self('v_mov_b32 %s, %s\ns_cmp_eq_u32 %s, 0' % (v(u2), s(sNON + 1), s(sW)))
        if drain:
            self.wvm(None if drain is True else drain)
        self('s_barrier')
        sk = self.lab('pub')
        if local:
            self('s_cbranch_scc0 %s\ns_mov_b64 exec, 1' % sk)
            st = 'buffer_store_dwordx2 %s, v0, %s, %s offen' % (v(u1, 2), s(WS, 4), flag_soff)
            self.local_stores(lambda sc: self(st + (' sc1' if sc else '')))
        else:
            self('s_cbranch_scc0 %s\ns_mov_b64 exec, 15' % sk)
            self('buffer_store_dwordx4 %s, %s, %s, %s offen sc1' % (v(u1, 4), v(vL16), s(WS, 4), flag_soff))
        self('s_mov_b64 exec, -1\n%s:' % sk)

    def poll_first(self, flag_soff, nflags, reg, sh=3):
        self('v_cmp_gt_u32 vcc, %d, v0\nv_lshlrev_b32 %s, %d, v0\nv_cndmask_b32 %s, 0, %s, vcc' % (nflags, v(reg), sh, v(reg), v(reg)))
        self.load(reg, reg, WS, flag_soff, 0, 'flag', n=2)

    def poll(self, flag_soff, nflags, first=None, sh=3):
        sk, lp = self.lab('pollskip'), self.lab('poll')
        if first is not None:
            self.wvm('flag')
            self('v_cmp_ne_u64 vcc, %s, %s\ns_cbranch_vccz %s' % (s(sNON, 2), v(first, 2), sk))
        self('s_cmp_eq_u32 %s, 0\ns_cbranch_scc0 %s' % (s(sW), sk))
        self('v_lshlrev_b32 %s, %d, %s' % (v(u0), sh, v(vL)))
        self('s_mov_b64 exec, 0x%x' % ((1 << nflags) - 1))
        self('s_mov_b32 %s, 0\n%s:' % (s(sCNT), lp))
        self('buffer_load_dwordx2 %s, %s, %s, %s offen sc1' % (v(u1, 2), v(u0), s(WS, 4), flag_soff))
        self('s_add_u32 %s, %s, 1' % (s(sCNT), s(sCNT)))
        self('s_waitcnt vmcnt(0)')
        self('v_cmp_ne_u64 vcc, %s, %s' % (s(sNON, 2), v(u1, 2)))
        self('s_cbranch_vccz %s_d' % lp)
        self('s_cmp_lt_u32 %s, %d\ns_cbranch_scc1 %s' % (s(sCNT), POLL_MAX, lp))
        self('%s_d:\ns_mov_b64 exec, -1\n%s:' % (lp, sk))
        self('s_barrier')

    def stamp(self, name, real=False):
        if self.o.get('padfrom') == name:
            self('s_memrealtime %s\ns_waitcnt lgkmcnt(0)' % s(sPT, 2))
            self.lg = []
        if not self.o.get('prof'):
            return
        if name not in self.names:
            self.names.append(name)
        k = self.names.index(name)
        assert k < 62
        self('s_memtime s[78:79]\ns_waitcnt lgkmcnt(0)\nv_writelane_b32 v255, s78, %d' % k)
        self.lg = []
        if self.o['prof'] == 2:
            self('s_memrealtime s[78:79]\ns_waitcnt lgkmcnt(0)\nv_writelane_b32 v254, s78, %d' % k)
        if real:
            self('s_memrealtime s[78:79]\ns_waitcnt lgkmcnt(0)\nv_writelane_b32 v255, s78, %d' % (62 if k == 0 else 63))

    def stamp_flush(self):
        if not self.o.get('prof'):
            return
        self('s_lshl_b32 %s, %s, 2\ns_add_u32 %s, %s, %s\ns_lshl_b32 %s, %s, 8\ns_add_u32 %s, %s, %d'
             % (s(t7), s(sB), s(t7), s(t7), s(sW), s(t7), s(t7), s(t7), s(t7), PROF))
        self('v_lshlrev_b32 v7, 2, v0\nbuffer_store_dword v255, v7, %s, %s offen' % (s(WS, 4), s(t7)))
        self('s_add_u32 %s, %s, 0x40000\nbuffer_store_dword v254, v7, %s, %s offen' % (s(t7), s(t7), s(WS, 4), s(t7)))

    def xhalf_add(self, r, tmp):
        self('v_mov_b32 %s, %s\nv_permlane32_swap_b32 %s, %s\nv_add_f32 %s, %s, %s'
             % (v(tmp), v(r), v(tmp), v(r), v(r), v(r), v(tmp)))

    def xhalf_add2(self, r, tmp):
        self('v_mov_b32 %s, %s\nv_mov_b32 %s, %s\ns_nop 0\nv_permlane32_swap_b32 %s, %s\nv_permlane32_swap_b32 %s, %s'
             % (v(tmp), v(r), v(tmp + 1), v(r + 1), v(tmp), v(r), v(tmp + 1), v(r + 1)))
        self('v_add_f32 %s, %s, %s\nv_add_f32 %s, %s, %s' % (v(r), v(r), v(tmp), v(r + 1), v(r + 1), v(tmp + 1)))

    def mean_rstd(self, vsum, vsq, n, mean, rstd):
        self('v_mul_f32 %s, %s, %s' % (v(mean), f32(1.0 / n), v(vsum)))
        self('v_mul_f32 %s, %s, %s' % (v(rstd), f32(1.0 / n), v(vsq)))
        self('v_fma_f32 %s, -%s, %s, %s' % (v(rstd), v(mean), v(mean), v(rstd)))
        self('v_max_f32 %s, 0, %s\nv_add_f32 %s, %s, %s' % (v(rstd), v(rstd), v(rstd), f32(1e-5), v(rstd)))
        self('v_rsq_f32 %s, %s' % (v(rstd), v(rstd)))

    def make_meanfrag(self, mean, tmp):
        self('v_sub_f32 %s, 0, %s\nv_cndmask_b32 %s, %s, 0, %s' % (v(tmp), v(mean), v(tmp), v(tmp), s(sHI, 2)))
        self('v_cvt_pk_bf16_f32 %s, %s, 0\nv_lshlrev_b32 %s, 16, %s' % (v(vMF + 1), v(tmp), v(vMF), v(vMF + 1)))
        self('v_sub_f32 %s, %s, %s\nv_cvt_pk_bf16_f32 %s, %s, %s' % (v(vMF), v(tmp), v(vMF), v(vMF), v(tmp), v(vMF)))
        self('v_mov_b32 %s, 0\nv_mov_b32 %s, 0' % (v(vMF + 2), v(vMF + 3)))

    def make_csfrag(self, cs, dst):
        self('v_cvt_pk_bf16_f32 %s, %s, %s\nv_and_b32 %s, 0xffff0000, %s' % (v(dst), v(cs), v(cs), v(dst + 1), v(dst)))
        self('v_sub_f32 %s, %s, %s\nv_cvt_pk_bf16_f32 %s, %s, 0' % (v(dst + 1), v(cs), v(dst + 1), v(dst + 1), v(dst + 1)))
        self('v_mov_b32 %s, 0\nv_mov_b32 %s, 0' % (v(dst + 2), v(dst + 3)))

    def colsum_put(self, c0, c1, xch):
        self('s_lshl_b32 %s, %s, 2\ns_add_u32 %s, %s, %d\nv_lshl_add_u32 %s, %s, 4, %s'
             % (s(t0), s(sW), s(t0), s(t0), xch, v(u0), v(vM), s(t0)))
        self.lgi('ds_write_b32 %s, %s' % (v(u0), v(c0)), 'csw')
        self.lgi('ds_write_b32 %s, %s offset:512' % (v(u0), v(c1)), 'csw')

    def colsum_part(self, base, bufs, acc, xch):
        self('s_mul_i32 %s, %s, 14336\ns_add_u32 %s, %s, %d' % (s(t0), s(sW), s(t0), s(t0), base))
        self('v_add_u32 %s, %s, %s\nv_add_u32 %s, %s, %s' % (v(u0), s(t0), v(vTRa), v(u1), s(t0), v(vTRb)))
        for q in range(7):
            for ct in range(2):
                self.trfrag(bufs[ct] + 4 * q, u0 + ct, q * 2048, 'cs%d' % q)
        for q in range(7):
            self.wlg('cs%d' % q)
            for ct in range(2):
                self.mfsum(acc + 4 * ct, bufs[ct] + 4 * q, q == 0)
        self.colsum_put(acc, acc + 4, xch)

    def colsum_get(self, buf, xch, dst):
        self('v_lshlrev_b32 %s, 4, %s' % (v(u0), v(vM)))
        self('v_add_u32 %s, %d, %s' % (v(u0), xch, v(u0)))
        for ct in range(2):
            self.lgi('ds_read_b128 %s, %s offset:%d' % (v(buf + 4 * ct, 4), v(u0), ct * 512), 'csr')
        self.wlg('csr')
        for ct in range(2):
            b = buf + 4 * ct
            self('v_add_f32 %s, %s, %s\nv_add_f32 %s, %s, %s\nv_add_f32 %s, %s, %s'
                 % (v(b), v(b), v(b + 1), v(b + 2), v(b + 2), v(b + 3), v(b), v(b), v(b + 2)))
            self.make_csfrag(b, dst + 4 * ct)

    def rowtile_dma_addrs(self, stride, vd, sbase):
        self('v_lshrrev_b32 %s, 3, %s\nv_mul_u32_u24 %s, %d, %s' % (v(u0), v(vL), v(u0), stride, v(u0)))
        self('v_lshrrev_b32 %s, 4, %s\nv_xor_b32 %s, %s, %s\nv_and_b32 %s, 7, %s'
             % (v(u1), v(vL), v(u1), v(u1), v(vL), v(u1), v(u1)))
        self('v_lshl_add_u32 %s, %s, 4, %s\nv_xor_b32 %s, 64, %s' % (v(u0), v(u1), v(u0), v(u1), v(u0)))
        self('v_add_u32 %s, %s, %s\nv_add_u32 %s, %s, %s' % (v(vd), sbase, v(u0), v(u1), sbase, v(u1)))
        d = 8 * stride - 1024
        self('v_add_u32 %s, %d, %s\nv_add_u32 %s, %d, %s\nv_add_u32 %s, %d, %s'
             % (v(vd + 1), d, v(u1), v(vd + 2), 2 * d, v(vd), v(vd + 3), 3 * d, v(u1)))

    def rowtile_read_addrs(self, vr, sbase, sxor=None):
        self('v_bfe_u32 %s, %s, 1, 3\nv_xor_b32 %s, %s, %s' % (v(u1), v(vM), v(u1), v(u1), v(vH)))
        self('v_lshlrev_b32 %s, 4, %s\nv_lshl_add_u32 %s, %s, 7, %s' % (v(u1), v(u1), v(u1), v(vM), v(u1)))
        if sxor:
            self('v_xor_b32 %s, %s, %s' % (v(u1), sxor, v(u1)))
        for k in range(4):
            self('v_xor_b32 %s, %d, %s\nv_add_u32 %s, %s, %s' % (v(vr + k), 32 * k, v(u1), v(vr + k), sbase, v(vr + k)))

    def gelu_consts(self):
        self('v_mul_f32 %s, %s, %s\nv_mul_f32 %s, %s, %s\nv_rcp_f32 %s, %s' % (v(u7), s(sK0), v(vRS), v(u8), v(vRS), v(vRS), v(vGI), v(vRS)))
        self('v_mul_f32 %s, %s, %s\nv_mul_f32 %s, %s, %s' % (v(u8), v(u8), v(vRS), v(u8), s(sK1), v(u8)))

    def gelu(self, x, n, tmp, nbg):
        for b in range(0, n, 8):
            for k in range(0, 8, 2):
                self('v_pk_mul_f32 %s, %s, %s' % (v(tmp + k, 2), v(x + b + k, 2), v(x + b + k, 2)))
            for k in range(0, 8, 2):
                self('v_pk_fma_f32 %s, %s, %s, %s op_sel:[0,1,0] op_sel_hi:[1,1,0]' % (v(tmp + k, 2), v(tmp + k, 2), v(u7, 2), v(u7, 2)))
            for k in range(0, 8, 2):
                self('v_pk_mul_f32 %s, %s, %s' % (v(tmp + k, 2), v(tmp + k, 2), v(x + b + k, 2)))
            for k in range(8):
                self('v_exp_f32 %s, %s' % (v(tmp + k), v(tmp + k)))
            for k in range(0, 8, 2):
                self('v_pk_fma_f32 %s, %s, %s, %s op_sel_hi:[1,0,0]' % (v(tmp + k, 2), v(tmp + k, 2), v(vGI, 2), v(vGI, 2)))
            for k in range(8):
                self('v_rcp_f32 %s, %s' % (v(tmp + k), v(tmp + k)))
            self.bg(nbg)
            for k in range(0, 8, 2):
                self('v_pk_mul_f32 %s, %s, %s' % (v(x + b + k, 2), v(x + b + k, 2), v(tmp + k, 2)))

    def scale(self, x, n, r):
        e = r & ~1
        sel = 'op_sel:[0,1] op_sel_hi:[1,1]' if r & 1 else 'op_sel_hi:[1,0]'
        for k in range(0, n, 2):
            self('v_pk_mul_f32 %s, %s, %s %s' % (v(x + k, 2), v(x + k, 2), v(e, 2), sel))

    def pack(self, dst, x, n):
        for k in range(0, n, 2):
            self('v_cvt_pk_bf16_f32 %s, %s, %s' % (v(dst + k // 2), v(x + k), v(x + k + 1)))

    XF, ACC1, GR, SUM, CSA, XD, XR, WD, WT, QD, NONV, SAD, TB = 16, 128, 160, 176, 180, 188, 192, 196, 198, 206, 208, 210, 214
    sROT = 49

    def prologue(self):
        XD, WD = self.XD, self.WD
        self('s_cmp_ge_u32 s2, 256\ns_cbranch_scc1 L_end')
        self.stamp('start', True)
        self('s_load_dwordx16 s[4:19], s[0:1], 0\ns_load_dwordx4 s[20:23], s[0:1], 64\ns_load_dwordx2 s[24:25], s[0:1], 80')
        self('v_lshrrev_b32 v1, 6, v0\nv_and_b32 v0, 63, v0\nv_readfirstlane_b32 %s, v1\ns_mov_b32 %s, s2' % (s(sW), s(sB)))
        if self.o.get('map', 'local') == 'q48':
            self('s_bfe_u32 %s, s2, 0x20001\ns_lshl_b32 %s, %s, 2\ns_lshr_b32 %s, s2, 6\ns_add_u32 %s, %s, %s'
                 % (s(t0), s(t0), s(t0), s(t1), s(sRB), s(t0), s(t1)))
            self('s_bfe_u32 %s, s2, 0x30003\ns_lshl_b32 %s, %s, 1\ns_and_b32 %s, s2, 1\ns_add_u32 %s, %s, %s'
                 % (s(sCB), s(t0), s(sCB), s(t2), s(sI), s(t0), s(t2)))
            self('s_lshl_b32 %s, %s, 1\ns_add_u32 %s, %s, %s' % (s(t1), s(t1), s(t1), s(t1), s(sCB)))
        else:
            self('s_and_b32 %s, s2, 7\ns_lshl_b32 %s, %s, 1\ns_lshr_b32 %s, s2, 7\ns_add_u32 %s, %s, %s'
                 % (s(t0), s(t0), s(t0), s(t1), s(sRB), s(t0), s(t1)))
            self('s_bfe_u32 %s, s2, 0x40003\ns_lshr_b32 %s, %s, 1\ns_mul_i32 %s, %s, 3\ns_add_u32 %s, %s, %s'
                 % (s(sI), s(sCB), s(sI), s(t1), s(t1), s(t1), s(t1), s(sCB)))
        if self.o.get('xrot', 2):
            self('s_and_b32 %s, s2, 7\ns_mul_i32 %s, %s, %d\ns_add_u32 %s, %s, %s' % (s(t0), s(t0), s(t0), self.o.get('xrot', 2), s(t1), s(t1), s(t0)))
        self('s_mul_i32 %s, %s, 37\ns_lshr_b32 %s, %s, 8\ns_mul_i32 %s, %s, 7\ns_sub_u32 %s, %s, %s'
             % (s(t0), s(t1), s(t0), s(t0), s(t0), s(t0), s(self.sROT), s(t1), s(t0)))
        self('s_lshl_b32 %s, %s, 2\ns_add_u32 %s, %s, %s\ns_mul_i32 %s, %s, %d' % (s(sT), s(sRB), s(sT), s(sT), s(sW), s(t2), s(sT), 32 * 896))
        self.rowtile_dma_addrs(896, XD, s(t2))
        self('v_lshrrev_b32 %s, 3, v0\nv_mul_u32_u24 %s, 2688, %s\nv_bfe_u32 %s, v0, 4, 1\nv_lshlrev_b32 %s, 2, %s'
             % (v(u0), v(u0), v(u0), v(u1), v(u1), v(u1)))
        self('v_xor_b32 %s, %s, v0\nv_and_b32 %s, 7, %s\nv_lshl_add_u32 %s, %s, 4, %s' % (v(u1), v(u1), v(u1), v(u1), v(u0), v(u1), v(u0)))
        self('s_mul_i32 %s, %s, 43008\ns_lshl_b32 %s, %s, 7\ns_add_u32 %s, %s, %s\ns_add_u32 %s, %s, 896\ns_lshl_b32 %s, %s, 11'
             % (s(t0), s(sW), s(t1), s(sI), s(t0), s(t0), s(t1), s(t0), s(t0), s(t3), s(sW)))
        self('v_add_u32 %s, %s, %s\nv_add_u32 %s, %d, %s' % (v(WD), s(t0), v(u0), v(WD + 1), 8 * 2688 - 1024, v(WD)))
        self('s_mul_i32 %s, %s, 12288\ns_add_u32 %s, %s, %d' % (s(t4), s(sW), s(t4), s(t4), XB))
        self('s_mov_b32 %s, 0x%x\ns_mov_b32 %s, 0x20000\ns_mov_b32 %s, 0x%x\ns_mov_b32 %s, 0x20000'
             % (s(SA + 2), 2048 * 896, s(SA + 3), s(SB + 2), 448 * 2688, s(SB + 3)))
        self('s_mov_b32 %s, %s' % (s(t5), s(self.sROT)))
        self('s_waitcnt lgkmcnt(0)')
        self('s_mov_b32 %s, %s\ns_mov_b32 %s, %s\ns_mov_b32 %s, %s\ns_mov_b32 %s, %s'
             % (s(SA), s(P_X), s(SA + 1), s(P_X + 1), s(SB), s(P_WQKV), s(SB + 1), s(P_WQKV + 1)))
        self.srd(SC, P_DBG, 256)
        sk = self.lab('non')
        self('s_or_b32 %s, %s, %s\ns_cbranch_scc1 %s' % (s(t0), s(sB), s(sW), sk))
        self('s_memrealtime %s\ns_waitcnt lgkmcnt(0)\ns_lshl_b64 %s, %s, 4\ns_or_b32 %s, %s, 0x80000000' % (s(t6, 2), s(t6, 2), s(t6, 2), s(t7), s(t7)))
        self('v_mov_b32 %s, %s\nv_mov_b32 %s, %s\nv_lshlrev_b32 %s, 3, v0\ns_mov_b64 exec, 255' % (v(u1), s(t6), v(u2), s(t7), v(u0)))
        self('buffer_store_dwordx2 %s, %s, %s, 0 offen sc1\ns_mov_b64 exec, -1\n%s:' % (v(u1, 2), v(u0), s(SC, 4), sk))

    def setup2(self):
        XR, WT, QD = self.XR, self.WT, self.QD
        self.srd(WS, P_WS, WS_BYTES)
        lp = self.lab('pc')
        self('s_getpc_b64 %s\n%s:\ns_sub_u32 %s, %s, %s-%s_kernel\ns_subb_u32 %s, %s, 0' % (s(84, 2), lp, s(84), s(84), lp, NAME, s(85), s(85)))
        self('s_mov_b32 s86, L_code_end-%s_kernel\ns_mov_b32 s87, 0x20000' % NAME)
        self('s_lshr_b32 %s, %s, 3\ns_lshl_b32 %s, %s, 2\ns_add_u32 %s, %s, %s\ns_lshl_b32 %s, %s, 9\nv_lshlrev_b32 %s, 3, v0'
             % (s(t0), s(sB), s(t0), s(t0), s(t0), s(t0), s(sW), s(t0), s(t0), v(u0)))
        self.load(250, u0, 84, s(t0), 0, 'code', n=2, sc1=False, pfx='a')
        self('s_getreg_b32 %s, hwreg(HW_REG_XCC_ID, 0, 4)' % s(sXCC))
        self('s_mov_b32 %s, 0\ns_mov_b32 %s, -1\ns_mov_b32 %s, 0x3f803f80' % (s(sHI), s(sHI + 1), s(sONE2)))
        k0 = -2.0 * math.sqrt(2.0 / math.pi) * math.log2(math.e)
        self('s_mov_b32 %s, %s' % (s(sK0), f32(k0)))
        self('s_mov_b32 %s, %s\ns_mov_b32 %s, %s' % (s(sK1), f32(k0 * 0.044715), s(sK1 + 1), f32(k0 * 0.044715)))
        self('s_lshl_b32 %s, %s, 4\ns_add_u32 %s, %s, %s\ns_lshl_b32 %s, %s, 3' % (s(sFID), s(sRB), s(sFID), s(sFID), s(sI), s(sFID), s(sFID)))
        self('s_and_b32 %s, %s, 1\ns_lshl_b32 %s, %s, 1\ns_lshr_b32 %s, %s, 1' % (s(t1), s(sI), s(t1), s(t1), s(sKH), s(sW)))
        self('s_lshl_b32 %s, %s, 2\ns_add_u32 %s, %s, %s\ns_and_b32 %s, %s, 1\ns_add_u32 %s, %s, %s'
             % (s(sT3), s(sRB), s(sT3), s(sT3), s(t1), s(t0), s(sW), s(sT3), s(sT3), s(t0)))
        self('v_lshrrev_b32 %s, 5, v0\nv_and_b32 %s, 31, v0\nv_lshlrev_b32 %s, 4, v0' % (v(vH), v(vM), v(vL16)))
        self('v_bfe_u32 %s, v0, 2, 2\nv_lshl_add_u32 %s, %s, 3, %s\nv_lshlrev_b32 %s, 7, %s'
             % (v(u0), v(u1), v(vH), v(u0), v(vTRa), v(u1)))
        self('v_bfe_u32 %s, v0, 4, 1\nv_and_b32 %s, 1, v0\nv_lshl_add_u32 %s, %s, 1, %s' % (v(u1), v(u2), v(u1), v(u1), v(u2)))
        self('v_bfe_u32 %s, v0, 3, 1\nv_lshlrev_b32 %s, 2, %s\nv_xor_b32 %s, %s, %s' % (v(u2), v(u2), v(u2), v(u2), v(u2), v(u1)))
        self('v_lshl_add_u32 %s, %s, 4, %s\nv_bfe_u32 %s, v0, 1, 1\nv_lshl_add_u32 %s, %s, 3, %s'
             % (v(vTRa), v(u2), v(vTRa), v(u2), v(vTRa), v(u2), v(vTRa)))
        self('v_xor_b32 %s, 64, %s' % (v(vTRb), v(vTRa)))
        self('v_and_b32 %s, 0x13, %s\nv_bfe_u32 %s, v0, 2, 1\nv_lshl_or_b32 %s, %s, 3, %s'
             % (v(vPM), v(vM), v(u0), v(vPM), v(u0), v(vPM)))
        self('v_bfe_u32 %s, v0, 3, 1\nv_lshl_or_b32 %s, %s, 2, %s' % (v(u1), v(vPM), v(u1), v(vPM)))
        self('v_bfe_u32 %s, v0, 4, 1\nv_cmp_eq_u32 vcc, %s, %s\nv_mov_b32 %s, %s\nv_cndmask_b32 %s, 0, %s, vcc'
             % (v(u1), v(u0), v(u1), v(u1), s(sONE2), v(u1), v(u1)))
        for k in range(4):
            self('v_accvgpr_write_b32 a%d, %s' % (252 + k, v(u1)))
        self('s_lshl_b32 %s, %s, 5' % (s(t1), s(sW)))
        self.rowtile_read_addrs(XR, s(t4), s(t1))
        for k in range(4):
            self('s_xor_b32 %s, %s, %d\nv_or_b32 %s, %s, %s\nv_or_b32 %s, %s, %s'
                 % (s(t0), s(t3), k * 2048, v(WT + 2 * k), s(t0), v(vTRa), v(WT + 2 * k + 1), s(t0), v(vTRb)))
        self('s_mul_i32 %s, %s, 56\ns_and_b32 %s, %s, 1\ns_lshl_b32 %s, %s, 3\ns_sub_u32 %s, %s, %s'
             % (s(t0), s(sI), s(t1), s(sI), s(t1), s(t1), s(t0), s(t0), s(t1)))
        self('v_lshrrev_b32 %s, 2, v0\nv_mul_u32_u24 %s, 2688, %s\nv_and_b32 %s, 3, v0\nv_lshl_add_u32 %s, %s, 4, %s'
             % (v(u0), v(u0), v(u0), v(u1), v(QD), v(u1), v(u0)))
        self('s_mul_i32 %s, %s, 43008\ns_add_u32 %s, %s, %s\nv_add_u32 %s, %s, %s\ns_lshl_b32 s82, %s, 10'
             % (s(t1), s(sW), s(t0), s(t0), s(t1), v(QD), s(t0), v(QD), s(sW)))

    def p1_variant(self, kind):
        XF, ACC, GR, SUM, CSA, XD, XR, WD, WT, QD, NONV, SAD, TB = (
            self.XF, self.ACC1, self.GR, self.SUM, self.CSA, self.XD, self.XR, self.WD, self.WT, self.QD,
            self.NONV, self.SAD, self.TB)
        kv = kind != 'N'

        def wreg(j, k, ct):
            return 32 * (j & 1) + 8 * k + 4 * ct

        def step(reg):
            self('s_add_u32 %s, %s, 1\ns_cmp_eq_u32 %s, 7\ns_cselect_b32 %s, 0, %s' % (s(reg), s(reg), s(reg), s(reg), s(reg)))

        def block_ops(j):
            ops = []
            if kv:
                def w_():
                    self('s_add_u32 m0, %s, %d\ns_mul_i32 %s, %s, %d' % (s(t3), j * 8192, s(t0), s(t5), 64 * 2688))
                    self.dma(WD, SB, s(t0), 0, 'B%d' % j)
                ops += [w_, lambda: self.dma(WD + 1, SB, s(t0), 1024, 'B%d' % j)]

            def x_():
                self('s_add_u32 m0, %s, %d\ns_lshl_b32 %s, %s, 7' % (s(t4), (j % 3) * 4096, s(t0), s(t5)))
                self.dma(XD, SA, s(t0), 0, 'B%d' % j)
            ops.append(x_)
            for rg in range(1, 4):
                ops.append(lambda rg=rg: self.dma(XD + rg, SA, s(t0), rg * 1024, 'B%d' % j))
            ops.append(lambda: step(t5))
            return ops

        def wq_op(j):
            self('s_add_u32 m0, s82, %d\ns_mul_i32 %s, %s, %d' % (WQB + j * 4096, s(t0), s(t5), 64 * 2688))
            self.dma(QD, SB, s(t0), 0, 'WQ')
            step(t5)
        if kind == 'C':
            self.q = block_ops(0) + block_ops(1)
            self.bg(99)
            self.stamp('p1dma')
            keep = list(self.vm)
            self.setup2()
            self.vm = keep + ['code']
            return
        if kind == 'K':
            self('s_lshl_b32 %s, %s, 3\nv_add_u32 %s, %s, %s\ns_mov_b32 %s, 225792\ns_mul_i32 %s, %s, 3584\ns_add_u32 %s, %s, %d'
                 % (s(t0), s(sI), v(u0), s(t0), v(vH), s(t1), s(t2), s(sT), s(t2), s(t2), KF))
            for k in range(4):
                self('v_add_u32 %s, %d, %s\nv_mul_u32_u24 %s, 37, %s\nv_lshrrev_b32 %s, 8, %s'
                     % (v(u1), 2 * k, v(u0), v(u2), v(u1), v(u2), v(u2)))
                self('v_mul_lo_u32 %s, %s, %s\nv_lshl_add_u32 %s, %s, 9, %s\nv_lshl_add_u32 %s, %s, 4, %s'
                     % (v(u2), v(u2), s(t1), v(u2), v(u1), v(u2), v(SAD + k), v(vM), v(u2)))
        elif kind == 'V':
            self('s_sub_u32 %s, %s, 7\ns_lshl_b32 %s, %s, 6\ns_mov_b32 %s, %d\ns_mul_i32 %s, %s, 1792\ns_add_u32 %s, %s, %d'
                 % (s(t0), s(sI), s(t0), s(t0), s(t1), 114688 - 448, s(t2), s(sT), s(t2), s(t2), VF))
            for ct in range(2):
                self('v_add_u32 %s, %s, %s\nv_add_u32 %s, %d, %s\nv_mul_u32_u24 %s, 2341, %s\nv_lshrrev_b32 %s, 16, %s'
                     % (v(u2), s(t0), v(vPM), v(u2), 32 * ct, v(u2), v(u3), v(u2), v(u3), v(u3)))
                self('v_mul_lo_u32 %s, %s, %s\nv_lshl_add_u32 %s, %s, 4, %s\nv_mul_u32_u24 %s, 448, %s\nv_add_u32 %s, %s, %s'
                     % (v(u3), v(u3), s(t1), v(u3), v(u2), v(u3), v(u2), v(vH), v(SAD + ct), v(u3), v(u2)))
            self('s_lshl_b32 %s, %s, 7\ns_add_u32 %s, %s, %d' % (s(t0), s(sW), s(t0), s(t0), RSX))
            self('v_lshl_add_u32 %s, %s, 2, %s\nv_lshl_add_u32 %s, %s, 4, %s' % (v(SAD + 2), v(vM), s(t0), v(SAD + 3), v(vH), s(t0)))
        XS, XG = TB, TB + 8
        xst = kv and self.o.get('xst', 0)
        if xst:
            self('s_lshl_b32 s88, %s, 13\ns_add_u32 s88, s88, %d\ns_lshl_b32 %s, %s, 9\ns_add_u32 s89, s88, %s'
                 % (s(sT), XST, s(t6), s(sI), s(t6)))
            self('s_and_b32 %s, %s, 512\ns_add_u32 s88, s88, %s\nv_lshlrev_b32 %s, 4, %s' % (s(t6), s(t6), s(t6), v(XS + 4), v(vM)))
            self('v_lshl_add_u32 %s, %s, 12, %s\nv_mul_u32_u24 %s, 3072, %s\nv_add_u32 %s, %s, %s'
                 % (v(XG), v(vH), v(XS + 4), v(XG + 1), v(vH), v(XG + 1), v(XG + 1), v(XS + 4)))
        self.stamp('p1iss')

        def stat_mf(j, k):
            x_ = XF + 16 * j + 4 * k
            first = j == 0 and k == 0
            return [lambda: self.mfma(GR, x_, x_, None if first else GR), lambda: self.mfsum(SUM, x_, first)]

        def main_mf(j, k):
            x_ = XF + 16 * j + 4 * k
            out = []
            for ct in range(2):
                def f(ct=ct):
                    c = None if j == 0 and k == 0 else ACC + 16 * ct
                    if ct == 0:
                        self.wlg('w%d_%d' % (j, k))
                    if kind == 'K':
                        self.mfma(ACC + 16 * ct, wreg(j, k, ct), x_, c, pa='a')
                    else:
                        self.mfma(ACC + 16 * ct, x_, wreg(j, k, ct), c, pb='a')
                out.append(f)
            return out

        def cs_mf(j):
            return [lambda ct=ct: self.mfsum(CSA + 4 * ct, wreg(j, 0, ct), j == 0, pb='a') for ct in range(2)]

        def side_ops(j):
            def head():
                self.wvm('B%d' % j)
                if kv:
                    self('s_barrier')
            side = [head]
            for k in range(4):
                side.append(lambda k=k: self.lgi('ds_read_b128 %s, %s offset:%d' % (
                    v(XF + 16 * j + 4 * k, 4), v(XR + k), (j % 3) * 4096), 'xf%d' % j))
            dm = block_ops(j + 2) if j + 2 < 7 else [lambda q=q: wq_op(q) for q in (range(4) if j == 5 else range(4, 7))]
            if j == (1 if xst else 3):
                def non():
                    self('v_mov_b32 %s, 0' % v(NONV))
                    self.load(NONV, NONV, SC, '0', 0, 'nonl', n=2)
                dm.insert(0, non)
            if xst and j == 6:
                dm = [lambda q=q: self.load(GR + 4 * q, XG + (q == 3), WS, 's88', q * 1024, 'xg') for q in range(4)] + dm
            if kv:
                for k in range(4):
                    for ct in range(2):
                        def rd(k=k, ct=ct):
                            w_ = wreg(j, k, ct)
                            for e in range(2):
                                self.lgi('ds_read_b64_tr_b16 a[%d:%d], %s offset:%d' % (
                                    w_ + 2 * e, w_ + 2 * e + 1, v(WT + 2 * k + ct), j * 8192 + 512 * e), 'w%d_%d' % (j, k))
                        side.append(rd)
                        if dm:
                            side.append(dm.pop(0))
            return side + dm
        self.q = side_ops(0)
        self.bg(99)
        for j in range(7):
            if j in (0, 3, 6):
                self.stamp('p1x%d' % j)
            self.wlg('xf%d' % j)
            self.q = side_ops(j + 1) if j < 6 else []
            seq = []
            if xst:
                for k in range(4):
                    st = stat_mf(j, k) if j == 0 else []
                    seq += st[:1] + main_mf(j, k) + st[1:]
                    if k == 0:
                        seq += cs_mf(j)
                if j == 1:
                    self.fill = self.cap(lambda: (self.diag(GR, XS + 1), self('v_mov_b32 %s, %s' % (v(XS), v(SUM)))))
                if j == 3:
                    self.drip(99)
                    self.wvm('nonl')
                    self.retry('v_cmp_eq_u32 vcc, 0, %s' % v(NONV + 1),
                               'v_mov_b32 %s, 0\nbuffer_load_dwordx2 %s, %s, %s, 0 offen sc1' % (v(NONV), v(NONV, 2), v(NONV), s(SC, 4)))
                    self('v_readfirstlane_b32 %s, %s\nv_readfirstlane_b32 %s, %s' % (s(sNON), v(NONV), s(sNON + 1), v(NONV + 1)))
                    self('v_mov_b32 %s, %s\nv_mov_b32 %s, %s\ns_not_b64 exec, %s' % (v(XS + 2), v(NONV), v(XS + 3), v(NONV + 1), s(sHI, 2)))
                    self.store(XS, XS + 4, WS, 's89', 0, 'xs')
                    self('s_mov_b64 exec, -1')
                if j == 6:
                    for f in seq[:6]:
                        f()
                    seq = seq[6:]
                    self.colsum_put(CSA, CSA + 4, MISC)
                    self.wvm('xg')
                    test = ''
                    for q in range(4):
                        test += 'v_cmp_ne_u64 %s, %s, %s\n' % (('vcc', s(t0, 2), 's[90:91]', s(t6, 2))[q], s(sNON, 2), v(GR + 4 * q + 2, 2))
                    test += 's_or_b64 %s, %s, s[90:91]\ns_or_b64 vcc, vcc, %s\ns_or_b64 vcc, vcc, %s' % (s(t0, 2), s(t0, 2), s(t6, 2), s(t0, 2))
                    self.retry(test, '\n'.join('buffer_load_dwordx4 %s, %s, %s, s88 offen offset:%d sc1'
                                               % (v(GR + 4 * q, 4), v(XG + (q == 3)), s(WS, 4), q * 1024) for q in range(4)))

                    def fin():
                        for e in range(2):
                            self('v_cndmask_b32 %s, %s, 0, %s\nv_add_f32 %s, %s, %s\nv_add_f32 %s, %s, %s\nv_add_f32 %s, %s, %s'
                                 % (v(GR + 12 + e), v(GR + 12 + e), s(sHI, 2), v(GR + e), v(GR + e), v(GR + 4 + e),
                                    v(GR + 8 + e), v(GR + 8 + e), v(GR + 12 + e), v(GR + e), v(GR + e), v(GR + 8 + e)))
                        self.xhalf_add2(GR, GR + 2)
                        self.mean_rstd(GR, GR + 1, 448, u3, vRS)
                        self.make_meanfrag(u3, u4)
                    self.fill = self.cap(fin)
                for g, f in enumerate(seq):
                    f()
                    if g >= 1 or j == 6:
                        self.bg(3 if j else 2)
                        self.drip(6 if j == 6 else 2)
                self.bg(99)
                if j == 6:
                    self.drip(99)
            elif j < 6:
                for k in range(4):
                    st = stat_mf(j, k)
                    seq += ([st[0]] + main_mf(j, k) + [st[1]]) if kv else st
                    if kv and k == 0:
                        seq += cs_mf(j)
                for g, f in enumerate(seq):
                    f()
                    if g >= 1:
                        self.bg(2)
                self.bg(99)
            else:
                for k in range(4):
                    for f in stat_mf(j, k):
                        f()
                if kv:
                    self.wlg('w6_0')
                    for f in cs_mf(j):
                        f()
                hold, self.a = self.a, Asm()
                self.diag(GR, u2)
                self.mean_rstd(SUM, u2, 448, u3, vRS)
                self.make_meanfrag(u3, u4)
                tail = [x.text for x in self.a.L]
                self.a = hold
                if kv:
                    mm = sum((main_mf(j, k) for k in range(4)), [])
                    mm[0]()
                    mm[1]()
                    self.colsum_put(CSA, CSA + 4, MISC)
                    for g in range(2, 8):
                        mm[g]()
                        self('\n'.join(tail[6 * (g - 2):6 * (g - 2) + 6]))
                    self('\n'.join(tail[36:]))
                else:
                    self('\n'.join(tail))
        self.stamp('p1mm')
        if not kv:
            self('s_lshl_b32 %s, %s, 1\ns_add_u32 %s, %s, %s\ns_sub_u32 %s, %s, 14\ns_lshl_b32 %s, %s, 2\ns_add_u32 %s, %s, %s'
                 % (s(t0), s(sRB), s(t0), s(t0), s(sI), s(t0), s(t0), s(t0), s(t0), s(t0), s(t0), s(sW)))
            self.srd(SA, P_WO, 448 * 896)
            self('s_lshl_b32 %s, %s, 12' % (s(t1), s(t0)))
            for q in range(4):
                self.load(64 + 4 * q, vL16, SA, s(t1), q * 1024, 'pf', sc1=False, pfx='a')
            self.srd(SA, P_WIN, 448 * 3584)
            self('s_mul_i32 %s, %s, 13312' % (s(t1), s(t0)))
            for q in range(13):
                if q and q % 4 == 0:
                    self('s_add_u32 %s, %s, 4096' % (s(t1), s(t1)))
                self.load(80 + 4 * q, vL16, SA, s(t1), (q % 4) * 1024, 'pf', sc1=False, pfx='a')
            return
        if kind == 'V':
            self.lgi('ds_write_b32 %s, %s' % (v(SAD + 2), v(vRS)), 'rs')
        self.wlg()
        self('s_barrier')
        if kind == 'V':
            for g in range(4):
                self.lgi('ds_read_b128 %s, %s offset:%d' % (v(TB + 4 * g, 4), v(SAD + 3), 32 * g), 'rs')
        self.colsum_get(GR, MISC, vCS2)
        for ct in range(2):
            if kind == 'K':
                self.mfma(ACC + 16 * ct, vCS2 + 4 * ct, vMF, ACC + 16 * ct)
            else:
                self.mfma(ACC + 16 * ct, vMF, vCS2 + 4 * ct, ACC + 16 * ct)
        for c in range(4):
            if kind == 'K':
                self.scale(ACC + 8 * c, 8, vRS)
            else:
                for k in range(0, 8, 2):
                    r = ACC + 8 * c + k
                    self('v_pk_mul_f32 %s, %s, %s' % (v(r, 2), v(r, 2), v(TB + 8 * (c & 1) + k, 2)))
            self.pack(GR + 4 * c, ACC + 8 * c, 8)
            if kind == 'K':
                self.store(GR + 4 * c, SAD + c, WS, s(t2), 0, 'st')
            else:
                self.store(GR + 4 * c, SAD + (c >> 1), WS, s(t2), (c & 1) * 896, 'st')

    def diag(self, g, dst):
        masks = (0xaaaaaaaa, 0xcccccccc, 0xff00ff00, 0xffff0000)
        n = 16
        for m in masks:
            self('s_mov_b32 vcc_lo, 0x%x\ns_mov_b32 vcc_hi, 0x%x' % (m, m))
            n //= 2
            for k in range(n):
                self('v_cndmask_b32 %s, %s, %s, vcc' % (v(g + k), v(g + 2 * k), v(g + 2 * k + 1)))
        self('v_mov_b32 %s, %s\ns_mov_b32 vcc_lo, 0xf0f0f0f0\ns_mov_b32 vcc_hi, 0xf0f0f0f0\nv_permlane32_swap_b32 %s, %s'
             % (v(g + 1), v(g), v(g), v(g + 1)))
        self('v_cndmask_b32 %s, %s, %s, vcc' % (v(dst), v(g), v(g + 1)))

    def p1(self):
        XF, ACC, GR, SUM, WT, NONV, TB = self.XF, self.ACC1, self.GR, self.SUM, self.WT, self.NONV, self.TB
        self.p1_variant('C')
        vm0 = list(self.vm)
        self('s_cmp_ge_u32 %s, 14\ns_cbranch_scc1 L_p1_N\ns_cmp_ge_u32 %s, 7\ns_cbranch_scc1 L_p1_V' % (s(sI), s(sI)))
        for kind in 'KVN':
            self('L_p1_%s:' % kind)
            self.vm, self.lg = list(vm0), []
            self.p1_variant(kind)
            if kind != 'N':
                self('s_branch L_p1_join')
        self('L_p1_join:')
        self.stamp('p1st')
        EC = self.o.get('ec', 5)
        self.vm = ['any']
        if EC:
            self.cold_setup()
            self.bg(EC)
            rest = self.q
        lp = self.lab('tag')
        self('s_mov_b32 %s, 0\ns_lshl_b32 %s, %s, 3\ns_add_u32 %s, %s, %d\ns_waitcnt vmcnt(%d)\n%s:' % (s(sCNT), s(t5), s(sFID), s(t5), s(t5), FLAG1, EC, lp))
        self('v_readfirstlane_b32 %s, %s\nv_readfirstlane_b32 %s, %s' % (s(sNON), v(NONV), s(sNON + 1), v(NONV + 1)))
        self('s_cmp_lg_u32 %s, 0\ns_cbranch_scc1 %s_d' % (s(sNON + 1), lp))
        self('v_mov_b32 %s, 0\nbuffer_load_dwordx2 %s, %s, %s, 0 offen sc1' % (v(u0), v(NONV, 2), v(u0), s(SC, 4)))
        self('s_add_u32 %s, %s, 1\ns_waitcnt vmcnt(0)\ns_cmp_lt_u32 %s, %d\ns_cbranch_scc1 %s\n%s_d:'
             % (s(sCNT), s(sCNT), s(sCNT), POLL_MAX, lp, lp))
        self.vm, self.lg = self.vm[1:], []
        self.publish(s(t5), xcc=True, drain=False)
        self.stamp('p1pub')
        self('s_lshl_b32 %s, %s, 10\ns_add_u32 %s, %s, %d' % (s(t0), s(sB), s(t0), s(t0), ONES))
        for k in range(4):
            self('v_mov_b32 %s, %s' % (v(TB + k), s(sONE2)))
        self.store(TB, vL16, WS, s(t0), 0, 'ones')
        self('v_bfe_u32 %s, v0, 2, 2\nv_lshl_add_u32 %s, %s, 3, %s\nv_lshlrev_b32 %s, 6, %s' % (v(u0), v(u0), v(vH), v(u0), v(u0), v(u0)))
        self('v_bfe_u32 %s, v0, 4, 1\nv_lshl_add_u32 %s, %s, 5, %s\nv_and_b32 %s, 1, v0\nv_lshl_add_u32 %s, %s, 4, %s'
             % (v(u1), v(u0), v(u1), v(u0), v(u1), v(u0), v(u1), v(u0)))
        self('v_bfe_u32 %s, v0, 1, 1\nv_lshl_add_u32 %s, %s, 3, %s' % (v(u1), v(u0), v(u1), v(u0)))
        for k in range(4):
            self('s_xor_b32 %s, %s, %d\ns_lshl_b32 %s, %s, 10\ns_add_u32 %s, %s, %d\nv_add_u32 %s, %s, %s'
                 % (s(t0), s(sW), k, s(t0), s(t0), s(t0), s(t0), WQB, v(WT + k), s(t0), v(u0)))

        def qrd(j, k):
            for e in range(2):
                r = 16 * (j & 1) + 4 * k + 2 * e
                self.lgi('ds_read_b64_tr_b16 a[%d:%d], %s offset:%d' % (r, r + 1, v(WT + k), j * 4096 + 256 * e), 'q%d_%d' % (j, k))
        for k in range(4):
            qrd(0, k)
        if EC:
            self.q = rest
        else:
            self.cold_setup()
        for j in range(7):
            for k in range(4):
                self.wlg('q%d_%d' % (j, k))
                r = 16 * (j & 1) + 4 * k
                self.mfma(ACC, r, XF + 16 * j + 4 * k, None if j + k == 0 else ACC, pa='a')
                if j < 6:
                    qrd(j + 1, k)
                self.mfsum(SUM, r, j + k == 0, pb='a')
                if k & 1 or j < 2:
                    self.bg(1)
        assert not self.q
        self('v_mul_f32 %s, %s, %s' % (v(u3), f32(math.log2(math.e) / math.sqrt(28.0)), v(vRS)))
        self('s_bitcmp1_b32 %s, 0\ns_cselect_b64 %s, -1, 0' % (s(sI), s(t0, 2)))
        self('s_andn2_b64 %s, %s, %s\ns_andn2_b64 %s, %s, %s' % (s(t2, 2), s(t0, 2), s(sHI, 2), s(t4, 2), s(sHI, 2), s(t0, 2)))
        self('s_lshl_b32 %s, %s, 11\ns_add_u32 %s, %s, %d\nv_add_u32 %s, %s, %s' % (s(t0), s(sW), s(t0), s(t0), MISC, v(u0), s(t0), v(vL16)))
        self.make_csfrag(SUM, vCS2)
        self.mfma(ACC, vCS2, vMF, ACC)
        self.scale(ACC, 16, u3)
        self.pack(GR, ACC, 16)
        for k in range(2):
            self('v_cndmask_b32 %s, %s, 0, %s\nv_cndmask_b32 %s, %s, 0, %s'
                 % (v(GR + k), v(GR + k), s(t2, 2), v(GR + 6 + k), v(GR + 6 + k), s(t4, 2)))
        self.lgi('ds_write_b128 %s, %s' % (v(u0), v(GR, 4)), 'qw')
        self.lgi('ds_write_b128 %s, %s offset:1024' % (v(u0), v(GR + 4, 4)), 'qw')
        self.p2_setup()
        self.wlg()
        self.vm_s1 = list(self.vm)
        self.stamp('q')
        WF = ACC
        sk, lp = self.lab('s1skip'), self.lab('s1')
        self('s_cmp_eq_u32 %s, 0\ns_cbranch_scc0 %s\ns_mov_b32 %s, 0\nv_lshlrev_b32 %s, 6, v0\n%s:' % (s(sW), sk, s(sCNT), v(WF + 8), lp))
        for k in range(4):
            self('s_mov_b32 %s, %d\nbuffer_load_dwordx2 %s, %s, %s, %s offen sc1' % (s(t0), FLAG1 + 4096 * k, v(WF + 2 * k, 2), v(WF + 8), s(WS, 4), s(t0)))
        self('s_add_u32 %s, %s, 1\ns_waitcnt vmcnt(0)' % (s(sCNT), s(sCNT)))
        for k in range(4):
            self('v_and_b32 %s, -16, %s' % (v(WF + 2 * k), v(WF + 2 * k)))
        for k in range(4):
            self('v_cmp_ne_u64 %s, %s, %s' % (('vcc', s(t0, 2), s(t2, 2), s(t6, 2))[k], s(sNON, 2), v(WF + 2 * k, 2)))
        self('s_or_b64 %s, %s, vcc\ns_or_b64 %s, %s, %s\ns_or_b64 %s, %s, %s'
             % (s(t0, 2), s(t0, 2), s(t2, 2), s(t2, 2), s(t6, 2), s(t0, 2), s(t0, 2), s(t2, 2)))
        self('s_cbranch_scc0 %s\ns_cmp_lt_u32 %s, %d\ns_cbranch_scc1 %s\n%s:\ns_barrier' % (sk, s(sCNT), POLL_MAX, lp, sk))
        self.stamp('s1')

    Q, O, S, P, KV, VOV, VST = 16, 48, 112, 144, 152, 217, 218

    def kv_addr(self, wave_split):
        VOV, VST = self.VOV, self.VST
        self('s_lshr_b32 %s, %s, 1\ns_mul_i32 %s, %s, 229376\ns_and_b32 %s, %s, 1\ns_mul_i32 %s, %s, 1536\ns_add_u32 %s, %s, %s'
             % (s(t0), s(sI), s(t4), s(t0), s(t0), s(sI), s(t0), s(t0), s(t4), s(t4), s(t0)))
        self('s_add_u32 %s, %s, %d\ns_mul_i32 %s, %s, 114688\ns_add_u32 %s, %s, %d' % (s(t4), s(t4), KF, s(t1), s(sI), s(t1), s(t1), VF))
        if wave_split:
            self('s_mul_i32 %s, %s, %d\ns_add_u32 %s, %s, %s\ns_mul_i32 %s, %s, %d\ns_add_u32 %s, %s, %s'
                 % (s(t0), s(sW), 16 * 3584, s(t4), s(t4), s(t0), s(t0), s(sW), 16 * 1792, s(t1), s(t1), s(t0)))
        self('v_mul_u32_u24 %s, 448, %s\nv_lshl_add_u32 %s, %s, 4, %s\nv_add_u32 %s, %s, %s'
             % (v(u0), v(vH), v(u0), v(vPM), v(u0), v(u0), s(t1), v(u0)))
        self('s_lshl_b32 %s, %s, 10\ns_add_u32 %s, %s, %d' % (s(t0), s(sB), s(t0), s(t0), ONES))
        self('v_mov_b32 %s, %s\nv_cmp_lt_u32 vcc, 28, %s\nv_mov_b32 %s, 0x7ff00000\nv_cndmask_b32 %s, %s, %s, vcc'
             % (v(u1), s(t0), v(vM), v(u2), v(u1), v(u1), v(u2)))
        self('v_mov_b32 %s, 1792\nv_cmp_gt_u32 vcc, 28, %s' % (v(u2), v(vM)))
        self('v_cndmask_b32 %s, %s, %s, vcc\nv_cndmask_b32 %s, 0, %s, vcc' % (v(VOV), v(u1), v(u0), v(VST), v(u2)))

    RW, QA, PD, PR = 226, 230, 234, 238
    SX, SBS, SSP, SWO = 84, 88, 92, 96

    def unit_addrs(self, pd, pr, sbase, stride):
        self('s_lshl_b32 %s, %s, 17\ns_mul_i32 %s, %s, %d\ns_add_u32 %s, %s, %d'
             % (s(t0), s(sT), sbase, s(sW), stride[1], sbase, sbase, stride[0]))
        self.rowtile_dma_addrs(4096, pd, s(t0))
        self.rowtile_read_addrs(pr, sbase)

    def unit_ops(self, u, slot, pd, sbase):
        def first():
            self('s_add_u32 m0, %s, %d\ns_add_u32 s101, s83, %d\ns_and_b32 s101, s101, 0xf80' % (sbase, slot * 4096, u * 128))
            self.dma(pd, self.SSP, 's101', 0, 'U%d' % u)
        return [first] + [lambda rg=rg: self.dma(pd + rg, self.SSP, 's101', rg * 1024, 'U%d' % u) for rg in range(1, 4)]

    def unit_read(self, u, slot, pr):
        for k in range(4):
            self.lgi('ds_read_b128 a[%d:%d], %s offset:%d' % (16 * u + 4 * k, 16 * u + 4 * k + 3, v(pr + k), slot * 4096), 'ur')

    def cold_setup(self):
        SX, SBS, SSP, SWO = self.SX, self.SBS, self.SSP, self.SWO
        self.srd(SX, P_X, 2048 * 896)
        self.srd(SBS, P_BSP, 4096)
        self.srd(SSP, P_WSP, 2048 * 4096)
        self.srd(SWO, P_WOUT, 896 * 896)
        self('s_mul_i32 %s, %s, %d\ns_lshl_b32 %s, %s, 7\ns_add_u32 %s, %s, %s\ns_lshl_b32 %s, %s, 6\ns_add_u32 %s, %s, %s'
             % (s(t0), s(sT3), 32 * 896, s(t1), s(sCB), s(t0), s(t0), s(t1), s(t1), s(sKH), s(t0), s(t0), s(t1)))
        self('v_mul_u32_u24 v224, 896, %s\nv_lshl_add_u32 v224, %s, 4, v224\nv_add_u32 v224, %s, v224' % (v(vM), v(vH), s(t0)))
        self('s_lshl_b32 %s, %s, 6\nv_lshl_add_u32 %s, %s, 1, %s' % (s(t0), s(sT), v(vBSP), v(vM), s(t0)))
        self('s_lshl_b32 %s, %s, 2\ns_add_u32 %s, %s, %s\ns_lshl_b32 %s, %s, 13\ns_lshl_b32 %s, %s, 19\ns_add_u32 %s, %s, %s\nv_add_u32 v225, %s, %s'
             % (s(t0), s(sI), s(t0), s(t0), s(sW), s(t0), s(t0), s(t1), s(sRB), s(t0), s(t0), s(t1), s(t0), v(vL16)))
        self('s_lshl_b32 %s, %s, 2\ns_add_u32 %s, %s, %s\ns_lshl_b32 s82, %s, 10\ns_lshl_b32 s83, %s, 8\ns_movk_i32 s101, 4096'
             % (s(t0), s(sB), s(t0), s(t0), s(sW), s(t0), s(sI)))
        self.q = [lambda q=q: self.load(216 + 4 * q, 225, SSP, 's101' if q >= 4 else '0', (q % 4) * 1024, 'pf', sc1=False, pfx='a')
                  for q in range(8)]
        self.q += [lambda: self.load(248, vL16, SWO, 's82', 0, 'pf', sc1=False, pfx='a'),
                   lambda: self.load(vHK, 224, SX, '0', 0, 'pf', sc1=False),
                   lambda: self.load(vHK + 4, 224, SX, '0', 32, 'pf', sc1=False),
                   lambda: self.vmi('buffer_load_ushort %s, %s, %s, 0 offen' % (v(vBSP), v(vBSP), s(SBS, 4)), 'pf')]
        self('s_lshl_b32 %s, %s, 15\ns_lshl_b32 %s, %s, 11\ns_add_u32 %s, %s, %s\ns_add_u32 s73, %s, %d'
             % (s(t0), s(sT), s(t1), s(sI), s(t2), s(t0), s(t1), s(t2), OF))
        self('s_lshl_b32 %s, %s, 13\ns_lshl_b32 %s, %s, 9\ns_add_u32 %s, %s, %s\ns_add_u32 %s, %s, %d\ns_lshl_b32 %s, %s, 7'
             % (s(t0), s(sT), s(t1), s(sI), s(t0), s(t0), s(t1), s(t0), s(t0), ZST - 512, s(t1), s(sRB)))
        self('v_and_b32 v222, 3, v0\nv_lshlrev_b32 v222, 12, v222\nv_add_u32 v222, %d, v222\nv_add_u32 v222, %s, v222' % (FLAG2, s(t1)))
        self('v_add_u32 v223, %s, %s\nv_cndmask_b32 v222, v222, v223, %s' % (s(t0), v(vL16), s(sHI, 2)))
        self.q.insert(0, lambda: self.load(208, 222, WS, '0', 0, 'pf', n=1, pfx='a'))

    def p2_setup(self):
        RW = self.RW
        self.kv_addr(True)
        self.srd(SA, P_WO, 448 * 896)
        self.srd(SB, P_WIN, 448 * 3584)
        self('s_lshl_b32 %s, %s, 7' % (s(t2), s(sCB)))
        wo = self.image_ops(220, SA, 896, s(t2), 0, 14, 'pf')
        self('s_lshl_b32 %s, %s, 7\ns_add_u32 %s, %s, 1792' % (s(t2), s(sI), s(t2), s(t2)))
        win = self.image_ops(222, SB, 3584, s(t2), WIN2, 14, 'pf')
        for j in range(4):
            self('s_add_u32 %s, %s, %d\ns_and_b32 %s, %s, 3\ns_mul_i32 %s, %s, 12288\ns_add_u32 %s, %s, %d\nv_add_u32 %s, %s, %s'
                 % (s(t0), s(sW), j + 1, s(t0), s(t0), s(t1), s(t0), s(t1), s(t1), RED + 4096 * (j % 3), v(RW + j), s(t1), v(vL16)))
            self('s_lshl_b32 %s, %s, 11\ns_add_u32 %s, %s, %d\nv_add_u32 %s, %s, %s' % (s(t0), s(t0), s(t0), s(t0), MISC, v(self.QA + j), s(t0), v(vL16)))
        self.unit_addrs(self.PD, self.PR, 's100', (RED, 12288))
        self('s_lshl_b32 %s, %s, 10\ns_add_u32 %s, %s, %d\nv_and_b32 v219, 15, v0\nv_lshl_add_u32 v219, v219, 6, %s'
             % (s(t0), s(sRB), s(t0), s(t0), FLAG1, s(t0)))
        self.att_img = [wo[k:k + 2] for k in range(0, 14, 2)] + [win[k:k + 2] for k in range(0, 14, 2)]

    def p2(self):
        Q, O, S, P, KV, VOV, VST, RW = self.Q, self.O, self.S, self.P, self.KV, self.VOV, self.VST, self.RW
        self.vm, self.lg = self.vm_s1, []
        self.wvm('ones')

        def kvload(it):
            b = KV + 16 * (it % 4)
            self.load(b, vL16, WS, s(t4), 0, 'K%d' % it)
            self.load(b + 4, vL16, WS, s(t4), 1024, 'K%d' % it)
            self.load(b + 8, VOV, WS, '0', 0, 'V%d' % it)
            self.load(b + 12, VOV, WS, '0', 896, 'V%d' % it)
            if it < 15:
                self('s_add_u32 %s, %s, 3584\nv_add_u32 %s, %s, %s' % (s(t4), s(t4), v(VOV), v(VST), v(VOV)))
        kvload(0)
        for j in range(4):
            self.lgi('ds_read_b128 %s, %s' % (v(Q + 8 * j, 4), v(self.QA + j)), 'q')
            self.lgi('ds_read_b128 %s, %s offset:1024' % (v(Q + 8 * j + 4, 4), v(self.QA + j)), 'q')
        kvload(1)
        kvload(2)
        self.wlg()
        self('s_barrier')
        wait_kv = self.wvm
        NA = self.NA
        self.stamp('a_iss')
        wait_kv('K0')
        self.stamp('a_k0')
        self.mfma(S, KV, Q, None)
        self.mfma(S, KV + 4, Q + 4, S)
        for n in range(64):
            it, j = divmod(n, 4)
            Sc, Sn = S + 16 * (n & 1), S + 16 * ((n + 1) & 1)
            ex = ['v_exp_f32 %s, %s' % (v(Sc + k), v(Sc + k)) for k in range(16)]
            pk = ['v_cvt_pk_bf16_f32 %s, %s, %s' % (v(P + k), v(Sc + 2 * k), v(Sc + 2 * k + 1)) for k in range(8)]
            nit, nj = divmod(n + 1, 4)
            pit, pj = divmod(n - 1, 4)
            kb, vb = KV + 16 * (nit % 4), KV + 16 * (pit % 4) + 8

            def qk(t):
                if n + 1 < 64:
                    if t == 0 and nj == 0:
                        wait_kv('K%d' % nit)
                    self.mfma(Sn, kb + 4 * t, Q + 8 * nj + 4 * t, Sn if t else None)

            def pv(t):
                if n > 0:
                    if t == 0 and pj == 0:
                        wait_kv('V%d' % pit)
                    c = None if (pit == 0 and t == 0) else O + 16 * pj
                    self.mfma(O + 16 * pj, vb + 4 * t, P + 4 * t, c)
            qk(0)
            self('\n'.join(ex[0:4]))
            pv(0)
            self('\n'.join(ex[4:8] + pk[0:2]))
            qk(1)
            self('\n'.join(ex[8:12] + pk[2:4]))
            pv(1)
            self('\n'.join(ex[12:16] + pk[4:8]))
            if j == 0 and it + 3 < 16:
                kvload(it + 3)
            if j == 1 and 0 <= it - 3 < NA:
                self.wvm('U%d' % (it - 3))
                self.unit_read(it - 3, it % 3, self.PR)
            if j == 2 and 0 <= it - 1 < NA:
                if it >= 4:
                    self.wlg()
                for op in self.unit_ops(it - 1, (it - 1) % 3, self.PD, 's100'):
                    op()
            if n == 2:
                self.load(219, 219, WS, '0', 0, 'pur', n=1)
            if j == 3 and 1 <= it <= 14:
                for op in self.att_img[it - 1]:
                    op()
            if n == 61 and NA:
                self.wlg()
                self('s_barrier')
            if n in (15, 31, 47):
                self.stamp('a%d' % n)
        self.mfma(O + 48, KV + 16 * 3 + 8, P, O + 48)
        self.mfma(O + 48, KV + 16 * 3 + 12, P + 4, O + 48)
        self.stamp('att')
        for j in range(3):
            for q in range(4):
                self.lgi('ds_write_b128 %s, %s offset:%d' % (v(RW + j), v(O + 16 * j + 4 * q, 4), q * 1024), 'rw')
        self('v_and_b32 v219, 15, v219\nv_cmp_ne_u32 vcc, %s, v219\ns_cmp_eq_u64 vcc, 0\ns_cselect_b32 %s, %d, 0'
             % (s(sXCC), s(sFAST), 0 if self.o.get('slowsync') else 1))
        self.wlg()
        self('s_barrier')
        for k in range(12):
            self.lgi('ds_read_b128 %s, %s offset:%d' % (v(O + 4 * k, 4), v(RW + 3), k * 1024), 'r%d' % (k // 4))
        A = O + 48
        for j in range(3):
            self.wlg('r%d' % j)
            for k in range(0, 16, 2):
                self('v_pk_add_f32 %s, %s, %s' % (v(A + k, 2), v(A + k, 2), v(O + 16 * j + k, 2)))
        self.stamp('red')
        self('L_att_norm:')
        self('v_mov_b32 %s, %s\nv_mov_b32 %s, %s\nv_permlane32_swap_b32 %s, %s' % (v(u0), v(A + 12), v(u1), v(A + 12), v(u0), v(u1)))
        self('v_cmp_gt_f32 vcc, %s, %s\ns_mov_b64 %s, vcc\nv_cmp_lt_f32 vcc, %s, %s\ns_and_b64 vcc, vcc, %s'
             % (f32(2.0 ** 40), v(u1), s(t0, 2), f32(2.0 ** -40), v(u1), s(t0, 2)))
        force = self.o.get('force_fallback')
        self('s_cmp_eq_u64 vcc, %s\ns_cbranch_scc0 L_att_slow\nL_att_ok:' % ('0' if force else '-1'))
        self('v_rcp_f32 %s, %s' % (v(u1), v(u1)))
        self.scale(A, 16, u1)
        self.pack(P, A, 16)
        self('v_cndmask_b32 %s, %s, 0, %s\nv_cndmask_b32 %s, %s, 0, %s' % (v(P + 6), v(P + 6), s(sHI, 2), v(P + 7), v(P + 7), s(sHI, 2)))
        self.vm = ['any']

        def st(sc):
            self.store(P, vL16, WS, 's73', 0, 'st', sc1=sc)
            self.store(P + 4, vL16, WS, 's73', 1024, 'st', sc1=sc)
        st(True)
        self.p3_pre()
        self('s_add_u32 %s, %s, %d' % (s(t5), s(sFID), FLAG2))
        self.publish(s(t5), True)
        self.stamp('p2pub')
        self('s_cmp_ge_u32 %s, 14\ns_cbranch_scc1 L_fin' % s(sI))

    def att_slow(self):
        Q, O, S, P, KV, VOV, VST = self.Q, self.O, self.S, self.P, self.KV, self.VOV, self.VST
        A, Qo = O + 48, Q + 24
        self('L_att_slow:\ns_waitcnt vmcnt(0)')
        self.kv_addr(False)
        self('s_mov_b32 %s, %s\nv_mov_b32 %s, 0xff800000\ns_mov_b32 %s, 0\nL_slow1:' % (s(t5), s(t4), v(u3), s(sCNT)))
        self('buffer_load_dwordx4 %s, %s, %s, %s offen sc1' % (v(KV, 4), v(vL16), s(WS, 4), s(t5)))
        self('buffer_load_dwordx4 %s, %s, %s, %s offen offset:1024 sc1' % (v(KV + 4, 4), v(vL16), s(WS, 4), s(t5)))
        self('s_add_u32 %s, %s, 3584\ns_waitcnt vmcnt(0)' % (s(t5), s(t5)))
        self.mfma(S, KV, Qo, None)
        self.mfma(S, KV + 4, Qo + 4, S)
        for k in range(0, 16, 2):
            self('v_max3_f32 %s, %s, %s, %s' % (v(u3), v(u3), v(S + k), v(S + k + 1)))
        self('s_add_u32 %s, %s, 1\ns_cmp_lt_u32 %s, 64\ns_cbranch_scc1 L_slow1' % (s(sCNT), s(sCNT), s(sCNT)))
        self('v_mov_b32 %s, %s\nv_permlane32_swap_b32 %s, %s\nv_max_f32 %s, %s, %s' % (v(u4), v(u3), v(u4), v(u3), v(u3), v(u3), v(u4)))
        for k in range(16):
            self('v_mov_b32 %s, 0' % v(A + k))
        self('s_mov_b32 %s, 0\nL_slow2:' % s(sCNT))
        self('buffer_load_dwordx4 %s, %s, %s, %s offen sc1' % (v(KV, 4), v(vL16), s(WS, 4), s(t4)))
        self('buffer_load_dwordx4 %s, %s, %s, %s offen offset:1024 sc1' % (v(KV + 4, 4), v(vL16), s(WS, 4), s(t4)))
        self('buffer_load_dwordx4 %s, %s, %s, 0 offen sc1' % (v(KV + 8, 4), v(VOV), s(WS, 4)))
        self('buffer_load_dwordx4 %s, %s, %s, 0 offen offset:896 sc1' % (v(KV + 12, 4), v(VOV), s(WS, 4)))
        self('s_add_u32 %s, %s, 3584\nv_add_u32 %s, %s, %s\ns_waitcnt vmcnt(0)' % (s(t4), s(t4), v(VOV), v(VST), v(VOV)))
        self.mfma(S, KV, Qo, None)
        self.mfma(S, KV + 4, Qo + 4, S)
        for k in range(16):
            self('v_sub_f32 %s, %s, %s' % (v(S + k), v(S + k), v(u3)))
        for k in range(16):
            self('v_exp_f32 %s, %s' % (v(S + k), v(S + k)))
        self.pack(P, S, 16)
        self.mfma(A, KV + 8, P, A)
        self.mfma(A, KV + 12, P + 4, A)
        self('s_add_u32 %s, %s, 1\ns_cmp_lt_u32 %s, 64\ns_cbranch_scc1 L_slow2' % (s(sCNT), s(sCNT), s(sCNT)))
        self('v_mov_b32 %s, %s\nv_mov_b32 %s, %s\nv_permlane32_swap_b32 %s, %s' % (v(u0), v(A + 12), v(u1), v(A + 12), v(u0), v(u1)))
        self('s_branch L_att_ok')

    def slot_addrs(self, dst, kh_bytes, base):
        self('s_mul_i32 %s, %s, %d\ns_add_u32 %s, %s, %d\ns_lshl_b32 %s, %s, 6' % (s(t0), s(sKH), kh_bytes, s(t0), s(t0), base, s(t1), s(sKH)))
        self('v_xor_b32 %s, %s, %s\nv_xor_b32 %s, %s, %s' % (v(dst), s(t1), v(vTRa), v(dst + 1), s(t1), v(vTRb)))
        self('v_add_u32 %s, %s, %s\nv_add_u32 %s, %s, %s' % (v(dst), s(t0), v(dst), v(dst + 1), s(t0), v(dst + 1)))

    def frag_ops(self, dst, n, sreg, tag, second=None):
        ops = []
        for k in range(n):
            def op(k=k):
                if k and k % 4 == 0:
                    self('s_add_u32 %s, %s, 4096' % (s(sreg), s(second if k == 4 and second else sreg)))
                self.load(dst + 4 * k, vL16, WS, s(sreg), (k % 4) * 1024, '%s%d' % (tag, k))
            ops.append(op)
        return ops

    def pair_addrs(self, dst, red):
        self('s_lshl_b32 %s, %s, 12\ns_add_u32 %s, %s, %d\nv_add_u32 %s, %s, %s' % (s(t0), s(sW), s(t0), s(t0), red, v(dst), s(t0), v(vL16)))
        self('v_xor_b32 %s, 0x2000, %s' % (v(dst + 1), v(dst)))

    def pair_reduce(self, acc, tmp, adr, res, rtmp):
        for k in range(8):
            self('v_lshlrev_b32 %s, 16, %s\nv_and_b32 %s, 0xffff0000, %s' % (v(rtmp + 2 * k), v(res + k), v(rtmp + 2 * k + 1), v(res + k)))
        for q in range(4):
            self.lgi('ds_write_b128 %s, %s offset:%d' % (v(adr), v(acc + 16 + 4 * q, 4), q * 1024), 'pw')
        for k in range(0, 16, 2):
            self('v_pk_add_f32 %s, %s, %s' % (v(acc + k, 2), v(acc + k, 2), v(rtmp + k, 2)))
        self.wlg()
        self('s_barrier')
        for q in range(4):
            self.lgi('ds_read_b128 %s, %s offset:%d' % (v(tmp + 4 * q, 4), v(adr + 1), q * 1024), 'pr%d' % q)
        for q in range(4):
            self.wlg('pr%d' % q)
            for k in range(4 * q, 4 * q + 4, 2):
                self('v_pk_add_f32 %s, %s, %s' % (v(acc + k, 2), v(acc + k, 2), v(tmp + k, 2)))

    def p3_pre(self):
        WO, PA = 112, 240
        self.slot_addrs(u5, 8 * 3584, 0)
        self.pair_addrs(PA, 131072)
        self('s_lshl_b32 %s, %s, 15\ns_lshl_b32 %s, %s, 14\ns_add_u32 %s, %s, %s\ns_add_u32 %s, %s, %d'
             % (s(t4), s(sT3), s(t1), s(sKH), s(t4), s(t4), s(t1), s(t4), s(t4), OF))
        for k in range(16):
            for sl in range(2):
                for e in range(2):
                    self.tr(WO + 8 * k + 4 * sl + 2 * e, u5 + sl, (k >> 1) * 3584 + (k & 1) * 2048 + 512 * e, 'wo')
        self('s_lshl_b32 %s, %s, 1\ns_add_u32 %s, %s, %s' % (s(t0), s(sCB), s(t0), s(t0), s(sKH)))
        self('s_mul_i32 %s, %s, 28672\ns_lshl_b32 %s, %s, 11\ns_add_u32 %s, %s, %s\ns_add_u32 %s, %s, %d'
             % (s(t2), s(sT3), s(t1), s(t0), s(t2), s(t2), s(t1), s(t2), s(t2), HF))
        self('s_lshl_b32 %s, %s, 12\ns_lshl_b32 %s, %s, 8\ns_add_u32 %s, %s, %s\ns_add_u32 %s, %s, %d'
             % (s(t3), s(sT3), s(t1), s(t0), s(t3), s(t3), s(t1), s(t3), s(t3), HST))
        self('v_lshlrev_b32 %s, 3, %s' % (v(u3), v(vM)))
        self('s_lshl_b32 %s, %s, 7\ns_add_u32 %s, %s, %d' % (s(t6), s(sRB), s(t6), s(t6), FLAG2))
        self.wlg()

    def p3(self):
        FR, ACC, WO, PA = 16, 80, 112, 240
        WB = FR
        self.vm, self.lg = [], []
        self.poll(s(t6), 16)
        self.stamp('s2')
        self.q = self.frag_ops(FR, 16, t4, 'f')
        self.bg(11)
        for k in range(16):
            self.wvm('f%d' % k)
            for sl in range(2):
                self.mfma(ACC + 16 * sl, WO + 8 * k + 4 * sl, FR + 4 * k, None if k == 0 else ACC + 16 * sl)
            self.bg(1)
        self.stamp('p3mm')
        self.pair_reduce(ACC, WB, PA, vHK, WB + 16)
        self.pack(vHK, ACC, 16)

        def st(sc):
            self.store(vHK, vL16, WS, s(t2), 0, 'st', sc1=sc)
            self.store(vHK + 4, vL16, WS, s(t2), 1024, 'st', sc1=sc)
        st(True)
        self('v_pk_mul_f32 %s, %s, %s' % (v(WB, 2), v(ACC, 2), v(ACC, 2)))
        for k in range(2, 16, 2):
            self('v_pk_fma_f32 %s, %s, %s, %s' % (v(WB, 2), v(ACC + k, 2), v(ACC + k, 2), v(WB, 2)))
            self('v_pk_add_f32 %s, %s, %s' % (v(ACC, 2), v(ACC, 2), v(ACC + k, 2)))
        self('v_add_f32 %s, %s, %s\nv_add_f32 %s, %s, %s' % (v(ACC), v(ACC), v(ACC + 1), v(ACC + 1), v(WB), v(WB + 1)))
        self.xhalf_add2(ACC, WB)
        self.store(ACC, u3, WS, s(t3), 0, 'st', n=2)
        self.p4_pre()
        self('s_add_u32 %s, %s, %d' % (s(t5), s(sFID), FLAG3))
        self.publish(s(t5), True)
        self.stamp('p3pub')

    def zrd(self, k):
        for ct in range(2):
            self.trfrag(128 + 8 * (k % 4) + 4 * ct, u5 + ct, k * 2048, 'w%d' % k)

    def zpass(self, acc, wait_frag, nbg, k0=0, k1=28, kend=None, ndrip=0):
        HFR, WB = 16, 128
        kend = kend or k1
        for k in range(k0, k1):
            if wait_frag:
                self.wvm('h%d' % k)
            self.wlg('w%d' % k)
            self.mfma(acc, WB + 8 * (k % 4), HFR + 4 * k, None if k == 0 else acc)
            if k + 3 < kend:
                self.zrd(k + 3)
            else:
                self.drip(2 * ndrip)
            self.mfma(acc + 16, WB + 8 * (k % 4) + 4, HFR + 4 * k, None if k == 0 else acc + 16)
            self.bg(nbg)
            self.drip(ndrip)

    def p4_pre(self):
        self.colsum_part(WIN2, (16, 44), 72, MISC)
        self('s_lshl_b32 %s, %s, 7\ns_add_u32 %s, %s, %d' % (s(t6), s(sRB), s(t6), s(t6), FLAG3))
        self('s_lshl_b32 %s, %s, 7' % (s(t2), s(sI)))
        self.w1 = self.image_ops(222, SB, 3584, s(t2), 0, 14, 'W1')
        self('s_mul_i32 %s, %s, 28672\ns_add_u32 %s, %s, %d' % (s(t2), s(sT), s(t2), s(t2), HF))
        self('s_lshl_b32 %s, %s, 12\ns_add_u32 %s, %s, %d' % (s(t3), s(sT), s(t3), s(t3), HST))
        self('v_mul_u32_u24 %s, 1792, %s\nv_lshl_add_u32 %s, %s, 3, %s' % (v(u4), v(vH), v(u4), v(vM), v(u4)))
        self('v_add_u32 %s, %d, %s\nv_add_u32 %s, %d, %s' % (v(u5), WIN2, v(vTRa), v(u6), WIN2, v(vTRb)))
        for k in range(3):
            self.zrd(k)
        self.wlg('csw')
        self.lg_p4 = list(self.lg)

    def p4(self):
        HFR, WB, A2, A1 = 16, 128, 160, 192
        KS = self.o.get('ks', 14)
        self.KS = KS
        self.vm, self.lg = [], []
        U0 = self.NA
        w1 = self.w1
        self.lg = self.lg_p4
        self.poll(s(t6), 14)
        self.stamp('s3')
        hl = self.frag_ops(HFR, 28, t2, 'h')
        hs = [lambda q=q: self.load(A1 + 2 * q, u4, WS, s(t3), q * 256, 'hs', n=2) for q in range(7)]
        self.q = hl[:16] + hs + hl[16:]
        self.bg(11)
        self.colsum_get(224, MISC, vCS2)
        self.stamp('p4iss')
        def hstat():
            for q in range(1, 7):
                self('v_add_f32 %s, %s, %s\nv_add_f32 %s, %s, %s' % (v(A1), v(A1), v(A1 + 2 * q), v(A1 + 1), v(A1 + 1), v(A1 + 2 * q + 1)))
            self.xhalf_add2(A1, A1 + 2)
            self.mean_rstd(A1, A1 + 1, 448, A1 + 2, vRS)
            self.make_meanfrag(A1 + 2, A1 + 3)
            self.gelu_consts()
            self('s_lshl_b32 %s, %s, 13\ns_add_u32 %s, %s, %d\ns_lshl_b32 %s, %s, 9\ns_add_u32 %s, %s, %s'
                 % (s(t3), s(sT), s(t3), s(t3), ZST, s(t1), s(sI), s(t4), s(t3), s(t1)))
            self('v_lshlrev_b32 %s, 4, %s\nv_mov_b32 %s, %s\nv_mov_b32 %s, %s' % (v(u3), v(vM), v(A1 + 6), s(sNON), v(A1 + 7), s(sNON + 1)))
        self.zpass(A2, True, 2, 0, 4, 28)
        self.zpass(A2, True, 1, 4, 20, 28)
        assert not self.q
        self.wvm('hs')
        self.fill = self.cap(hstat)
        self.zpass(A2, True, 0, 20, 28, ndrip=3)
        self.drip(99)
        self.stamp('z2mm')
        for ct in range(2):
            self.mfma(A2 + 16 * ct, vCS2 + 4 * ct, vMF, A2 + 16 * ct)
        self('v_mov_b32 %s, %s\nv_mov_b32 %s, %s' % (v(u5), v(vTRa), v(u6), v(vTRb)))
        self.q = w1
        self.bg(5)
        self.gelu(A2, 32, A1 + 8, 3)
        assert not self.q
        Z = A1 + 4
        self('v_pk_mul_f32 %s, %s, %s\nv_pk_add_f32 %s, %s, %s'
             % (v(A1, 2), v(A2, 2), v(A2, 2), v(Z, 2), v(A2, 2), v(A2 + 2, 2)))
        for k in range(2, 32, 2):
            self('v_pk_fma_f32 %s, %s, %s, %s' % (v(A1, 2), v(A2 + k, 2), v(A2 + k, 2), v(A1, 2)))
            if k > 2:
                self('v_pk_add_f32 %s, %s, %s' % (v(Z, 2), v(Z, 2), v(A2 + k, 2)))
        self('v_add_f32 %s, %s, %s\nv_add_f32 %s, %s, %s' % (v(Z), v(Z), v(Z + 1), v(Z + 1), v(A1), v(A1 + 1)))
        self.xhalf_add2(Z, A1)
        self('s_not_b64 exec, %s' % s(sHI, 2))
        self.local_stores(lambda sc: self.store(Z, u3, WS, s(t4), 0, 'zs', sc1=sc))
        self('s_mov_b64 exec, -1')
        self.stamp('zst')
        self('s_lshl_b32 %s, %s, 18\ns_lshl_b32 %s, %s, 12\ns_add_u32 %s, %s, %s\ns_add_u32 %s, %s, %d'
             % (s(t2), s(sI), s(t1), s(sT), s(t2), s(t2), s(t1), s(t2), s(t2), ZF))
        self('v_lshlrev_b32 %s, 2, %s\nv_xor_b32 %s, %s, %s\nv_lshlrev_b32 %s, 4, %s\nv_lshl_add_u32 %s, %s, 9, %s'
             % (v(u3), v(vH), v(u3), v(u3), v(vM), v(u3), v(u3), v(u3), v(vH), v(u3)))
        self('v_xor_b32 %s, 0x80, %s\nv_add_u32 %s, 1024, %s' % (v(u4), v(u3), v(u4), v(u4)))
        self('s_lshl_b32 %s, %s, 4\ns_add_u32 %s, %s, %s\ns_lshl_b32 %s, %s, 6\ns_add_u32 %s, %s, %d'
             % (s(t5), s(sI), s(t5), s(t5), s(sRB), s(t5), s(t5), s(t5), s(t5), FLAG5))
        self('v_mul_u32_u24 %s, 3584, %s\nv_lshl_add_u32 %s, %s, 4, %s\ns_mov_b32 %s, 0' % (v(u2), v(vH), v(u2), v(vM), v(u2), s(sCNT)))
        self.unit_addrs(232, 236, 's100', (RED, 8192))
        self.wvm('W1')
        self('s_barrier')
        gather = [lambda q=q: self.load(224 + 4 * q, u2, WS, s(t3), q * 512, 'zg', pfx='a') for q in range(7)]
        if self.o.get('gearly', 1):
            self.q = gather
            self.bg(99)
        self.colsum_part(0, (WB, A1), 224, MISC + 1024)
        self.q = ([] if self.o.get('gearly', 1) else gather) + sum((self.unit_ops(U0 + r, r, 232, 's100') for r in range(self.ND)), [])
        self.bg(99)
        self.stamp('z1a')
        lp = self.lab('zs')
        self.wvm('zg')
        for q in range(28):
            self('v_accvgpr_read_b32 %s, a%d' % (v(WB + q), 224 + q))
        keepvm = list(self.vm)
        self('s_branch %s_c\n%s:' % (lp, lp))
        for q in range(7):
            self('buffer_load_dwordx4 %s, %s, %s, %s offen offset:%d sc1' % (v(WB + 4 * q, 4), v(u2), s(WS, 4), s(t3), q * 512))
        self('s_add_u32 %s, %s, 1\ns_waitcnt vmcnt(0)\n%s_c:' % (s(sCNT), s(sCNT), lp))
        for q in range(1, 7):
            self('v_xor_b32 %s, %s, %s\nv_xor_b32 %s, %s, %s' % (v(WB + 4 * q + 2), s(sNON), v(WB + 4 * q + 2),
                                                                v(WB + 4 * q + 3), s(sNON + 1), v(WB + 4 * q + 3)))
        self('v_or3_b32 %s, %s, %s, %s' % (v(u1), v(WB + 6), v(WB + 7), v(WB + 10)))
        for r in ((11, 14), (15, 18), (19, 22), (23, 26)):
            self('v_or3_b32 %s, %s, %s, %s' % (v(u1), v(u1), v(WB + r[0]), v(WB + r[1])))
        self('v_or_b32 %s, %s, %s\nv_cmp_ne_u64 %s, %s, %s\nv_cmp_ne_u32 vcc, 0, %s'
             % (v(u1), v(u1), v(WB + 27), s(t0, 2), s(sNON, 2), v(WB + 2, 2), v(u1)))
        for q in range(1, 7):
            self('v_pk_add_f32 %s, %s, %s' % (v(WB, 2), v(WB, 2), v(WB + 4 * q, 2)))
        self('s_or_b64 %s, %s, vcc' % (s(t0, 2), s(t0, 2)))
        self('s_cbranch_scc0 %s_d\ns_cmp_lt_u32 %s, %d\ns_cbranch_scc1 %s\n%s_d:' % (lp, s(sCNT), POLL_MAX, lp, lp))
        self.vm = keepvm
        self.stamp('s4')
        self.xhalf_add2(WB, WB + 2)
        self.mean_rstd(WB, WB + 1, 896, WB + 2, WB + 4)
        self('v_mul_f32 %s, -%s, %s' % (v(WB + 6), v(WB + 2), v(WB + 4)))
        for c in range(4):
            for k in range(8 * c, 8 * c + 8, 2):
                self('v_pk_fma_f32 %s, %s, %s, %s op_sel_hi:[1,0,0]' % (v(A2 + k, 2), v(A2 + k, 2), v(WB + 4, 2), v(WB + 6, 2)))
            self.pack(WB + 8 + 4 * c, A2 + 8 * c, 8)
            self.store(WB + 8 + 4 * c, u3 + (c & 1), WS, s(t2), (c >> 1) * 2048, 'st')
        if self.ND:
            self.wvm('U%d' % (U0 + self.ND - 1))
        for r in range(self.ND):
            self.unit_read(U0 + r, r, 236)
        for k in range(3):
            self.zrd(k)
        self.zpass(A1, False, 0, 0, KS, 28)
        self.wlg('ur')
        self.publish(s(t5))
        self.stamp('p4pub')

    NZ, NW, WRING = 6, 6, 57344

    def p5(self):
        A1, ACC, ZB, WB, WD, WR, ZA, OD, FL = 192, 16, 48, 80, 160, 164, 168, 170, 172
        NZ, NW, WRING, SWO, KS = self.NZ, self.NW, self.WRING, self.SWO, self.KS
        order = []
        for k in range(14):
            order += [14 + k, k]
        order += [28, 29, 30, 31]
        self.vm = []
        self.unit_addrs(WD, WR, s(t4), (WRING, NW * 4096))
        self.colsum_get(172, MISC + 1024, vCS1)

        def w_ops(r):
            return self.unit_ops(14 + r, r % NW, WD, s(t4))

        def z_ops(p):
            def first():
                self('s_add_u32 m0, %s, %d\ns_add_u32 %s, s82, %d\ns_and_b32 %s, %s, 0x3e000\ns_add_u32 %s, %s, %s'
                     % (s(t1), (p % NZ) * 8192, s(t0), order[p] * 8192, s(t0), s(t0), s(t0), s(t0), s(t2)))
                self.dma(vL16, WS, s(t0), 0, 'Z%d' % p, sc1=True)
            return [first, lambda: self.dma(vL16, WS, s(t0), 1024, 'Z%d' % p, sc1=True)]

        def o_ops(c):
            ops = []
            for hf in range(2):
                def first(hf=hf):
                    if c < 6:
                        self('s_add_u32 m0, %s, %d' % (s(t4), c * 4096 + hf * 2048))
                    else:
                        self('s_lshl_b32 %s, %s, 12\ns_add_u32 m0, %s, %d' % (s(t0), s(sW), s(t0), 16384 + hf * 2048))
                    self('s_mov_b32 %s, %d' % (s(t0), (32 * c + 16 * hf) * 896))
                    self.dma(OD, SWO, s(t0), 0, 'WT')
                ops += [first, lambda: self.dma(OD + 1, SWO, s(t0), 1024, 'WT')]
            return ops
        self.o_ops = o_ops
        self.q = sum((w_ops(r) for r in range(NW)), [])
        self.zpass(A1, False, 1, KS, 28)
        self.stamp('z1')
        for ct in range(2):
            self.mfma(A1 + 16 * ct, vCS1 + 4 * ct, vMF, A1 + 16 * ct)
        self('v_lshlrev_b32 %s, 16, %s' % (v(vBSP), v(vBSP)))
        self('v_bfe_u32 %s, v0, 4, 1\nv_and_b32 %s, 1, v0\nv_lshl_add_u32 %s, %s, 1, %s' % (v(u0), v(u1), v(u0), v(u0), v(u1)))
        self('v_lshlrev_b32 %s, 1, %s\nv_xor_b32 %s, %s, %s\nv_lshlrev_b32 %s, 6, %s\nv_lshl_add_u32 %s, %s, 9, %s'
             % (v(u1), v(vH), v(u1), v(u1), v(u0), v(u1), v(u1), v(u1), v(u0), v(u1)))
        self('v_bfe_u32 %s, v0, 2, 2\nv_lshl_add_u32 %s, %s, 4, %s\nv_bfe_u32 %s, v0, 1, 1\nv_lshl_add_u32 %s, %s, 3, %s'
             % (v(u0), v(u1), v(u0), v(u1), v(u0), v(ZA), v(u0), v(u1)))
        self('v_xor_b32 %s, 64, %s' % (v(ZA + 1), v(ZA)))
        self('s_lshl_b32 %s, %s, 7' % (s(t2), s(sCB)))
        self.image_ops(OD, SWO, 896, s(t2), 0, 28, 'WT')
        self('s_lshl_b32 %s, %s, 11\ns_lshl_b32 %s, %s, 18\ns_add_u32 %s, %s, %s\ns_add_u32 %s, %s, %d\ns_lshl_b32 s82, %s, 14'
             % (s(t1), s(sW), s(t2), s(sI), s(t2), s(t2), s(t1), s(t2), s(t2), ZF, s(sI)))
        self('s_lshl_b32 %s, %s, 10\ns_add_u32 %s, %s, %d' % (s(t5), s(sI), s(t5), s(t5), FLAG5))
        GS = self.o.get('gs', 24)
        nb = -(-len(self.q) // max(1, GS // 8 - 1))
        self.gelu(A1, GS - 8, 128, nb)
        self.bg(99)
        self.poll_first(s(t5), 16, FL, 6)
        self.gelu(A1 + GS - 8, 8, 128, 0)
        self.stamp('g1')
        self.poll(s(t5), 16, FL, 6)
        self.stamp('s5')
        self.q = sum((z_ops(p) for p in range(NZ - 1)), [])
        self.bg(99)
        self.gelu(A1 + GS, 32 - GS, 128, 0)

        def rdz(g, ct):
            p, k = divmod(g, 4)
            off = (p % NZ) * 8192 + (k >> 1) * 4096 + (k & 1) * 256
            d = ZB + 8 * (g % 4) + 4 * ct
            self.tr(d, ZA, off + ct * 2048, 'g%d' % g)
            self.tr(d + 2, ZA + 1, off + ct * 2048, 'g%d' % g)

        def rdw(g):
            p, k = divmod(g, 4)
            if order[p] >= 14:
                self.lgi('ds_read_b128 %s, %s offset:%d' % (v(WB + 4 * (g % 4), 4), v(WR + k), ((order[p] - 14) % NW) * 4096), 'g%d' % g)

        def mm(g, ct):
            p, k = divmod(g, 4)
            c = None if g == 0 else ACC + 16 * ct
            if order[p] >= 14:
                self.mfma(ACC + 16 * ct, ZB + 8 * (g % 4) + 4 * ct, WB + 4 * (g % 4), c)
            else:
                self.mfma(ACC + 16 * ct, ZB + 8 * (g % 4) + 4 * ct, 16 * order[p] + 4 * k, c, pb='a')
        self.wvm('Z0')
        self('s_barrier')
        self.stamp('p5z0')
        for g in range(2):
            rdz(g, 0)
            rdz(g, 1)
            rdw(g)
        for g in range(128):
            p, k = divmod(g, 4)
            if g in (32, 64, 96):
                self.stamp('p5_%d' % g)
            self.wlg('g%d' % g)
            mm(g, 0)
            if k == 2 and p + 1 < 32:
                self.wvm('Z%d' % (p + 1))
                self.wvm('U%d' % order[p + 1])
                self('s_barrier')
                if p + NZ - 1 < 32:
                    self.q += z_ops(p + NZ - 1)
                if p >= 1 and order[p - 1] >= 14:
                    r = order[p - 1] - 14
                    self.q += w_ops(r + NW) if r + NW < 18 else o_ops(r % NW)
            if g + 2 < 128:
                rdz(g + 2, 0)
                rdw(g + 2)
            mm(g, 1)
            if g + 2 < 128:
                rdz(g + 2, 1)
            self.bg(1)
        self.bg(99)
        self.stamp('p5')
        self('s_mul_i32 %s, %s, 57344\ns_lshl_b32 %s, %s, 12\ns_add_u32 %s, %s, %s\ns_add_u32 %s, %s, %d'
             % (s(t2), s(sT), s(t1), s(sI), s(t2), s(t2), s(t1), s(t2), s(t2), UF))
        self('s_add_u32 %s, %s, %d' % (s(t5), s(sFID), FLAG6))
        e = vBSP & ~1
        for k in range(0, 32, 2):
            self('v_pk_add_f32 %s, %s, %s op_sel_hi:[1,0]' % (v(ACC + k, 2), v(ACC + k, 2), v(e, 2)))
            self('v_pk_mul_f32 %s, %s, %s' % (v(ACC + k, 2), v(ACC + k, 2), v(A1 + k, 2)))
        self.pack(ZB, ACC, 32)

        def st_(sc):
            for k in range(4):
                self.store(ZB + 4 * k, vL16, WS, s(t2), k * 1024, 'st', sc1=sc)
        st_(True)
        self.p6_pre()
        self.publish(s(t5), True, drain='st')
        self.stamp('p5pub')

    def p6_pre(self):
        AR, AZ, PA = 208, 210, 212
        self.q = self.o_ops(4) + self.o_ops(5) + self.o_ops(6)
        self.bg(99)
        self.slot_addrs(AR, 49152, self.WRING)
        self.slot_addrs(AZ, 8192, 16384)
        self.pair_addrs(PA, 0)
        self.srd(SA, P_OUT, 2048 * 896)
        self('s_mul_i32 %s, %s, %d\ns_lshl_b32 %s, %s, 7\ns_add_u32 %s, %s, %s\ns_lshl_b32 %s, %s, 6\ns_add_u32 %s, %s, %s'
             % (s(t3), s(sT3), 32 * 896, s(t1), s(sCB), s(t3), s(t3), s(t1), s(t1), s(sKH), s(t3), s(t3), s(t1)))
        self('v_mul_u32_u24 %s, 896, %s\nv_lshl_add_u32 %s, %s, 4, %s' % (v(u4), v(vM), v(u4), v(vH), v(u4)))
        self('s_mul_i32 %s, %s, 57344\ns_mul_i32 %s, %s, 28672\ns_add_u32 %s, %s, %s\ns_add_u32 %s, %s, %d'
             % (s(t2), s(sT3), s(t1), s(sKH), s(t2), s(t2), s(t1), s(t2), s(t2), UF))
        self('s_lshl_b32 %s, %s, 7\ns_add_u32 %s, %s, %d' % (s(t6), s(sRB), s(t6), s(t6), FLAG6))
        OA = 216
        self('s_and_b32 %s, %s, 1\ns_lshl_b32 %s, %s, 12\ns_add_u32 %s, %s, 32768\ns_lshl_b32 %s, %s, 2' % (s(t0), s(sW), s(t0), s(t0), s(t0), s(t0), s(t1), s(sKH)))
        self('v_add_u32 %s, %s, %s\nv_and_b32 %s, 7, v0\nv_xor_b32 %s, %s, %s\nv_lshlrev_b32 %s, 4, %s' % (v(u0), s(t1), v(vH), v(u1), v(u0), v(u0), v(u1), v(u0), v(u0)))
        self('v_lshl_add_u32 %s, %s, 7, %s\nv_add_u32 %s, %s, %s\nv_xor_b32 %s, 32, %s' % (v(u0), v(vM), v(u0), v(OA), s(t0), v(u0), v(OA + 1), v(OA)))
        self('s_lshl_b32 %s, %s, 11\ns_add_u32 %s, %s, 32768\nv_add_u32 %s, %s, %s' % (s(t0), s(sW), s(t0), s(t0), v(OA + 2), s(t0), v(vL16)))
        self('v_lshrrev_b32 %s, 3, v0\nv_xor_b32 %s, %s, %s\nv_mul_u32_u24 %s, 896, %s\nv_lshl_add_u32 %s, %s, 4, %s\nv_add_u32 %s, 7168, %s'
             % (v(u0), v(u1), v(u1), v(u0), v(u0), v(u0), v(OA + 3), v(u1), v(u0), v(OA + 4), v(OA + 3)))
        self('s_and_b32 %s, %s, -2\ns_lshl_b32 %s, %s, 1\ns_add_u32 %s, %s, %s\ns_mul_i32 %s, %s, %d\ns_lshl_b32 %s, %s, 7\ns_add_u32 %s, %s, %s'
             % (s(t0), s(sT3), s(t0), s(t0), s(t0), s(t0), s(sW), s(t4), s(t0), 16 * 896, s(t1), s(sCB), s(t4), s(t4), s(t1)))

    def p6(self):
        FR, WB, ACC, AR, AZ, PA = 16, 128, 176, 208, 210, 212
        OA = 216
        self.wvm()
        self.poll(s(t6), 14)
        self.stamp('s6')
        self.q = self.frag_ops(FR, 28, t2, 'f')
        self.bg(11)

        def rd(k, sl):
            hi, c = divmod(k >> 1, 7)
            if c < 6:
                adr, off = AR, hi * 24576 + c * 4096
            else:
                adr, off = AZ, hi * 4096
            self.trfrag(WB + 8 * (k % 4) + 4 * sl, adr + sl, off + (k & 1) * 2048, 'w%d' % k)
        for k in range(3):
            rd(k, 0)
            rd(k, 1)
        for k in range(28):
            self.wvm('f%d' % k)
            self.wlg('w%d' % k)
            for sl in range(2):
                self.mfma(ACC + 16 * sl, WB + 8 * (k % 4) + 4 * sl, FR + 4 * k, None if k == 0 else ACC + 16 * sl)
                if k + 3 < 28:
                    rd(k + 3, sl)
            self.bg(1)
        self.stamp('p6mm')
        self.pair_reduce(ACC, WB, PA, vHK, WB + 16)
        self.pack(WB, ACC, 16)
        if self.o.get('outl', 1):
            self.lgi('ds_write_b128 %s, %s' % (v(OA), v(WB, 4)), 'ow')
            self.lgi('ds_write_b128 %s, %s' % (v(OA + 1), v(WB + 4, 4)), 'ow')
            self.wlg()
            self('s_barrier')
            self.lgi('ds_read_b128 %s, %s' % (v(WB + 8, 4), v(OA + 2)), 'o0')
            self.lgi('ds_read_b128 %s, %s offset:1024' % (v(WB + 12, 4), v(OA + 2)), 'o1')
            self.wlg('o0')
            self.store(WB + 8, OA + 3, SA, s(t4), 0, 'st')
            self.wlg('o1')
            self.store(WB + 12, OA + 4, SA, s(t4), 0, 'st')
        else:
            self.store(WB, u4, SA, s(t3), 0, 'st')
            self.store(WB + 4, u4, SA, s(t3), 32, 'st')
        self.stamp('end', True)

    def build(self):
        stop = self.o.get('stop', 6)
        self.prologue()
        for k, ph in enumerate((self.p1, self.p2, self.p3, self.p4, self.p5, self.p6), 1):
            if k <= stop:
                ph()
        if self.o.get('padfrom') == 'tag':
            self('s_mov_b32 %s, %s' % (s(sPT), s(sNON)))
        if self.o.get('padfrom'):
            self('s_mov_b32 %s, 0\nL_hold:\ns_memrealtime s[78:79]\ns_add_u32 %s, %s, 1\ns_waitcnt lgkmcnt(0)' % (s(sCNT), s(sCNT), s(sCNT)))
            self('s_sub_u32 s78, s78, %s\ns_cmp_ge_u32 s78, 10000\ns_cbranch_scc1 L_fin\ns_cmp_lt_u32 %s, 100000\ns_cbranch_scc1 L_hold' % (s(sPT), s(sCNT)))
        self('L_fin:')
        self.stamp_flush()
        self('L_end:\ns_endpgm')
        if stop >= 2:
            self.att_slow()
        self.emit_stubs()
        self('L_code_end:')
        npad = self.a.pad()
        errs = []
        for take in ((), ('L_p1_V',), ('L_p1_N',), ('L_att_slow',)):
            errs += self.a.check_waits(take)
        for e in sorted(set(errs)):
            print('WAITCHECK', e, file=sys.stderr)
        ref = open('cdna_kernels/%s.s.ref' % NAME).read().split('\n')
        head = [l for l in ref if l.startswith(';') and '@launch' not in l and 'Override' not in l and 'grid=ceil' not in l
                and l == l.lstrip()]
        out = '\n'.join(head) + '\n'
        if self.names:
            out += '; stamps: ' + ' '.join(self.names) + '\n'
        out += '; @launch grid=(256,1,1) block=(256,1,1) lds=%d\n' % LDS_BYTES
        out += '.amdgcn_target "amdgcn-amd-amdhsa--gfx950"\n.text\n.globl %s_kernel\n.p2align 8\n' % NAME
        out += '.type %s_kernel,@function\n%s_kernel:\n' % (NAME, NAME)
        out += self.a.text()
        out += '.section .rodata,"a"\n.p2align 6\n.amdhsa_kernel %s_kernel\n' % NAME
        out += ('  .amdhsa_next_free_vgpr 512\n  .amdhsa_next_free_sgpr 102\n  .amdhsa_accum_offset 256\n'
                '  .amdhsa_group_segment_fixed_size 0\n  .amdhsa_kernarg_size 88\n  .amdhsa_user_sgpr_count 2\n'
                '  .amdhsa_user_sgpr_kernarg_segment_ptr 1\n  .amdhsa_system_sgpr_workgroup_id_x 1\n'
                '.end_amdhsa_kernel\n')
        if self.o.get('showpads'):
            for k, x in enumerate(self.a.L):
                if x.note == 'pad':
                    print(k, x.text, '| prev:', self.a.L[k - 1].text, '| next:', self.a.L[k + 1].text, file=sys.stderr)
        print('instructions %d, pads %d, waitcheck errors %d' % (len(self.a.L), npad, len(set(errs))), file=sys.stderr)
        return out


if __name__ == '__main__':
    opt = {}
    dst = sys.argv[1]
    for a in sys.argv[2:]:
        k, _, val = a.partition('=')
        opt[k] = int(val) if val.isdigit() else (val or 1)
    open(dst, 'w').write(G(opt).build())
```

```python
import sys
import math
import struct
import copy
from asmlib import Asm

NAME = 'sequential_preLN__mha_block__mixer_gmlp__prompt'

FLAG2, FLAG3, FLAG6 = 0x1000, 0x2000, 0x3000
FLAG1, FLAG5 = 0x8000, 0xC000
ONES, PROF = 0x40000, 0x80000
ZST, HST = 0x100000, 0x180000
KF, VF, OF, HF, ZF, UF = 0x200000, 0x400000, 0x600000, 0x800000, 0xA00000, 0xE00000
XST = 0x1200000
WS_BYTES = 0x1280000

XB = 57344
WQB = 106496
MISC = 155648
RSX = 157696
WIN2 = 57344
RED = 114688
LDS_BYTES = 163840

P_X, P_WQKV, P_WO, P_WIN, P_WSP, P_BSP, P_WOUT, P_OUT, P_DBG, P_WS = 4, 6, 8, 12, 14, 16, 18, 20, 22, 24
sW, sRB, sI, sXCC, sNON, sFAST = 26, 27, 44, 45, 46, 48
WS, SA, SB, SC = 28, 32, 36, 40
sHI = 50
sONE2 = 52
sT = 54
sCB, sKH, sT3 = 55, 56, 57
sK0, sK1 = 58, 60
t0, t1, t2, t3, t4, t5, t6, t7 = 62, 63, 64, 65, 66, 67, 68, 69
sSAVE = 70
sCNT = 72
sPT = 70
sB = 76
sM0, sSO = 80, 81
sFID = 77

vL, vH, vM, vL16, vTRa, vTRb, vPM = 0, 1, 2, 3, 4, 5, 6
u0, u1, u2, u3, u4, u5, u6, u7, u8 = 7, 8, 9, 10, 11, 12, 13, 14, 15
vCS1, vCS2, vMF, vHK, vBSP, vRS, vGI = 224, 232, 240, 244, 252, 253, 6

POLL_MAX = 8000


def f32(x):
    return '0x%08x' % struct.unpack('<I', struct.pack('<f', x))[0]


def v(a, n=1):
    return 'v%d' % a if n == 1 else 'v[%d:%d]' % (a, a + n - 1)


def s(a, n=1):
    return 's%d' % a if n == 1 else 's[%d:%d]' % (a, a + n - 1)


class G:
    def __init__(self, opt):
        self.o = opt
        self.a = Asm()
        self.vm = []
        self.lg = []
        self.nlab = 0
        self.names = []
        self.q = []
        self.issued = set()
        self.fill = []
        self.stubs = []
        self.NB, self.NC, self.ND = opt.get('nb', 0), opt.get('nc', 0), opt.get('nd', 2)
        self.NA = 14 - self.NB - self.NC - self.ND
        assert self.NA <= 13

    def __call__(self, t):
        self.a(t)

    def lab(self, p):
        self.nlab += 1
        return 'L_%s_%d' % (p, self.nlab)

    def vmi(self, text, tag):
        self.a(text)
        self.vm.append(tag)
        self.issued.add(tag)

    def lgi(self, text, tag):
        self.a(text)
        self.lg.append(tag)

    def _n(self, q, tag):
        idx = [k for k, t in enumerate(q) if t == tag]
        return None if not idx else len(q) - 1 - idx[-1]

    def wvm(self, tag=None):
        n = 0 if tag is None else self._n(self.vm, tag)
        assert tag is None or tag in self.issued, tag
        if n is None:
            return
        self.a('s_waitcnt vmcnt(%d)' % n)
        self.vm = self.vm[len(self.vm) - n:]

    def wlg(self, tag=None):
        n = 0 if tag is None else self._n(self.lg, tag)
        if n is None:
            return
        n = min(n, 15)
        self.a('s_waitcnt lgkmcnt(%d)' % n)
        self.lg = self.lg[len(self.lg) - n:]

    def srd(self, r, ptr, nbytes):
        self('s_mov_b32 %s, %s\ns_mov_b32 %s, %s\ns_mov_b32 %s, 0x%x\ns_mov_b32 %s, 0x20000'
             % (s(r), s(ptr), s(r + 1), s(ptr + 1), s(r + 2), nbytes, s(r + 3)))

    def bg(self, n=1):
        for _ in range(n):
            if self.q:
                self.q.pop(0)()

    def cap(self, fn):
        hold, self.a = self.a, Asm()
        fn()
        assert all(x.kind in ('valu', 'salu', 'nop') for x in self.a.L)
        lines = [x.text for x in self.a.L]
        self.a = hold
        out = []
        for l in lines:
            if out and l.startswith(('s_cselect', 's_subb', 's_addc')):
                out[-1] += '\n' + l
            else:
                out.append(l)
        return out

    def drip(self, n):
        for _ in range(n):
            if self.fill:
                self(self.fill.pop(0))

    def retry(self, test, reload):
        st, bk = self.lab('again'), self.lab('have')
        self('%s\ns_cbranch_vccnz %s\n%s:' % (test, st, bk))
        self.stubs.append((st, bk, test, reload))

    def emit_stubs(self):
        for st, bk, test, reload in self.stubs:
            self('%s:\ns_mov_b32 %s, 0\n%s_l:\n%s' % (st, s(sCNT), st, reload))
            self('s_add_u32 %s, %s, 1\ns_waitcnt vmcnt(0)\n%s\ns_cbranch_vccz %s' % (s(sCNT), s(sCNT), test, bk))
            self('s_cmp_lt_u32 %s, %d\ns_cbranch_scc1 %s_l\ns_branch %s' % (s(sCNT), POLL_MAX, st, bk))

    def image_ops(self, va, srd, stride, col_soff, lds_base, ninstr, tag):
        self('v_lshrrev_b32 %s, 3, %s\nv_mul_u32_u24 %s, %d, %s' % (v(va), v(vL), v(va), stride, v(va)))
        self('v_bfe_u32 %s, %s, 4, 1\nv_lshlrev_b32 %s, 2, %s' % (v(va + 1), v(vL), v(va + 1), v(va + 1)))
        self('v_xor_b32 %s, %s, %s\nv_and_b32 %s, 7, %s' % (v(va + 1), v(va + 1), v(vL), v(va + 1), v(va + 1)))
        self('v_lshl_add_u32 %s, %s, 4, %s' % (v(va), v(va + 1), v(va)))
        self('s_mul_i32 %s, %s, %d\ns_add_u32 %s, %s, %s' % (s(t0), s(sW), ninstr * 8 * stride, s(t0), s(t0), col_soff))
        self('v_add_u32 %s, %s, %s\nv_add_u32 %s, %d, %s' % (v(va), s(t0), v(va), v(va + 1), 8 * stride - 1024, v(va)))
        ops = []
        for q in range(ninstr):
            def op(q=q):
                if q % 2 == 0:
                    if q == 0:
                        self('s_mul_i32 %s, %s, %d\ns_add_u32 m0, %s, %d\ns_mov_b32 %s, 0'
                             % (s(sM0), s(sW), ninstr * 1024, s(sM0), lds_base, s(sSO)))
                    else:
                        self('s_add_u32 m0, %s, %d\ns_mov_b32 %s, %d' % (s(sM0), lds_base + q * 1024, s(sSO), q * 8 * stride))
                self.dma(va + (q & 1), srd, s(sSO), (q & 1) * 1024, tag)
            ops.append(op)
        return ops

    def mfma(self, d, a_, b, c=None, pa='v', pb='v'):
        cs = '0' if c is None else v(c, 16)
        self('v_mfma_f32_32x32x16_bf16 %s, %s[%d:%d], %s[%d:%d], %s'
             % (v(d, 16), pa, a_, a_ + 3, pb, b, b + 3, cs))

    def mfsum(self, d, b, first, pb='v'):
        self('v_mfma_f32_16x16x32_bf16 %s, a[252:255], %s[%d:%d], %s' % (v(d, 4), pb, b, b + 3, '0' if first else v(d, 4)))

    def tr(self, dst, addr, off, tag):
        self.lgi('ds_read_b64_tr_b16 %s, %s offset:%d' % (v(dst, 2), v(addr), off), tag)

    def trfrag(self, dst, addr, off, tag, step=512):
        self.tr(dst, addr, off, tag)
        self.tr(dst + 2, addr, off + step, tag)

    def load(self, dst, voff, srd, soff, imm, tag, n=4, sc1=True, pfx='v'):
        op = {4: 'dwordx4', 2: 'dwordx2', 1: 'dword'}[n]
        d = '%s%d' % (pfx, dst) if n == 1 else '%s[%d:%d]' % (pfx, dst, dst + n - 1)
        self.vmi('buffer_load_%s %s, %s, %s, %s offen offset:%d%s'
                 % (op, d, v(voff), s(srd, 4), soff, imm, ' sc1' if sc1 else ''), tag)

    def dma(self, voff, srd, soff, imm, tag, sc1=False):
        self.vmi('buffer_load_dwordx4 %s, %s, %s offen offset:%d%s lds'
                 % (v(voff), s(srd, 4), soff, imm, ' sc1' if sc1 else ''), tag)

    def store(self, src, voff, srd, soff, imm, tag, n=4, sc1=True):
        op = {4: 'dwordx4', 2: 'dwordx2', 1: 'dword'}[n]
        self.vmi('buffer_store_%s %s, %s, %s, %s offen offset:%d%s'
                 % (op, v(src, n), v(voff), s(srd, 4), soff, imm,
                    ' sc1' if sc1 else (' ' + self.o['plainmod'] if srd == WS and self.o.get('plainmod') else '')), tag)

    def local_stores(self, emit):
        lp, lj = self.lab('plain'), self.lab('join')
        self('s_cmp_eq_u32 %s, 1\ns_cbranch_scc1 %s' % (s(sFAST), lp))
        keep = list(self.vm)
        emit(True)
        self('s_branch %s\n%s:' % (lj, lp))
        self.vm = keep
        emit(False)
        self('%s:' % lj)

    def publish(self, flag_soff, local=False, xcc=False, drain=True):
        if xcc:
            self('s_or_b32 %s, %s, %s\nv_mov_b32 %s, %s' % (s(t0), s(sNON), s(sXCC), v(u1), s(t0)))
        else:
            self('v_mov_b32 %s, %s' % (v(u1), s(sNON)))
        self('v_mov_b32 %s, %s\ns_cmp_eq_u32 %s, 0' % (v(u2), s(sNON + 1), s(sW)))
        if drain:
            self.wvm(None if drain is True else drain)
        self('s_barrier')
        sk = self.lab('pub')
        if local:
            self('s_cbranch_scc0 %s\ns_mov_b64 exec, 1' % sk)
            st = 'buffer_store_dwordx2 %s, v0, %s, %s offen' % (v(u1, 2), s(WS, 4), flag_soff)
            self.local_stores(lambda sc: self(st + (' sc1' if sc else '')))
        else:
            self('s_cbranch_scc0 %s\ns_mov_b64 exec, 15' % sk)
            self('buffer_store_dwordx4 %s, %s, %s, %s offen sc1' % (v(u1, 4), v(vL16), s(WS, 4), flag_soff))
        self('s_mov_b64 exec, -1\n%s:' % sk)

    def poll_first(self, flag_soff, nflags, reg, sh=3):
        self('v_cmp_gt_u32 vcc, %d, v0\nv_lshlrev_b32 %s, %d, v0\nv_cndmask_b32 %s, 0, %s, vcc' % (nflags, v(reg), sh, v(reg), v(reg)))
        self.load(reg, reg, WS, flag_soff, 0, 'flag', n=2)

    def poll(self, flag_soff, nflags, first=None, sh=3):
        sk, lp = self.lab('pollskip'), self.lab('poll')
        if first is not None:
            self.wvm('flag')
            self('v_cmp_ne_u64 vcc, %s, %s\ns_cbranch_vccz %s' % (s(sNON, 2), v(first, 2), sk))
        self('s_cmp_eq_u32 %s, 0\ns_cbranch_scc0 %s' % (s(sW), sk))
        self('v_lshlrev_b32 %s, %d, %s' % (v(u0), sh, v(vL)))
        self('s_mov_b64 exec, 0x%x' % ((1 << nflags) - 1))
        self('s_mov_b32 %s, 0\n%s:' % (s(sCNT), lp))
        self('buffer_load_dwordx2 %s, %s, %s, %s offen sc1' % (v(u1, 2), v(u0), s(WS, 4), flag_soff))
        self('s_add_u32 %s, %s, 1' % (s(sCNT), s(sCNT)))
        self('s_waitcnt vmcnt(0)')
        self('v_cmp_ne_u64 vcc, %s, %s' % (s(sNON, 2), v(u1, 2)))
        self('s_cbranch_vccz %s_d' % lp)
        self('s_cmp_lt_u32 %s, %d\ns_cbranch_scc1 %s' % (s(sCNT), POLL_MAX, lp))
        self('%s_d:\ns_mov_b64 exec, -1\n%s:' % (lp, sk))
        self('s_barrier')

    def stamp(self, name, real=False):
        if self.o.get('padfrom') == name:
            self('s_memrealtime %s\ns_waitcnt lgkmcnt(0)' % s(sPT, 2))
            self.lg = []
        if not self.o.get('prof'):
            return
        if name not in self.names:
            self.names.append(name)
        k = self.names.index(name)
        assert k < 62
        self('s_memtime s[78:79]\ns_waitcnt lgkmcnt(0)\nv_writelane_b32 v255, s78, %d' % k)
        self.lg = []
        if self.o['prof'] == 2:
            self('s_memrealtime s[78:79]\ns_waitcnt lgkmcnt(0)\nv_writelane_b32 v254, s78, %d' % k)
        if real:
            self('s_memrealtime s[78:79]\ns_waitcnt lgkmcnt(0)\nv_writelane_b32 v255, s78, %d' % (62 if k == 0 else 63))

    def stamp_flush(self):
        if not self.o.get('prof'):
            return
        self('s_lshl_b32 %s, %s, 2\ns_add_u32 %s, %s, %s\ns_lshl_b32 %s, %s, 8\ns_add_u32 %s, %s, %d'
             % (s(t7), s(sB), s(t7), s(t7), s(sW), s(t7), s(t7), s(t7), s(t7), PROF))
        self('v_lshlrev_b32 v7, 2, v0\nbuffer_store_dword v255, v7, %s, %s offen' % (s(WS, 4), s(t7)))
        self('s_add_u32 %s, %s, 0x40000\nbuffer_store_dword v254, v7, %s, %s offen' % (s(t7), s(t7), s(WS, 4), s(t7)))

    def xhalf_add(self, r, tmp):
        self('v_mov_b32 %s, %s\nv_permlane32_swap_b32 %s, %s\nv_add_f32 %s, %s, %s'
             % (v(tmp), v(r), v(tmp), v(r), v(r), v(r), v(tmp)))

    def xhalf_add2(self, r, tmp):
        self('v_mov_b32 %s, %s\nv_mov_b32 %s, %s\ns_nop 0\nv_permlane32_swap_b32 %s, %s\nv_permlane32_swap_b32 %s, %s'
             % (v(tmp), v(r), v(tmp + 1), v(r + 1), v(tmp), v(r), v(tmp + 1), v(r + 1)))
        self('v_add_f32 %s, %s, %s\nv_add_f32 %s, %s, %s' % (v(r), v(r), v(tmp), v(r + 1), v(r + 1), v(tmp + 1)))

    def mean_rstd(self, vsum, vsq, n, mean, rstd):
        self('v_mul_f32 %s, %s, %s' % (v(mean), f32(1.0 / n), v(vsum)))
        self('v_mul_f32 %s, %s, %s' % (v(rstd), f32(1.0 / n), v(vsq)))
        self('v_fma_f32 %s, -%s, %s, %s' % (v(rstd), v(mean), v(mean), v(rstd)))
        self('v_max_f32 %s, 0, %s\nv_add_f32 %s, %s, %s' % (v(rstd), v(rstd), v(rstd), f32(1e-5), v(rstd)))
        self('v_rsq_f32 %s, %s' % (v(rstd), v(rstd)))

    def make_meanfrag(self, mean, tmp):
        self('v_sub_f32 %s, 0, %s\nv_cndmask_b32 %s, %s, 0, %s' % (v(tmp), v(mean), v(tmp), v(tmp), s(sHI, 2)))
        self('v_cvt_pk_bf16_f32 %s, %s, 0\nv_lshlrev_b32 %s, 16, %s' % (v(vMF + 1), v(tmp), v(vMF), v(vMF + 1)))
        self('v_sub_f32 %s, %s, %s\nv_cvt_pk_bf16_f32 %s, %s, %s' % (v(vMF), v(tmp), v(vMF), v(vMF), v(tmp), v(vMF)))
        self('v_mov_b32 %s, 0\nv_mov_b32 %s, 0' % (v(vMF + 2), v(vMF + 3)))

    def make_csfrag(self, cs, dst):
        self('v_cvt_pk_bf16_f32 %s, %s, %s\nv_and_b32 %s, 0xffff0000, %s' % (v(dst), v(cs), v(cs), v(dst + 1), v(dst)))
        self('v_sub_f32 %s, %s, %s\nv_cvt_pk_bf16_f32 %s, %s, 0' % (v(dst + 1), v(cs), v(dst + 1), v(dst + 1), v(dst + 1)))
        self('v_mov_b32 %s, 0\nv_mov_b32 %s, 0' % (v(dst + 2), v(dst + 3)))

    def colsum_put(self, c0, c1, xch):
        self('s_lshl_b32 %s, %s, 2\ns_add_u32 %s, %s, %d\nv_lshl_add_u32 %s, %s, 4, %s'
             % (s(t0), s(sW), s(t0), s(t0), xch, v(u0), v(vM), s(t0)))
        self.lgi('ds_write_b32 %s, %s' % (v(u0), v(c0)), 'csw')
        self.lgi('ds_write_b32 %s, %s offset:512' % (v(u0), v(c1)), 'csw')

    def colsum_part(self, base, bufs, acc, xch):
        self('s_mul_i32 %s, %s, 14336\ns_add_u32 %s, %s, %d' % (s(t0), s(sW), s(t0), s(t0), base))
        self('v_add_u32 %s, %s, %s\nv_add_u32 %s, %s, %s' % (v(u0), s(t0), v(vTRa), v(u1), s(t0), v(vTRb)))
        for q in range(7):
            for ct in range(2):
                self.trfrag(bufs[ct] + 4 * q, u0 + ct, q * 2048, 'cs%d' % q)
        for q in range(7):
            self.wlg('cs%d' % q)
            for ct in range(2):
                self.mfsum(acc + 4 * ct, bufs[ct] + 4 * q, q == 0)
        self.colsum_put(acc, acc + 4, xch)

    def colsum_get(self, buf, xch, dst):
        self('v_lshlrev_b32 %s, 4, %s' % (v(u0), v(vM)))
        self('v_add_u32 %s, %d, %s' % (v(u0), xch, v(u0)))
        for ct in range(2):
            self.lgi('ds_read_b128 %s, %s offset:%d' % (v(buf + 4 * ct, 4), v(u0), ct * 512), 'csr')
        self.wlg('csr')
        for ct in range(2):
            b = buf + 4 * ct
            self('v_add_f32 %s, %s, %s\nv_add_f32 %s, %s, %s\nv_add_f32 %s, %s, %s'
                 % (v(b), v(b), v(b + 1), v(b + 2), v(b + 2), v(b + 3), v(b), v(b), v(b + 2)))
            self.make_csfrag(b, dst + 4 * ct)

    def rowtile_dma_addrs(self, stride, vd, sbase):
        self('v_lshrrev_b32 %s, 3, %s\nv_mul_u32_u24 %s, %d, %s' % (v(u0), v(vL), v(u0), stride, v(u0)))
        self('v_lshrrev_b32 %s, 4, %s\nv_xor_b32 %s, %s, %s\nv_and_b32 %s, 7, %s'
             % (v(u1), v(vL), v(u1), v(u1), v(vL), v(u1), v(u1)))
        self('v_lshl_add_u32 %s, %s, 4, %s\nv_xor_b32 %s, 64, %s' % (v(u0), v(u1), v(u0), v(u1), v(u0)))
        self('v_add_u32 %s, %s, %s\nv_add_u32 %s, %s, %s' % (v(vd), sbase, v(u0), v(u1), sbase, v(u1)))
        d = 8 * stride - 1024
        self('v_add_u32 %s, %d, %s\nv_add_u32 %s, %d, %s\nv_add_u32 %s, %d, %s'
             % (v(vd + 1), d, v(u1), v(vd + 2), 2 * d, v(vd), v(vd + 3), 3 * d, v(u1)))

    def rowtile_read_addrs(self, vr, sbase, sxor=None):
        self('v_bfe_u32 %s, %s, 1, 3\nv_xor_b32 %s, %s, %s' % (v(u1), v(vM), v(u1), v(u1), v(vH)))
        self('v_lshlrev_b32 %s, 4, %s\nv_lshl_add_u32 %s, %s, 7, %s' % (v(u1), v(u1), v(u1), v(vM), v(u1)))
        if sxor:
            self('v_xor_b32 %s, %s, %s' % (v(u1), sxor, v(u1)))
        for k in range(4):
            self('v_xor_b32 %s, %d, %s\nv_add_u32 %s, %s, %s' % (v(vr + k), 32 * k, v(u1), v(vr + k), sbase, v(vr + k)))

    def gelu_consts(self):
        self('v_mul_f32 %s, %s, %s\nv_mul_f32 %s, %s, %s\nv_rcp_f32 %s, %s' % (v(u7), s(sK0), v(vRS), v(u8), v(vRS), v(vRS), v(vGI), v(vRS)))
        self('v_mul_f32 %s, %s, %s\nv_mul_f32 %s, %s, %s' % (v(u8), v(u8), v(vRS), v(u8), s(sK1), v(u8)))

    def gelu(self, x, n, tmp, nbg):
        for b in range(0, n, 8):
            for k in range(0, 8, 2):
                self('v_pk_mul_f32 %s, %s, %s' % (v(tmp + k, 2), v(x + b + k, 2), v(x + b + k, 2)))
            for k in range(0, 8, 2):
                self('v_pk_fma_f32 %s, %s, %s, %s op_sel:[0,1,0] op_sel_hi:[1,1,0]' % (v(tmp + k, 2), v(tmp + k, 2), v(u7, 2), v(u7, 2)))
            for k in range(0, 8, 2):
                self('v_pk_mul_f32 %s, %s, %s' % (v(tmp + k, 2), v(tmp + k, 2), v(x + b + k, 2)))
            for k in range(8):
                self('v_exp_f32 %s, %s' % (v(tmp + k), v(tmp + k)))
            for k in range(0, 8, 2):
                self('v_pk_fma_f32 %s, %s, %s, %s op_sel_hi:[1,0,0]' % (v(tmp + k, 2), v(tmp + k, 2), v(vGI, 2), v(vGI, 2)))
            for k in range(8):
                self('v_rcp_f32 %s, %s' % (v(tmp + k), v(tmp + k)))
            self.bg(nbg)
            for k in range(0, 8, 2):
                self('v_pk_mul_f32 %s, %s, %s' % (v(x + b + k, 2), v(x + b + k, 2), v(tmp + k, 2)))

    def scale(self, x, n, r):
        e = r & ~1
        sel = 'op_sel:[0,1] op_sel_hi:[1,1]' if r & 1 else 'op_sel_hi:[1,0]'
        for k in range(0, n, 2):
            self('v_pk_mul_f32 %s, %s, %s %s' % (v(x + k, 2), v(x + k, 2), v(e, 2), sel))

    def pack(self, dst, x, n):
        for k in range(0, n, 2):
            self('v_cvt_pk_bf16_f32 %s, %s, %s' % (v(dst + k // 2), v(x + k), v(x + k + 1)))

    XF, ACC1, GR, SUM, CSA, XD, XR, WD, WT, QD, NONV, SAD, TB = 16, 128, 160, 176, 180, 188, 192, 196, 198, 206, 208, 210, 214
    sROT = 49

    def prologue(self):
        XD, WD = self.XD, self.WD
        self('s_cmp_ge_u32 s2, 256\ns_cbranch_scc1 L_end')
        self.stamp('start', True)
        self('s_load_dwordx16 s[4:19], s[0:1], 0\ns_load_dwordx4 s[20:23], s[0:1], 64\ns_load_dwordx2 s[24:25], s[0:1], 80')
        self('v_lshrrev_b32 v1, 6, v0\nv_and_b32 v0, 63, v0\nv_readfirstlane_b32 %s, v1\ns_mov_b32 %s, s2' % (s(sW), s(sB)))
        if self.o.get('map', 'local') == 'q48':
            self('s_bfe_u32 %s, s2, 0x20001\ns_lshl_b32 %s, %s, 2\ns_lshr_b32 %s, s2, 6\ns_add_u32 %s, %s, %s'
                 % (s(t0), s(t0), s(t0), s(t1), s(sRB), s(t0), s(t1)))
            self('s_bfe_u32 %s, s2, 0x30003\ns_lshl_b32 %s, %s, 1\ns_and_b32 %s, s2, 1\ns_add_u32 %s, %s, %s'
                 % (s(sCB), s(t0), s(sCB), s(t2), s(sI), s(t0), s(t2)))
            self('s_lshl_b32 %s, %s, 1\ns_add_u32 %s, %s, %s' % (s(t1), s(t1), s(t1), s(t1), s(sCB)))
        else:
            self('s_and_b32 %s, s2, 7\ns_lshl_b32 %s, %s, 1\ns_lshr_b32 %s, s2, 7\ns_add_u32 %s, %s, %s'
                 % (s(t0), s(t0), s(t0), s(t1), s(sRB), s(t0), s(t1)))
            self('s_bfe_u32 %s, s2, 0x40003\ns_lshr_b32 %s, %s, 1\ns_mul_i32 %s, %s, 3\ns_add_u32 %s, %s, %s'
                 % (s(sI), s(sCB), s(sI), s(t1), s(t1), s(t1), s(t1), s(sCB)))
        if self.o.get('xrot', 2):
            self('s_and_b32 %s, s2, 7\ns_mul_i32 %s, %s, %d\ns_add_u32 %s, %s, %s' % (s(t0), s(t0), s(t0), self.o.get('xrot', 2), s(t1), s(t1), s(t0)))
        self('s_mul_i32 %s, %s, 37\ns_lshr_b32 %s, %s, 8\ns_mul_i32 %s, %s, 7\ns_sub_u32 %s, %s, %s'
             % (s(t0), s(t1), s(t0), s(t0), s(t0), s(t0), s(self.sROT), s(t1), s(t0)))
        self('s_lshl_b32 %s, %s, 2\ns_add_u32 %s, %s, %s\ns_mul_i32 %s, %s, %d' % (s(sT), s(sRB), s(sT), s(sT), s(sW), s(t2), s(sT), 32 * 896))
        self.rowtile_dma_addrs(896, XD, s(t2))
        self('v_lshrrev_b32 %s, 3, v0\nv_mul_u32_u24 %s, 2688, %s\nv_bfe_u32 %s, v0, 4, 1\nv_lshlrev_b32 %s, 2, %s'
             % (v(u0), v(u0), v(u0), v(u1), v(u1), v(u1)))
        self('v_xor_b32 %s, %s, v0\nv_and_b32 %s, 7, %s\nv_lshl_add_u32 %s, %s, 4, %s' % (v(u1), v(u1), v(u1), v(u1), v(u0), v(u1), v(u0)))
        self('s_mul_i32 %s, %s, 43008\ns_lshl_b32 %s, %s, 7\ns_add_u32 %s, %s, %s\ns_add_u32 %s, %s, 896\ns_lshl_b32 %s, %s, 11'
             % (s(t0), s(sW), s(t1), s(sI), s(t0), s(t0), s(t1), s(t0), s(t0), s(t3), s(sW)))
        self('v_add_u32 %s, %s, %s\nv_add_u32 %s, %d, %s' % (v(WD), s(t0), v(u0), v(WD + 1), 8 * 2688 - 1024, v(WD)))
        self('s_mul_i32 %s, %s, 12288\ns_add_u32 %s, %s, %d' % (s(t4), s(sW), s(t4), s(t4), XB))
        self('s_mov_b32 %s, 0x%x\ns_mov_b32 %s, 0x20000\ns_mov_b32 %s, 0x%x\ns_mov_b32 %s, 0x20000'
             % (s(SA + 2), 2048 * 896, s(SA + 3), s(SB + 2), 448 * 2688, s(SB + 3)))
        self('s_mov_b32 %s, %s' % (s(t5), s(self.sROT)))
        self('s_waitcnt lgkmcnt(0)')
        self('s_mov_b32 %s, %s\ns_mov_b32 %s, %s\ns_mov_b32 %s, %s\ns_mov_b32 %s, %s'
             % (s(SA), s(P_X), s(SA + 1), s(P_X + 1), s(SB), s(P_WQKV), s(SB + 1), s(P_WQKV + 1)))
        self.srd(SC, P_DBG, 256)
        sk = self.lab('non')
        self('s_or_b32 %s, %s, %s\ns_cbranch_scc1 %s' % (s(t0), s(sB), s(sW), sk))
        self('s_memrealtime %s\ns_waitcnt lgkmcnt(0)\ns_lshl_b64 %s, %s, 4\ns_or_b32 %s, %s, 0x80000000' % (s(t6, 2), s(t6, 2), s(t6, 2), s(t7), s(t7)))
        self('v_mov_b32 %s, %s\nv_mov_b32 %s, %s\nv_lshlrev_b32 %s, 3, v0\ns_mov_b64 exec, 255' % (v(u1), s(t6), v(u2), s(t7), v(u0)))
        self('buffer_store_dwordx2 %s, %s, %s, 0 offen sc1\ns_mov_b64 exec, -1\n%s:' % (v(u1, 2), v(u0), s(SC, 4), sk))

    def setup2(self):
        XR, WT, QD = self.XR, self.WT, self.QD
        self.srd(WS, P_WS, WS_BYTES)
        lp = self.lab('pc')
        self('s_getpc_b64 %s\n%s:\ns_sub_u32 %s, %s, %s-%s_kernel\ns_subb_u32 %s, %s, 0' % (s(84, 2), lp, s(84), s(84), lp, NAME, s(85), s(85)))
        self('s_mov_b32 s86, L_code_end-%s_kernel\ns_mov_b32 s87, 0x20000' % NAME)
        self('s_lshr_b32 %s, %s, 3\ns_lshl_b32 %s, %s, 2\ns_add_u32 %s, %s, %s\ns_lshl_b32 %s, %s, 9\nv_lshlrev_b32 %s, 3, v0'
             % (s(t0), s(sB), s(t0), s(t0), s(t0), s(t0), s(sW), s(t0), s(t0), v(u0)))
        self.load(250, u0, 84, s(t0), 0, 'code', n=2, sc1=False, pfx='a')
        self('s_getreg_b32 %s, hwreg(HW_REG_XCC_ID, 0, 4)' % s(sXCC))
        self('s_mov_b32 %s, 0\ns_mov_b32 %s, -1\ns_mov_b32 %s, 0x3f803f80' % (s(sHI), s(sHI + 1), s(sONE2)))
        k0 = -2.0 * math.sqrt(2.0 / math.pi) * math.log2(math.e)
        self('s_mov_b32 %s, %s' % (s(sK0), f32(k0)))
        self('s_mov_b32 %s, %s\ns_mov_b32 %s, %s' % (s(sK1), f32(k0 * 0.044715), s(sK1 + 1), f32(k0 * 0.044715)))
        self('s_lshl_b32 %s, %s, 4\ns_add_u32 %s, %s, %s\ns_lshl_b32 %s, %s, 3' % (s(sFID), s(sRB), s(sFID), s(sFID), s(sI), s(sFID), s(sFID)))
        self('s_and_b32 %s, %s, 1\ns_lshl_b32 %s, %s, 1\ns_lshr_b32 %s, %s, 1' % (s(t1), s(sI), s(t1), s(t1), s(sKH), s(sW)))
        self('s_lshl_b32 %s, %s, 2\ns_add_u32 %s, %s, %s\ns_and_b32 %s, %s, 1\ns_add_u32 %s, %s, %s'
             % (s(sT3), s(sRB), s(sT3), s(sT3), s(t1), s(t0), s(sW), s(sT3), s(sT3), s(t0)))
        self('v_lshrrev_b32 %s, 5, v0\nv_and_b32 %s, 31, v0\nv_lshlrev_b32 %s, 4, v0' % (v(vH), v(vM), v(vL16)))
        self('v_bfe_u32 %s, v0, 2, 2\nv_lshl_add_u32 %s, %s, 3, %s\nv_lshlrev_b32 %s, 7, %s'
             % (v(u0), v(u1), v(vH), v(u0), v(vTRa), v(u1)))
        self('v_bfe_u32 %s, v0, 4, 1\nv_and_b32 %s, 1, v0\nv_lshl_add_u32 %s, %s, 1, %s' % (v(u1), v(u2), v(u1), v(u1), v(u2)))
        self('v_bfe_u32 %s, v0, 3, 1\nv_lshlrev_b32 %s, 2, %s\nv_xor_b32 %s, %s, %s' % (v(u2), v(u2), v(u2), v(u2), v(u2), v(u1)))
        self('v_lshl_add_u32 %s, %s, 4, %s\nv_bfe_u32 %s, v0, 1, 1\nv_lshl_add_u32 %s, %s, 3, %s'
             % (v(vTRa), v(u2), v(vTRa), v(u2), v(vTRa), v(u2), v(vTRa)))
        self('v_xor_b32 %s, 64, %s' % (v(vTRb), v(vTRa)))
        self('v_and_b32 %s, 0x13, %s\nv_bfe_u32 %s, v0, 2, 1\nv_lshl_or_b32 %s, %s, 3, %s'
             % (v(vPM), v(vM), v(u0), v(vPM), v(u0), v(vPM)))
        self('v_bfe_u32 %s, v0, 3, 1\nv_lshl_or_b32 %s, %s, 2, %s' % (v(u1), v(vPM), v(u1), v(vPM)))
        self('v_bfe_u32 %s, v0, 4, 1\nv_cmp_eq_u32 vcc, %s, %s\nv_mov_b32 %s, %s\nv_cndmask_b32 %s, 0, %s, vcc'
             % (v(u1), v(u0), v(u1), v(u1), s(sONE2), v(u1), v(u1)))
        for k in range(4):
            self('v_accvgpr_write_b32 a%d, %s' % (252 + k, v(u1)))
        self('s_lshl_b32 %s, %s, 5' % (s(t1), s(sW)))
        self.rowtile_read_addrs(XR, s(t4), s(t1))
        for k in range(4):
            self('s_xor_b32 %s, %s, %d\nv_or_b32 %s, %s, %s\nv_or_b32 %s, %s, %s'
                 % (s(t0), s(t3), k * 2048, v(WT + 2 * k), s(t0), v(vTRa), v(WT + 2 * k + 1), s(t0), v(vTRb)))
        self('s_mul_i32 %s, %s, 56\ns_and_b32 %s, %s, 1\ns_lshl_b32 %s, %s, 3\ns_sub_u32 %s, %s, %s'
             % (s(t0), s(sI), s(t1), s(sI), s(t1), s(t1), s(t0), s(t0), s(t1)))
        self('v_lshrrev_b32 %s, 2, v0\nv_mul_u32_u24 %s, 2688, %s\nv_and_b32 %s, 3, v0\nv_lshl_add_u32 %s, %s, 4, %s'
             % (v(u0), v(u0), v(u0), v(u1), v(QD), v(u1), v(u0)))
        self('s_mul_i32 %s, %s, 43008\ns_add_u32 %s, %s, %s\nv_add_u32 %s, %s, %s\ns_lshl_b32 s82, %s, 10'
             % (s(t1), s(sW), s(t0), s(t0), s(t1), v(QD), s(t0), v(QD), s(sW)))

    def p1_variant(self, kind):
        XF, ACC, GR, SUM, CSA, XD, XR, WD, WT, QD, NONV, SAD, TB = (
            self.XF, self.ACC1, self.GR, self.SUM, self.CSA, self.XD, self.XR, self.WD, self.WT, self.QD,
            self.NONV, self.SAD, self.TB)
        kv = kind != 'N'

        def wreg(j, k, ct):
            return 32 * (j & 1) + 8 * k + 4 * ct

        def step(reg):
            self('s_add_u32 %s, %s, 1\ns_cmp_eq_u32 %s, 7\ns_cselect_b32 %s, 0, %s' % (s(reg), s(reg), s(reg), s(reg), s(reg)))

        def block_ops(j):
            ops = []
            if kv:
                def w_():
                    self('s_add_u32 m0, %s, %d\ns_mul_i32 %s, %s, %d' % (s(t3), j * 8192, s(t0), s(t5), 64 * 2688))
                    self.dma(WD, SB, s(t0), 0, 'B%d' % j)
                ops += [w_, lambda: self.dma(WD + 1, SB, s(t0), 1024, 'B%d' % j)]

            def x_():
                self('s_add_u32 m0, %s, %d\ns_lshl_b32 %s, %s, 7' % (s(t4), (j % 3) * 4096, s(t0), s(t5)))
                self.dma(XD, SA, s(t0), 0, 'B%d' % j)
            ops.append(x_)
            for rg in range(1, 4):
                ops.append(lambda rg=rg: self.dma(XD + rg, SA, s(t0), rg * 1024, 'B%d' % j))
            ops.append(lambda: step(t5))
            return ops

        def wq_op(j):
            self('s_add_u32 m0, s82, %d\ns_mul_i32 %s, %s, %d' % (WQB + j * 4096, s(t0), s(t5), 64 * 2688))
            self.dma(QD, SB, s(t0), 0, 'WQ')
            step(t5)
        if kind == 'C':
            self.q = block_ops(0) + block_ops(1)
            self.bg(99)
            self.stamp('p1dma')
            keep = list(self.vm)
            self.setup2()
            self.vm = keep + ['code']
            return
        if kind == 'K':
            self('s_lshl_b32 %s, %s, 3\nv_add_u32 %s, %s, %s\ns_mov_b32 %s, 225792\ns_mul_i32 %s, %s, 3584\ns_add_u32 %s, %s, %d'
                 % (s(t0), s(sI), v(u0), s(t0), v(vH), s(t1), s(t2), s(sT), s(t2), s(t2), KF))
            for k in range(4):
                self('v_add_u32 %s, %d, %s\nv_mul_u32_u24 %s, 37, %s\nv_lshrrev_b32 %s, 8, %s'
                     % (v(u1), 2 * k, v(u0), v(u2), v(u1), v(u2), v(u2)))
                self('v_mul_lo_u32 %s, %s, %s\nv_lshl_add_u32 %s, %s, 9, %s\nv_lshl_add_u32 %s, %s, 4, %s'
                     % (v(u2), v(u2), s(t1), v(u2), v(u1), v(u2), v(SAD + k), v(vM), v(u2)))
        elif kind == 'V':
            self('s_sub_u32 %s, %s, 7\ns_lshl_b32 %s, %s, 6\ns_mov_b32 %s, %d\ns_mul_i32 %s, %s, 1792\ns_add_u32 %s, %s, %d'
                 % (s(t0), s(sI), s(t0), s(t0), s(t1), 114688 - 448, s(t2), s(sT), s(t2), s(t2), VF))
            for ct in range(2):
                self('v_add_u32 %s, %s, %s\nv_add_u32 %s, %d, %s\nv_mul_u32_u24 %s, 2341, %s\nv_lshrrev_b32 %s, 16, %s'
                     % (v(u2), s(t0), v(vPM), v(u2), 32 * ct, v(u2), v(u3), v(u2), v(u3), v(u3)))
                self('v_mul_lo_u32 %s, %s, %s\nv_lshl_add_u32 %s, %s, 4, %s\nv_mul_u32_u24 %s, 448, %s\nv_add_u32 %s, %s, %s'
                     % (v(u3), v(u3), s(t1), v(u3), v(u2), v(u3), v(u2), v(vH), v(SAD + ct), v(u3), v(u2)))
            self('s_lshl_b32 %s, %s, 7\ns_add_u32 %s, %s, %d' % (s(t0), s(sW), s(t0), s(t0), RSX))
            self('v_lshl_add_u32 %s, %s, 2, %s\nv_lshl_add_u32 %s, %s, 4, %s' % (v(SAD + 2), v(vM), s(t0), v(SAD + 3), v(vH), s(t0)))
        XS, XG = TB, TB + 8
        xst = kv and self.o.get('xst', 1)
        if xst:
            self('s_lshl_b32 s88, %s, 13\ns_add_u32 s88, s88, %d\ns_lshl_b32 %s, %s, 9\ns_add_u32 s89, s88, %s'
                 % (s(sT), XST, s(t6), s(sI), s(t6)))
            self('s_and_b32 %s, %s, 512\ns_add_u32 s88, s88, %s\nv_lshlrev_b32 %s, 4, %s' % (s(t6), s(t6), s(t6), v(XS + 4), v(vM)))
            self('v_lshl_add_u32 %s, %s, 12, %s\nv_mul_u32_u24 %s, 3072, %s\nv_add_u32 %s, %s, %s'
                 % (v(XG), v(vH), v(XS + 4), v(XG + 1), v(vH), v(XG + 1), v(XG + 1), v(XS + 4)))
        self.stamp('p1iss')

        def stat_mf(j, k):
            x_ = XF + 16 * j + 4 * k
            first = j == 0 and k == 0
            return [lambda: self.mfma(GR, x_, x_, None if first else GR), lambda: self.mfsum(SUM, x_, first)]

        def main_mf(j, k):
            x_ = XF + 16 * j + 4 * k
            out = []
            for ct in range(2):
                def f(ct=ct):
                    c = None if j == 0 and k == 0 else ACC + 16 * ct
                    if ct == 0:
                        self.wlg('w%d_%d' % (j, k))
                    if kind == 'K':
                        self.mfma(ACC + 16 * ct, wreg(j, k, ct), x_, c, pa='a')
                    else:
                        self.mfma(ACC + 16 * ct, x_, wreg(j, k, ct), c, pb='a')
                out.append(f)
            return out

        def cs_mf(j):
            return [lambda ct=ct: self.mfsum(CSA + 4 * ct, wreg(j, 0, ct), j == 0, pb='a') for ct in range(2)]

        def side_ops(j):
            def head():
                self.wvm('B%d' % j)
                if kv:
                    self('s_barrier')
            side = [head]
            for k in range(4):
                side.append(lambda k=k: self.lgi('ds_read_b128 %s, %s offset:%d' % (
                    v(XF + 16 * j + 4 * k, 4), v(XR + k), (j % 3) * 4096), 'xf%d' % j))
            dm = block_ops(j + 2) if j + 2 < 7 else [lambda q=q: wq_op(q) for q in (range(4) if j == 5 else range(4, 7))]
            if j == (1 if xst else 3):
                def non():
                    self('v_mov_b32 %s, 0' % v(NONV))
                    self.load(NONV, NONV, SC, '0', 0, 'nonl', n=2)
                dm.insert(0, non)
            if xst and j == 6:
                dm = [lambda q=q: self.load(GR + 4 * q, XG + (q == 3), WS, 's88', q * 1024, 'xg') for q in range(4)] + dm
            if kv:
                for k in range(4):
                    for ct in range(2):
                        def rd(k=k, ct=ct):
                            w_ = wreg(j, k, ct)
                            for e in range(2):
                                self.lgi('ds_read_b64_tr_b16 a[%d:%d], %s offset:%d' % (
                                    w_ + 2 * e, w_ + 2 * e + 1, v(WT + 2 * k + ct), j * 8192 + 512 * e), 'w%d_%d' % (j, k))
                        side.append(rd)
                        if dm:
                            side.append(dm.pop(0))
            return side + dm
        self.q = side_ops(0)
        self.bg(99)
        for j in range(7):
            if j in (0, 3, 6):
                self.stamp('p1x%d' % j)
            self.wlg('xf%d' % j)
            self.q = side_ops(j + 1) if j < 6 else []
            seq = []
            if xst:
                for k in range(4):
                    st = stat_mf(j, k) if j == 0 else []
                    seq += st[:1] + main_mf(j, k) + st[1:]
                    if k == 0:
                        seq += cs_mf(j)
                if j == 1:
                    self.fill = self.cap(lambda: (self.diag(GR, XS + 1), self('v_mov_b32 %s, %s' % (v(XS), v(SUM)))))
                if j == 3:
                    self.drip(99)
                    self.wvm('nonl')
                    self.retry('v_cmp_eq_u32 vcc, 0, %s' % v(NONV + 1),
                               'v_mov_b32 %s, 0\nbuffer_load_dwordx2 %s, %s, %s, 0 offen sc1' % (v(NONV), v(NONV, 2), v(NONV), s(SC, 4)))
                    self('v_readfirstlane_b32 %s, %s\nv_readfirstlane_b32 %s, %s' % (s(sNON), v(NONV), s(sNON + 1), v(NONV + 1)))
                    self('v_mov_b32 %s, %s\nv_mov_b32 %s, %s\ns_not_b64 exec, %s' % (v(XS + 2), v(NONV), v(XS + 3), v(NONV + 1), s(sHI, 2)))
                    self.store(XS, XS + 4, WS, 's89', 0, 'xs')
                    self('s_mov_b64 exec, -1')
                if j == 6:
                    for f in seq[:6]:
                        f()
                    seq = seq[6:]
                    self.colsum_put(CSA, CSA + 4, MISC)
                    self('v_lshlrev_b32 %s, 4, %s\nv_add_u32 %s, %d, %s' % (v(u0), v(vM), v(u0), MISC, v(u0)))
                    self.wlg()
                    self('s_barrier')
                    for ct in range(2):
                        self.lgi('ds_read_b128 %s, %s offset:%d' % (v(CSA + 4 * ct, 4), v(u0), ct * 512), 'csr')
                    self.wvm('xg')
                    test = ''
                    for q in range(4):
                        test += 'v_cmp_ne_u64 %s, %s, %s\n' % (('vcc', s(t0, 2), 's[90:91]', s(t6, 2))[q], s(sNON, 2), v(GR + 4 * q + 2, 2))
                    test += 's_or_b64 %s, %s, s[90:91]\ns_or_b64 vcc, vcc, %s\ns_or_b64 vcc, vcc, %s' % (s(t0, 2), s(t0, 2), s(t6, 2), s(t0, 2))
                    self.retry(test, '\n'.join('buffer_load_dwordx4 %s, %s, %s, s88 offen offset:%d sc1'
                                               % (v(GR + 4 * q, 4), v(XG + (q == 3)), s(WS, 4), q * 1024) for q in range(4)))

                    def fin():
                        for e in range(2):
                            self('v_cndmask_b32 %s, %s, 0, %s\nv_add_f32 %s, %s, %s\nv_add_f32 %s, %s, %s\nv_add_f32 %s, %s, %s'
                                 % (v(GR + 12 + e), v(GR + 12 + e), s(sHI, 2), v(GR + e), v(GR + e), v(GR + 4 + e),
                                    v(GR + 8 + e), v(GR + 8 + e), v(GR + 12 + e), v(GR + e), v(GR + e), v(GR + 8 + e)))
                        self.xhalf_add2(GR, GR + 2)
                        self.mean_rstd(GR, GR + 1, 448, u3, vRS)
                        self.make_meanfrag(u3, u4)

                    def csf():
                        for ct in range(2):
                            b = CSA + 4 * ct
                            self('v_add_f32 %s, %s, %s\nv_add_f32 %s, %s, %s\nv_add_f32 %s, %s, %s'
                                 % (v(b), v(b), v(b + 1), v(b + 2), v(b + 2), v(b + 3), v(b), v(b), v(b + 2)))
                            self.make_csfrag(b, vCS2 + 4 * ct)
                    self.fill = self.cap(fin)
                    tail = self.cap(csf)
                for g, f in enumerate(seq):
                    f()
                    if g >= 1 or j == 6:
                        self.bg(3 if j else 2)
                        self.drip(6 if j == 6 else 2)
                self.bg(99)
                if j == 6:
                    self.drip(99)
                    if kind == 'V':
                        self.lgi('ds_write_b32 %s, %s' % (v(SAD + 2), v(vRS)), 'rs')
                    self.wlg('csr')
                    self('\n'.join(tail))
            elif j < 6:
                for k in range(4):
                    st = stat_mf(j, k)
                    seq += ([st[0]] + main_mf(j, k) + [st[1]]) if kv else st
                    if kv and k == 0:
                        seq += cs_mf(j)
                for g, f in enumerate(seq):
                    f()
                    if g >= 1:
                        self.bg(2)
                self.bg(99)
            else:
                for k in range(4):
                    for f in stat_mf(j, k):
                        f()
                if kv:
                    self.wlg('w6_0')
                    for f in cs_mf(j):
                        f()
                hold, self.a = self.a, Asm()
                self.diag(GR, u2)
                self.mean_rstd(SUM, u2, 448, u3, vRS)
                self.make_meanfrag(u3, u4)
                tail = [x.text for x in self.a.L]
                self.a = hold
                if kv:
                    mm = sum((main_mf(j, k) for k in range(4)), [])
                    mm[0]()
                    mm[1]()
                    self.colsum_put(CSA, CSA + 4, MISC)
                    for g in range(2, 8):
                        mm[g]()
                        self('\n'.join(tail[6 * (g - 2):6 * (g - 2) + 6]))
                    self('\n'.join(tail[36:]))
                else:
                    self('\n'.join(tail))
        self.stamp('p1mm')
        if not kv:
            self('s_lshl_b32 %s, %s, 1\ns_add_u32 %s, %s, %s\ns_sub_u32 %s, %s, 14\ns_lshl_b32 %s, %s, 2\ns_add_u32 %s, %s, %s'
                 % (s(t0), s(sRB), s(t0), s(t0), s(sI), s(t0), s(t0), s(t0), s(t0), s(t0), s(t0), s(sW)))
            self.srd(SA, P_WO, 448 * 896)
            self('s_lshl_b32 %s, %s, 12' % (s(t1), s(t0)))
            for q in range(4):
                self.load(64 + 4 * q, vL16, SA, s(t1), q * 1024, 'pf', sc1=False, pfx='a')
            self.srd(SA, P_WIN, 448 * 3584)
            self('s_mul_i32 %s, %s, 13312' % (s(t1), s(t0)))
            for q in range(13):
                if q and q % 4 == 0:
                    self('s_add_u32 %s, %s, 4096' % (s(t1), s(t1)))
                self.load(80 + 4 * q, vL16, SA, s(t1), (q % 4) * 1024, 'pf', sc1=False, pfx='a')
            return
        if kind == 'V' and not xst:
            self.lgi('ds_write_b32 %s, %s' % (v(SAD + 2), v(vRS)), 'rs')
        self.wlg()
        if not xst:
            self('s_barrier')
        if kind == 'V':
            for g in range(4):
                self.lgi('ds_read_b128 %s, %s offset:%d' % (v(TB + 4 * g, 4), v(SAD + 3), 32 * g), 'rs')
        if not xst:
            self.colsum_get(GR, MISC, vCS2)
        for ct in range(2):
            if kind == 'K':
                self.mfma(ACC + 16 * ct, vCS2 + 4 * ct, vMF, ACC + 16 * ct)
            else:
                self.mfma(ACC + 16 * ct, vMF, vCS2 + 4 * ct, ACC + 16 * ct)
        self.wlg()
        for c in range(4):
            if kind == 'K':
                self.scale(ACC + 8 * c, 8, vRS)
            else:
                for k in range(0, 8, 2):
                    r = ACC + 8 * c + k
                    self('v_pk_mul_f32 %s, %s, %s' % (v(r, 2), v(r, 2), v(TB + 8 * (c & 1) + k, 2)))
            self.pack(GR + 4 * c, ACC + 8 * c, 8)
            if kind == 'K':
                self.store(GR + 4 * c, SAD + c, WS, s(t2), 0, 'st')
            else:
                self.store(GR + 4 * c, SAD + (c >> 1), WS, s(t2), (c & 1) * 896, 'st')

    def diag(self, g, dst):
        masks = (0xaaaaaaaa, 0xcccccccc, 0xff00ff00, 0xffff0000)
        n = 16
        for m in masks:
            self('s_mov_b32 vcc_lo, 0x%x\ns_mov_b32 vcc_hi, 0x%x' % (m, m))
            n //= 2
            for k in range(n):
                self('v_cndmask_b32 %s, %s, %s, vcc' % (v(g + k), v(g + 2 * k), v(g + 2 * k + 1)))
        self('v_mov_b32 %s, %s\ns_mov_b32 vcc_lo, 0xf0f0f0f0\ns_mov_b32 vcc_hi, 0xf0f0f0f0\nv_permlane32_swap_b32 %s, %s'
             % (v(g + 1), v(g), v(g), v(g + 1)))
        self('v_cndmask_b32 %s, %s, %s, vcc' % (v(dst), v(g), v(g + 1)))

    def p1(self):
        XF, ACC, GR, SUM, WT, NONV, TB = self.XF, self.ACC1, self.GR, self.SUM, self.WT, self.NONV, self.TB
        self.p1_variant('C')
        vm0 = list(self.vm)
        self('s_cmp_ge_u32 %s, 14\ns_cbranch_scc1 L_p1_N\ns_cmp_ge_u32 %s, 7\ns_cbranch_scc1 L_p1_V' % (s(sI), s(sI)))
        for kind in 'KVN':
            self('L_p1_%s:' % kind)
            self.vm, self.lg = list(vm0), []
            self.p1_variant(kind)
            if kind != 'N':
                self('s_branch L_p1_join')
        self('L_p1_join:')
        self.stamp('p1st')
        EC = self.o.get('ec', 5)
        self.vm = ['any']
        if EC:
            self.cold_setup()
            self.bg(EC)
            rest = self.q
        lp = self.lab('tag')
        self('s_mov_b32 %s, 0\ns_lshl_b32 %s, %s, 3\ns_add_u32 %s, %s, %d\ns_waitcnt vmcnt(%d)\n%s:' % (s(sCNT), s(t5), s(sFID), s(t5), s(t5), FLAG1, EC, lp))
        self('v_readfirstlane_b32 %s, %s\nv_readfirstlane_b32 %s, %s' % (s(sNON), v(NONV), s(sNON + 1), v(NONV + 1)))
        self('s_cmp_lg_u32 %s, 0\ns_cbranch_scc1 %s_d' % (s(sNON + 1), lp))
        self('v_mov_b32 %s, 0\nbuffer_load_dwordx2 %s, %s, %s, 0 offen sc1' % (v(u0), v(NONV, 2), v(u0), s(SC, 4)))
        self('s_add_u32 %s, %s, 1\ns_waitcnt vmcnt(0)\ns_cmp_lt_u32 %s, %d\ns_cbranch_scc1 %s\n%s_d:'
             % (s(sCNT), s(sCNT), s(sCNT), POLL_MAX, lp, lp))
        self.vm, self.lg = self.vm[1:], []
        self.publish(s(t5), xcc=True, drain=False)
        self.stamp('p1pub')
        self('s_lshl_b32 %s, %s, 10\ns_add_u32 %s, %s, %d' % (s(t0), s(sB), s(t0), s(t0), ONES))
        for k in range(4):
            self('v_mov_b32 %s, %s' % (v(TB + k), s(sONE2)))
        self.store(TB, vL16, WS, s(t0), 0, 'ones')
        self('v_bfe_u32 %s, v0, 2, 2\nv_lshl_add_u32 %s, %s, 3, %s\nv_lshlrev_b32 %s, 6, %s' % (v(u0), v(u0), v(vH), v(u0), v(u0), v(u0)))
        self('v_bfe_u32 %s, v0, 4, 1\nv_lshl_add_u32 %s, %s, 5, %s\nv_and_b32 %s, 1, v0\nv_lshl_add_u32 %s, %s, 4, %s'
             % (v(u1), v(u0), v(u1), v(u0), v(u1), v(u0), v(u1), v(u0)))
        self('v_bfe_u32 %s, v0, 1, 1\nv_lshl_add_u32 %s, %s, 3, %s' % (v(u1), v(u0), v(u1), v(u0)))
        for k in range(4):
            self('s_xor_b32 %s, %s, %d\ns_lshl_b32 %s, %s, 10\ns_add_u32 %s, %s, %d\nv_add_u32 %s, %s, %s'
                 % (s(t0), s(sW), k, s(t0), s(t0), s(t0), s(t0), WQB, v(WT + k), s(t0), v(u0)))

        def qrd(j, k):
            for e in range(2):
                r = 16 * (j & 1) + 4 * k + 2 * e
                self.lgi('ds_read_b64_tr_b16 a[%d:%d], %s offset:%d' % (r, r + 1, v(WT + k), j * 4096 + 256 * e), 'q%d_%d' % (j, k))
        for k in range(4):
            qrd(0, k)
        if EC:
            self.q = rest
        else:
            self.cold_setup()
        for j in range(7):
            for k in range(4):
                self.wlg('q%d_%d' % (j, k))
                r = 16 * (j & 1) + 4 * k
                self.mfma(ACC, r, XF + 16 * j + 4 * k, None if j + k == 0 else ACC, pa='a')
                if j < 6:
                    qrd(j + 1, k)
                self.mfsum(SUM, r, j + k == 0, pb='a')
                if k & 1 or j < 2:
                    self.bg(1)
        assert not self.q
        self('v_mul_f32 %s, %s, %s' % (v(u3), f32(math.log2(math.e) / math.sqrt(28.0)), v(vRS)))
        self('s_bitcmp1_b32 %s, 0\ns_cselect_b64 %s, -1, 0' % (s(sI), s(t0, 2)))
        self('s_andn2_b64 %s, %s, %s\ns_andn2_b64 %s, %s, %s' % (s(t2, 2), s(t0, 2), s(sHI, 2), s(t4, 2), s(sHI, 2), s(t0, 2)))
        self('s_lshl_b32 %s, %s, 11\ns_add_u32 %s, %s, %d\nv_add_u32 %s, %s, %s' % (s(t0), s(sW), s(t0), s(t0), MISC, v(u0), s(t0), v(vL16)))
        self.make_csfrag(SUM, vCS2)
        self.mfma(ACC, vCS2, vMF, ACC)
        self.scale(ACC, 16, u3)
        self.pack(GR, ACC, 16)
        for k in range(2):
            self('v_cndmask_b32 %s, %s, 0, %s\nv_cndmask_b32 %s, %s, 0, %s'
                 % (v(GR + k), v(GR + k), s(t2, 2), v(GR + 6 + k), v(GR + 6 + k), s(t4, 2)))
        self.lgi('ds_write_b128 %s, %s' % (v(u0), v(GR, 4)), 'qw')
        self.lgi('ds_write_b128 %s, %s offset:1024' % (v(u0), v(GR + 4, 4)), 'qw')
        self.p2_setup()
        self.wlg()
        self.vm_s1 = list(self.vm)
        self.stamp('q')
        WF = ACC
        sk, lp = self.lab('s1skip'), self.lab('s1')
        self('s_cmp_eq_u32 %s, 0\ns_cbranch_scc0 %s\ns_mov_b32 %s, 0\nv_lshlrev_b32 %s, 6, v0\n%s:' % (s(sW), sk, s(sCNT), v(WF + 8), lp))
        for k in range(4):
            self('s_mov_b32 %s, %d\nbuffer_load_dwordx2 %s, %s, %s, %s offen sc1' % (s(t0), FLAG1 + 4096 * k, v(WF + 2 * k, 2), v(WF + 8), s(WS, 4), s(t0)))
        self('s_add_u32 %s, %s, 1\ns_waitcnt vmcnt(0)' % (s(sCNT), s(sCNT)))
        for k in range(4):
            self('v_and_b32 %s, -16, %s' % (v(WF + 2 * k), v(WF + 2 * k)))
        for k in range(4):
            self('v_cmp_ne_u64 %s, %s, %s' % (('vcc', s(t0, 2), s(t2, 2), s(t6, 2))[k], s(sNON, 2), v(WF + 2 * k, 2)))
        self('s_or_b64 %s, %s, vcc\ns_or_b64 %s, %s, %s\ns_or_b64 %s, %s, %s'
             % (s(t0, 2), s(t0, 2), s(t2, 2), s(t2, 2), s(t6, 2), s(t0, 2), s(t0, 2), s(t2, 2)))
        self('s_cbranch_scc0 %s\ns_cmp_lt_u32 %s, %d\ns_cbranch_scc1 %s\n%s:\ns_barrier' % (sk, s(sCNT), POLL_MAX, lp, sk))
        self.stamp('s1')

    Q, O, S, P, KV, VOV, VST = 16, 48, 112, 144, 152, 217, 218

    def kv_addr(self, wave_split):
        VOV, VST = self.VOV, self.VST
        self('s_lshr_b32 %s, %s, 1\ns_mul_i32 %s, %s, 229376\ns_and_b32 %s, %s, 1\ns_mul_i32 %s, %s, 1536\ns_add_u32 %s, %s, %s'
             % (s(t0), s(sI), s(t4), s(t0), s(t0), s(sI), s(t0), s(t0), s(t4), s(t4), s(t0)))
        self('s_add_u32 %s, %s, %d\ns_mul_i32 %s, %s, 114688\ns_add_u32 %s, %s, %d' % (s(t4), s(t4), KF, s(t1), s(sI), s(t1), s(t1), VF))
        if wave_split:
            self('s_mul_i32 %s, %s, %d\ns_add_u32 %s, %s, %s\ns_mul_i32 %s, %s, %d\ns_add_u32 %s, %s, %s'
                 % (s(t0), s(sW), 16 * 3584, s(t4), s(t4), s(t0), s(t0), s(sW), 16 * 1792, s(t1), s(t1), s(t0)))
        self('v_mul_u32_u24 %s, 448, %s\nv_lshl_add_u32 %s, %s, 4, %s\nv_add_u32 %s, %s, %s'
             % (v(u0), v(vH), v(u0), v(vPM), v(u0), v(u0), s(t1), v(u0)))
        self('s_lshl_b32 %s, %s, 10\ns_add_u32 %s, %s, %d' % (s(t0), s(sB), s(t0), s(t0), ONES))
        self('v_mov_b32 %s, %s\nv_cmp_lt_u32 vcc, 28, %s\nv_mov_b32 %s, 0x7ff00000\nv_cndmask_b32 %s, %s, %s, vcc'
             % (v(u1), s(t0), v(vM), v(u2), v(u1), v(u1), v(u2)))
        self('v_mov_b32 %s, 1792\nv_cmp_gt_u32 vcc, 28, %s' % (v(u2), v(vM)))
        self('v_cndmask_b32 %s, %s, %s, vcc\nv_cndmask_b32 %s, 0, %s, vcc' % (v(VOV), v(u1), v(u0), v(VST), v(u2)))

    RW, QA, PD, PR = 226, 230, 234, 238
    SX, SBS, SSP, SWO = 84, 88, 92, 96

    def unit_addrs(self, pd, pr, sbase, stride):
        self('s_lshl_b32 %s, %s, 17\ns_mul_i32 %s, %s, %d\ns_add_u32 %s, %s, %d'
             % (s(t0), s(sT), sbase, s(sW), stride[1], sbase, sbase, stride[0]))
        self.rowtile_dma_addrs(4096, pd, s(t0))
        self.rowtile_read_addrs(pr, sbase)

    def unit_ops(self, u, slot, pd, sbase):
        def first():
            self('s_add_u32 m0, %s, %d\ns_add_u32 s101, s83, %d\ns_and_b32 s101, s101, 0xf80' % (sbase, slot * 4096, u * 128))
            self.dma(pd, self.SSP, 's101', 0, 'U%d' % u)
        return [first] + [lambda rg=rg: self.dma(pd + rg, self.SSP, 's101', rg * 1024, 'U%d' % u) for rg in range(1, 4)]

    def unit_read(self, u, slot, pr):
        for k in range(4):
            self.lgi('ds_read_b128 a[%d:%d], %s offset:%d' % (16 * u + 4 * k, 16 * u + 4 * k + 3, v(pr + k), slot * 4096), 'ur')

    def cold_setup(self):
        SX, SBS, SSP, SWO = self.SX, self.SBS, self.SSP, self.SWO
        self.srd(SX, P_X, 2048 * 896)
        self.srd(SBS, P_BSP, 4096)
        self.srd(SSP, P_WSP, 2048 * 4096)
        self.srd(SWO, P_WOUT, 896 * 896)
        self('s_mul_i32 %s, %s, %d\ns_lshl_b32 %s, %s, 7\ns_add_u32 %s, %s, %s\ns_lshl_b32 %s, %s, 6\ns_add_u32 %s, %s, %s'
             % (s(t0), s(sT3), 32 * 896, s(t1), s(sCB), s(t0), s(t0), s(t1), s(t1), s(sKH), s(t0), s(t0), s(t1)))
        self('v_mul_u32_u24 v224, 896, %s\nv_lshl_add_u32 v224, %s, 4, v224\nv_add_u32 v224, %s, v224' % (v(vM), v(vH), s(t0)))
        self('s_lshl_b32 %s, %s, 6\nv_lshl_add_u32 %s, %s, 1, %s' % (s(t0), s(sT), v(vBSP), v(vM), s(t0)))
        self('s_lshl_b32 %s, %s, 2\ns_add_u32 %s, %s, %s\ns_lshl_b32 %s, %s, 13\ns_lshl_b32 %s, %s, 19\ns_add_u32 %s, %s, %s\nv_add_u32 v225, %s, %s'
             % (s(t0), s(sI), s(t0), s(t0), s(sW), s(t0), s(t0), s(t1), s(sRB), s(t0), s(t0), s(t1), s(t0), v(vL16)))
        self('s_lshl_b32 %s, %s, 2\ns_add_u32 %s, %s, %s\ns_lshl_b32 s82, %s, 10\ns_lshl_b32 s83, %s, 8\ns_movk_i32 s101, 4096'
             % (s(t0), s(sB), s(t0), s(t0), s(sW), s(t0), s(sI)))
        self.q = [lambda q=q: self.load(216 + 4 * q, 225, SSP, 's101' if q >= 4 else '0', (q % 4) * 1024, 'pf', sc1=False, pfx='a')
                  for q in range(8)]
        self.q += [lambda: self.load(248, vL16, SWO, 's82', 0, 'pf', sc1=False, pfx='a'),
                   lambda: self.load(vHK, 224, SX, '0', 0, 'pf', sc1=False),
                   lambda: self.load(vHK + 4, 224, SX, '0', 32, 'pf', sc1=False),
                   lambda: self.vmi('buffer_load_ushort %s, %s, %s, 0 offen' % (v(vBSP), v(vBSP), s(SBS, 4)), 'pf')]
        self('s_lshl_b32 %s, %s, 15\ns_lshl_b32 %s, %s, 11\ns_add_u32 %s, %s, %s\ns_add_u32 s73, %s, %d'
             % (s(t0), s(sT), s(t1), s(sI), s(t2), s(t0), s(t1), s(t2), OF))
        self('s_lshl_b32 %s, %s, 13\ns_lshl_b32 %s, %s, 9\ns_add_u32 %s, %s, %s\ns_add_u32 %s, %s, %d\ns_lshl_b32 %s, %s, 7'
             % (s(t0), s(sT), s(t1), s(sI), s(t0), s(t0), s(t1), s(t0), s(t0), ZST - 512, s(t1), s(sRB)))
        self('v_and_b32 v222, 3, v0\nv_lshlrev_b32 v222, 12, v222\nv_add_u32 v222, %d, v222\nv_add_u32 v222, %s, v222' % (FLAG2, s(t1)))
        self('v_add_u32 v223, %s, %s\nv_cndmask_b32 v222, v222, v223, %s' % (s(t0), v(vL16), s(sHI, 2)))
        self.q.insert(0, lambda: self.load(208, 222, WS, '0', 0, 'pf', n=1, pfx='a'))

    def p2_setup(self):
        RW = self.RW
        self.kv_addr(True)
        self.srd(SA, P_WO, 448 * 896)
        self.srd(SB, P_WIN, 448 * 3584)
        self('s_lshl_b32 %s, %s, 7' % (s(t2), s(sCB)))
        wo = self.image_ops(220, SA, 896, s(t2), 0, 14, 'pf')
        self('s_lshl_b32 %s, %s, 7\ns_add_u32 %s, %s, 1792' % (s(t2), s(sI), s(t2), s(t2)))
        win = self.image_ops(222, SB, 3584, s(t2), WIN2, 14, 'pf')
        for j in range(4):
            self('s_add_u32 %s, %s, %d\ns_and_b32 %s, %s, 3\ns_mul_i32 %s, %s, 12288\ns_add_u32 %s, %s, %d\nv_add_u32 %s, %s, %s'
                 % (s(t0), s(sW), j + 1, s(t0), s(t0), s(t1), s(t0), s(t1), s(t1), RED + 4096 * (j % 3), v(RW + j), s(t1), v(vL16)))
            self('s_lshl_b32 %s, %s, 11\ns_add_u32 %s, %s, %d\nv_add_u32 %s, %s, %s' % (s(t0), s(t0), s(t0), s(t0), MISC, v(self.QA + j), s(t0), v(vL16)))
        self.unit_addrs(self.PD, self.PR, 's100', (RED, 12288))
        self('s_lshl_b32 %s, %s, 10\ns_add_u32 %s, %s, %d\nv_and_b32 v219, 15, v0\nv_lshl_add_u32 v219, v219, 6, %s'
             % (s(t0), s(sRB), s(t0), s(t0), FLAG1, s(t0)))
        self.att_img = [wo[k:k + 2] for k in range(0, 14, 2)] + [win[k:k + 2] for k in range(0, 14, 2)]

    def p2(self):
        Q, O, S, P, KV, VOV, VST, RW = self.Q, self.O, self.S, self.P, self.KV, self.VOV, self.VST, self.RW
        self.vm, self.lg = self.vm_s1, []
        self.wvm('ones')

        def kvload(it):
            b = KV + 16 * (it % 4)
            self.load(b, vL16, WS, s(t4), 0, 'K%d' % it)
            self.load(b + 4, vL16, WS, s(t4), 1024, 'K%d' % it)
            self.load(b + 8, VOV, WS, '0', 0, 'V%d' % it)
            self.load(b + 12, VOV, WS, '0', 896, 'V%d' % it)
            if it < 15:
                self('s_add_u32 %s, %s, 3584\nv_add_u32 %s, %s, %s' % (s(t4), s(t4), v(VOV), v(VST), v(VOV)))
        kvload(0)
        for j in range(4):
            self.lgi('ds_read_b128 %s, %s' % (v(Q + 8 * j, 4), v(self.QA + j)), 'q')
            self.lgi('ds_read_b128 %s, %s offset:1024' % (v(Q + 8 * j + 4, 4), v(self.QA + j)), 'q')
        kvload(1)
        kvload(2)
        self.wlg()
        self('s_barrier')
        wait_kv = self.wvm
        NA = self.NA
        self.stamp('a_iss')
        wait_kv('K0')
        self.stamp('a_k0')
        self.mfma(S, KV, Q, None)
        self.mfma(S, KV + 4, Q + 4, S)
        for n in range(64):
            it, j = divmod(n, 4)
            Sc, Sn = S + 16 * (n & 1), S + 16 * ((n + 1) & 1)
            ex = ['v_exp_f32 %s, %s' % (v(Sc + k), v(Sc + k)) for k in range(16)]
            pk = ['v_cvt_pk_bf16_f32 %s, %s, %s' % (v(P + k), v(Sc + 2 * k), v(Sc + 2 * k + 1)) for k in range(8)]
            nit, nj = divmod(n + 1, 4)
            pit, pj = divmod(n - 1, 4)
            kb, vb = KV + 16 * (nit % 4), KV + 16 * (pit % 4) + 8

            def qk(t):
                if n + 1 < 64:
                    if t == 0 and nj == 0:
                        wait_kv('K%d' % nit)
                    self.mfma(Sn, kb + 4 * t, Q + 8 * nj + 4 * t, Sn if t else None)

            def pv(t):
                if n > 0:
                    if t == 0 and pj == 0:
                        wait_kv('V%d' % pit)
                    c = None if (pit == 0 and t == 0) else O + 16 * pj
                    self.mfma(O + 16 * pj, vb + 4 * t, P + 4 * t, c)
            qk(0)
            self('\n'.join(ex[0:4]))
            pv(0)
            self('\n'.join(ex[4:8] + pk[0:2]))
            qk(1)
            self('\n'.join(ex[8:12] + pk[2:4]))
            pv(1)
            self('\n'.join(ex[12:16] + pk[4:8]))
            if j == 0 and it + 3 < 16:
                kvload(it + 3)
            if j == 1 and 0 <= it - 3 < NA:
                self.wvm('U%d' % (it - 3))
                self.unit_read(it - 3, it % 3, self.PR)
            if j == 2 and 0 <= it - 1 < NA:
                if it >= 4:
                    self.wlg()
                for op in self.unit_ops(it - 1, (it - 1) % 3, self.PD, 's100'):
                    op()
            if n == 2:
                self.load(219, 219, WS, '0', 0, 'pur', n=1)
            if j == 3 and 1 <= it <= 14:
                for op in self.att_img[it - 1]:
                    op()
            if n == 61 and NA:
                self.wlg()
                self('s_barrier')
            if n in (15, 31, 47):
                self.stamp('a%d' % n)
        self.mfma(O + 48, KV + 16 * 3 + 8, P, O + 48)
        self.mfma(O + 48, KV + 16 * 3 + 12, P + 4, O + 48)
        self.stamp('att')
        for j in range(3):
            for q in range(4):
                self.lgi('ds_write_b128 %s, %s offset:%d' % (v(RW + j), v(O + 16 * j + 4 * q, 4), q * 1024), 'rw')
        self('v_and_b32 v219, 15, v219\nv_cmp_ne_u32 vcc, %s, v219\ns_cmp_eq_u64 vcc, 0\ns_cselect_b32 %s, %d, 0'
             % (s(sXCC), s(sFAST), 0 if self.o.get('slowsync') else 1))
        self.wlg()
        self('s_barrier')
        for k in range(12):
            self.lgi('ds_read_b128 %s, %s offset:%d' % (v(O + 4 * k, 4), v(RW + 3), k * 1024), 'r%d' % (k // 4))
        A = O + 48
        for j in range(3):
            self.wlg('r%d' % j)
            for k in range(0, 16, 2):
                self('v_pk_add_f32 %s, %s, %s' % (v(A + k, 2), v(A + k, 2), v(O + 16 * j + k, 2)))
        self.stamp('red')
        self('L_att_norm:')
        self('v_mov_b32 %s, %s\nv_mov_b32 %s, %s\nv_permlane32_swap_b32 %s, %s' % (v(u0), v(A + 12), v(u1), v(A + 12), v(u0), v(u1)))
        self('v_cmp_gt_f32 vcc, %s, %s\ns_mov_b64 %s, vcc\nv_cmp_lt_f32 vcc, %s, %s\ns_and_b64 vcc, vcc, %s'
             % (f32(2.0 ** 40), v(u1), s(t0, 2), f32(2.0 ** -40), v(u1), s(t0, 2)))
        force = self.o.get('force_fallback')
        self('s_cmp_eq_u64 vcc, %s\ns_cbranch_scc0 L_att_slow\nL_att_ok:' % ('0' if force else '-1'))
        self('v_rcp_f32 %s, %s' % (v(u1), v(u1)))
        self.scale(A, 16, u1)
        self.pack(P, A, 16)
        self('v_cndmask_b32 %s, %s, 0, %s\nv_cndmask_b32 %s, %s, 0, %s' % (v(P + 6), v(P + 6), s(sHI, 2), v(P + 7), v(P + 7), s(sHI, 2)))
        self.vm = ['any']

        def st(sc):
            self.store(P, vL16, WS, 's73', 0, 'st', sc1=sc)
            self.store(P + 4, vL16, WS, 's73', 1024, 'st', sc1=sc)
        st(True)
        self.p3_pre()
        self('s_add_u32 %s, %s, %d' % (s(t5), s(sFID), FLAG2))
        self.publish(s(t5), True)
        self.stamp('p2pub')
        self('s_cmp_ge_u32 %s, 14\ns_cbranch_scc1 L_fin' % s(sI))

    def att_slow(self):
        Q, O, S, P, KV, VOV, VST = self.Q, self.O, self.S, self.P, self.KV, self.VOV, self.VST
        A, Qo = O + 48, Q + 24
        self('L_att_slow:\ns_waitcnt vmcnt(0)')
        self.kv_addr(False)
        self('s_mov_b32 %s, %s\nv_mov_b32 %s, 0xff800000\ns_mov_b32 %s, 0\nL_slow1:' % (s(t5), s(t4), v(u3), s(sCNT)))
        self('buffer_load_dwordx4 %s, %s, %s, %s offen sc1' % (v(KV, 4), v(vL16), s(WS, 4), s(t5)))
        self('buffer_load_dwordx4 %s, %s, %s, %s offen offset:1024 sc1' % (v(KV + 4, 4), v(vL16), s(WS, 4), s(t5)))
        self('s_add_u32 %s, %s, 3584\ns_waitcnt vmcnt(0)' % (s(t5), s(t5)))
        self.mfma(S, KV, Qo, None)
        self.mfma(S, KV + 4, Qo + 4, S)
        for k in range(0, 16, 2):
            self('v_max3_f32 %s, %s, %s, %s' % (v(u3), v(u3), v(S + k), v(S + k + 1)))
        self('s_add_u32 %s, %s, 1\ns_cmp_lt_u32 %s, 64\ns_cbranch_scc1 L_slow1' % (s(sCNT), s(sCNT), s(sCNT)))
        self('v_mov_b32 %s, %s\nv_permlane32_swap_b32 %s, %s\nv_max_f32 %s, %s, %s' % (v(u4), v(u3), v(u4), v(u3), v(u3), v(u3), v(u4)))
        for k in range(16):
            self('v_mov_b32 %s, 0' % v(A + k))
        self('s_mov_b32 %s, 0\nL_slow2:' % s(sCNT))
        self('buffer_load_dwordx4 %s, %s, %s, %s offen sc1' % (v(KV, 4), v(vL16), s(WS, 4), s(t4)))
        self('buffer_load_dwordx4 %s, %s, %s, %s offen offset:1024 sc1' % (v(KV + 4, 4), v(vL16), s(WS, 4), s(t4)))
        self('buffer_load_dwordx4 %s, %s, %s, 0 offen sc1' % (v(KV + 8, 4), v(VOV), s(WS, 4)))
        self('buffer_load_dwordx4 %s, %s, %s, 0 offen offset:896 sc1' % (v(KV + 12, 4), v(VOV), s(WS, 4)))
        self('s_add_u32 %s, %s, 3584\nv_add_u32 %s, %s, %s\ns_waitcnt vmcnt(0)' % (s(t4), s(t4), v(VOV), v(VST), v(VOV)))
        self.mfma(S, KV, Qo, None)
        self.mfma(S, KV + 4, Qo + 4, S)
        for k in range(16):
            self('v_sub_f32 %s, %s, %s' % (v(S + k), v(S + k), v(u3)))
        for k in range(16):
            self('v_exp_f32 %s, %s' % (v(S + k), v(S + k)))
        self.pack(P, S, 16)
        self.mfma(A, KV + 8, P, A)
        self.mfma(A, KV + 12, P + 4, A)
        self('s_add_u32 %s, %s, 1\ns_cmp_lt_u32 %s, 64\ns_cbranch_scc1 L_slow2' % (s(sCNT), s(sCNT), s(sCNT)))
        self('v_mov_b32 %s, %s\nv_mov_b32 %s, %s\nv_permlane32_swap_b32 %s, %s' % (v(u0), v(A + 12), v(u1), v(A + 12), v(u0), v(u1)))
        self('s_branch L_att_ok')

    def slot_addrs(self, dst, kh_bytes, base):
        self('s_mul_i32 %s, %s, %d\ns_add_u32 %s, %s, %d\ns_lshl_b32 %s, %s, 6' % (s(t0), s(sKH), kh_bytes, s(t0), s(t0), base, s(t1), s(sKH)))
        self('v_xor_b32 %s, %s, %s\nv_xor_b32 %s, %s, %s' % (v(dst), s(t1), v(vTRa), v(dst + 1), s(t1), v(vTRb)))
        self('v_add_u32 %s, %s, %s\nv_add_u32 %s, %s, %s' % (v(dst), s(t0), v(dst), v(dst + 1), s(t0), v(dst + 1)))

    def frag_ops(self, dst, n, sreg, tag, second=None):
        ops = []
        for k in range(n):
            def op(k=k):
                if k and k % 4 == 0:
                    self('s_add_u32 %s, %s, 4096' % (s(sreg), s(second if k == 4 and second else sreg)))
                self.load(dst + 4 * k, vL16, WS, s(sreg), (k % 4) * 1024, '%s%d' % (tag, k))
            ops.append(op)
        return ops

    def pair_addrs(self, dst, red):
        self('s_lshl_b32 %s, %s, 12\ns_add_u32 %s, %s, %d\nv_add_u32 %s, %s, %s' % (s(t0), s(sW), s(t0), s(t0), red, v(dst), s(t0), v(vL16)))
        self('v_xor_b32 %s, 0x2000, %s' % (v(dst + 1), v(dst)))

    def pair_reduce(self, acc, tmp, adr, res, rtmp):
        for k in range(8):
            self('v_lshlrev_b32 %s, 16, %s\nv_and_b32 %s, 0xffff0000, %s' % (v(rtmp + 2 * k), v(res + k), v(rtmp + 2 * k + 1), v(res + k)))
        for q in range(4):
            self.lgi('ds_write_b128 %s, %s offset:%d' % (v(adr), v(acc + 16 + 4 * q, 4), q * 1024), 'pw')
        for k in range(0, 16, 2):
            self('v_pk_add_f32 %s, %s, %s' % (v(acc + k, 2), v(acc + k, 2), v(rtmp + k, 2)))
        self.wlg()
        self('s_barrier')
        for q in range(4):
            self.lgi('ds_read_b128 %s, %s offset:%d' % (v(tmp + 4 * q, 4), v(adr + 1), q * 1024), 'pr%d' % q)
        for q in range(4):
            self.wlg('pr%d' % q)
            for k in range(4 * q, 4 * q + 4, 2):
                self('v_pk_add_f32 %s, %s, %s' % (v(acc + k, 2), v(acc + k, 2), v(tmp + k, 2)))

    def p3_pre(self):
        WO, PA = 112, 240
        self.slot_addrs(u5, 8 * 3584, 0)
        self.pair_addrs(PA, 131072)
        self('s_lshl_b32 %s, %s, 15\ns_lshl_b32 %s, %s, 14\ns_add_u32 %s, %s, %s\ns_add_u32 %s, %s, %d'
             % (s(t4), s(sT3), s(t1), s(sKH), s(t4), s(t4), s(t1), s(t4), s(t4), OF))
        for k in range(16):
            for sl in range(2):
                for e in range(2):
                    self.tr(WO + 8 * k + 4 * sl + 2 * e, u5 + sl, (k >> 1) * 3584 + (k & 1) * 2048 + 512 * e, 'wo')
        self('s_lshl_b32 %s, %s, 1\ns_add_u32 %s, %s, %s' % (s(t0), s(sCB), s(t0), s(t0), s(sKH)))
        self('s_mul_i32 %s, %s, 28672\ns_lshl_b32 %s, %s, 11\ns_add_u32 %s, %s, %s\ns_add_u32 %s, %s, %d'
             % (s(t2), s(sT3), s(t1), s(t0), s(t2), s(t2), s(t1), s(t2), s(t2), HF))
        self('s_lshl_b32 %s, %s, 12\ns_lshl_b32 %s, %s, 8\ns_add_u32 %s, %s, %s\ns_add_u32 %s, %s, %d'
             % (s(t3), s(sT3), s(t1), s(t0), s(t3), s(t3), s(t1), s(t3), s(t3), HST))
        self('v_lshlrev_b32 %s, 3, %s' % (v(u3), v(vM)))
        self('s_lshl_b32 %s, %s, 7\ns_add_u32 %s, %s, %d' % (s(t6), s(sRB), s(t6), s(t6), FLAG2))
        self.wlg()

    def p3(self):
        FR, ACC, WO, PA = 16, 80, 112, 240
        WB = FR
        self.vm, self.lg = [], []
        self.poll(s(t6), 16)
        self.stamp('s2')
        self.q = self.frag_ops(FR, 16, t4, 'f')
        self.bg(11)
        for k in range(16):
            self.wvm('f%d' % k)
            for sl in range(2):
                self.mfma(ACC + 16 * sl, WO + 8 * k + 4 * sl, FR + 4 * k, None if k == 0 else ACC + 16 * sl)
            self.bg(1)
        self.stamp('p3mm')
        self.pair_reduce(ACC, WB, PA, vHK, WB + 16)
        self.pack(vHK, ACC, 16)

        def st(sc):
            self.store(vHK, vL16, WS, s(t2), 0, 'st', sc1=sc)
            self.store(vHK + 4, vL16, WS, s(t2), 1024, 'st', sc1=sc)
        st(True)
        self('v_pk_mul_f32 %s, %s, %s' % (v(WB, 2), v(ACC, 2), v(ACC, 2)))
        for k in range(2, 16, 2):
            self('v_pk_fma_f32 %s, %s, %s, %s' % (v(WB, 2), v(ACC + k, 2), v(ACC + k, 2), v(WB, 2)))
            self('v_pk_add_f32 %s, %s, %s' % (v(ACC, 2), v(ACC, 2), v(ACC + k, 2)))
        self('v_add_f32 %s, %s, %s\nv_add_f32 %s, %s, %s' % (v(ACC), v(ACC), v(ACC + 1), v(ACC + 1), v(WB), v(WB + 1)))
        self.xhalf_add2(ACC, WB)
        self.store(ACC, u3, WS, s(t3), 0, 'st', n=2)
        self.p4_pre()
        self('s_add_u32 %s, %s, %d' % (s(t5), s(sFID), FLAG3))
        self.publish(s(t5), True)
        self.stamp('p3pub')

    def zrd(self, k):
        for ct in range(2):
            self.trfrag(128 + 8 * (k % 4) + 4 * ct, u5 + ct, k * 2048, 'w%d' % k)

    def zpass(self, acc, wait_frag, nbg, k0=0, k1=28, kend=None, ndrip=0):
        HFR, WB = 16, 128
        kend = kend or k1
        for k in range(k0, k1):
            if wait_frag:
                self.wvm('h%d' % k)
            self.wlg('w%d' % k)
            self.mfma(acc, WB + 8 * (k % 4), HFR + 4 * k, None if k == 0 else acc)
            if k + 3 < kend:
                self.zrd(k + 3)
            else:
                self.drip(2 * ndrip)
            self.mfma(acc + 16, WB + 8 * (k % 4) + 4, HFR + 4 * k, None if k == 0 else acc + 16)
            self.bg(nbg)
            self.drip(ndrip)

    def p4_pre(self):
        self.colsum_part(WIN2, (16, 44), 72, MISC)
        self('s_lshl_b32 %s, %s, 7\ns_add_u32 %s, %s, %d' % (s(t6), s(sRB), s(t6), s(t6), FLAG3))
        self('s_lshl_b32 %s, %s, 7' % (s(t2), s(sI)))
        self.w1 = self.image_ops(222, SB, 3584, s(t2), 0, 14, 'W1')
        self('s_mul_i32 %s, %s, 28672\ns_add_u32 %s, %s, %d' % (s(t2), s(sT), s(t2), s(t2), HF))
        self('s_lshl_b32 %s, %s, 12\ns_add_u32 %s, %s, %d' % (s(t3), s(sT), s(t3), s(t3), HST))
        self('v_mul_u32_u24 %s, 1792, %s\nv_lshl_add_u32 %s, %s, 3, %s' % (v(u4), v(vH), v(u4), v(vM), v(u4)))
        self('v_add_u32 %s, %d, %s\nv_add_u32 %s, %d, %s' % (v(u5), WIN2, v(vTRa), v(u6), WIN2, v(vTRb)))
        for k in range(3):
            self.zrd(k)
        self.wlg('csw')
        self.lg_p4 = list(self.lg)

    def p4(self):
        HFR, WB, A2, A1 = 16, 128, 160, 192
        KS = self.o.get('ks', 6)
        self.KS = KS
        self.vm, self.lg = [], []
        U0 = self.NA
        w1 = self.w1
        self.lg = self.lg_p4
        self.poll(s(t6), 14)
        self.stamp('s3')
        hl = self.frag_ops(HFR, 28, t2, 'h')
        hs = [lambda q=q: self.load(A1 + 2 * q, u4, WS, s(t3), q * 256, 'hs', n=2) for q in range(7)]
        self.q = hl[:16] + hs + hl[16:]
        self.bg(11)
        self.colsum_get(224, MISC, vCS2)
        self.stamp('p4iss')
        def hstat():
            for q in range(1, 7):
                self('v_add_f32 %s, %s, %s\nv_add_f32 %s, %s, %s' % (v(A1), v(A1), v(A1 + 2 * q), v(A1 + 1), v(A1 + 1), v(A1 + 2 * q + 1)))
            self.xhalf_add2(A1, A1 + 2)
            self.mean_rstd(A1, A1 + 1, 448, A1 + 2, vRS)
            self.make_meanfrag(A1 + 2, A1 + 3)
            self.gelu_consts()
            self('s_lshl_b32 %s, %s, 13\ns_add_u32 %s, %s, %d\ns_lshl_b32 %s, %s, 9\ns_add_u32 %s, %s, %s'
                 % (s(t3), s(sT), s(t3), s(t3), ZST, s(t1), s(sI), s(t4), s(t3), s(t1)))
            self('v_lshlrev_b32 %s, 4, %s\nv_mov_b32 %s, %s\nv_mov_b32 %s, %s' % (v(u3), v(vM), v(A1 + 6), s(sNON), v(A1 + 7), s(sNON + 1)))
        self.zpass(A2, True, 2, 0, 4, 28)
        self.zpass(A2, True, 1, 4, 20, 28)
        assert not self.q
        self.wvm('hs')
        self.fill = self.cap(hstat)
        self.zpass(A2, True, 0, 20, 28, ndrip=3)
        self.drip(99)
        self.stamp('z2mm')
        for ct in range(2):
            self.mfma(A2 + 16 * ct, vCS2 + 4 * ct, vMF, A2 + 16 * ct)
        self('v_mov_b32 %s, %s\nv_mov_b32 %s, %s' % (v(u5), v(vTRa), v(u6), v(vTRb)))
        self.q = w1
        self.bg(5)
        self.gelu(A2, 32, A1 + 8, 3)
        assert not self.q
        Z = A1 + 4
        self('v_pk_mul_f32 %s, %s, %s\nv_pk_add_f32 %s, %s, %s'
             % (v(A1, 2), v(A2, 2), v(A2, 2), v(Z, 2), v(A2, 2), v(A2 + 2, 2)))
        for k in range(2, 32, 2):
            self('v_pk_fma_f32 %s, %s, %s, %s' % (v(A1, 2), v(A2 + k, 2), v(A2 + k, 2), v(A1, 2)))
            if k > 2:
                self('v_pk_add_f32 %s, %s, %s' % (v(Z, 2), v(Z, 2), v(A2 + k, 2)))
        self('v_add_f32 %s, %s, %s\nv_add_f32 %s, %s, %s' % (v(Z), v(Z), v(Z + 1), v(Z + 1), v(A1), v(A1 + 1)))
        self.xhalf_add2(Z, A1)
        self('s_not_b64 exec, %s' % s(sHI, 2))
        self.local_stores(lambda sc: self.store(Z, u3, WS, s(t4), 0, 'zs', sc1=sc))
        self('s_mov_b64 exec, -1')
        self.stamp('zst')
        self('s_lshl_b32 %s, %s, 18\ns_lshl_b32 %s, %s, 12\ns_add_u32 %s, %s, %s\ns_add_u32 %s, %s, %d'
             % (s(t2), s(sI), s(t1), s(sT), s(t2), s(t2), s(t1), s(t2), s(t2), ZF))
        self('v_lshlrev_b32 %s, 2, %s\nv_xor_b32 %s, %s, %s\nv_lshlrev_b32 %s, 4, %s\nv_lshl_add_u32 %s, %s, 9, %s'
             % (v(u3), v(vH), v(u3), v(u3), v(vM), v(u3), v(u3), v(u3), v(vH), v(u3)))
        self('v_xor_b32 %s, 0x80, %s\nv_add_u32 %s, 1024, %s' % (v(u4), v(u3), v(u4), v(u4)))
        self('s_lshl_b32 %s, %s, 4\ns_add_u32 %s, %s, %s\ns_lshl_b32 %s, %s, 6\ns_add_u32 %s, %s, %d'
             % (s(t5), s(sI), s(t5), s(t5), s(sRB), s(t5), s(t5), s(t5), s(t5), FLAG5))
        self('v_mul_u32_u24 %s, 3584, %s\nv_lshl_add_u32 %s, %s, 4, %s\ns_mov_b32 %s, 0' % (v(u2), v(vH), v(u2), v(vM), v(u2), s(sCNT)))
        self.unit_addrs(232, 236, 's100', (RED, 8192))
        self.wvm('W1')
        self('s_barrier')
        gather = [lambda q=q: self.load(224 + 4 * q, u2, WS, s(t3), q * 512, 'zg', pfx='a') for q in range(7)]
        if self.o.get('gearly', 1):
            self.q = gather
            self.bg(99)
        self.colsum_part(0, (WB, A1), 224, MISC + 1024)
        self.q = ([] if self.o.get('gearly', 1) else gather) + sum((self.unit_ops(U0 + r, r, 232, 's100') for r in range(self.ND)), [])
        self.bg(99)
        self.stamp('z1a')
        lp = self.lab('zs')
        self.wvm('zg')
        for q in range(28):
            self('v_accvgpr_read_b32 %s, a%d' % (v(WB + q), 224 + q))
        keepvm = list(self.vm)
        self('s_branch %s_c\n%s:' % (lp, lp))
        for q in range(7):
            self('buffer_load_dwordx4 %s, %s, %s, %s offen offset:%d sc1' % (v(WB + 4 * q, 4), v(u2), s(WS, 4), s(t3), q * 512))
        self('s_add_u32 %s, %s, 1\ns_waitcnt vmcnt(0)\n%s_c:' % (s(sCNT), s(sCNT), lp))
        for q in range(1, 7):
            self('v_xor_b32 %s, %s, %s\nv_xor_b32 %s, %s, %s' % (v(WB + 4 * q + 2), s(sNON), v(WB + 4 * q + 2),
                                                                v(WB + 4 * q + 3), s(sNON + 1), v(WB + 4 * q + 3)))
        self('v_or3_b32 %s, %s, %s, %s' % (v(u1), v(WB + 6), v(WB + 7), v(WB + 10)))
        for r in ((11, 14), (15, 18), (19, 22), (23, 26)):
            self('v_or3_b32 %s, %s, %s, %s' % (v(u1), v(u1), v(WB + r[0]), v(WB + r[1])))
        self('v_or_b32 %s, %s, %s\nv_cmp_ne_u64 %s, %s, %s\nv_cmp_ne_u32 vcc, 0, %s'
             % (v(u1), v(u1), v(WB + 27), s(t0, 2), s(sNON, 2), v(WB + 2, 2), v(u1)))
        for q in range(1, 7):
            self('v_pk_add_f32 %s, %s, %s' % (v(WB, 2), v(WB, 2), v(WB + 4 * q, 2)))
        self('s_or_b64 %s, %s, vcc' % (s(t0, 2), s(t0, 2)))
        self('s_cbranch_scc0 %s_d\ns_cmp_lt_u32 %s, %d\ns_cbranch_scc1 %s\n%s_d:' % (lp, s(sCNT), POLL_MAX, lp, lp))
        self.vm = keepvm
        self.stamp('s4')
        self.xhalf_add2(WB, WB + 2)
        self.mean_rstd(WB, WB + 1, 896, WB + 2, WB + 4)
        self('v_mul_f32 %s, -%s, %s' % (v(WB + 6), v(WB + 2), v(WB + 4)))
        for c in range(4):
            for k in range(8 * c, 8 * c + 8, 2):
                self('v_pk_fma_f32 %s, %s, %s, %s op_sel_hi:[1,0,0]' % (v(A2 + k, 2), v(A2 + k, 2), v(WB + 4, 2), v(WB + 6, 2)))
            self.pack(WB + 8 + 4 * c, A2 + 8 * c, 8)
            self.store(WB + 8 + 4 * c, u3 + (c & 1), WS, s(t2), (c >> 1) * 2048, 'st')
        if self.ND:
            self.wvm('U%d' % (U0 + self.ND - 1))
        for r in range(self.ND):
            self.unit_read(U0 + r, r, 236)
        for k in range(3):
            self.zrd(k)
        self.zpass(A1, False, 0, 0, KS, 28)
        self.wlg('ur')
        self.publish(s(t5))
        self.stamp('p4pub')

    NZ, NW, WRING = 6, 6, 57344

    def p5(self):
        A1, ACC, ZB, WB, WD, WR, ZA, OD, FL = 192, 16, 48, 80, 160, 164, 168, 170, 172
        NZ, NW, WRING, SWO, KS = self.NZ, self.NW, self.WRING, self.SWO, self.KS
        order = []
        for k in range(14):
            order += [14 + k, k]
        order += [28, 29, 30, 31]
        self.vm = []
        self.unit_addrs(WD, WR, s(t4), (WRING, NW * 4096))
        self.colsum_get(172, MISC + 1024, vCS1)

        def w_ops(r):
            return self.unit_ops(14 + r, r % NW, WD, s(t4))

        def z_ops(p):
            def first():
                self('s_add_u32 m0, %s, %d\ns_add_u32 %s, s82, %d\ns_and_b32 %s, %s, 0x3e000\ns_add_u32 %s, %s, %s'
                     % (s(t1), (p % NZ) * 8192, s(t0), order[p] * 8192, s(t0), s(t0), s(t0), s(t0), s(t2)))
                self.dma(vL16, WS, s(t0), 0, 'Z%d' % p, sc1=True)
            return [first, lambda: self.dma(vL16, WS, s(t0), 1024, 'Z%d' % p, sc1=True)]

        def o_ops(c):
            ops = []
            for hf in range(2):
                def first(hf=hf):
                    if c < 6:
                        self('s_add_u32 m0, %s, %d' % (s(t4), c * 4096 + hf * 2048))
                    else:
                        self('s_lshl_b32 %s, %s, 12\ns_add_u32 m0, %s, %d' % (s(t0), s(sW), s(t0), 16384 + hf * 2048))
                    self('s_mov_b32 %s, %d' % (s(t0), (32 * c + 16 * hf) * 896))
                    self.dma(OD, SWO, s(t0), 0, 'WT')
                ops += [first, lambda: self.dma(OD + 1, SWO, s(t0), 1024, 'WT')]
            return ops
        self.o_ops = o_ops
        self.q = sum((w_ops(r) for r in range(NW)), [])
        self.zpass(A1, False, 1, KS, 28)
        self.stamp('z1')
        for ct in range(2):
            self.mfma(A1 + 16 * ct, vCS1 + 4 * ct, vMF, A1 + 16 * ct)
        self('v_lshlrev_b32 %s, 16, %s' % (v(vBSP), v(vBSP)))
        self('v_bfe_u32 %s, v0, 4, 1\nv_and_b32 %s, 1, v0\nv_lshl_add_u32 %s, %s, 1, %s' % (v(u0), v(u1), v(u0), v(u0), v(u1)))
        self('v_lshlrev_b32 %s, 1, %s\nv_xor_b32 %s, %s, %s\nv_lshlrev_b32 %s, 6, %s\nv_lshl_add_u32 %s, %s, 9, %s'
             % (v(u1), v(vH), v(u1), v(u1), v(u0), v(u1), v(u1), v(u1), v(u0), v(u1)))
        self('v_bfe_u32 %s, v0, 2, 2\nv_lshl_add_u32 %s, %s, 4, %s\nv_bfe_u32 %s, v0, 1, 1\nv_lshl_add_u32 %s, %s, 3, %s'
             % (v(u0), v(u1), v(u0), v(u1), v(u0), v(ZA), v(u0), v(u1)))
        self('v_xor_b32 %s, 64, %s' % (v(ZA + 1), v(ZA)))
        self('s_lshl_b32 %s, %s, 7' % (s(t2), s(sCB)))
        self.image_ops(OD, SWO, 896, s(t2), 0, 28, 'WT')
        self('s_lshl_b32 %s, %s, 11\ns_lshl_b32 %s, %s, 18\ns_add_u32 %s, %s, %s\ns_add_u32 %s, %s, %d\ns_lshl_b32 s82, %s, 14'
             % (s(t1), s(sW), s(t2), s(sI), s(t2), s(t2), s(t1), s(t2), s(t2), ZF, s(sI)))
        self('s_lshl_b32 %s, %s, 10\ns_add_u32 %s, %s, %d' % (s(t5), s(sI), s(t5), s(t5), FLAG5))
        GS = self.o.get('gs', 24)
        nb = -(-len(self.q) // max(1, GS // 8 - 1))
        self.gelu(A1, GS - 8, 128, nb)
        self.bg(99)
        self.poll_first(s(t5), 16, FL, 6)
        self.gelu(A1 + GS - 8, 8, 128, 0)
        self.stamp('g1')
        self.poll(s(t5), 16, FL, 6)
        self.stamp('s5')
        self.q = sum((z_ops(p) for p in range(NZ - 1)), [])
        self.bg(99)
        self.gelu(A1 + GS, 32 - GS, 128, 0)

        def rdz(g, ct):
            p, k = divmod(g, 4)
            off = (p % NZ) * 8192 + (k >> 1) * 4096 + (k & 1) * 256
            d = ZB + 8 * (g % 4) + 4 * ct
            self.tr(d, ZA, off + ct * 2048, 'g%d' % g)
            self.tr(d + 2, ZA + 1, off + ct * 2048, 'g%d' % g)

        def rdw(g):
            p, k = divmod(g, 4)
            if order[p] >= 14:
                self.lgi('ds_read_b128 %s, %s offset:%d' % (v(WB + 4 * (g % 4), 4), v(WR + k), ((order[p] - 14) % NW) * 4096), 'g%d' % g)

        def mm(g, ct):
            p, k = divmod(g, 4)
            c = None if g == 0 else ACC + 16 * ct
            if order[p] >= 14:
                self.mfma(ACC + 16 * ct, ZB + 8 * (g % 4) + 4 * ct, WB + 4 * (g % 4), c)
            else:
                self.mfma(ACC + 16 * ct, ZB + 8 * (g % 4) + 4 * ct, 16 * order[p] + 4 * k, c, pb='a')
        self.wvm('Z0')
        self('s_barrier')
        self.stamp('p5z0')
        for g in range(2):
            rdz(g, 0)
            rdz(g, 1)
            rdw(g)
        for g in range(128):
            p, k = divmod(g, 4)
            if g in (32, 64, 96):
                self.stamp('p5_%d' % g)
            self.wlg('g%d' % g)
            mm(g, 0)
            if k == 2 and p + 1 < 32:
                self.wvm('Z%d' % (p + 1))
                self.wvm('U%d' % order[p + 1])
                self('s_barrier')
                if p + NZ - 1 < 32:
                    self.q += z_ops(p + NZ - 1)
                if p >= 1 and order[p - 1] >= 14:
                    r = order[p - 1] - 14
                    self.q += w_ops(r + NW) if r + NW < 18 else o_ops(r % NW)
            if g + 2 < 128:
                rdz(g + 2, 0)
                rdw(g + 2)
            mm(g, 1)
            if g + 2 < 128:
                rdz(g + 2, 1)
            self.bg(1)
        self.bg(99)
        self.stamp('p5')
        self('s_mul_i32 %s, %s, 57344\ns_lshl_b32 %s, %s, 12\ns_add_u32 %s, %s, %s\ns_add_u32 %s, %s, %d'
             % (s(t2), s(sT), s(t1), s(sI), s(t2), s(t2), s(t1), s(t2), s(t2), UF))
        self('s_add_u32 %s, %s, %d' % (s(t5), s(sFID), FLAG6))
        e = vBSP & ~1
        for k in range(0, 32, 2):
            self('v_pk_add_f32 %s, %s, %s op_sel_hi:[1,0]' % (v(ACC + k, 2), v(ACC + k, 2), v(e, 2)))
            self('v_pk_mul_f32 %s, %s, %s' % (v(ACC + k, 2), v(ACC + k, 2), v(A1 + k, 2)))
        self.pack(ZB, ACC, 32)

        def st_(sc):
            for k in range(4):
                self.store(ZB + 4 * k, vL16, WS, s(t2), k * 1024, 'st', sc1=sc)
        st_(True)
        self.p6_pre()
        self.publish(s(t5), True, drain='st')
        self.stamp('p5pub')

    def p6_pre(self):
        AR, AZ, PA = 208, 210, 212
        self.q = self.o_ops(4) + self.o_ops(5) + self.o_ops(6)
        self.bg(8)
        self.slot_addrs(AR, 49152, self.WRING)
        self.slot_addrs(AZ, 8192, 16384)
        self.pair_addrs(PA, 0)
        self.srd(SA, P_OUT, 2048 * 896)
        self('s_mul_i32 %s, %s, %d\ns_lshl_b32 %s, %s, 7\ns_add_u32 %s, %s, %s\ns_lshl_b32 %s, %s, 6\ns_add_u32 %s, %s, %s'
             % (s(t3), s(sT3), 32 * 896, s(t1), s(sCB), s(t3), s(t3), s(t1), s(t1), s(sKH), s(t3), s(t3), s(t1)))
        self('v_mul_u32_u24 %s, 896, %s\nv_lshl_add_u32 %s, %s, 4, %s' % (v(u4), v(vM), v(u4), v(vH), v(u4)))
        self('s_mul_i32 %s, %s, 57344\ns_mul_i32 %s, %s, 28672\ns_add_u32 %s, %s, %s\ns_add_u32 %s, %s, %d'
             % (s(t2), s(sT3), s(t1), s(sKH), s(t2), s(t2), s(t1), s(t2), s(t2), UF))
        self('s_lshl_b32 %s, %s, 7\ns_add_u32 %s, %s, %d' % (s(t6), s(sRB), s(t6), s(t6), FLAG6))
        OA = 216
        self('s_and_b32 %s, %s, 1\ns_lshl_b32 %s, %s, 12\ns_add_u32 %s, %s, 32768\ns_lshl_b32 %s, %s, 2' % (s(t0), s(sW), s(t0), s(t0), s(t0), s(t0), s(t1), s(sKH)))
        self('v_add_u32 %s, %s, %s\nv_and_b32 %s, 7, v0\nv_xor_b32 %s, %s, %s\nv_lshlrev_b32 %s, 4, %s' % (v(u0), s(t1), v(vH), v(u1), v(u0), v(u0), v(u1), v(u0), v(u0)))
        self('v_lshl_add_u32 %s, %s, 7, %s\nv_add_u32 %s, %s, %s\nv_xor_b32 %s, 32, %s' % (v(u0), v(vM), v(u0), v(OA), s(t0), v(u0), v(OA + 1), v(OA)))
        self('s_lshl_b32 %s, %s, 11\ns_add_u32 %s, %s, 32768\nv_add_u32 %s, %s, %s' % (s(t0), s(sW), s(t0), s(t0), v(OA + 2), s(t0), v(vL16)))
        self('v_lshrrev_b32 %s, 3, v0\nv_xor_b32 %s, %s, %s\nv_mul_u32_u24 %s, 896, %s\nv_lshl_add_u32 %s, %s, 4, %s\nv_add_u32 %s, 7168, %s'
             % (v(u0), v(u1), v(u1), v(u0), v(u0), v(u0), v(OA + 3), v(u1), v(u0), v(OA + 4), v(OA + 3)))
        self('s_and_b32 %s, %s, -2\ns_lshl_b32 %s, %s, 1\ns_add_u32 %s, %s, %s\ns_mul_i32 %s, %s, %d\ns_lshl_b32 %s, %s, 7\ns_add_u32 %s, %s, %s'
             % (s(t0), s(sT3), s(t0), s(t0), s(t0), s(t0), s(sW), s(t4), s(t0), 16 * 896, s(t1), s(sCB), s(t4), s(t4), s(t1)))

    def p6(self):
        FR, WB, ACC, AR, AZ, PA = 16, 128, 176, 208, 210, 212
        OA = 216
        self.bg(99)
        self.wvm()
        self.poll(s(t6), 14)
        self.stamp('s6')
        self.q = self.frag_ops(FR, 28, t2, 'f')
        self.bg(11)

        def rd(k, sl):
            hi, c = divmod(k >> 1, 7)
            if c < 6:
                adr, off = AR, hi * 24576 + c * 4096
            else:
                adr, off = AZ, hi * 4096
            self.trfrag(WB + 8 * (k % 4) + 4 * sl, adr + sl, off + (k & 1) * 2048, 'w%d' % k)
        for k in range(3):
            rd(k, 0)
            rd(k, 1)
        for k in range(28):
            self.wvm('f%d' % k)
            self.wlg('w%d' % k)
            for sl in range(2):
                self.mfma(ACC + 16 * sl, WB + 8 * (k % 4) + 4 * sl, FR + 4 * k, None if k == 0 else ACC + 16 * sl)
                if k + 3 < 28:
                    rd(k + 3, sl)
            self.bg(1)
        self.stamp('p6mm')
        self.pair_reduce(ACC, WB, PA, vHK, WB + 16)
        self.pack(WB, ACC, 16)
        if self.o.get('outl', 1):
            self.lgi('ds_write_b128 %s, %s' % (v(OA), v(WB, 4)), 'ow')
            self.lgi('ds_write_b128 %s, %s' % (v(OA + 1), v(WB + 4, 4)), 'ow')
            self.wlg()
            self('s_barrier')
            self.lgi('ds_read_b128 %s, %s' % (v(WB + 8, 4), v(OA + 2)), 'o0')
            self.lgi('ds_read_b128 %s, %s offset:1024' % (v(WB + 12, 4), v(OA + 2)), 'o1')
            self.wlg('o0')
            self.store(WB + 8, OA + 3, SA, s(t4), 0, 'st')
            self.wlg('o1')
            self.store(WB + 12, OA + 4, SA, s(t4), 0, 'st')
        else:
            self.store(WB, u4, SA, s(t3), 0, 'st')
            self.store(WB + 4, u4, SA, s(t3), 32, 'st')
        self.stamp('end', True)

    def build(self):
        stop = self.o.get('stop', 6)
        self.prologue()
        for k, ph in enumerate((self.p1, self.p2, self.p3, self.p4, self.p5, self.p6), 1):
            if k <= stop:
                ph()
        if self.o.get('padfrom') == 'tag':
            self('s_mov_b32 %s, %s' % (s(sPT), s(sNON)))
        if self.o.get('padfrom'):
            self('s_mov_b32 %s, 0\nL_hold:\ns_memrealtime s[78:79]\ns_add_u32 %s, %s, 1\ns_waitcnt lgkmcnt(0)' % (s(sCNT), s(sCNT), s(sCNT)))
            self('s_sub_u32 s78, s78, %s\ns_cmp_ge_u32 s78, 10000\ns_cbranch_scc1 L_fin\ns_cmp_lt_u32 %s, 100000\ns_cbranch_scc1 L_hold' % (s(sPT), s(sCNT)))
        self('L_fin:')
        self.stamp_flush()
        self('L_end:\ns_endpgm')
        if stop >= 2:
            self.att_slow()
        self.emit_stubs()
        self('L_code_end:')
        npad = self.a.pad()
        errs = []
        for take in ((), ('L_p1_V',), ('L_p1_N',), ('L_att_slow',)):
            errs += self.a.check_waits(take)
        for e in sorted(set(errs)):
            print('WAITCHECK', e, file=sys.stderr)
        ref = open('cdna_kernels/%s.s.ref' % NAME).read().split('\n')
        head = [l for l in ref if l.startswith(';') and '@launch' not in l and 'Override' not in l and 'grid=ceil' not in l
                and l == l.lstrip()]
        out = '\n'.join(head) + '\n'
        if self.names:
            out += '; stamps: ' + ' '.join(self.names) + '\n'
        out += '; @launch grid=(256,1,1) block=(256,1,1) lds=%d\n' % LDS_BYTES
        out += '.amdgcn_target "amdgcn-amd-amdhsa--gfx950"\n.text\n.globl %s_kernel\n.p2align 8\n' % NAME
        out += '.type %s_kernel,@function\n%s_kernel:\n' % (NAME, NAME)
        out += self.a.text()
        out += '.section .rodata,"a"\n.p2align 6\n.amdhsa_kernel %s_kernel\n' % NAME
        out += ('  .amdhsa_next_free_vgpr 512\n  .amdhsa_next_free_sgpr 102\n  .amdhsa_accum_offset 256\n'
                '  .amdhsa_group_segment_fixed_size 0\n  .amdhsa_kernarg_size 88\n  .amdhsa_user_sgpr_count 2\n'
                '  .amdhsa_user_sgpr_kernarg_segment_ptr 1\n  .amdhsa_system_sgpr_workgroup_id_x 1\n'
                '.end_amdhsa_kernel\n')
        if self.o.get('showpads'):
            for k, x in enumerate(self.a.L):
                if x.note == 'pad':
                    print(k, x.text, '| prev:', self.a.L[k - 1].text, '| next:', self.a.L[k + 1].text, file=sys.stderr)
        print('instructions %d, pads %d, waitcheck errors %d' % (len(self.a.L), npad, len(set(errs))), file=sys.stderr)
        return out


if __name__ == '__main__':
    opt = {}
    dst = sys.argv[1]
    for a in sys.argv[2:]:
        k, _, val = a.partition('=')
        opt[k] = int(val) if val.isdigit() else (val or 1)
    open(dst, 'w').write(G(opt).build())
    import subprocess
    subprocess.check_call(['clang', '-x', 'assembler', '-target', 'amdgcn-amd-amdhsa', '-mcpu=gfx950', '-c', dst, '-o', 'gen_check.o'])
```
